```python
import torch

def _softmax(x, axis=-1):
    return torch.softmax(x, dim=axis)
def _gelu(x):
    return torch.nn.functional.gelu(x, approximate="tanh")
def _silu(x):
    return torch.nn.functional.silu(x)
def _sigmoid(x):
    return torch.sigmoid(x)
def _layernorm(x, axis=-1, eps=1e-5):
    m = x.mean(dim=axis, keepdim=True)
    v = x.var(dim=axis, keepdim=True, unbiased=False)
    return (x - m) / torch.sqrt(v + eps)
def _scatter_add(tgt, idx, src, axis=0):
    return tgt.clone().index_add_(axis, idx, src)
def _segment_sum(src, seg, n):
    out = torch.zeros((n,) + src.shape[1:], dtype=src.dtype)
    return out.index_add_(0, seg, src)
def _pad(x, pw):
    flat = tuple(v for pair in reversed(pw) for v in pair)
    return torch.nn.functional.pad(x, flat)

kernel_name = 'parallel_sum__ssm_conv_s4d__moe_arch_mod__prompt'

def setup_inputs():

    _w = (lambda a: (lambda t: t.to(torch.bfloat16) if t.is_floating_point() else t)(torch.as_tensor(a)))
    def _A_setup():
        Bsz, L, D, N = 1, 2048, 1024, 128
        return {
            "u": _w((lambda *s: torch.randn(*s, dtype=torch.bfloat16) * 0.05)(Bsz, L, D)),
            "log_A_real": _w((lambda *s: torch.randn(*s, dtype=torch.bfloat16) * 3.2)(D, N) * 0.5),
            "A_imag": _w((lambda *s: torch.randn(*s, dtype=torch.bfloat16) * 0.2)(D, N) * 3.14),
            "C_real": _w((lambda *s: torch.randn(*s, dtype=torch.bfloat16) * 3.2)(D, N) / N ** 0.5),
            "C_imag": _w((lambda *s: torch.randn(*s, dtype=torch.bfloat16) * 3.2)(D, N) / N ** 0.5),
            "log_dt": _w((lambda *s: torch.randn(*s, dtype=torch.bfloat16) * 0.2)(D) * 0.5 - 4.0),
            "D_skip": _w((lambda *s: torch.randn(*s, dtype=torch.bfloat16) * 0.4)(D)),
        }
    _A_in = _A_setup()

    def _B_setup():
        B, S, D, F, C = 1, 2048, 1024, 3584, 8
        return {
            "x": _w((lambda *s: torch.randn(*s, dtype=torch.bfloat16) * 0.05)(B, S, D)),
            "w_r": _w((lambda *s: torch.randn(*s, dtype=torch.bfloat16) * 0.05)(D)),
            "w_gate": _w((lambda *s: torch.randn(*s, dtype=torch.bfloat16) * 0.05)(D, F)),
            "w_up": _w((lambda *s: torch.randn(*s, dtype=torch.bfloat16) * 0.05)(D, F)),
            "w_down": _w((lambda *s: torch.randn(*s, dtype=torch.bfloat16) * 0.05)(F, D)),
        }
    _B_in = _B_setup()

    return {
        "A_u": _A_in["u"],
        "A_log_A_real": _A_in["log_A_real"],
        "A_A_imag": _A_in["A_imag"],
        "A_C_real": _A_in["C_real"],
        "A_C_imag": _A_in["C_imag"],
        "A_log_dt": _A_in["log_dt"],
        "A_D_skip": _A_in["D_skip"],
        "B_x": _B_in["x"],
        "B_w_r": _B_in["w_r"],
        "B_w_gate": _B_in["w_gate"],
        "B_w_up": _B_in["w_up"],
        "B_w_down": _B_in["w_down"],
    }

def reference(A_u, A_log_A_real, A_A_imag, A_C_real, A_C_imag, A_log_dt, A_D_skip, B_x, B_w_r, B_w_gate, B_w_up, B_w_down):
    def _A_ref(u, log_A_real, A_imag, C_real, C_imag, log_dt, D_skip):
        L = u.shape[1]
        dt = torch.exp(log_dt)
        A = -torch.exp(log_A_real) + 1j * A_imag
        C = (C_real + 1j * C_imag) * dt[:, None]
        pos = (lambda x, dt: x.to(dt))(torch.arange(L), log_dt.dtype)
        P = torch.exp((A * dt[:, None])[:, :, None] * pos[None, None, :])
        K = 2.0 * torch.einsum("dn,dnl->dl", C, P).real
        L2 = 2 * L
        u_t = (lambda x, *d: x.permute(*d))(u, 0, 2, 1)
        Kf = (lambda x, *a, **k: torch.fft.rfft(x.float(), *a, **k))(K, L2)
        Uf = (lambda x, *a, **k: torch.fft.rfft(x.float(), *a, **k))(u_t, L2)
        y = (lambda x, *a, **k: torch.fft.irfft(x, *a, **k).to(torch.bfloat16))(Uf * Kf[None, :, :], L2)[:, :, :L]
        y = (lambda x, *d: x.permute(*d))(y, 0, 2, 1)
        return y + u * D_skip[None, None, :]

    def _B_ref(x, w_r, w_gate, w_up, w_down):
        B, S, D = x.shape
        C = 8
        r = x @ w_r
        idx = torch.argsort(-r, axis=-1)[:, :C]
        idx_e = (lambda x, n, axis: torch.repeat_interleave(x, n, dim=axis))(idx.reshape(B, C, 1), D, axis=2)
        x_sel = (lambda x, i, axis: torch.take_along_dim(x, i, dim=axis))(x, idx_e, axis=1)
        g = _silu(x_sel @ w_gate)
        u = x_sel @ w_up
        y = (g * u) @ w_down
        r_sel = _sigmoid((lambda x, i, axis: torch.take_along_dim(x, i, dim=axis))(r, idx, axis=1))
        y = y * r_sel.reshape(B, C, 1)
        b_off = (torch.arange(B) * S).reshape(B, 1)
        flat_idx = (idx + b_off).reshape(B * C)
        zero = (x * 0.0).reshape(B * S, D)
        upd = _scatter_add(zero, flat_idx, y.reshape(B * C, D), axis=0)
        return x + upd.reshape(B, S, D)

    x = A_u
    xn = _layernorm(x, axis=-1)
    return x + _A_ref(xn, A_log_A_real, A_A_imag, A_C_real, A_C_imag, A_log_dt, A_D_skip) + _B_ref(xn, B_w_r, B_w_gate, B_w_up, B_w_down)
```

```python
import re

TRANS = ("v_exp_f32","v_log_f32","v_rcp_f32","v_rsq_f32","v_sqrt_f32","v_sin_f32","v_cos_f32","v_rcp_iflag_f32")

def _regs(tok):
    tok = tok.strip()
    tok = tok.lstrip('-')
    m = re.match(r"abs\((.*)\)$", tok)
    if m: tok = m.group(1)
    if tok.startswith('|') and tok.endswith('|'): tok = tok[1:-1]
    m = re.match(r"([vsa])\[(\d+):(\d+)\]$", tok)
    if m: return {(m.group(1), i) for i in range(int(m.group(2)), int(m.group(3))+1)}
    m = re.match(r"([vsa])(\d+)$", tok)
    if m: return {(m.group(1), int(m.group(2)))}
    if tok == "vcc": return {('s','vcc_lo'),('s','vcc_hi')}
    if tok in ("vcc_lo","vcc_hi"): return {('s',tok)}
    if tok == "exec": return {('s','exec_lo'),('s','exec_hi')}
    if tok in ("exec_lo","exec_hi"): return {('s',tok)}
    if tok == "m0": return {('s','m0')}
    return set()

class Ins:
    def __init__(self, text):
        self.text = text
        t = text.split(';')[0].strip()
        self.label = None
        self.op = None
        self.w = set(); self.r = set()
        self.kind = None
        if not t: return
        if t.endswith(':'):
            self.label = t[:-1]; return
        if t.startswith('.'):
            self.kind = 'dir'; return
        parts = t.split(None, 1)
        op = parts[0]; self.op = op
        rest = parts[1] if len(parts) > 1 else ""
        ops = []; depth = 0; cur = ""
        for ch in rest:
            if ch in '[(': depth += 1
            if ch in '])': depth -= 1
            if ch == ',' and depth == 0: ops.append(cur.strip()); cur = ""
            else: cur += ch
        if cur.strip(): ops.append(cur.strip())
        mods = ""
        if ops:
            sp = ops[-1].split(None, 1)
            if len(sp) > 1:
                ops[-1] = sp[0]; mods = sp[1]
        self.ops = ops; self.mods = mods
        R = [_regs(o) for o in ops]
        self.dpp = ('_dpp' in op) or bool(re.search(r"\b(row_|quad_perm|wave_)", mods))
        self.srcA = self.srcB = self.srcC = set()
        if op.startswith("v_mfma"):
            self.kind = 'mfma'
            self.w = R[0]; self.srcA = R[1]; self.srcB = R[2]; self.srcC = R[3]
            self.r = R[1] | R[2] | R[3]
            self.passes = 8 if "32x32" in op else 4
        elif op.startswith("v_"):
            self.kind = 'valu'
            base = op.replace("_e32","").replace("_e64","").replace("_dpp","").replace("_sdwa","")
            self.base = base
            self.trans = base in TRANS
            if base.startswith("v_permlane"):
                self.w = R[0] | R[1]; self.r = R[0] | R[1]
            elif re.match(r"v_(add|sub|subrev)_co_u32|v_(addc|subb|subbrev)_co_u32|v_div_scale|v_mad_u64_u32", base):
                self.w = R[0] | R[1]
                for x in R[2:]: self.r |= x
            elif base.startswith("v_cmpx"):
                self.w = R[0] | _regs("exec")
                for x in R[1:]: self.r |= x
            elif base == "v_nop":
                pass
            else:
                self.w = R[0]
                for x in R[1:]: self.r |= x
                if base in ("v_fmac_f32","v_mac_f32","v_dot2c_f32_bf16","v_writelane_b32","v_pk_fmac_f16") or self.dpp or 'UNUSED_PRESERVE' in mods:
                    self.r |= R[0]
            self.lanesel = R[2] if base in ("v_readlane_b32","v_writelane_b32") else set()
        elif op.startswith("ds_"):
            self.kind = 'ds'
            if op.startswith("ds_read") or "_rtn" in op or "permute" in op or "swizzle" in op:
                self.w = R[0]
                for x in R[1:]: self.r |= x
            else:
                for x in R: self.r |= x
        elif op.startswith(("global_","buffer_","flat_")):
            self.kind = 'vmem'
            self.lds = bool(re.search(r"\blds\b", mods)) or "_lds_" in op
            self.wide_store = set()
            if op in ("buffer_inv","buffer_wbl2"):
                pass
            elif "_load" in op and not self.lds:
                self.w = R[0]
                for x in R[1:]: self.r |= x
            elif "atomic" in op and re.search(r"\bsc0\b", mods):
                self.w = R[0]
                for x in R: self.r |= x
            else:
                for x in R: self.r |= x
                if re.search(r"store_dwordx[34]", op):
                    self.wide_store = R[1] if op.startswith(("global_","flat_")) else R[0]
        elif op.startswith("s_"):
            self.kind = 'salu'
            if op in ("s_nop",):
                self.kind = 'nop'; self.n = int(ops[0], 0) + 1
            elif op.startswith(("s_cmp","s_cbranch","s_branch","s_waitcnt","s_barrier","s_endpgm","s_sleep","s_setprio","s_bitcmp")):
                for x in R: self.r |= x
            else:
                if R: self.w = R[0]
                for x in R[1:]: self.r |= x
                if "saveexec" in op: self.w = self.w | _regs("exec")
        self.target = ops[0] if op.startswith(("s_cbranch","s_branch")) else None

def _v(s): return {x for x in s if x[0] in 'va'}
def _s(s): return {x for x in s if x[0] == 's'}

def need(p, c):
    n = 0
    if p.kind == 'valu':
        pv = _v(p.w); ps = _s(p.w)
        if c.kind == 'valu':
            if c.dpp and (pv & c.r): n = max(n, 2)
            if c.base.startswith("v_permlane") and (pv & c.r): n = max(n, 2)
            if c.base in ("v_readlane_b32","v_readfirstlane_b32") and (pv & c.r): n = max(n, 1)
            if ps & c.lanesel: n = max(n, 4)
            if ps & _s(c.r): n = max(n, 2)
            if p.trans and not c.trans and (pv & c.r): n = max(n, 1)
            if ('s','exec_lo') in ps:
                if c.dpp: n = max(n, 5)
                if c.base in ("v_readlane_b32","v_readfirstlane_b32","v_writelane_b32") or c.base.startswith("v_permlane"): n = max(n, 4)
            if ('sdwa' in p.op and 'dst_sel:DWORD' not in p.mods) and (pv & (c.r | c.w)): n = max(n, 1)
            if c.base == "v_div_fmas_f32" and ('s','vcc_lo') in ps: n = max(n, 4)
        elif c.kind == 'mfma':
            if pv & c.r: n = max(n, 2)
            if ('s','exec_lo') in ps: n = max(n, 4)
        elif c.kind == 'vmem':
            if ps & _s(c.r): n = max(n, 5)
            if p.trans and (pv & c.r): n = max(n, 1)
        elif c.kind == 'ds':
            if p.trans and (pv & c.r): n = max(n, 1)
    elif p.kind == 'mfma':
        P = p.passes
        tab_ab = {4: 8, 8: 12}[P]; tab_c = {4: 6, 8: 10}[P]; war = {4: 3, 8: 7}[P]
        if c.kind == 'mfma':
            if p.w & (c.srcA | c.srcB): n = max(n, tab_ab)
            if p.w & c.srcC:
                if not (p.w == c.srcC and p.passes == c.passes): n = max(n, tab_c)
            elif p.w & c.w: n = max(n, tab_c)
        elif c.kind in ('valu','vmem','ds'):
            if p.w & (c.r | c.w): n = max(n, tab_ab)
            if c.kind == 'valu' and (p.srcC & c.w): n = max(n, war)
    elif p.kind == 'vmem':
        if p.wide_store and (p.wide_store & c.w): n = max(n, 2 if c.kind == 'valu' else 1)
    elif p.kind == 'salu':
        if ('s','m0') in p.w and ((c.kind == 'vmem' and c.lds) or (c.op or '').startswith(("s_movrel","s_sendmsg")) or 'addtid' in (c.op or '')): n = max(n, 1)
    return n

MAXW = 13
class Asm:
    def __init__(self):
        self.lines = []
        self._lbl = 0
    def __call__(self, s):
        for l in s.split('\n'):
            if l.strip(): self.lines.append(l.strip())
    def label(self, base="L"):
        self._lbl += 1
        return f"{base}_{self._lbl}"
    def finalize(self):
        ins = [Ins(l) for l in self.lines]
        pads = [0]*len(ins)
        at_label = {}
        def merge(a, b):
            d = {}
            for (i, age) in a + b:
                d[id(i)] = (i, min(age, d[id(i)][1])) if id(i) in d else (i, age)
            return list(d.values())
        for it in range(4):
            changed = False
            hist = []
            for k, c in enumerate(ins):
                if c.label is not None:
                    hist = merge(hist, at_label.get(c.label, []))
                    continue
                if c.kind is None or c.kind == 'dir': continue
                req = 0
                for (p, age) in hist:
                    req = max(req, need(p, c) - age)
                if req > pads[k]:
                    pads[k] = req; changed = True
                adv = pads[k] + (c.n if c.kind == 'nop' else 1)
                hist = [(p, age+adv) for (p, age) in hist if age+adv < MAXW]
                if c.kind in ('valu','mfma','vmem','salu'):
                    hist.append((c, 0))
                if c.target:
                    old = at_label.get(c.target, [])
                    new = merge(old, hist)
                    if sorted((id(i),a) for i,a in new) != sorted((id(i),a) for i,a in old):
                        at_label[c.target] = new; changed = True
                    if c.op == "s_branch": hist = []
                if c.op == "s_endpgm": hist = []
            if not changed: break
        out = []
        for k, c in enumerate(ins):
            p = pads[k]
            while p > 0:
                n = min(p, 16); out.append(f"    s_nop {n-1}"); p -= n
            out.append(c.text if (c.label is not None or c.kind == 'dir') else "    " + c.text)
        return "\n".join(out) + "\n"

import subprocess, tempfile, os
def _sizes(lines, kn):
    d = tempfile.mkdtemp()
    src = '.amdgcn_target "amdgcn-amd-amdhsa--gfx950"\n.text\n%s:\n' % kn + "\n".join(lines) + "\n"
    open(d+"/a.s","w").write(src)
    r = subprocess.run(["clang","-x","assembler","-target","amdgcn-amd-amdhsa","-mcpu=gfx950","-c",d+"/a.s","-o",d+"/a.o"],capture_output=True,text=True)
    if r.returncode: raise RuntimeError(r.stderr[:3000])
    o = subprocess.run(["llvm-objdump","-d","--mcpu=gfx950",d+"/a.o"],capture_output=True,text=True).stdout
    sz = []
    for l in o.splitlines():
        m = re.search(r"// ([0-9A-F]{12}): ((?:[0-9A-F]{8} ?)+)", l)
        if m: sz.append(4*len(m.group(2).split()))
    return sz

NOPROMO = ("v_readfirstlane","v_permlane","v_nop","v_accvgpr","v_fmac","v_cndmask","v_add_co","v_addc_co","v_swap")
def align_pass(body, kn, minrun=5):
    lines = body.rstrip("\n").split("\n")
    isins = [not (l.strip().endswith(":") or l.strip().startswith(".") or not l.strip()) for l in lines]
    idx = [i for i,b in enumerate(isins) if b]
    sz = _sizes(lines, kn)
    assert len(sz) == len(idx), (len(sz), len(idx))
    pre = {}
    off = 0
    for k, i in enumerate(idx):
        if sz[k] >= 8 and off % 8 == 4:
            fixed = False
            j = k-1
            while j >= 0 and sz[j] == 4:
                t = lines[idx[j]].strip(); op = t.split()[0]
                if op.startswith("v_") and not op.startswith(NOPROMO) and not op.endswith(("_e32","_e64")):
                    lines[idx[j]] = "    " + op + "_e64" + t[len(op):]; sz[j] = 8; fixed = True; break
                m = re.match(r"s_nop (\d+)$", t)
                if m and int(m.group(1)) >= 1:
                    lines[idx[j]] = f"    s_nop 0\n    s_nop {int(m.group(1))-1}"; sz[j] = 8; fixed = True; break
                j -= 1
            if not fixed:
                run = 0; j = k
                while j < len(idx) and sz[j] != 4: run += 1; j += 1
                if run >= minrun:
                    pre[i] = "    s_nop 0"; fixed = True
            if fixed: off += 4
        off += sz[k]
    out = []
    for i, l in enumerate(lines):
        if i in pre: out.append(pre[i])
        out.append(l)
    return "\n".join(out) + "\n"
```

```python
import sys, struct
from asmlib import Asm, align_pass

KN = "parallel_sum__ssm_conv_s4d__moe_arch_mod__prompt_kernel"
def f2u(x): return struct.unpack("<I", struct.pack("<f", x))[0]
LOG2E = f2u(1.4426950408889634); INV2PI = f2u(0.15915494309189535)

LIST = 192; IDX = 256; RSV = 288; LST2 = 320; GM = 384; CNTR = 512; CNT2 = 516; C_RW = 544; C_ST = 528; STG = 576; HB = 4096; UPD = 1024; SELF = 1152; KEYS = 4096; LMC = 8192
TROW = 528
MSB = 9216
XR0 = 9216 + 8192; XSTR = 4608
K0 = XR0 + 4*XSTR
KSTR = 2368; K3O = 4*KSTR; KREG = 14336
VT0 = K0 + 4*KREG; VSTR = 32*TROW
YB = VT0; PRE = VT0 + 32768
LDS_END = VT0 + 4*VSTR
C_XR, C_Y1, C_Y2, C_Y3, C_KEYS, C_PRE, C_UPD, C_SEL, C_XS, C_Y0, C_KD, C_H = [16*i for i in range(12)]
WS_ALIVE = 0x800
WS_STAT = 0x8000
WS_H1 = 0x10000
WS_PART = 0x100000
WS_XT = 0x300000
WS_FL2 = 0x4000
WS_STAMP = 0x800000
WS_SIZE = 0x1000000

sX, sLAR, sAI, sCR, sCI, sLDT, sDSK = 16, 18, 20, 22, 24, 26, 28
sWR, sWGT, sWU, sWD = 32, 34, 36, 38
sOUT, sWS = 40, 42
rWS, rX, rOUT = 44, 48, 52
sTAG = 56; sW = 3; sDG = 57; sJ = 59
sO = 60
sSH = 12
sROLE = 69
sST = 70
rG, rU, rD = 16, 20, 24

def P(r): return f"v[{r}:{r+1}]"
def Q(r): return f"v[{r}:{r+3}]"
def SP(r): return f"s[{r}:{r+1}]"
def SQ(r): return f"s[{r}:{r+3}]"
MFMA = "v_mfma_f32_16x16x32_bf16"

def interleave(main, fill, per=1, start=0):
    out = []; fill = list(fill)
    for k, m in enumerate(main):
        out.append(m)
        if k >= start:
            for _ in range(per):
                if fill: out.append(fill.pop(0))
    return out + fill

class G:
    def __init__(self, stamps=False, opt=None):
        self.a = Asm(); self.stamps = stamps; self.opt = opt or {}
        self.NX0 = self.opt.get("nx0", 2); self.NX1 = self.opt.get("nx1", 1); self.NX2 = self.opt.get("nx2", 1)
        self.NB0 = self.opt.get('nb0', 2)
        self.NXA = self.NX0 + self.NX1 + self.NX2
    def stamp(self, i):
        if self.stamps or self.opt.get("amp") == i or self.opt.get("gamp") == i:
            self.a(f"s_memrealtime {SP(sST+2*i)}\ns_waitcnt lgkmcnt(0)")
    def kst(self, i):
        if self.opt.get("kst"): self.a(f"s_memrealtime {SP(sST+2*i)}")
    def unp(self, lo, hi, src):
        return [f"v_lshlrev_b32 v{lo}, 16, v{src}", f"v_and_b32 v{hi}, 0xffff0000, v{src}"]
    def unpack(self, lo, hi, src):
        for l in self.unp(lo, hi, src): self.a(l)
    def bf16r(self, dst, src):
        self.a(f"v_cvt_pk_bf16_f32 v{dst}, v{src}, v{src}\nv_and_b32 v{dst}, 0xffff0000, v{dst}")
    def cmul2(self, d, x, y, t):
        a = self.a
        for q in (0,2): a(f"v_pk_mul_f32 {P(t+q)}, {P(x+q)}, {P(y+q)} op_sel_hi:[1,0]")
        for q in (0,2): a(f"v_pk_fma_f32 {P(d+q)}, {P(x+q)}, {P(y+q)}, {P(t+q)} op_sel:[1,1,0] op_sel_hi:[0,1,1] neg_lo:[1,0,0]")
    def arr(self, off, vw4, vone):
        return ["s_mov_b64 exec, 1", f"ds_write_b32 v{vw4}, v{vone} offset:{off}", "s_mov_b64 exec, -1"]
    def arrive(self, off, vw4, vone):
        for l in self.arr(off, vw4, vone): self.a(l)
    def wait_flag(self, off, vl4, vt, sleep=0):
        L = self.a.label("LW")
        sl = f"s_sleep {sleep}\n" if sleep else ""
        self.a(f"{L}:\n{sl}ds_read_b32 v{vt}, v{vl4} offset:{off}\ns_waitcnt lgkmcnt(0)\nv_cmp_eq_u32 vcc, 0, v{vt}\ns_cbranch_vccnz {L}")
    def srd(self, r, p, size):
        self.a(f"s_mov_b32 s{r}, s{p}\ns_and_b32 s{r+1}, s{p+1}, 0xffff\ns_mov_b32 s{r+2}, {size:#x}\ns_mov_b32 s{r+3}, 0x20000")
    def mktag(self):
        self.a(f"s_mul_i32 s{sTAG}, s{sTAG}, 0x9E3779B1\ns_add_u32 s{sTAG}, s{sTAG}, 0x7F4A7C15\ns_or_b32 s{sTAG}, s{sTAG}, 1")

    def prologue(self):
        a = self.a
        if "gamp" in self.opt: a(f"s_mov_b32 s{sST+2*self.opt['gamp']}, 0")
        if self.stamps or "amp" in self.opt or "gamp" in self.opt: a(f"s_memrealtime {SP(sST)}")
        a(f"""
        s_cmp_ge_u32 s2, 256
        s_cbranch_scc1 L_END
        s_load_dwordx16 s[16:31], s[0:1], 0
        s_load_dwordx8 s[32:39], s[0:1], 64
        s_load_dwordx2 {SP(sOUT)}, s[0:1], 96
        s_load_dwordx2 {SP(sWS)}, s[0:1], 112
        s_getpc_b64 s[14:15]
        v_lshrrev_b32 v1, 6, v0
        v_and_b32 v10, 255, v0
        v_and_b32 v0, 63, v0
        v_readfirstlane_b32 s{sW}, v1
        v_lshlrev_b32 v1, 2, v0
        v_mov_b32 v2, 0
        ds_write2st64_b32 v1, v2, v2 offset0:0 offset1:2
        s_and_b32 s5, s2, 7
        s_lshr_b32 s6, s2, 3
        s_lshl_b32 s{sDG}, s5, 5
        s_add_u32 s{sDG}, s{sDG}, s6
        s_and_b32 s58, s{sW}, 3
        s_lshl_b32 s7, s{sDG}, 2
        s_add_u32 s7, s7, s58
        s_lshl_b32 s7, s7, 8
        v_add_u32 v15, s7, v1
        s_mov_b32 s{sO}, 0
        s_lshl_b32 s4, s{sDG}, 3
        s_cmp_lt_u32 s{sW}, 4
        s_cbranch_scc1 L_F0
        """)
        a(f"""
        v_lshlrev_b32 v2, 7, v10
        v_min_u32 v2, L_END-{KN}-128, v2
        global_load_dword v16, v2, s[14:15]
        v_lshlrev_b32 v3, 12, v10
        v_add_u32 v3, s4, v3
        s_lshr_b32 s8, s6, 2
        s_add_u32 s9, s5, 3
        s_and_b32 s9, s9, 7
        s_min_u32 s9, s9, 6
        s_cmp_lt_u32 s6, 28
        s_cselect_b32 s8, s8, s9
        s_mul_i32 s9, s5, 7
        s_add_u32 s8, s8, s9
        s_lshl_b32 s8, s8, 7
        s_and_b32 s9, s6, 3
        s_lshl_b32 s9, s9, 8
        v_add_u32 v17, s9, v10
        s_movk_i32 s9, 7168
        v_mul_u32_u24 v17, s9, v17
        v_add_u32 v17, s8, v17
        s_waitcnt lgkmcnt(0)
        s_add_u32 s6, s{sLDT}, s4
        s_addc_u32 s7, s{sLDT+1}, 0
        s_load_dwordx2 s[64:65], s[6:7], 0
        global_load_dword v224, v15, {SP(sLAR)}
        global_load_dword v225, v15, {SP(sAI)}
        global_load_dword v226, v15, {SP(sCR)}
        global_load_dword v227, v15, {SP(sCI)}
        s_add_u32 s6, s{sDSK}, s4
        s_addc_u32 s7, s{sDSK+1}, 0
        s_load_dwordx2 s[66:67], s[6:7], 0
        s_barrier
        s_mov_b32 s{sO+1}, 0x100000
        s_mov_b32 s{sO+2}, 0x200000
        s_mov_b32 s{sO+3}, 0x300000
        """)
        self.srd(rWS, sWS, WS_SIZE); self.srd(rX, sX, 0x400000); self.srd(rOUT, sOUT, 0x400000)

    def dt_calc(self, DT):
        self.a(f"""
        s_lshl_b32 s4, s58, 4
        s_lshr_b64 s[6:7], s[64:65], s4
        s_lshl_b32 s6, s6, 16
        v_mov_b32 v{DT}, s6
        v_mul_f32 v{DT}, {LOG2E:#x}, v{DT}
        v_exp_f32 v{DT}, v{DT}
        """)
        self.bf16r(DT, DT)
    def zcalc(self, plar, pai, DT, ER, FI, t):
        a = self.a
        self.unpack(t, t+1, plar)
        self.unpack(t+2, t+3, pai)
        a(f"v_mul_f32 v{t}, {LOG2E:#x}, v{t}\nv_mul_f32 v{t+1}, {LOG2E:#x}, v{t+1}\nv_exp_f32 v{t}, v{t}\nv_exp_f32 v{t+1}, v{t+1}")
        a(f"v_mul_f32 v{t+2}, v{t+2}, v{DT}\nv_mul_f32 v{t+3}, v{t+3}, v{DT}")
        a(f"v_mul_f32 v{FI}, {INV2PI:#x}, v{t+2}\nv_mul_f32 v{FI+1}, {INV2PI:#x}, v{t+3}")
        a(f"v_cvt_pk_bf16_f32 v{t+2}, v{t}, v{t+1}")
        self.unpack(t, t+1, t+2)
        a(f"v_mul_f32 v{t}, v{t}, v{DT}\nv_mul_f32 v{t+1}, v{t+1}, v{DT}")
        a(f"v_mul_f32 v{ER}, {LOG2E|0x80000000:#x}, v{t}\nv_mul_f32 v{ER+1}, {LOG2E|0x80000000:#x}, v{t+1}")
    def cexp(self, E, p, ER, FI, t):
        a = self.a
        if p != 1.0:
            for q in (0,1): a(f"v_mul_f32 v{t+q}, {f2u(p):#x}, v{ER+q}\nv_mul_f32 v{t+2+q}, {f2u(p):#x}, v{FI+q}")
            e, f = t, t+2
        else: e, f = ER, FI
        for q in (0,1): a(f"v_exp_f32 v{t+q}, v{e+q}\nv_fract_f32 v{t+2+q}, v{f+q}")
        for q in (0,1): a(f"v_cos_f32 v{E+2*q}, v{t+2+q}\nv_sin_f32 v{E+2*q+1}, v{t+2+q}")
        for q in (0,1): a(f"v_mul_f32 v{E+2*q}, v{E+2*q}, v{t+q}\nv_mul_f32 v{E+2*q+1}, v{E+2*q+1}, v{t+q}")

    PRM=224; VDT=228; VaW=229; VER=230; VFI=232; VCUR=236; VE8=240; VTMP=244; VPK=248
    def vprep(self):
        a = self.a
        a(f"s_mul_i32 s4, s58, {VSTR}\ns_add_u32 s4, s4, {VT0}\nv_lshl_add_u32 v{self.VaW}, v0, 3, s4")
        a(f"v_add_f32 v{self.VDT}, v{self.VDT}, v{self.VDT}")
        self.unpack(self.VCUR, self.VCUR+2, self.PRM+2)
        self.unpack(self.VCUR+1, self.VCUR+3, self.PRM+3)
        for i in range(4): a(f"v_mul_f32 v{self.VCUR+i}, v{self.VCUR+i}, v{self.VDT}")
        self.cexp(self.VE8, 8.0, self.VER, self.VFI, self.VTMP)
    def vloop(self, n=8):
        a = self.a; L = a.label("LV"); CUR = self.VCUR
        a(f"s_mov_b32 s4, 0\n{L}:")
        for j in range(4):
            r = self.VPK + 2*j
            a(f"v_cvt_pk_bf16_f32 v{r}, v{CUR}, -v{CUR+1}\nv_cvt_pk_bf16_f32 v{r+1}, v{CUR+2}, -v{CUR+3}")
            a(f"ds_write_b64 v{self.VaW}, {P(r)} offset:{j*TROW}")
            self.cmul2(CUR, CUR, self.VE8, self.VTMP)
        a(f"v_add_u32 v{self.VaW}, {4*TROW}, v{self.VaW}\ns_add_u32 s4, s4, 1\ns_cmp_lt_u32 s4, {n}\ns_cbranch_scc1 {L}")

    def kgen(self):
        a = self.a
        E1=20; E256=24; EV = lambda i: 28 + 4*(i-1)
        ODD=220; TMP=244; BASE=236; TM2=240; PK=248; DT=228; ER=230; FI=232
        VF=48; XF=112; YF=144; DX=[204,208]; DY=[212,216]; RAW=180
        aW=11; aX=12; aY=13; aV=14
        vXO=3; vW4=4; vONE=5; vL4=6
        zF=196; zT=197; zK=198; aE=199; aE2=200; aE3=201; aKB=202
        TH = 8
        xl = [(f"s_waitcnt vmcnt({TH-1})\n" if i >= TH else "") + f"buffer_load_dwordx2 {P(RAW+2*i)}, v{vXO}, {SQ(rX)}, s{sO+i//2} offen offset:{2048*(i%2)}" for i in range(8)]
        self.xl_all = list(xl)
        XL0 = self.opt.get("xl0", 100); XLS = self.opt.get("xls", 3)
        def xload():
            if xl: a(xl.pop(0))
        NX0 = self.NX0
        a(f"""
        s_mul_i32 s8, s58, {KREG}
        s_add_u32 s8, s8, {K0}
        s_mul_i32 s10, s58, {XSTR}
        s_add_u32 s10, s10, {XR0}
        s_mul_i32 s11, s58, {VSTR}
        s_add_u32 s11, s11, {VT0}
        s_movk_i32 s9, {TROW}
        v_lshl_add_u32 v{aW}, v0, 3, s8
        v_and_b32 v1, 15, v0
        v_lshrrev_b32 v2, 4, v0
        v_lshlrev_b32 v7, 4, v2
        v_mad_u32_u24 v{aV}, v1, s9, v7
        v_add_u32 v{aV}, s11, v{aV}
        v_add_u32 v7, s8, v7
        v_lshrrev_b32 v8, 2, v1
        v_lshlrev_b32 v9, 3, v8
        s_mov_b32 s4, 0x01030000
        v_lshrrev_b32 v{aX}, v9, s4
        v_and_b32 v{aX}, 0xff, v{aX}
        v_add_u32 v{aX}, v{aX}, v1
        v_mad_u32_u24 v{aX}, v{aX}, s9, v7
        s_mov_b32 s4, 0x14110804
        v_lshrrev_b32 v{aY}, v9, s4
        v_and_b32 v{aY}, 0xff, v{aY}
        v_and_b32 v9, 3, v1
        v_add_u32 v{aY}, v{aY}, v9
        v_add_u32 v8, 23, v8
        v_cmp_eq_u32 vcc, 3, v9
        v_cndmask_b32 v{aY}, v{aY}, v8, vcc
        v_mad_u32_u24 v{aY}, v{aY}, s9, v7
        s_lshl_b32 s4, s58, 2
        v_mov_b32 v{vW4}, s4
        v_mov_b32 v{vONE}, 1
        v_lshlrev_b32 v{vL4}, 2, v9
        s_movk_i32 s9, {KSTR}
        v_lshrrev_b32 v7, 2, v0
        v_lshl_add_u32 v8, v9, 3, s8
        v_mad_u32_u24 v{zF}, v7, s9, v8
        s_movk_i32 s4, 160
        v_mad_u32_u24 v{zK}, v7, s4, v8
        v_lshrrev_b32 v7, 3, v0
        v_and_b32 v8, 7, v0
        v_lshl_add_u32 v8, v8, 3, s8
        v_mad_u32_u24 v{zT}, v7, s9, v8
        v_lshrrev_b32 v7, 5, v0
        v_lshlrev_b32 v7, 8, v7
        v_lshl_add_u32 v7, v1, 4, v7
        v_add_u32 v7, s8, v7
        v_and_b32 v8, 1, v2
        v_lshl_add_u32 v{aE}, v8, 3, v7
        v_lshl_add_u32 v{aE2}, v8, 9, v7
        v_and_b32 v7, 1, v1
        s_movk_i32 s4, 640
        v_mul_u32_u24 v7, s4, v7
        v_lshl_add_u32 v7, v2, 5, v7
        v_and_b32 v8, 14, v1
        v_add3_u32 v{aE3}, v7, v8, s8
        v_mov_b32 v{aKB}, s8
        v_mov_b32 v8, 0
        v_mov_b32 v9, 0
        s_waitcnt lgkmcnt(0)
        """)
        self.dt_calc(DT)
        a("s_waitcnt vmcnt(0)")
        self.stamp(1)
        self.zcalc(224, 225, DT, ER, FI, TMP)
        CT = 0
        tg = f"global_load_dword v18, v17, {SP(sWGT)}"; tu = f"global_load_dword v19, v17, {SP(sWU)}"
        if CT == 1:
            a(tg); self.vprep(); self.vloop(self.opt.get("ctn", 4)); a(tu); self.vloop(8-self.opt.get("ctn", 4))
        elif CT == 2:
            a(tg); a(tu); self.vprep(); self.vloop()
        elif CT == 3:
            self.vprep(); self.vloop(2); a(tg); self.vloop(4); a(tu); self.vloop(2)
        else:
            self.vprep(); self.vloop()
        for ct in range(2):
            for s in range(8): a(f"ds_read_b128 {Q(VF+32*ct+4*s)}, v{aV} offset:{16*TROW*ct+64*s}")
        self.kst(10)
        self.cexp(E1, 1.0, ER, FI, TMP)
        self.cexp(E256, 256.0, ER, FI, TMP)
        self._pk = 0
        def put(row, src):
            r = PK + 2*(self._pk % 4); self._pk += 1
            a(f"v_cvt_pk_bf16_f32 v{r}, v{src}, v{src+1}\nv_cvt_pk_bf16_f32 v{r+1}, v{src+2}, v{src+3}")
            a(f"ds_write_b64 v{aW}, {P(r)} offset:{row*TROW}")
            if self._pk >= XL0 and (self._pk - XL0) % XLS == 0: xload()
        a(f"v_mov_b32 v{PK}, 0x3f80\nv_mov_b32 v{PK+1}, 0x3f80\nds_write_b64 v{aW}, {P(PK)}")
        self._pk += 1
        put(1, E1)
        self.cmul2(EV(1), E1, E1, TMP)
        for i in range(1, 6):
            put(2*i, EV(i))
            if i < 5:
                self.cmul2(ODD, EV(i), E1, TMP)
                self.cmul2(EV(i+1), EV(i), EV(1), TM2)
                put(2*i+1, ODD)
        put(11, E256)
        for i in range(1, 6):
            self.cmul2(ODD, EV(i), E256, TMP)
            put(11+i, ODD)
        for s in range(8): a(f"ds_read_b128 {Q(XF+4*s)}, v{aX} offset:{64*s}")
        self.cmul2(BASE, E256, E256, TMP)
        for h in range(2):
            put(17+3*h, BASE)
            self.cmul2(ODD, EV(2), BASE, TMP)
            put(18+3*h, ODD)
            self.cmul2(ODD, EV(4), BASE, TMP)
            put(19+3*h, ODD)
            if h == 0: self.cmul2(BASE, BASE, E256, TMP)
        for h in range(4):
            self.cmul2(ODD, ODD, E256, TMP)
            put(23+h, ODD)
        for s in range(8): a(f"ds_read_b128 {Q(YF+4*s)}, v{aY} offset:{64*s}")
        self.kst(13)
        a(f"""
        s_mov_b64 exec, 0xffff
        ds_write_b64 v{zF}, v[8:9]
        s_mov_b32 exec_lo, -1
        ds_write_b64 v{zT}, v[8:9] offset:2080
        ds_write_b64 v{zK}, v[8:9] offset:{K3O}
        s_mov_b64 exec, -1
        """)
        for ct in range(2):
            for s in range(8):
                if ct == 0 and s % 2 == 0: a(f"s_waitcnt lgkmcnt({3+8-(s+2)})")
                a(f"{MFMA} {Q(DX[ct])}, {Q(XF+4*s)}, {Q(VF+32*ct+4*s)}, {'0' if s == 0 else Q(DX[ct])}")
                a(f"{MFMA} {Q(DY[ct])}, {Q(YF+4*s)}, {Q(VF+32*ct+4*s)}, {'0' if s == 0 else Q(DY[ct])}")
        self.kst(12)
        self.fpoll = f"buffer_load_dword v203, v11, {SQ(rWS)}, s12 offen offset:12 sc1"
        a(f"v_lshl_add_u32 v11, v2, 6, v1\nv_lshlrev_b32 v11, 7, v11\ns_lshl_b32 s12, s58, 11\ns_add_u32 s12, s12, {WS_STAT}")
        if self.opt.get("pe", 0): a(self.fpoll)
        for r in range(4): a(f"v_permlane32_swap_b32 v{DX[0]+r}, v{DX[1]+r}")
        a(f"v_cvt_pk_bf16_f32 v{PK}, v{DY[0]+3}, v{DY[1]+3}")
        for r in range(3): a(f"v_permlane32_swap_b32 v{DY[0]+r}, v{DY[1]+r}")
        for sg in range(4):
            a(f"ds_write_b16 v{aE3}, v{PK} offset:{K3O+32+158*sg}")
            a(f"ds_write_b16_d16_hi v{aE3}, v{PK} offset:{K3O+16+32+158*sg}")
        def expand(X, seq, nl, addr, lag0):
            for sg in range(4):
                nd = nl//2
                base = X + sg*nd
                for d in range(nd):
                    a(f"v_cvt_pk_bf16_f32 v{base+d}, v{seq[sg+2*d]}, v{seq[sg+2*d+1]}")
                off = sg*KSTR + 2*(16+lag0)
                if nd == 2: a(f"ds_write_b64 v{addr}, {P(base)} offset:{off}")
                else: a(f"ds_write_b128 v{addr}, {Q(base)} offset:{off}")
        X0, X1, Y0, Y1 = DX[0], DX[1], DY[0], DY[1]
        expand(48, [X0,X0+1,X0+2,X0+3,Y0,Y0+1,Y0+2], 4, aE, 0)
        expand(56, [X1,X1,X1+1,X1+2,X1+2,X1+2,X1+3], 4, aE, 256)
        expand(64, [Y1]*3+[Y1+1]*3+[Y1+2]*5, 8, aE2, 512)
        a(f"""
        v_cvt_pk_bf16_f32 v80, v8, v{X0}
        v_mov_b32 v81, v50
        v_mov_b32 v82, v79
        v_cvt_pk_bf16_f32 v83, v{Y1+2}, v8
        s_mov_b64 exec, 1
        ds_write_b32 v{aKB}, v80 offset:{1*KSTR+28}
        ds_write_b32 v{aKB}, v48 offset:{2*KSTR+28}
        ds_write_b64 v{aKB}, v[80:81] offset:{3*KSTR+24}
        s_brev_b64 exec, 1
        ds_write_b64 v{aKB}, v[78:79] offset:{2080}
        ds_write_b32 v{aKB}, v83 offset:{2088}
        ds_write_b64 v{aKB}, v[78:79] offset:{KSTR+2080}
        ds_write_b64 v{aKB}, v[82:83] offset:{2*KSTR+2080}
        ds_write_b32 v{aKB}, v79 offset:{3*KSTR+2080}
        s_mov_b64 exec, -1
        """)
        self.stamp(2)

    def cmain(self):
        a = self.a
        XU = 16; AR = 48; RB = 180; ACC = 204; ZF = 236; D1 = 252
        G0 = ZF; T = 204; RAW = 180; M = 180; RS = 188; PKD = 196
        vXO=3; vW4=4; vONE=5; vL4=6; vB=7; vYW=8; vYR=9; vT8=10
        vST=11; vKW=12; vLM=13; vXW=14
        vA = 1; vK3 = 2
        BXB = ZF+8; BXA = ZF+12
        self.arrive(C_KD, vW4, vONE)
        a(f"""
        s_setprio 1
        v_lshlrev_b32 v{vKW}, 4, v10
        v_lshl_add_u32 v15, v0, 3, s10
        """)
        if not self.opt.get("pe", 0): a(self.fpoll)
        self.wait_flag(C_XS, vL4, G0+1)
        a(f"v_readfirstlane_b32 s{sTAG}, v{G0+1}\nds_write_b64 v15, v[8:9] offset:4096")
        vm = []
        a(f"""
        v_lshlrev_b32 v{vB}, 4, v2
        v_lshlrev_b32 v15, 5, v1
        v_sub_u32 v{vB}, v{vB}, v15
        s_add_u32 s4, s10, 480
        v_add_u32 v{vB}, s4, v{vB}
        s_lshl_b32 s4, s58, 13
        s_add_u32 s4, s4, {YB}
        v_lshlrev_b32 v15, 6, v1
        v_lshl_add_u32 v15, v2, 4, v15
        v_add_u32 v{vYW}, s4, v15
        v_sub_u32 v{T}, 20, v1
        v_lshlrev_b32 v{T+1}, 3, v2
        v_mov_b32 v{T+2}, 0x7f
        v_lshlrev_b32 v{T+2}, v{T}, v{T+2}
        v_subrev_u32 v{T}, 1, v{T}
        v_mov_b32 v{T+3}, 0x1ff
        v_lshlrev_b32 v{T+3}, v{T}, v{T+3}
        v_lshrrev_b32 v{T+2}, v{T+1}, v{T+2}
        v_lshrrev_b32 v{T+3}, v{T+1}, v{T+3}
        v_add_u32 v15, 1, v1
        v_and_b32 v{T}, 3, v15
        v_and_b32 v15, 28, v15
        v_lshl_add_u32 v{T+4}, v2, 3, v15
        v_lshl_add_u32 v{T+4}, v{T+4}, 1, s8
        v_mad_u32_u24 v{vA}, v{T}, s9, v{T+4}
        v_lshlrev_b32 v{T+4}, 2, v2
        v_sub_u32 v15, v15, v{T+4}
        v_lshl_add_u32 v15, v15, 1, s8
        s_movk_i32 s4, 160
        v_mad_u32_u24 v{vK3}, v{T}, s4, v15
        """)
        ldA = lambda d: [f"ds_read_b64 {P(AR+4*d)}, v{vA} offset:{64*d}", f"ds_read_b64 {P(AR+4*d+2)}, v{vA} offset:{64*d+8}"]
        al = sum([ldA(d) for d in range(33)], [])
        oth = []
        for (dst, src) in ((BXB, T+2), (BXA, T+3)):
            for d in range(4):
                oth += [f"v_bfe_i32 v{T+5}, v{src}, {2*d}, 1", f"v_bfe_i32 v{T+6}, v{src}, {2*d+1}, 1",
                        f"v_and_b32 v{T+5}, 0x3f80, v{T+5}", f"v_bfi_b32 v{dst+d}, s15, v{T+6}, v{T+5}"]
        oth += f"""s_lshl_b32 s4, s66, 16
        s_and_b32 s5, s66, 0xffff0000
        s_lshl_b32 s6, s67, 16
        s_and_b32 s7, s67, 0xffff0000
        v_add_f32 v{D1}, s4, 1.0
        v_add_f32 v{D1+1}, s5, 1.0
        v_add_f32 v{D1+2}, s6, 1.0
        v_add_f32 v{D1+3}, s7, 1.0
        v_lshlrev_b32 v{vXW}, 2, v10
        v_sub_u32 v{vXW}, {XR0+1020}, v{vXW}
        v_lshlrev_b32 v{vT8}, 3, v10
        v_add_u32 v{vYR}, {YB}, v{vT8}
        s_mov_b32 s11, 0
        s_brev_b32 s68, 1""".split("\n")
        a("s_mov_b32 s15, 0x3f800000")
        L = interleave(al, oth)
        cut = self.opt.get("cut", 40)
        for l in L[:cut]: a(l)
        a(f"""
        s_lshl_b32 s13, s{sDG}, 14
        s_add_u32 s13, s13, {WS_XT}
        s_mov_b32 s14, 0
        s_branch L_F2W
        L_F2P:
        s_sleep 2
        {self.fpoll}
        L_F2W:
        s_add_u32 s14, s14, 1
        s_waitcnt vmcnt(0)
        v_cmp_ne_u32 vcc, s{sTAG}, v203
        s_cbranch_vccz L_F2OK
        s_cmp_lt_u32 s14, 0x4000
        s_cbranch_scc1 L_F2P
        L_F2OK:
        """)
        self.stamp(3)
        for k in range(4): a(f"buffer_load_dwordx4 {Q(RAW+4*k)}, v{vKW}, {SQ(rWS)}, s13 offen sc1\ns_add_u32 s13, s13, 0x1000")
        for l in L[cut:]: a(l)
        a("s_waitcnt vmcnt(0)")
        self.stamp(4)
        for i in range(8):
            self.unpack(XU+0*8+i, XU+1*8+i, RAW+2*i)
            self.unpack(XU+2*8+i, XU+3*8+i, RAW+1+2*i)
        self.wait_flag(C_ST, vW4, 15)
        for k in range(4): a(f"ds_read_b64 {P(G0+2*k)}, v{vT8} offset:{MSB+2048*k}")
        a("s_waitcnt lgkmcnt(0)")
        self.stamp(5)
        a(f"""
        """)
        a("s_setprio 0")
        for i in range(4): self.unpack(RS+2*i, RS+2*i+1, G0+1+2*i)
        for i in range(8): a(f"v_rcp_f32 v{RS+i}, v{RS+i}")
        for i in range(4): self.unpack(M+2*i, M+2*i+1, G0+2*i)
        for i in range(4): a(f"v_pk_mul_f32 {P(M+2*i)}, {P(M+2*i)}, {P(RS+2*i)}")
        for c in range(4):
            for k in range(4): a(f"v_pk_fma_f32 {P(T+8*c+2*k)}, {P(XU+8*c+2*k)}, {P(RS+2*k)}, {P(M+2*k)} neg_lo:[0,0,1] neg_hi:[0,0,1]")
            r = PKD+4*(c%2)
            for k in range(4): a(f"v_cvt_pk_bf16_f32 v{r+k}, v{T+8*c+2*k+1}, v{T+8*c+2*k}")
            for k in (0,2): a(f"ds_write2st64_b32 v{vXW}, v{r+k}, v{r+k+1} offset0:{18*c+4*(3-k)} offset1:{18*c+4*(2-k)}")
        self.arrive(C_XR, vW4, vONE)
        for c in range(4):
            sel = c % 2
            for k in range(4):
                a(f"v_pk_fma_f32 {P(XU+8*c+2*k)}, {P(T+8*c+2*k)}, {P(D1+(c//2)*2)}, {P(XU+8*c+2*k)} op_sel:[0,{sel},0] op_sel_hi:[1,{sel},1]")
        self.wait_flag(C_XR, vL4, 15)
        self.stamp(6)

        acc = {nt: ACC+4*nt for nt in range(8)}
        started = set()
        def mf(nt, A, B):
            c = Q(acc[nt]) if nt in started else "0"
            started.add(nt)
            return f"{MFMA} {Q(acc[nt])}, {Q(A)}, {Q(B)}, {c}"
        def itB(u):
            tiles = [nt for nt in range(8) if 0 <= 8*nt-u <= 32]
            return (lambda r: [f"ds_read_b128 {Q(r)}, v{vB} offset:{64*(56-u)}"], lambda r: [mf(nt, AR+4*(8*nt-u), r) for nt in tiles], ("B", u))
        def itBox(S, ty):
            off = 64*(56-8*S) + 16*ty; d = ACC+16+8*(S%2)+4*ty
            return (lambda r: [f"ds_read_b128 {Q(r)}, v{vB} offset:{off}"], lambda r: [f"{MFMA} {Q(d)}, {Q(r)}, {Q(BXA if ty else BXB)}, 0"], ("X", S, ty))
        def itK3(D, pairs):
            return (lambda r: [f"ds_read_b64 {P(r)}, v{vK3} offset:{K3O+24+32*D}", f"ds_read_b64 {P(r+2)}, v{vK3} offset:{K3O+24+32*D+640}"],
                    lambda r: [mf(4+Tt, ZF+4*S, r) for (Tt, S) in pairs], ("K3", D, pairs[0][0]))
        items = [itB(-7), itBox(0,0), itBox(0,1), itB(-6), itBox(1,0), itBox(1,1), itB(-5), itB(-4),
                 itBox(2,0), itBox(2,1), itB(-3), itBox(3,0), itBox(3,1), itB(-2), itB(-1)]
        for u in range(0, 57):
            items.append(itB(u))
            if u == 20: items.append(itK3(0, [(0,0),(1,1)]))
            if u == 28: items.append(itK3(1, [(1,0)]))
            if u == 42: items.append(itK3(0, [(2,2),(3,3)]))
            if u == 45: items.append(itK3(1, [(2,1),(3,2)]))
            if u == 47: items.append(itK3(2, [(2,0),(3,1)]))
            if u == 51: items.append(itK3(3, [(3,0)]))
        pos = {it[2]: k for k, it in enumerate(items)}
        fill = {}; hard = set()
        def addf(idx, L): fill.setdefault(idx, []).extend(L)
        def zc(S):
            d = ACC+16+8*(S%2)
            return [f"v_cvt_pk_bf16_f32 v{ZF+4*S}, v{d+3}, v{d+2}", f"v_cvt_pk_bf16_f32 v{ZF+4*S+1}, v{d+1}, v{d}",
                    f"v_cvt_pk_bf16_f32 v{ZF+4*S+2}, v{d+7}, v{d+6}", f"v_cvt_pk_bf16_f32 v{ZF+4*S+3}, v{d+5}, v{d+4}"]
        addf(pos[("B",-5)], zc(0) + zc(1)); hard.add(pos[("X",2,0)])
        addf(pos[("B",-2)], zc(2) + zc(3)); hard.add(pos[("B",0)])
        YF = [C_Y0, C_Y1, C_Y2, C_Y3]
        def ywrite(k):
            return [("lds", None, f"ds_write_b128 v{vYW}, {Q(acc[nt])} offset:{1024*nt}") for nt in (2*k, 2*k+1)] + [("rawlds", self.arr(YF[k], vW4, vONE))]
        def yread(k, tag):
            return [("lds", tag, f"ds_read_b64 {P(ACC+8*k+2*c)}, v{vYR} offset:{c*8192+2048*k}") for c in range(4)]
        def eaddr(k, e):
            fl = 12 + k//2; sh = 24 - 8*(2*(k%2)+e)
            if sh: return [f"v_lshlrev_b32 v{14+e}, {sh}, v{fl}", f"v_and_or_b32 v{14+e}, v{14+e}, s68, v{vXO}"]
            return [f"v_and_or_b32 v{14+e}, v{fl}, s68, v{vXO}"]
        def emath(k):
            Y = ACC+8*k; L = []
            for c in range(4):
                for e in range(2): L.append(f"v_add_f32 v{XU+8*c+2*k+e}, v{Y+2*c+e}, v{XU+8*c+2*k+e}")
            for e in range(2):
                L.append(f"v_cvt_pk_bf16_f32 v{Y+2*e}, v{XU+2*k+e}, v{XU+8+2*k+e}")
                L.append(f"v_cvt_pk_bf16_f32 v{Y+2*e+1}, v{XU+16+2*k+e}, v{XU+24+2*k+e}")
            return L
        def est(k, e):
            if self.opt.get("nost"): return []
            return [f"buffer_store_dwordx2 {P(ACC+8*k+2*e)}, v{14+e}, {SQ(rOUT)}, s{sO+k} offen offset:{2048*e}"]
        def check(n, regs):
            L = []
            if len(regs) == 2: L.append(f"v_min_u32 v{regs[0]}, v{regs[0]}, v{regs[1]}")
            L += [f"v_cmp_eq_u32 vcc, 0, v{regs[0]}", f"s_cbranch_vccnz L_SLOW{n}", f"L_BACK{n}:"]
            return [("raw", L)]
        for k in range(3):
            p = pos[("B", 16*k+8)]
            d = (1, 3, 4, 6, 8, 14) if k < 2 else (1, 4, 6, 9, 12, 17)
            addf(p+d[0], ywrite(k))
            fr = [("lds", f"f{k}", f"ds_read_b32 v11, v{vL4} offset:{YF[k]}")]
            if k == 0: fr.append(("lds", "f0", f"ds_read_b32 v15, v{vL4} offset:{C_SEL}"))
            addf(p+d[1], fr)
            addf(p+d[2], [("need", f"f{k}")] + check(k, [11, 15] if k == 0 else [11]) + ([("lds", "y0", f"ds_read_b64 v[12:13], v{vT8} offset:{SELF}")] if k == 0 else []) + yread(k, f"y{k}"))
            addf(p+d[3], [("need", f"y{k}")] + eaddr(k, 0) + eaddr(k, 1) + emath(k))
            addf(p+d[4], est(k, 0))
            addf(p+d[5], est(k, 1))
        issued = []; done = [0]
        def lds(tag, text): a(text); issued.append(tag)
        def need(tag):
            last = max(i for i, t in enumerate(issued) if t == tag)
            if last >= done[0]:
                n = min(len(issued) - 1 - last, 15)
                a(f"s_waitcnt lgkmcnt({n})"); done[0] = len(issued) - n
        NR = 6; PD = self.opt.get("pd", 5)
        slot = lambda k: RB + 4*(k % NR)
        for k in range(PD):
            for l in items[k][0](slot(k)): lds(("it", k), l)
        queue = []
        def drain(n):
            while queue and n > 0:
                e = queue.pop(0)
                if isinstance(e, str): a(e); n -= 1
                elif e[0] == "need": need(e[1])
                elif e[0] == "lds": lds(e[1], e[2]); n -= 1
                elif e[0] == "raw":
                    for l in e[1]: a(l)
                    n -= 2
                elif e[0] == "rawlds":
                    for l in e[1]: a(l)
                    issued.append(None); n -= 2
        for k, it in enumerate(items):
            if k in hard: drain(1000)
            queue += fill.get(k, [])
            need(("it", k))
            ms = it[1](slot(k))
            for j, m in enumerate(ms):
                a(m)
                if j == 0 and k+PD < len(items):
                    for l in items[k+PD][0](slot(k+PD)): lds(("it", k+PD), l)
                    if len(ms) == 1 or k > pos[("B", 40)]: drain(1)
                else: drain(2 if k > pos[("B", 40)] or k < pos[("B", 0)] else 1 + (len(queue) > 8))
            if it[2] == ("B", 49): lds(None, f"ds_write_b128 v{vYW}, {Q(acc[6])} offset:{1024*6}")
        drain(1000)
        self.stamp(7)
        for l in eaddr(3, 0) + eaddr(3, 1): a(l)
        a(f"ds_write_b128 v{vYW}, {Q(acc[7])} offset:{1024*7}")
        self.arrive(C_Y3, vW4, vONE)
        self.wait_flag(C_Y3, vL4, 11)
        for e in yread(3, None): a(e[2])
        a("s_waitcnt lgkmcnt(0)")
        em = emath(3)
        for l in em[:10] + est(3, 0) + em[10:] + est(3, 1): a(l)
        self.stamp(8)
        if self.stamps or self.opt.get("gamp") == 9:
            a("s_waitcnt vmcnt(0)")
            self.stamp(9)
        a("s_branch L_FIN")
        for n in range(3):
            a(f"L_SLOW{n}:")
            self.wait_flag(YF[n], vL4, 11)
            if n == 0: self.wait_flag(C_SEL, vL4, 11)
            a(f"s_branch L_BACK{n}")

    def fmain(self):
        a = self.a
        GUR = 112; GUF = 48
        WDR = 176; WDF = 112
        XS = 208
        ACC = 16
        vL4 = 1; vW4 = 2; vPW = 3; vPR = 4; vONE = 5; vRS = 6; vE = 7; vNM = 8; vXO = 9
        PRM = 224; TCH = 216
        sSG = 59; sK = 68
        X0 = 16; W0 = 32; S = 48
        a(f"""
        L_F0:
        s_setprio 2
        s_mov_b32 s{sO+1}, {WS_STAT}
        s_lshl_b32 s7, s2, 2
        s_add_u32 s7, s7, s{sW}
        s_lshl_b32 s13, s2, 7
        s_add_u32 s13, s13, {WS_STAT}
        s_lshl_b32 s8, s7, 12
        v_and_b32 v10, 31, v0
        v_lshlrev_b32 v10, 4, v10
        v_lshrrev_b32 v11, 5, v0
        v_lshl_add_u32 v11, v11, 11, v10
        v_add_u32 v11, s8, v11
        s_cmp_lt_u32 s6, 28
        s_cselect_b32 s{sROLE}, 1, 0
        s_lshr_b32 s8, s6, 2
        s_add_u32 s9, s5, 3
        s_and_b32 s9, s9, 7
        s_min_u32 s9, s9, 6
        s_cmp_lt_u32 s6, 28
        s_cselect_b32 s8, s8, s9
        s_and_b32 s{sSH}, s6, 1
        s_mul_i32 s{sSG}, s5, 7
        s_add_u32 s{sSG}, s{sSG}, s8
        s_and_b32 s{sK}, s6, 3
        s_lshl_b32 s8, s{sK}, 2
        s_add_u32 s8, s8, s{sW}
        s_lshl_b32 s8, s8, 6
        s_xor_b32 s9, s{sROLE}, 1
        s_lshl_b32 s9, s9, 5
        s_add_u32 s8, s8, s9
        v_lshrrev_b32 v12, 4, v0
        v_lshl_add_u32 v12, v12, 3, s8
        v_lshlrev_b32 v{vXO}, 1, v12
        s_movk_i32 s10, 7168
        v_mul_u32_u24 v14, s10, v12
        v_and_b32 v12, 7, v0
        v_lshl_add_u32 v14, v12, 4, v14
        s_lshl_b32 s8, s{sSG}, 7
        v_add_u32 v14, s8, v14
        v_and_b32 v12, 8, v0
        v_cmp_ne_u32 vcc, 0, v12
        s_mov_b32 s11, 0
        s_mov_b32 s14, {25*7168}
        s_mov_b32 s15, 0
        s_waitcnt lgkmcnt(0)
        """)
        for i in range(4): a(f"global_load_dwordx4 {Q(X0+4*i)}, v11, {SP(sX)} offset:{512*i} {'nt' if self.opt.get('xnt') else ''}")
        a(f"s_load_dword s{sTAG}, {SP(sWS)}, 0")
        for i in range(4): a(f"global_load_dwordx4 {Q(W0+4*i)}, v10, {SP(sWR)} offset:{512*i}")
        a(f"s_mul_i32 s8, s{sW}, 4160\ns_add_u32 s8, s8, {XR0}\nv_lshrrev_b32 v15, 5, v0\ns_movk_i32 s9, 2080\nv_mad_u32_u24 v15, v15, s9, v10\nv_add_u32 v15, s8, v15")
        a(f"s_add_u32 s8, s{sDSK}, s4\ns_addc_u32 s9, s{sDSK+1}, 0\ns_load_dwordx2 s[66:67], s[8:9], 0")
        a(f"""
        v_mov_b32 v12, s{sWGT}
        v_mov_b32 v13, s{sWGT+1}
        v_mov_b32 v10, s{sWU}
        v_mov_b32 v11, s{sWU+1}
        v_cndmask_b32 v12, v12, v10, vcc
        v_cndmask_b32 v13, v13, v11, vcc
        v_add_co_u32 v12, vcc, v12, v14
        v_addc_co_u32 v13, vcc, 0, v13, vcc
        s_barrier
        """)
        gl = []
        for s in range(2):
            for j in range(8):
                gl.append([f"global_load_dwordx4 {Q(GUR+32*s+4*j)}, v[12:13], off {'nt' if self.opt.get('gnt') else ''}"] + ([f"v_lshl_add_u64 v[12:13], {'s[10:11]' if j < 7 else 's[14:15]'}, 0, v[12:13]"] if (s, j) != (1, 7) else []))
        NB = self.opt.get("nb", 0)
        for x in gl[:NB]:
            for l in x: a(l)
        self.srd(rWS, sWS, WS_SIZE); self.srd(rX, sX, 0x400000); self.srd(rOUT, sOUT, 0x400000); self.srd(rD, sWD, 3584*2048)
        T = 224; TP = 16; E = T+8; KP = 32; CR = T+24; XT = 64
        def kpl():
            for i, so in enumerate((sO+1, 5, 6, 7)): a(f"buffer_load_dwordx4 {Q(KP+4*i)}, v{T+2}, {SQ(rWS)}, s{so} offen sc1")
        a(f"""
        s_lshl_b32 s7, s{sW}, 2
        v_mov_b32 v{vW4}, s7
        v_and_b32 v11, 3, v0
        v_lshlrev_b32 v{vL4}, 2, v11
        v_mov_b32 v{vONE}, 1
        s_lshl_b32 s8, s{sW}, 6
        v_add_u32 v14, s8, v0
        v_lshrrev_b32 v10, 2, v14
        s_movk_i32 s9, 4160
        v_lshlrev_b32 v14, 3, v10
        v_mad_u32_u24 v14, v11, s9, v14
        v_lshlrev_b32 v{T+2}, 7, v10
        v_lshlrev_b32 v10, 14, v10
        v_lshl_add_u32 v10, v11, 4, v10
        v_lshl_add_u32 v{T+2}, v11, 4, v{T+2}
        s_lshl_b32 s9, s2, 6
        s_add_u32 s9, s9, {WS_XT}
        s_mov_b32 s5, {WS_STAT+0x2000}
        s_mov_b32 s6, {WS_STAT+0x4000}
        s_mov_b32 s7, {WS_STAT+0x6000}
        s_mov_b32 s8, 0x3f803f80
        s_waitcnt vmcnt({4+NB})
        """)
        for i in range(4): a(f"ds_write_b128 v15, {Q(X0+4*i)} offset:{512*i}")
        self.arrive(C_RW, vW4, vONE)
        for i in range(16):
            c = lambda r: "0" if i == 0 else f"v{r}"
            a(f"v_dot2_f32_bf16 v{S}, v{X0+i}, s8, {c(S)}")
            a(f"v_dot2_f32_bf16 v{S+1}, v{X0+i}, v{X0+i}, {c(S+1)}")
        self.wait_flag(C_RW, vL4, 11)
        self.mktag()
        for i in range(4): a(f"ds_read_b64 {P(XT+4*i)}, v14 offset:{XR0+512*i}\nds_read_b64 {P(XT+4*i+2)}, v14 offset:{XR0+512*i+2080}")
        a(f"v_mov_b32 v{S+11}, s{sTAG}")
        for i in range(4): a(f"s_waitcnt lgkmcnt({6-2*i})\nbuffer_store_dwordx4 {Q(XT+4*i)}, v10, {SQ(rWS)}, s9 offen sc1\ns_add_u32 s9, s9, 0x100000")
        self.arrive(C_XS, vW4, S+11)
        self.stamp(1)
        NB2 = self.opt.get("nb2", 0)
        for x in gl[NB:NB2]:
            for l in x: a(l)
        a(f"s_waitcnt vmcnt({NB2+4})")
        for i in range(16):
            c = lambda r: "0" if i == 0 else f"v{r}"
            a(f"v_dot2_f32_bf16 v{S+2}, v{X0+i}, v{W0+i}, {c(S+2)}")
            a(f"v_dot2_f32_bf16 v{S+3}, v{W0+i}, s8, {c(S+3)}")
        a("s_nop 1")
        for sh in ("row_shr:1 row_mask:0xf","row_shr:2 row_mask:0xf","row_shr:4 row_mask:0xf","row_shr:8 row_mask:0xf","row_bcast:15 row_mask:0xa"):
            for r in range(S, S+4): a(f"v_add_f32_dpp v{r}, v{r}, v{r} {sh} bank_mask:0xf")
        a(f"""
        v_mul_f32 v{S}, 0x3a800000, v{S}
        v_mul_f32 v{S+1}, 0x3a800000, v{S+1}
        v_cvt_pk_bf16_f32 v{S+4}, v{S}, v{S}
        v_fma_f32 v{S+1}, -v{S}, v{S}, v{S+1}
        v_max_f32 v{S+1}, 0, v{S+1}
        v_and_b32 v{S+5}, 0xffff0000, v{S+4}
        """)
        self.bf16r(S+1, S+1)
        a(f"v_add_f32 v{S+1}, {f2u(1e-5):#x}, v{S+1}\nv_fma_f32 v{S+2}, -v{S+5}, v{S+3}, v{S+2}")
        self.bf16r(S+1, S+1)
        a(f"""
        v_sqrt_f32 v{S+1}, v{S+1}
        v_lshlrev_b32 v10, 2, v{vW4}
        v_lshlrev_b32 v11, 4, v0
        v_mov_b32 v{S+13}, 0
        v_cvt_pk_bf16_f32 v{S+6}, v{S+1}, v{S+1}
        v_and_b32 v{S+1}, 0xffff0000, v{S+6}
        v_rcp_f32 v{S+1}, v{S+1}
        v_mul_f32 v{S+2}, v{S+2}, v{S+1}
        v_cvt_pk_bf16_f32 v{S+2}, v{S+2}, v{S+2}
        v_bfe_i32 v{S+3}, v{S+2}, 15, 1
        v_or_b32 v{S+3}, 0x80008000, v{S+3}
        v_xor_b32 v{S+7}, v{S+2}, v{S+3}
        s_mov_b32 s8, 0xffff
        v_mov_b32_dpp v{S+8}, v{S+4} row_bcast:31 row_mask:0x8 bank_mask:0xf
        v_mov_b32_dpp v{S+9}, v{S+6} row_bcast:31 row_mask:0x8 bank_mask:0xf
        v_mov_b32_dpp v{S+10}, v{S+7} row_bcast:31 row_mask:0x8 bank_mask:0xf
        v_bfi_b32 v{S+8}, s8, v{S+8}, v{S+4}
        v_bfi_b32 v{S+9}, s8, v{S+9}, v{S+6}
        v_bfi_b32 v{S+10}, s8, v{S+10}, v{S+7}
        s_brev_b64 exec, 1
        ds_write_b128 v10, {Q(S+8)} offset:{STG}
        """)
        self.stamp(2)
        a(f"""
        s_waitcnt vmcnt({NB2-NB})
        ds_add_rtn_u32 v{S+12}, v{S+13}, v{vONE} offset:{CNTR}
        s_mov_b64 exec, -1
        s_waitcnt lgkmcnt(0)
        v_readlane_b32 s8, v{S+12}, 63
        s_cmp_lg_u32 s8, 3
        s_cbranch_scc1 L_NOPUB
        s_mov_b64 exec, 0xf
        ds_read_b128 {Q(S+4)}, v11 offset:{STG}
        s_waitcnt lgkmcnt(0)
        buffer_store_dwordx4 {Q(S+4)}, v11, {SQ(rWS)}, s13 offen sc1
        ds_write_b32 v{S+13}, v{vONE} offset:{CNT2}
        s_mov_b64 exec, -1
        L_NOPUB:
        """)
        if self.opt.get("wpub", 1): self.wait_flag(CNT2, S+13, S+12)
        self.stamp(4)
        assert NB2 <= 8
        for x in gl[NB2:8]:
            for l in x: a(l)
        a(f"s_cmp_eq_u32 s{sROLE}, 0\ns_cbranch_scc1 L_NG5")
        for x in gl[8:]:
            for l in x: a(l)
        a("L_NG5:")
        def perms(raw, out, nd, nj):
            L = []
            for d in range(nd):
                for jj in range(nj):
                    A = raw+nd*(2*jj)+d; B = raw+nd*(2*jj+1)+d
                    L.append(f"v_perm_b32 v{out+nj*(2*d)+jj}, v{B}, v{A}, s64")
                    L.append(f"v_perm_b32 v{out+nj*(2*d+1)+jj}, v{B}, v{A}, s65")
            return L
        a(f"""
        s_cmp_lg_u32 s{sW}, 0
        s_cbranch_scc1 L_NOZ
        v_lshlrev_b32 v{T}, 4, v0
        v_mov_b32 v{T+4}, 0
        v_mov_b32 v{T+5}, 0
        v_mov_b32 v{T+6}, 0
        v_mov_b32 v{T+7}, 0
        ds_write_b128 v{T}, {Q(T+4)} offset:{UPD}
        ds_write_b128 v{T}, {Q(T+4)} offset:{UPD+1024}
        ds_write_b128 v{T}, {Q(T+4)} offset:{UPD+2048}
        L_NOZ:
        s_lshl_b32 s4, s{sW}, 6
        v_add_u32 v14, s4, v0
        v_lshlrev_b32 v15, 4, v14
        s_mov_b32 s64, 0x05040100
        s_mov_b32 s65, 0x07060302
        v_lshlrev_b32 v{T}, 4, v0
        v_and_b32 v10, 15, v0
        v_lshlrev_b32 v10, 2, v10
        v_and_b32 v11, 48, v0
        s_movk_i32 s4, 0xfff
        v_lshlrev_b32 v{CR}, 1, v14
        v_sub_u32 v{CR}, s4, v{CR}
        v_subrev_u32 v{CR+1}, 1, v{CR}
        v_subrev_u32 v{CR+2}, 512, v{CR}
        v_subrev_u32 v{CR+3}, 513, v{CR}
        v_subrev_u32 v{CR+4}, 1024, v{CR}
        v_subrev_u32 v{CR+5}, 1025, v{CR}
        v_subrev_u32 v{CR+6}, 1536, v{CR}
        v_subrev_u32 v{CR+7}, 1537, v{CR}
        v_lshlrev_b32 v{T+3}, 3, v14
        v_lshrrev_b32 v{T+1}, 4, v14
        v_lshlrev_b32 v{T+1}, 2, v{T+1}
        v_lshlrev_b32 v14, 2, v14
        s_mov_b32 s16, 0
        s_mov_b32 s17, 0xffff0000
        v_lshlrev_b32 v{vPW}, 3, v11
        s_lshl_b32 s8, s{sW}, 12
        s_add_u32 s8, s8, {PRE}
        v_add_u32 v{vPW}, s8, v{vPW}
        v_lshrrev_b32 v12, 5, v0
        v_lshlrev_b32 v{vPR}, 7, v12
        v_bfe_u32 v12, v0, 4, 1
        v_lshl_add_u32 v{vPR}, v12, 3, v{vPR}
        v_bfe_u32 v12, v0, 3, 1
        v_lshl_add_u32 v{vPR}, v12, 9, v{vPR}
        v_and_b32 v12, 7, v0
        v_lshl_add_u32 v{vPR}, v12, 4, v{vPR}
        s_lshl_b32 s8, s{sW}, 10
        s_add_u32 s8, s8, {PRE}
        v_add_u32 v{vPR}, s8, v{vPR}
        v_bfe_u32 v12, v0, 4, 1
        v_lshlrev_b32 v12, 16, v12
        v_lshrrev_b32 v13, 5, v0
        v_lshl_add_u32 v12, v13, 12, v12
        v_lshl_add_u32 v12, v10, 1, v12
        s_lshl_b32 s10, s{sSG}, 17
        s_lshl_b32 s11, s{sK}, 9
        s_add_u32 s10, s10, s11
        s_lshl_b32 s11, s{sW}, 7
        s_add_u32 s10, s10, s11
        """)
        for i in range(8): a(f"v_mov_b32 v{XS+i}, 0x3f803f80")
        KW = self.opt.get("kw", 4)
        a(f"s_waitcnt vmcnt({KW})")
        kpl()
        a("s_waitcnt vmcnt(4)")
        self.stamp(5)
        for s in range(2):
            for l in perms(GUR+32*s, GUF+32*s, 4, 4): a(l)
        a(f"s_branch L_KPW\nL_KP:\ns_sleep {self.opt.get('ksl', 2)}")
        kpl()
        a(f"""
        L_KPW:
        s_waitcnt vmcnt(0)
        s_add_u32 s16, s16, 1
        v_cmp_ne_u32 vcc, s{sTAG}, v{KP+3}
        v_cmp_ne_u32 s[8:9], s{sTAG}, v{KP+7}
        v_cmp_ne_u32 s[14:15], s{sTAG}, v{KP+11}
        v_cmp_ne_u32 s[28:29], s{sTAG}, v{KP+15}
        s_or_b64 vcc, vcc, s[8:9]
        s_or_b64 s[14:15], s[14:15], s[28:29]
        s_or_b64 vcc, vcc, s[14:15]
        s_cbranch_vccz L_KPOK
        s_cmp_lt_u32 s16, 0x4000
        s_cbranch_scc1 L_KP
        L_KPOK:
        """)
        self.stamp(3)
        a(f"ds_write2st64_b64 v{T+3}, {P(KP)}, {P(KP+4)} offset0:{MSB//512} offset1:{MSB//512+4}\nds_write2st64_b64 v{T+3}, {P(KP+8)}, {P(KP+12)} offset0:{MSB//512+8} offset1:{MSB//512+12}")
        self.arrive(C_ST, vW4, vONE)
        for k in range(4):
            a(f"v_lshl_or_b32 v{CR+2*k}, v{KP+4*k+2}, 16, v{CR+2*k}\nv_and_or_b32 v{CR+1+2*k}, v{KP+4*k+2}, s17, v{CR+1+2*k}")
        B = T+2
        a(f"v_max_u32 v{B}, v{CR}, v{CR+1}\nv_min_u32 v{B+1}, v{CR}, v{CR+1}\nv_max_u32 v{B+2}, v{CR+4}, v{CR+5}\nv_min_u32 v{B+3}, v{CR+4}, v{CR+5}")
        for j in (2, 3):
            a(f"v_med3_u32 v{B+1}, v{B}, v{B+1}, v{CR+j}\nv_med3_u32 v{B+3}, v{B+2}, v{B+3}, v{CR+j+4}\nv_max_u32 v{B}, v{B}, v{CR+j}\nv_max_u32 v{B+2}, v{B+2}, v{CR+j+4}")
        a(f"""
        v_min_u32 v{B+4}, v{B}, v{B+2}
        v_max_u32 v{B}, v{B}, v{B+2}
        v_max3_u32 v{B+1}, v{B+1}, v{B+3}, v{B+4}
        ds_write_b32 v14, v{B} offset:{LMC}
        """)
        mid = [f"v_add_u32 v15, {KEYS}, v15", f"ds_write2_b32 v15, v{KP+2}, v{KP+6} offset0:0 offset1:1", f"ds_write2_b32 v15, v{KP+10}, v{KP+14} offset0:2 offset1:3", "s_nop 0"]
        for i, sh in enumerate((1,2,4,8)):
            a(mid[i])
            a(f"v_max_u32_dpp v{B}, v{B}, v{B} row_shr:{sh} row_mask:0xf bank_mask:0xf\nv_max_u32_dpp v{B+1}, v{B+1}, v{B+1} row_shr:{sh} row_mask:0xf bank_mask:0xf")
        a(f"""
        s_mov_b32 exec_lo, 0x80008000
        s_mov_b32 exec_hi, 0x80008000
        ds_write2_b32 v{T+1}, v{B}, v{B+1} offset0:{GM//4} offset1:{GM//4+16}
        """)
        self.arrive(C_KEYS, vW4, vONE)
        self.wait_flag(C_KEYS, vL4, T+1)
        self.stamp(6)
        def rank16(own, four, r, c):
            a(f"v_cmp_gt_u32 vcc, v{four}, v{own}\nv_cmp_gt_u32 s[8:9], v{four+1}, v{own}\nv_cmp_gt_u32 s[14:15], v{four+2}, v{own}\nv_cmp_gt_u32 s[28:29], v{four+3}, v{own}")
            a(f"v_cndmask_b32 v{r}, 0, 1, vcc\nv_cndmask_b32 v{c}, 0, 1, s[8:9]\nv_addc_co_u32 v{r}, vcc, 0, v{r}, s[14:15]\nv_addc_co_u32 v{r}, vcc, v{c}, v{r}, s[28:29]")
            a(f"v_mov_b32 v{c}, v{r}\nv_permlane32_swap_b32 v{r}, v{c}\nv_add_u32 v{r}, v{r}, v{c}\nv_mov_b32 v{c}, v{r}\nv_permlane16_swap_b32 v{r}, v{c}\nv_add_u32 v{r}, v{r}, v{c}")
        a(f"""
        ds_read2_b32 {P(T+2)}, v10 offset0:{GM//4} offset1:{GM//4+16}
        ds_read_b128 {Q(T+4)}, v11 offset:{GM}
        ds_read_b128 {Q(E)}, v{T} offset:{LMC}
        s_waitcnt lgkmcnt(1)
        """)
        rank16(T+2, T+4, T+12, T+13)
        a(f"""
        v_cmp_eq_u32 vcc, 7, v{T+12}
        s_ff1_i32_b32 s5, vcc_lo
        v_readlane_b32 s4, v{T+2}, s5
        s_waitcnt lgkmcnt(0)
        v_cmp_le_u32 vcc, s4, v{T+3}
        {"s_branch" if self.opt.get("forceslow") else "s_cbranch_vccnz"} L_SLOWT
        L_CAND:
        v_cmp_le_u32 s[8:9], s4, v{E}
        v_cmp_le_u32 s[14:15], s4, v{E+1}
        v_cmp_le_u32 s[28:29], s4, v{E+2}
        v_cmp_le_u32 s[30:31], s4, v{E+3}
        s_bcnt1_i32_b64 s5, s[8:9]
        s_bcnt1_i32_b64 s6, s[14:15]
        s_bcnt1_i32_b64 s7, s[28:29]
        s_bcnt1_i32_b64 s16, s[30:31]
        s_add_u32 s6, s6, s5
        s_add_u32 s7, s7, s6
        s_add_u32 s16, s16, s7
        s_cmp_gt_u32 s16, 15
        s_cbranch_scc1 L_TRIM
        """)
        MK = (8, 14, 28, 30)
        for k, (mk, base) in enumerate(zip(MK, ("0", "s5", "s6", "s7"))):
            a(f"v_mbcnt_lo_u32_b32 v{T+12+k}, s{mk}, 0\nv_mbcnt_hi_u32_b32 v{T+12+k}, s{mk+1}, v{T+12+k}\nv_add_lshl_u32 v{T+12+k}, v{T+12+k}, {base}, 2")
            a(f"s_mov_b64 exec, {SP(mk)}\nds_write_b32 v{T+12+k}, v{E+k} offset:{LIST}\ns_mov_b64 exec, -1")
        a(f"""
        s_movk_i32 s4, 0x7ff
        ds_read_b32 v{TP}, v10 offset:{LIST}
        ds_read_b128 {Q(TP+4)}, v11 offset:{LIST}
        s_cmp_lg_u32 s{sROLE}, 1
        s_waitcnt lgkmcnt(1)
        v_bfi_b32 v14, v{TP}, 0, s4
        s_cbranch_scc1 L_NOXS
        v_lshl_add_u32 v15, v14, 11, v{vXO}
        s_mov_b32 exec_lo, 0x7fff7fff
        s_mov_b32 exec_hi, 0x7fff7fff
        buffer_load_dwordx4 {Q(XS)}, v15, {SQ(rX)}, 0 offen
        buffer_load_dwordx4 {Q(XS+4)}, v15, {SQ(rX)}, 0 offen offset:64
        s_mov_b64 exec, -1
        v_lshrrev_b32 v15, 1, v14
        v_lshlrev_b32 v15, 3, v15
        ds_read_b64 v[8:9], v15 offset:{MSB}
        """)
        self.stamp(7)
        WDE = 0
        a(f"v_lshlrev_b32 v15, 11, v0\nbuffer_load_dword v{TCH+3}, v15, {SQ(rD)}, s10 offen {'nt' if self.opt.get('wnt') else ''}")
        a("L_NOXS:\ns_waitcnt lgkmcnt(0)")
        rank16(TP, TP+4, TP+8, TP+9)
        a(f"""
        v_cmp_gt_u32 s[30:31], 8, v{TP+8}
        v_lshlrev_b32 v15, 2, v{TP+8}
        v_and_b32 v10, 7, v0
        v_lshlrev_b32 v10, 2, v10
        v_bfe_u32 v{TP+4}, v14, 1, 8
        v_lshrrev_b32 v{TP+5}, 9, v14
        v_lshlrev_b32 v{TP+4}, 3, v{TP+4}
        v_lshl_add_u32 v{TP+4}, v{TP+5}, 1, v{TP+4}
        v_and_b32 v14, 1, v14
        v_add_u32 v{TP+4}, v{TP+4}, v14
        v_mov_b32 v{TP+6}, 0x80
        s_mov_b64 exec, s[30:31]
        ds_write_b32 v15, v{TP} offset:{IDX}
        s_cmp_lg_u32 s{sW}, 0
        s_cbranch_scc1 L_NOSEL
        ds_write_b8 v{TP+4}, v{TP+6} offset:{SELF}
        s_mov_b64 exec, 0xf
        ds_write_b32 v{vL4}, v{vONE} offset:{C_SEL}
        s_cmp_lg_u32 s2, 255
        s_cbranch_scc1 L_NOSEL
        s_mov_b64 exec, 1
        v_mov_b32 v{TP+6}, s{sTAG}
        buffer_store_dword v{TP+6}, v{vW4}, {SQ(rWS)}, 0 offen sc1
        L_NOSEL:
        s_mov_b64 exec, -1
        ds_read_b32 v{vE}, v10 offset:{IDX}
        s_cmp_lg_u32 s{sROLE}, 1
        s_cbranch_scc1 L_GATHER
        v_lshl_add_u32 v{vPW}, v{TP+8}, 4, v{vPW}
        v_lshlrev_b32 v14, 4, v14
        """)
        HQ = 216; R = 224; BL = 240; BH = 242; t = 244; PQ = 48; DA = 16; HP = 144
        a(f"""
        v_lshlrev_b32 v13, 4, v0
        s_lshl_b32 s4, s{sSG}, 14
        s_add_u32 s4, s4, {WS_H1}
        s_lshl_b32 s6, s{sW}, 12
        s_add_u32 s6, s6, s4
        s_lshl_b32 s5, s{sK}, 10
        s_add_u32 s5, s5, s6
        v_mov_b32 v{HQ+2}, s{sTAG}
        """)
        self.wait_flag(C_KD, vL4, 11)
        self.stamp(8)
        a(f"s_waitcnt vmcnt(1)")
        self.stamp(9)
        fill = f"""v_lshrrev_b32 v{vRS}, v14, v9
        v_lshrrev_b32 v{vNM}, v14, v8
        v_lshlrev_b32 v{vRS}, 16, v{vRS}
        v_lshlrev_b32 v{vNM}, 16, v{vNM}
        v_rcp_f32 v{vRS}, v{vRS}
        v_xor_b32 v{vNM}, 0x80000000, v{vNM}""".split("\n")
        M_ = [f"{MFMA} {Q(ACC+4*c)}, {Q(GUF+32*s+4*c)}, {Q(XS+4*s)}, {'0' if s==0 else Q(ACC+4*c)}" for c in range(8) for s in range(2)]
        fm = lambda c: [f"v_fmac_f32_dpp v{ACC+4*c+i}, v{ACC+4*c+i}, v{vNM} row_newbcast:15 row_mask:0xf bank_mask:0xf" for i in range(4)]
        for l in interleave(M_[:6], fill): a(l)
        for l in interleave(M_[6:], sum([fm(c) for c in range(8)], []), per=2): a(l)
        a("s_mov_b64 exec, s[30:31]")
        for c in range(8): a(f"ds_write_b128 v{vPW}, {Q(ACC+4*c)} offset:{512*c}")
        a(f"ds_write_b32 v15, v{vRS} offset:{RSV}")
        self.arrive(C_PRE, vW4, vONE)
        a(f"ds_read_b32 v{vRS}, v10 offset:{RSV}")
        self.wait_flag(C_PRE, vL4, 11)
        for k in range(4):
            for mat in range(2): a(f"ds_read_b64 {P(R+4*k+2*mat)}, v{vPR} offset:{4096*k+256*mat}")
        a("s_waitcnt lgkmcnt(4)")
        for i in range(4): a(f"v_add_f32 v{R+i}, v{R+i}, v{R+4+i}")
        a("s_waitcnt lgkmcnt(0)")
        for i in range(4): a(f"v_add_f32 v{R+8+i}, v{R+8+i}, v{R+12+i}")
        for i in range(4): a(f"v_add_f32 v{R+i}, v{R+i}, v{R+8+i}")
        a(f"""
        v_cvt_pk_bf16_f32 v{HQ}, v{R}, v{R+1}
        v_cvt_pk_bf16_f32 v{HQ+1}, v{R+2}, v{R+3}
        buffer_store_dwordx4 {Q(HQ)}, v13, {SQ(rWS)}, s5 offen sc1
        """)
        self.stamp(10)
        if not WDE:
            for ks in range(2):
                for j in range(8):
                    a(f"s_add_u32 s11, s10, {(16*(j>>2) + 8*(j&1) + 4*ks + ((j>>1)&1))*2048}\nbuffer_load_dwordx2 {P(WDR+16*ks+2*j)}, v12, {SQ(rD)}, s11 offen {'nt' if self.opt.get('wnt') else ''}")
        a(f"""
        v_bfe_u32 v10, v0, 3, 1
        v_lshrrev_b32 v11, 4, v0
        v_cmp_ne_u32 s[22:23], 0, v10
        v_lshlrev_b32 v15, 2, v10
        v_lshl_add_u32 v15, v11, 3, v15
        v_lshlrev_b32 v10, 8, v10
        v_lshl_add_u32 v10, v11, 9, v10
        v_lshlrev_b32 v9, 4, v11
        v_and_b32 v11, 7, v0
        v_lshl_add_u32 v10, v11, 4, v10
        s_movk_i32 s5, 144
        v_mad_u32_u24 v15, v11, s5, v15
        v_mad_u32_u24 v9, v11, s5, v9
        s_lshl_b32 s5, s{sW}, 5
        v_add_u32 v15, s5, v15
        s_lshl_b32 s4, s{sSG}, 15
        s_lshl_b32 s5, s{sK}, 13
        s_add_u32 s4, s4, s5
        s_lshl_b32 s5, s{sW}, 11
        s_add_u32 s4, s4, s5
        s_add_u32 s4, s4, {WS_PART}
        v_mul_f32 v12, {LOG2E|0x80000000:#x}, v{vRS}
        v_mul_f32 v14, v{vRS}, v{vRS}
        v_mov_b32 v{PQ+2}, s{sTAG}
        v_mov_b32 v{PQ+6}, s{sTAG}
        """)
        hpl = [f"buffer_load_dwordx3 v[{HP+4*k}:{HP+4*k+2}], v13, {SQ(rWS)}, s6 offen offset:{1024*k} sc1" for k in range(4)]
        if WDE:
            a("s_mov_b32 s16, 0\ns_waitcnt vmcnt(1)")
            for ks in range(2):
                for l in perms(WDR+16*ks, WDF+16*ks, 2, 4): a(l)
            if self.opt.get("hw0", 1): a("s_waitcnt vmcnt(0)")
            for l in hpl: a(l)
        else:
            a(f"s_mov_b32 s16, 0\ns_waitcnt vmcnt({self.opt.get('hw', 8)})")
            for l in hpl: a(l)
            for ks in range(2):
                a(f"s_waitcnt vmcnt({12-8*ks})")
                for l in perms(WDR+16*ks, WDF+16*ks, 2, 4): a(l)
        a("s_branch L_HPW\nL_HP:")
        a(f"s_sleep {self.opt.get('hsl', 3)}")
        for k, mk in enumerate((18, 8, 14, 28)):
            a(f"s_cmp_eq_u64 {SP(mk)}, 0\ns_cbranch_scc1 L_HS{k}\n{hpl[k]}\nL_HS{k}:")
        a(f"""
        L_HPW:
        s_add_u32 s16, s16, 1
        s_waitcnt vmcnt(0)
        v_cmp_ne_u32 s[18:19], s{sTAG}, v{HP+2}
        v_cmp_ne_u32 s[8:9], s{sTAG}, v{HP+6}
        v_cmp_ne_u32 s[14:15], s{sTAG}, v{HP+10}
        v_cmp_ne_u32 s[28:29], s{sTAG}, v{HP+14}
        s_or_b64 vcc, s[18:19], s[8:9]
        s_or_b64 s[20:21], s[14:15], s[28:29]
        s_or_b64 vcc, vcc, s[20:21]
        s_cbranch_vccz L_HOK
        s_cmp_lt_u32 s16, 0x4000
        s_cbranch_scc1 L_HP
        L_HOK:
        """)
        self.stamp(11)
        for k in range(4): self.unpack(R+2*k, R+2*k+1, HP+4*k)
        for i in range(2): a(f"v_add_f32 v{R+i}, v{R+i}, v{R+2+i}\nv_add_f32 v{R+4+i}, v{R+4+i}, v{R+6+i}")
        for i in range(2): a(f"v_add_f32 v{R+i}, v{R+i}, v{R+4+i}")
        for i in range(2): a(f"v_mul_f32 v{t+i}, v12, v{R+i}")
        for i in range(2): a(f"v_exp_f32 v{t+i}, v{t+i}")
        for k in range(4): self.unpack(R+8+2*k, R+8+2*k+1, HP+4*k+1)
        for i in range(2): a(f"v_add_f32 v{t+i}, 1.0, v{t+i}")
        for i in range(2): a(f"v_rcp_f32 v{t+i}, v{t+i}")
        for i in range(2): a(f"v_add_f32 v{R+8+i}, v{R+8+i}, v{R+10+i}\nv_add_f32 v{R+12+i}, v{R+12+i}, v{R+14+i}")
        for i in range(2): a(f"v_mul_f32 v{R+i}, v{R+i}, v14\nv_add_f32 v{R+8+i}, v{R+8+i}, v{R+12+i}")
        for i in range(2): a(f"v_mul_f32 v{R+i}, v{R+i}, v{t+i}")
        for i in range(2): a(f"v_mul_f32 v{R+i}, v{R+i}, v{R+8+i}")
        a(f"""
        v_cvt_pk_bf16_f32 v{t}, v{R}, v{R+1}
        ds_write_b32 v15, v{t} offset:{HB}
        """)
        self.arrive(C_H, vW4, vONE)
        self.wait_flag(C_H, vL4, 11)
        a(f"ds_read_b128 {Q(R)}, v9 offset:{HB}\nds_read_b128 {Q(R+4)}, v9 offset:{HB+64}")
        for ks in range(2):
            a(f"s_waitcnt lgkmcnt({1-ks})")
            for c in range(4): a(f"{MFMA} {Q(DA+4*c)}, {Q(WDF+16*ks+4*c)}, {Q(R+4*ks)}, {'0' if ks == 0 else Q(DA+4*c)}")
        for r in range(2):
            for c in range(4): a(f"v_cndmask_b32 v{DA+4*c+r}, v{DA+4*c+r}, v{DA+4*c+r+2}, s[22:23]")
            a(f"v_cvt_pk_bf16_f32 v{PQ+4*r}, v{DA+r}, v{DA+4+r}\nv_cvt_pk_bf16_f32 v{PQ+4*r+1}, v{DA+8+r}, v{DA+12+r}")
            a(f"buffer_store_dwordx4 {Q(PQ+4*r)}, v10, {SQ(rWS)}, s4 offen offset:{128*r} sc1")
        self.stamp(12)
        GP = 144; U = 176; F = 80
        a(f"""
        L_GATHER:
        s_waitcnt lgkmcnt(0)
        s_movk_i32 s4, 0x7ff
        v_bfi_b32 v14, v{vE}, 0, s4
        v_lshrrev_b32 v10, 3, v0
        s_lshl_b32 s4, s{sW}, 3
        v_add_lshl_u32 v10, v10, s4, 15
        v_and_b32 v11, 7, v0
        v_lshlrev_b32 v11, 4, v11
        v_add_u32 v10, v10, v11
        s_lshl_b32 s4, s{sDG}, 7
        s_add_u32 s4, s4, {WS_PART}
        s_mov_b32 s11, 0
        v_bfe_u32 v12, v0, 3, 2
        v_lshlrev_b32 v13, 11, v14
        v_lshl_add_u32 v13, v12, 1, v13
        s_lshl_b32 s8, s{sDG}, 3
        v_add_u32 v13, s8, v13
        buffer_load_ushort v{F}, v13, {SQ(rX)}, 0 offen
        """)
        self.wait_flag(C_SEL, vL4, 15)
        a(f"""
        v_lshrrev_b32 v15, 16, v{vE}
        v_bfe_i32 v{F+2}, v15, 15, 1
        v_not_b32 v{F+2}, v{F+2}
        v_or_b32 v{F+2}, 0x8000, v{F+2}
        v_xor_b32 v15, v15, v{F+2}
        v_lshlrev_b32 v15, 16, v15
        v_mul_f32 v15, {LOG2E|0x80000000:#x}, v15
        v_exp_f32 v15, v15
        s_movk_i32 s8, {XSTR}
        v_mul_u32_u24 v{F+2}, s8, v12
        v_add_f32 v15, 1.0, v15
        v_rcp_f32 v15, v15
        v_sub_u32 v{F+3}, 2047, v14
        v_lshl_add_u32 v{F+2}, v{F+3}, 1, v{F+2}
        v_lshlrev_b32 v{F+3}, 13, v12
        v_lshl_add_u32 v{F+3}, v14, 2, v{F+3}
        v_add_u32 v{F+3}, {YB}, v{F+3}
        v_lshl_add_u32 v{F+4}, v12, 2, v11
        v_mov_b32 v{F+6}, s66
        v_mov_b32 v{F+7}, s67
        v_cmp_lt_u32 vcc, 1, v12
        v_lshlrev_b32 v{F+5}, 4, v12
        v_cndmask_b32 v{F+6}, v{F+6}, v{F+7}, vcc
        v_lshrrev_b32 v{F+6}, v{F+5}, v{F+6}
        v_lshlrev_b32 v{F+6}, 16, v{F+6}
        v_add_f32 v{F+6}, 1.0, v{F+6}
        s_cmp_eq_u32 s{sROLE}, 1
        s_cbranch_scc1 L_GGO
        s_setprio 0
        """)
        self.wait_flag(C_Y3, vL4, F+1, sleep=2)
        a("s_setprio 2\nL_GGO:")
        self.stamp(13)
        a(f"""
        s_mov_b64 s[8:9], -1
        s_cmp_lt_u32 s{sW}, 3
        s_cselect_b64 s[12:13], -1, 0
        s_add_u32 s5, s4, 0x100000
        v_mov_b32 v{GP+4}, 0
        v_mov_b32 v{GP+5}, 0
        v_mov_b32 v{GP+6}, s{sTAG}
        s_waitcnt vmcnt(0)
        """)
        if self.opt.get("gd"): a(f"s_sleep {self.opt['gd']}")
        a("L_GP:")
        for k, mk in enumerate((8, 12)):
            a(f"s_cmp_eq_u64 {SP(mk)}, 0\ns_cbranch_scc1 L_GS{k}\nbuffer_load_dwordx3 v[{GP+4*k}:{GP+4*k+2}], v10, {SQ(rWS)}, s{4+k} offen sc1\nL_GS{k}:")
        a(f"""
        s_add_u32 s11, s11, 1
        s_waitcnt vmcnt(0)
        v_cmp_ne_u32 s[8:9], s{sTAG}, v{GP+2}
        v_cmp_ne_u32 s[12:13], s{sTAG}, v{GP+6}
        s_or_b64 vcc, s[8:9], s[12:13]
        s_cbranch_vccz L_GOT
        s_sleep {self.opt.get("gsl", 2)}
        s_cmp_lt_u32 s11, 0x4000
        s_cbranch_scc1 L_GP
        L_GOT:
        """)
        self.stamp(14)
        for k in range(2):
            self.unpack(U+4*k, U+4*k+1, GP+4*k); self.unpack(U+4*k+2, U+4*k+3, GP+4*k+1)
        for i in range(4): a(f"v_add_f32 v{U+i}, v{U+i}, v{U+4+i}")
        for i in range(4): a(f"v_add_f32_dpp v{U+i}, v{U+i}, v{U+i} row_ror:8 row_mask:0xf bank_mask:0xf")
        a("s_mov_b32 exec_lo, 0x00ff00ff\ns_mov_b32 exec_hi, 0x00ff00ff")
        for i in range(4): a(f"ds_add_f32 v11, v{U+i} offset:{UPD+4*i}")
        self.arrive(C_UPD, vW4, vONE)
        a(f"s_cmp_lg_u32 s{sW}, 0\ns_cbranch_scc1 L_FIN")
        self.wait_flag(C_Y3, vL4, F+1)
        a(f"ds_read_u16 v{F+8}, v{F+2} offset:{XR0}\nds_read_b32 v{F+9}, v{F+3}\nv_lshlrev_b32 v{F}, 16, v{F}")
        self.wait_flag(C_UPD, vL4, F+1)
        a(f"""
        ds_read_b32 v{F+10}, v{F+4} offset:{UPD}
        v_lshlrev_b32 v{F+8}, 16, v{F+8}
        v_fma_f32 v{F}, v{F+8}, v{F+6}, v{F}
        v_add_f32 v{F}, v{F}, v{F+9}
        s_waitcnt lgkmcnt(0)
        v_fma_f32 v{F}, v{F+10}, v15, v{F}
        v_cvt_pk_bf16_f32 v{F}, v{F}, v{F}
        s_mov_b32 exec_hi, 0
        buffer_store_short v{F}, v13, {SQ(rOUT)}, 0 offen
        s_mov_b64 exec, -1
        """)
        self.stamp(15)
        a("s_branch L_FIN")
        a(f"""
        L_TRIM:
        v_subrev_u32 v{T+12}, s4, v{E}
        v_subrev_u32 v{T+13}, s4, v{E+1}
        v_subrev_u32 v{T+14}, s4, v{E+2}
        v_subrev_u32 v{T+15}, s4, v{E+3}
        v_min3_u32 v{T+12}, v{T+12}, v{T+13}, v{T+14}
        v_min_u32 v{T+12}, v{T+12}, v{T+15}
        """)
        for sh in ("row_shr:1 row_mask:0xf","row_shr:2 row_mask:0xf","row_shr:4 row_mask:0xf","row_shr:8 row_mask:0xf","row_bcast:15 row_mask:0xa","row_bcast:31 row_mask:0xc"):
            a(f"v_min_u32_dpp v{T+12}, v{T+12}, v{T+12} {sh} bank_mask:0xf")
        a(f"""
        v_readlane_b32 s5, v{T+12}, 63
        s_add_u32 s4, s4, s5
        s_add_u32 s4, s4, 1
        s_branch L_CAND
        L_SLOWT:
        v_max3_u32 v{T+4}, v{E}, v{E+1}, v{E+2}
        v_max_u32 v{T+4}, v{T+4}, v{E+3}
        s_mov_b32 s4, 0
        s_brev_b32 s5, 1
        L_BS:
        s_or_b32 s6, s4, s5
        v_cmp_le_u32 vcc, s6, v{T+4}
        s_lshr_b32 s5, s5, 1
        s_bcnt1_i32_b64 s7, vcc
        s_cmp_ge_u32 s7, 8
        s_cselect_b32 s4, s6, s4
        s_cmp_lg_u32 s7, 8
        s_cbranch_scc1 L_BS
        v_mbcnt_lo_u32_b32 v{T+5}, vcc_lo, 0
        v_mbcnt_hi_u32_b32 v{T+5}, vcc_hi, v{T+5}
        v_lshlrev_b32 v{T+5}, 2, v{T+5}
        s_mov_b64 exec, vcc
        ds_write_b32 v{T+5}, v0 offset:{LST2}
        s_mov_b64 exec, -1
        v_lshrrev_b32 v{T+6}, 3, v0
        v_lshlrev_b32 v{T+6}, 2, v{T+6}
        ds_read_b32 v{T+5}, v{T+6} offset:{LST2}
        s_waitcnt lgkmcnt(0)
        v_and_b32 v{T+6}, 7, v0
        v_lshl_add_u32 v{T+5}, v{T+5}, 3, v{T+6}
        v_lshlrev_b32 v{T+6}, 3, v{T+5}
        ds_read_b64 {P(T+2)}, v{T+6} offset:{KEYS}
        v_and_b32 v{T+6}, 1, v{T+5}
        v_and_b32 v{T+5}, -2, v{T+5}
        v_lshl_add_u32 v{T+5}, v{T+6}, 10, v{T+5}
        v_sub_u32 v{E}, 0xfff, v{T+5}
        v_sub_u32 v{E+1}, 0xffe, v{T+5}
        v_sub_u32 v{E+2}, 0xdff, v{T+5}
        v_sub_u32 v{E+3}, 0xdfe, v{T+5}
        s_mov_b32 s5, 0xffff0000
        s_waitcnt lgkmcnt(0)
        v_lshl_or_b32 v{E}, v{T+2}, 16, v{E}
        v_and_or_b32 v{E+1}, v{T+2}, s5, v{E+1}
        v_lshl_or_b32 v{E+2}, v{T+3}, 16, v{E+2}
        v_and_or_b32 v{E+3}, v{T+3}, s5, v{E+3}
        s_branch L_CAND
        """)

    def fin(self):
        a = self.a
        a("L_FIN:")
        if self.opt.get("wb"): a("s_waitcnt vmcnt(0)\nbuffer_wbl2 sc1\ns_waitcnt vmcnt(0)")
        if "gamp" in self.opt:
            k = self.opt["gamp"]; half = self.opt.get("gC", 0); mode = self.opt.get("gmode", 0)
            a(f"""
            s_lshr_b32 s4, s{sW}, 2
            s_lshl_b32 s4, s4, 10
            s_lshl_b32 s5, s2, 2
            s_add_u32 s4, s4, s5
            s_and_b32 s5, s{sW}, 3
            s_add_u32 s4, s4, s5
            s_lshl_b32 s4, s4, 3
            s_add_u32 s4, s4, {WS_STAMP}
            v_mov_b32 v1, 0
            v_mov_b32 v4, s{sST}
            v_mov_b32 v5, s{sST+2*k}
            s_mov_b64 exec, 1
            buffer_store_dwordx2 v[4:5], v1, {SQ(rWS)}, s4 offen sc1
            s_mov_b64 exec, -1
            s_cmp_lg_u32 s2, 0
            s_cbranch_scc1 L_END
            s_cmp_lg_u32 s{sW}, 0
            s_cbranch_scc1 L_END
            L_GA1:
            s_memrealtime s[6:7]
            s_waitcnt lgkmcnt(0)
            s_sub_u32 s5, s6, s{sST}
            s_cmp_lt_u32 s5, 4000
            s_cbranch_scc1 L_GA1
            v_lshlrev_b32 v1, 3, v0
            s_mov_b32 s4, {WS_STAMP + half*8192}
            s_sub_u32 s8, s{sST}, 1000
            """)
            for i in range(16): a(f"buffer_load_dwordx2 {P(16+2*i)}, v1, {SQ(rWS)}, s4 offen sc1\ns_add_u32 s4, s4, 512")
            a("s_waitcnt vmcnt(0)\nv_mov_b32 v2, -1\nv_mov_b32 v3, 0\nv_mov_b32 v6, 0")
            for i in range(16):
                a(f"v_subrev_u32 v{16+2*i}, s8, v{16+2*i}\nv_min_u32 v2, v2, v{16+2*i}\nv_cmp_ne_u32 vcc, 0, v{17+2*i}\nv_subrev_u32 v{17+2*i}, s8, v{17+2*i}\nv_cndmask_b32 v{17+2*i}, 0, v{17+2*i}, vcc\nv_addc_co_u32 v6, vcc, 0, v6, vcc")
                a(f"v_max_u32 v3, v3, v{17+2*i}" if mode == 0 else f"v_add_u32 v3, v3, v{17+2*i}")
            op = "v_max_u32_dpp" if mode == 0 else "v_add_u32_dpp"
            for sh in ("row_shr:1 row_mask:0xf","row_shr:2 row_mask:0xf","row_shr:4 row_mask:0xf","row_shr:8 row_mask:0xf","row_bcast:15 row_mask:0xa","row_bcast:31 row_mask:0xc"):
                a(f"v_min_u32_dpp v2, v2, v2 {sh} bank_mask:0xf\n{op} v3, v3, v3 {sh} bank_mask:0xf\nv_add_u32_dpp v6, v6, v6 {sh} bank_mask:0xf")
            if mode == 1:
                a("v_cvt_f32_u32 v3, v3\nv_cvt_f32_u32 v6, v6\nv_rcp_f32 v6, v6\nv_mul_f32 v3, v3, v6\nv_cvt_u32_f32 v3, v3")
            a(f"""
            v_readlane_b32 s4, v3, 63
            v_readlane_b32 s5, v2, 63
            s_sub_u32 s4, s4, s5
            s_min_u32 s4, s4, 4000
            s_mul_i32 s4, s4, 10
            s_add_u32 s4, s4, 5000
            L_GA2:
            s_memrealtime s[6:7]
            s_waitcnt lgkmcnt(0)
            s_sub_u32 s5, s6, s{sST}
            s_cmp_lt_u32 s5, s4
            s_cbranch_scc1 L_GA2
            """)
        if "amp" in self.opt:
            k = self.opt["amp"]
            a(f"""
            s_cmp_lg_u32 s2, {self.opt.get('ampb', 0)}
            s_cbranch_scc1 L_END
            s_cmp_lg_u32 s{sW}, {self.opt.get('ampw', 0)}
            s_cbranch_scc1 L_END
            s_sub_u32 s4, s{sST+2*k}, s{sST}
            s_min_u32 s4, s4, 5000
            s_mul_i32 s4, s4, 10
            {"s_mov_b32 s4, %d" % self.opt["fix"] if "fix" in self.opt else ""}
            L_AMP:
            s_memrealtime s[6:7]
            s_waitcnt lgkmcnt(0)
            s_sub_u32 s5, s6, s{sST}
            s_cmp_lt_u32 s5, s4
            s_cbranch_scc1 L_AMP
            """)
        if self.stamps:
            a(f"s_lshl_b32 s4, s2, 3\ns_add_u32 s4, s4, s{sW}\ns_lshl_b32 s4, s4, 7\ns_add_u32 s4, s4, {WS_STAMP}\nv_mov_b32 v1, s4\ns_mov_b64 exec, 1")
            for i in range(8):
                for k in range(4): a(f"v_mov_b32 v{4+k}, s{sST+4*i+k}")
                a(f"buffer_store_dwordx4 v[4:7], v1, {SQ(rWS)}, 0 offen offset:{16*i}")
        a("L_END:\ns_endpgm")

    def build(self):
        if self.stamps:
            for i in range(2, 32, 2): self.a(f"s_mov_b64 {SP(sST+i)}, 0")
        self.prologue(); self.kgen(); self.cmain(); self.fmain(); self.fin()
        body = self.a.finalize()
        if not self.opt.get("noalign"): body = align_pass(body, KN)
        hdr = open("parallel_sum__ssm_conv_s4d__moe_arch_mod__prompt.s.ref").read().split("; Override launch")[0]
        out = hdr + f"; @launch grid=(256,1,1) block=(512,1,1) lds={LDS_END}\n"
        out += f'.amdgcn_target "amdgcn-amd-amdhsa--gfx950"\n.text\n.globl {KN}\n.p2align 8\n.type {KN},@function\n{KN}:\n'
        out += body
        out += f'''.section .rodata,"a"
.p2align 6
.amdhsa_kernel {KN}
  .amdhsa_next_free_vgpr 256
  .amdhsa_next_free_sgpr 102
  .amdhsa_accum_offset 256
  .amdhsa_group_segment_fixed_size 0
  .amdhsa_kernarg_size 120
  .amdhsa_user_sgpr_count 2
  .amdhsa_user_sgpr_kernarg_segment_ptr 1
  .amdhsa_system_sgpr_workgroup_id_x 1
  .amdhsa_float_denorm_mode_32 3
.end_amdhsa_kernel
'''
        return out

if __name__ == "__main__":
    out = sys.argv[1]
    stamps = "--stamps" in sys.argv
    opt = {}
    for x in sys.argv[2:]:
        if "=" in x:
            k, v = x.split("="); opt[k] = int(v, 0)
    open(out, "w").write(G(stamps, opt).build())
```

```python
import sys, struct
from asmlib import Asm, align_pass

KN = "parallel_sum__ssm_conv_s4d__moe_arch_mod__prompt_kernel"
def f2u(x): return struct.unpack("<I", struct.pack("<f", x))[0]
LOG2E = f2u(1.4426950408889634); INV2PI = f2u(0.15915494309189535)

LIST = 192; IDX = 256; RSV = 288; LST2 = 320; GM = 384; CNTR = 512; CNT2 = 516; CNT3 = 520; CNT4 = 524; C_RW = 544; C_ST = 528; STG = 576; HB = 4096; UPD = 1024; SELF = 1152; KEYS = 4096; LMC = 8192
TROW = 528
MSB = 9216
XR0 = 9216 + 8192; XSTR = 4608
K0 = XR0 + 4*XSTR
KSTR = 2368; K3O = 4*KSTR; KREG = 14336
VT0 = K0 + 4*KREG; VSTR = 32*TROW
YB = VT0; PRE = VT0 + 32768; RX = VT0 + 49152
LDS_END = VT0 + 4*VSTR
C_XR, C_Y1, C_Y2, C_Y3, C_KEYS, C_PRE, C_UPD, C_SEL, C_XS, C_Y0, C_KD, C_H = [16*i for i in range(12)]
WS_ALIVE = 0x800
WS_STAT = 0x8000
WS_H1 = 0x10000
WS_PART = 0x100000
WS_XT = 0x300000
WS_FL2 = 0xF0000
WS_FL3 = 0xF8000
WS_STAMP = 0x800000
WS_SIZE = 0x1000000

sX, sLAR, sAI, sCR, sCI, sLDT, sDSK = 16, 18, 20, 22, 24, 26, 28
sWR, sWGT, sWU, sWD = 32, 34, 36, 38
sOUT, sWS = 40, 42
rWS, rX, rOUT = 44, 48, 52
sTAG = 56; sW = 3; sDG = 57; sJ = 59
sO = 60
sSH = 12
sROLE = 69
sST = 70
rG, rU, rD = 16, 20, 24

def P(r): return f"v[{r}:{r+1}]"
def Q(r): return f"v[{r}:{r+3}]"
def SP(r): return f"s[{r}:{r+1}]"
def SQ(r): return f"s[{r}:{r+3}]"
MFMA = "v_mfma_f32_16x16x32_bf16"

def interleave(main, fill, per=1, start=0):
    out = []; fill = list(fill)
    for k, m in enumerate(main):
        out.append(m)
        if k >= start:
            for _ in range(per):
                if fill: out.append(fill.pop(0))
    return out + fill

class G:
    def __init__(self, stamps=False, opt=None):
        self.a = Asm(); self.stamps = stamps; self.opt = opt or {}
        self.tpos = [v for k, v in self.opt.items() if k in ("tg","tu","td","tga","tgb","tua","tub","tda","tdb")]
        self.NX0 = self.opt.get("nx0", 2); self.NX1 = self.opt.get("nx1", 1); self.NX2 = self.opt.get("nx2", 1)
        self.NB0 = self.opt.get('nb0', 2)
        self.NXA = self.NX0 + self.NX1 + self.NX2
    def hook(self, p):
        for name, reg, ad, base in (("tg", 18, 17, sWGT), ("tu", 19, 17, sWU), ("td", 16, 15, sWD)):
            for h, ex in (("", None), ("a", "hi"), ("b", "lo")):
                if self.opt.get(name+h, -9) == p:
                    if ex: self.a(f"s_mov_b32 exec_{ex}, 0")
                    self.a(f"global_load_dword v{reg}, v{ad}, {SP(base)}")
                    if ex: self.a(f"s_mov_b32 exec_{ex}, -1")
    def est(self, i):
        if self.opt.get("est"): self.a(f"s_memrealtime {SP(sST+2*i)}")
    def stamp(self, i):
        if self.opt.get("est") and i >= 6 and i < 14: return
        if self.stamps or self.opt.get("amp") == i or self.opt.get("gamp") == i:
            self.a(f"s_memrealtime {SP(sST+2*i)}\ns_waitcnt lgkmcnt(0)")
    def kst(self, i):
        if self.opt.get("kst"): self.a(f"s_memrealtime {SP(sST+2*i)}")
    def unp(self, lo, hi, src):
        return [f"v_lshlrev_b32 v{lo}, 16, v{src}", f"v_and_b32 v{hi}, 0xffff0000, v{src}"]
    def unpack(self, lo, hi, src):
        for l in self.unp(lo, hi, src): self.a(l)
    def bf16r(self, dst, src):
        self.a(f"v_cvt_pk_bf16_f32 v{dst}, v{src}, v{src}\nv_and_b32 v{dst}, 0xffff0000, v{dst}")
    def cmul2(self, d, x, y, t):
        a = self.a
        for q in (0,2): a(f"v_pk_mul_f32 {P(t+q)}, {P(x+q)}, {P(y+q)} op_sel_hi:[1,0]")
        for q in (0,2): a(f"v_pk_fma_f32 {P(d+q)}, {P(x+q)}, {P(y+q)}, {P(t+q)} op_sel:[1,1,0] op_sel_hi:[0,1,1] neg_lo:[1,0,0]")
    def arr(self, off, vw4, vone):
        return ["s_mov_b64 exec, 1", f"ds_write_b32 v{vw4}, v{vone} offset:{off}", "s_mov_b64 exec, -1"]
    def arrive(self, off, vw4, vone):
        for l in self.arr(off, vw4, vone): self.a(l)
    def wait_flag(self, off, vl4, vt, sleep=0):
        L = self.a.label("LW")
        sl = f"s_sleep {sleep}\n" if sleep else ""
        self.a(f"{L}:\n{sl}ds_read_b32 v{vt}, v{vl4} offset:{off}\ns_waitcnt lgkmcnt(0)\nv_cmp_eq_u32 vcc, 0, v{vt}\ns_cbranch_vccnz {L}")
    def srd(self, r, p, size):
        self.a(f"s_mov_b32 s{r}, s{p}\ns_and_b32 s{r+1}, s{p+1}, 0xffff\ns_mov_b32 s{r+2}, {size:#x}\ns_mov_b32 s{r+3}, 0x20000")
    def wsb(self):
        if self.opt.get("wsb"): self.a(f"s_add_u32 s{sWS}, s{sWS}, {self.opt['wsb']:#x}\ns_addc_u32 s{sWS+1}, s{sWS+1}, 0")
    def mktag(self):
        self.a(f"s_mul_i32 s{sTAG}, s{sTAG}, 0x9E3779B1\ns_add_u32 s{sTAG}, s{sTAG}, 0x7F4A7C15\ns_or_b32 s{sTAG}, s{sTAG}, 1")

    def prologue(self):
        a = self.a
        if "gamp" in self.opt: a(f"s_mov_b32 s{sST+2*self.opt['gamp']}, 0")
        if self.stamps or "amp" in self.opt or "gamp" in self.opt: a(f"s_memrealtime {SP(sST)}")
        a(f"""
        s_cmp_ge_u32 s2, 256
        s_cbranch_scc1 L_END
        s_load_dwordx16 s[16:31], s[0:1], 0
        s_load_dwordx8 s[32:39], s[0:1], 64
        s_load_dwordx2 {SP(sOUT)}, s[0:1], 96
        s_load_dwordx2 {SP(sWS)}, s[0:1], 112
        s_getpc_b64 s[14:15]
        v_lshrrev_b32 v1, 6, v0
        v_and_b32 v10, 255, v0
        v_and_b32 v0, 63, v0
        v_readfirstlane_b32 s{sW}, v1
        v_lshlrev_b32 v1, 2, v0
        v_mov_b32 v2, 0
        ds_write2st64_b32 v1, v2, v2 offset0:0 offset1:2
        s_and_b32 s5, s2, 7
        s_lshr_b32 s6, s2, 3
        s_lshl_b32 s{sDG}, s5, 5
        s_add_u32 s{sDG}, s{sDG}, s6
        s_and_b32 s58, s{sW}, 3
        s_lshl_b32 s7, s{sDG}, 2
        s_add_u32 s7, s7, s58
        s_lshl_b32 s7, s7, 8
        v_add_u32 v15, s7, v1
        s_mov_b32 s{sO}, 0
        s_lshl_b32 s4, s{sDG}, 3
        s_cmp_lt_u32 s{sW}, 4
        s_cbranch_scc1 L_F0
        """)
        CPF = self.opt.get("cpf", 0)
        if CPF:
            a(f"""
            s_and_b32 s8, s6, {(1<<CPF)-1}
            s_lshl_b32 s8, s8, 2
            s_add_u32 s8, s8, s58
            s_lshl_b32 s8, s8, {13-CPF}
            v_lshl_add_u32 v2, v0, 7, s8
            v_min_u32 v2, L_END-{KN}-128, v2
            s_mov_b64 exec, {(1<<(64>>CPF))-1:#x}
            global_load_dword v16, v2, s[14:15]
            s_mov_b64 exec, -1
            """)
        else: a(f"""
        v_lshlrev_b32 v2, 7, v10
        v_min_u32 v2, L_END-{KN}-128, v2
        global_load_dword v16, v2, s[14:15]
        """)
        a(f"""
        v_lshlrev_b32 v3, 12, v10
        v_add_u32 v3, s4, v3
        s_lshr_b32 s8, s6, 2
        s_add_u32 s9, s5, 3
        s_and_b32 s9, s9, 7
        s_min_u32 s9, s9, 6
        s_cmp_lt_u32 s6, 28
        s_cselect_b32 s8, s8, s9
        s_mul_i32 s9, s5, 7
        s_add_u32 s8, s8, s9
        s_lshl_b32 s8, s8, 7
        s_and_b32 s9, s6, 3
        s_lshl_b32 s9, s9, 8
        v_add_u32 v17, s9, v10
        s_movk_i32 s9, 7168
        v_mul_u32_u24 v17, s9, v17
        v_add_u32 v17, s8, v17
        s_waitcnt lgkmcnt(0)
        s_add_u32 s6, s{sLDT}, s4
        s_addc_u32 s7, s{sLDT+1}, 0
        s_load_dwordx2 s[64:65], s[6:7], 0
        global_load_dword v224, v15, {SP(sLAR)}
        global_load_dword v225, v15, {SP(sAI)}
        global_load_dword v226, v15, {SP(sCR)}
        global_load_dword v227, v15, {SP(sCI)}
        s_add_u32 s6, s{sDSK}, s4
        s_addc_u32 s7, s{sDSK+1}, 0
        s_load_dwordx2 s[66:67], s[6:7], 0
        s_lshl_b32 s8, s8, 10
        s_bfe_u32 s9, s2, 0x20003
        s_lshl_b32 s9, s9, 2
        s_add_u32 s9, s9, s58
        s_lshl_b32 s9, s9, 7
        s_add_u32 s8, s8, s9
        v_lshl_add_u32 v15, v0, 11, s8
        s_barrier
        s_mov_b32 s{sO+1}, 0x100000
        s_mov_b32 s{sO+2}, 0x200000
        s_mov_b32 s{sO+3}, 0x300000
        """)
        self.wsb()
        self.srd(rWS, sWS, WS_SIZE); self.srd(rX, sX, 0x400000); self.srd(rOUT, sOUT, 0x400000)
        if self.opt.get("kprio", 2): a(f"s_setprio {self.opt.get('kprio', 2)}")
        self.hook(-2)
        if "probe" in self.opt:
            p = {0: sWS, 1: sOUT, 2: 30, 3: sWD}[self.opt["probe"]]
            off = self.opt.get("poff", 0x200000)
            a(f"s_cmp_lg_u32 s2, 0\ns_cbranch_scc1 L_NPR\ns_cmp_lg_u32 s{sW}, 4\ns_cbranch_scc1 L_NPR\ns_waitcnt vmcnt(0)")
            if self.opt.get("pdelay"): a(f"s_mov_b32 s4, 0\nL_PD:\ns_sleep 100\ns_add_u32 s4, s4, 1\ns_cmp_lt_u32 s4, 10\ns_cbranch_scc1 L_PD")
            a(f"v_mov_b32 v20, {off}\nglobal_load_dword v21, v20, {SP(p)}\ns_waitcnt vmcnt(0)\ns_memrealtime {SP(sST)}\ns_waitcnt lgkmcnt(0)")
            for i in range(8): a(f"v_add_u32 v20, 0x4800, v20\nglobal_load_dword v21, v20, {SP(p)}\ns_waitcnt vmcnt(0)")
            a(f"s_memrealtime {SP(sST+30)}\ns_waitcnt lgkmcnt(0)\nL_NPR:")

    def dt_calc(self, DT):
        self.a(f"""
        s_lshl_b32 s4, s58, 4
        s_lshr_b64 s[6:7], s[64:65], s4
        s_lshl_b32 s6, s6, 16
        v_mov_b32 v{DT}, s6
        v_mul_f32 v{DT}, {LOG2E:#x}, v{DT}
        v_exp_f32 v{DT}, v{DT}
        """)
        self.bf16r(DT, DT)
    def zcalc(self, plar, pai, DT, ER, FI, t):
        a = self.a
        self.unpack(t, t+1, plar)
        self.unpack(t+2, t+3, pai)
        a(f"v_mul_f32 v{t}, {LOG2E:#x}, v{t}\nv_mul_f32 v{t+1}, {LOG2E:#x}, v{t+1}\nv_exp_f32 v{t}, v{t}\nv_exp_f32 v{t+1}, v{t+1}")
        a(f"v_mul_f32 v{t+2}, v{t+2}, v{DT}\nv_mul_f32 v{t+3}, v{t+3}, v{DT}")
        a(f"v_mul_f32 v{FI}, {INV2PI:#x}, v{t+2}\nv_mul_f32 v{FI+1}, {INV2PI:#x}, v{t+3}")
        a(f"v_cvt_pk_bf16_f32 v{t+2}, v{t}, v{t+1}")
        self.unpack(t, t+1, t+2)
        a(f"v_mul_f32 v{t}, v{t}, v{DT}\nv_mul_f32 v{t+1}, v{t+1}, v{DT}")
        a(f"v_mul_f32 v{ER}, {LOG2E|0x80000000:#x}, v{t}\nv_mul_f32 v{ER+1}, {LOG2E|0x80000000:#x}, v{t+1}")
    def cexp(self, E, p, ER, FI, t):
        a = self.a
        if p != 1.0:
            for q in (0,1): a(f"v_mul_f32 v{t+q}, {f2u(p):#x}, v{ER+q}\nv_mul_f32 v{t+2+q}, {f2u(p):#x}, v{FI+q}")
            e, f = t, t+2
        else: e, f = ER, FI
        for q in (0,1): a(f"v_exp_f32 v{t+q}, v{e+q}\nv_fract_f32 v{t+2+q}, v{f+q}")
        for q in (0,1): a(f"v_cos_f32 v{E+2*q}, v{t+2+q}\nv_sin_f32 v{E+2*q+1}, v{t+2+q}")
        for q in (0,1): a(f"v_mul_f32 v{E+2*q}, v{E+2*q}, v{t+q}\nv_mul_f32 v{E+2*q+1}, v{E+2*q+1}, v{t+q}")

    PRM=224; VDT=228; VaW=229; VER=230; VFI=232; VCUR=236; VE8=240; VTMP=244; VPK=248
    def vprep(self):
        a = self.a
        a(f"s_mul_i32 s4, s58, {VSTR}\ns_add_u32 s4, s4, {VT0}\nv_lshl_add_u32 v{self.VaW}, v0, 3, s4")
        a(f"v_add_f32 v{self.VDT}, v{self.VDT}, v{self.VDT}")
        self.unpack(self.VCUR, self.VCUR+2, self.PRM+2)
        self.unpack(self.VCUR+1, self.VCUR+3, self.PRM+3)
        for i in range(4): a(f"v_mul_f32 v{self.VCUR+i}, v{self.VCUR+i}, v{self.VDT}")
        self.cexp(self.VE8, 8.0, self.VER, self.VFI, self.VTMP)
    def vloop(self, n=8):
        a = self.a; L = a.label("LV"); CUR = self.VCUR
        a(f"s_mov_b32 s4, 0\n{L}:")
        for j in range(4):
            r = self.VPK + 2*j
            a(f"v_cvt_pk_bf16_f32 v{r}, v{CUR}, -v{CUR+1}\nv_cvt_pk_bf16_f32 v{r+1}, v{CUR+2}, -v{CUR+3}")
            a(f"ds_write_b64 v{self.VaW}, {P(r)} offset:{j*TROW}")
            self.cmul2(CUR, CUR, self.VE8, self.VTMP)
        a(f"v_add_u32 v{self.VaW}, {4*TROW}, v{self.VaW}\ns_add_u32 s4, s4, 1\ns_cmp_lt_u32 s4, {n}\ns_cbranch_scc1 {L}")

    def kgen(self):
        a = self.a
        E1=20; E256=24; EV = lambda i: 28 + 4*(i-1)
        ODD=220; TMP=244; BASE=236; TM2=240; PK=248; DT=228; ER=230; FI=232
        VF=48; XF=112; YF=144; DX=[204,208]; DY=[212,216]; RAW=180
        aW=11; aX=12; aY=13; aV=14
        vXO=3; vW4=4; vONE=5; vL4=6
        zF=196; zT=197; zK=198; aE=199; aE2=200; aE3=201; aKB=202
        NX0 = self.NX0
        a(f"""
        s_mul_i32 s8, s58, {KREG}
        s_add_u32 s8, s8, {K0}
        s_mul_i32 s10, s58, {XSTR}
        s_add_u32 s10, s10, {XR0}
        s_mul_i32 s11, s58, {VSTR}
        s_add_u32 s11, s11, {VT0}
        s_movk_i32 s9, {TROW}
        v_lshl_add_u32 v{aW}, v0, 3, s8
        v_and_b32 v1, 15, v0
        v_lshrrev_b32 v2, 4, v0
        v_lshlrev_b32 v7, 4, v2
        v_mad_u32_u24 v{aV}, v1, s9, v7
        v_add_u32 v{aV}, s11, v{aV}
        v_add_u32 v7, s8, v7
        v_lshrrev_b32 v8, 2, v1
        v_lshlrev_b32 v9, 3, v8
        s_mov_b32 s4, 0x01030000
        v_lshrrev_b32 v{aX}, v9, s4
        v_and_b32 v{aX}, 0xff, v{aX}
        v_add_u32 v{aX}, v{aX}, v1
        v_mad_u32_u24 v{aX}, v{aX}, s9, v7
        s_mov_b32 s4, 0x14110804
        v_lshrrev_b32 v{aY}, v9, s4
        v_and_b32 v{aY}, 0xff, v{aY}
        v_and_b32 v9, 3, v1
        v_add_u32 v{aY}, v{aY}, v9
        v_add_u32 v8, 23, v8
        v_cmp_eq_u32 vcc, 3, v9
        v_cndmask_b32 v{aY}, v{aY}, v8, vcc
        v_mad_u32_u24 v{aY}, v{aY}, s9, v7
        s_lshl_b32 s4, s58, 2
        v_mov_b32 v{vW4}, s4
        v_mov_b32 v{vONE}, 1
        v_lshlrev_b32 v{vL4}, 2, v9
        s_movk_i32 s9, {KSTR}
        v_lshrrev_b32 v7, 2, v0
        v_lshl_add_u32 v8, v9, 3, s8
        v_mad_u32_u24 v{zF}, v7, s9, v8
        s_movk_i32 s4, 160
        v_mad_u32_u24 v{zK}, v7, s4, v8
        v_lshrrev_b32 v7, 3, v0
        v_and_b32 v8, 7, v0
        v_lshl_add_u32 v8, v8, 3, s8
        v_mad_u32_u24 v{zT}, v7, s9, v8
        v_lshrrev_b32 v7, 5, v0
        v_lshlrev_b32 v7, 8, v7
        v_lshl_add_u32 v7, v1, 4, v7
        v_add_u32 v7, s8, v7
        v_and_b32 v8, 1, v2
        v_lshl_add_u32 v{aE}, v8, 3, v7
        v_lshl_add_u32 v{aE2}, v8, 9, v7
        v_and_b32 v7, 1, v1
        s_movk_i32 s4, 640
        v_mul_u32_u24 v7, s4, v7
        v_lshl_add_u32 v7, v2, 5, v7
        v_and_b32 v8, 14, v1
        v_add3_u32 v{aE3}, v7, v8, s8
        v_mov_b32 v{aKB}, s8
        v_mov_b32 v8, 0
        v_mov_b32 v9, 0
        s_waitcnt lgkmcnt(0)
        """)
        self.dt_calc(DT)
        a(f"s_waitcnt vmcnt({self.tpos.count(-2)})")
        self.stamp(1)
        self.hook(0)
        self.zcalc(224, 225, DT, ER, FI, TMP)
        self.vprep(); self.hook(1)
        cuts = sorted(set(p-1 for p in self.tpos if 2 <= p <= 8)) + [8]
        prev = 0
        for c in cuts:
            self.vloop(c-prev); self.hook(c+1); prev = c
        for ct in range(2):
            for s in range(8): a(f"ds_read_b128 {Q(VF+32*ct+4*s)}, v{aV} offset:{16*TROW*ct+64*s}")
        self.kst(10)
        self.cexp(E1, 1.0, ER, FI, TMP)
        self.cexp(E256, 256.0, ER, FI, TMP)
        self.hook(10)
        self._pk = 0
        def put(row, src):
            r = PK + 2*(self._pk % 4); self._pk += 1
            a(f"v_cvt_pk_bf16_f32 v{r}, v{src}, v{src+1}\nv_cvt_pk_bf16_f32 v{r+1}, v{src+2}, v{src+3}")
            a(f"ds_write_b64 v{aW}, {P(r)} offset:{row*TROW}")
        a(f"v_mov_b32 v{PK}, 0x3f80\nv_mov_b32 v{PK+1}, 0x3f80\nds_write_b64 v{aW}, {P(PK)}")
        self._pk += 1
        put(1, E1)
        self.cmul2(EV(1), E1, E1, TMP)
        for i in range(1, 6):
            put(2*i, EV(i))
            if i < 5:
                self.cmul2(ODD, EV(i), E1, TMP)
                self.cmul2(EV(i+1), EV(i), EV(1), TM2)
                put(2*i+1, ODD)
        put(11, E256)
        self.hook(11)
        for i in range(1, 6):
            self.cmul2(ODD, EV(i), E256, TMP)
            put(11+i, ODD)
        for s in range(8): a(f"ds_read_b128 {Q(XF+4*s)}, v{aX} offset:{64*s}")
        self.hook(12)
        self.cmul2(BASE, E256, E256, TMP)
        for h in range(2):
            put(17+3*h, BASE)
            self.cmul2(ODD, EV(2), BASE, TMP)
            put(18+3*h, ODD)
            self.cmul2(ODD, EV(4), BASE, TMP)
            put(19+3*h, ODD)
            if h == 0: self.cmul2(BASE, BASE, E256, TMP)
        for h in range(4):
            self.cmul2(ODD, ODD, E256, TMP)
            put(23+h, ODD)
        for s in range(8): a(f"ds_read_b128 {Q(YF+4*s)}, v{aY} offset:{64*s}")
        self.kst(13)
        self.hook(13)
        a(f"""
        s_mov_b64 exec, 0xffff
        ds_write_b64 v{zF}, v[8:9]
        s_mov_b32 exec_lo, -1
        ds_write_b64 v{zT}, v[8:9] offset:2080
        ds_write_b64 v{zK}, v[8:9] offset:{K3O}
        s_mov_b64 exec, -1
        """)
        for ct in range(2):
            for s in range(8):
                if ct == 0 and s % 2 == 0: a(f"s_waitcnt lgkmcnt({3+8-(s+2)})")
                a(f"{MFMA} {Q(DX[ct])}, {Q(XF+4*s)}, {Q(VF+32*ct+4*s)}, {'0' if s == 0 else Q(DX[ct])}")
                a(f"{MFMA} {Q(DY[ct])}, {Q(YF+4*s)}, {Q(VF+32*ct+4*s)}, {'0' if s == 0 else Q(DY[ct])}")
        self.kst(12)
        a("s_lshl_b32 s4, s58, 4\ns_lshr_b64 s[6:7], s[66:67], s4\ns_lshl_b32 s6, s6, 16")
        for r in range(4): a(f"v_permlane32_swap_b32 v{DX[0]+r}, v{DX[1]+r}")
        a(f"v_cvt_pk_bf16_f32 v{PK}, v{DY[0]+3}, v{DY[1]+3}")
        a(f"s_mov_b64 exec, 1\nv_add_f32 v{DX[0]}, s6, v{DX[0]}\nv_add_f32 v{DX[0]}, 1.0, v{DX[0]}\ns_mov_b64 exec, -1")
        for r in range(3): a(f"v_permlane32_swap_b32 v{DY[0]+r}, v{DY[1]+r}")
        for sg in range(4):
            a(f"ds_write_b16 v{aE3}, v{PK} offset:{K3O+32+158*sg}")
            a(f"ds_write_b16_d16_hi v{aE3}, v{PK} offset:{K3O+16+32+158*sg}")
        def expand(X, seq, nl, addr, lag0):
            for sg in range(4):
                nd = nl//2
                base = X + sg*nd
                for d in range(nd):
                    a(f"v_cvt_pk_bf16_f32 v{base+d}, v{seq[sg+2*d]}, v{seq[sg+2*d+1]}")
                off = sg*KSTR + 2*(16+lag0)
                if nd == 2: a(f"ds_write_b64 v{addr}, {P(base)} offset:{off}")
                else: a(f"ds_write_b128 v{addr}, {Q(base)} offset:{off}")
        X0, X1, Y0, Y1 = DX[0], DX[1], DY[0], DY[1]
        expand(48, [X0,X0+1,X0+2,X0+3,Y0,Y0+1,Y0+2], 4, aE, 0)
        expand(56, [X1,X1,X1+1,X1+2,X1+2,X1+2,X1+3], 4, aE, 256)
        expand(64, [Y1]*3+[Y1+1]*3+[Y1+2]*5, 8, aE2, 512)
        a(f"""
        v_cvt_pk_bf16_f32 v80, v8, v{X0}
        v_mov_b32 v81, v50
        v_mov_b32 v82, v79
        v_cvt_pk_bf16_f32 v83, v{Y1+2}, v8
        s_mov_b64 exec, 1
        ds_write_b32 v{aKB}, v80 offset:{1*KSTR+28}
        ds_write_b32 v{aKB}, v48 offset:{2*KSTR+28}
        ds_write_b64 v{aKB}, v[80:81] offset:{3*KSTR+24}
        s_brev_b64 exec, 1
        ds_write_b64 v{aKB}, v[78:79] offset:{2080}
        ds_write_b32 v{aKB}, v83 offset:{2088}
        ds_write_b64 v{aKB}, v[78:79] offset:{KSTR+2080}
        ds_write_b64 v{aKB}, v[82:83] offset:{2*KSTR+2080}
        ds_write_b32 v{aKB}, v79 offset:{3*KSTR+2080}
        s_mov_b64 exec, -1
        """)
        self.hook(14)
        self.stamp(2)

    def cmain(self):
        a = self.a
        XU = 16; AR = 48; RB = 180; ACC = 204; ZF = 236; D1 = 252
        G0 = ZF; T = 204; RAW = 180; M = 180; RS = 188; PKD = 196
        vXO=3; vW4=4; vONE=5; vL4=6; vB=7; vYW=8; vYR=9; vT8=10
        vXW=32; RAWC=28; UN=20; vKW=33; vTG=34
        vA = 1; vK3 = 2
        BXB = ZF+8; BXA = ZF+12
        self.arrive(C_KD, vW4, vONE)
        a(f"v_lshl_add_u32 v15, v0, 3, s10")
        self.wait_flag(C_XS, vL4, vTG)
        a(f"ds_write_b64 v15, v[8:9] offset:4096")
        vm = []
        a(f"""
        v_lshlrev_b32 v{vB}, 4, v2
        v_lshlrev_b32 v15, 5, v1
        v_sub_u32 v{vB}, v{vB}, v15
        s_add_u32 s4, s10, 480
        v_add_u32 v{vB}, s4, v{vB}
        s_lshl_b32 s4, s58, 13
        s_add_u32 s4, s4, {YB}
        v_lshlrev_b32 v15, 6, v1
        v_lshl_add_u32 v15, v2, 4, v15
        v_add_u32 v{vYW}, s4, v15
        v_sub_u32 v{T}, 20, v1
        v_lshlrev_b32 v{T+1}, 3, v2
        v_mov_b32 v{T+2}, 0x7f
        v_lshlrev_b32 v{T+2}, v{T}, v{T+2}
        v_subrev_u32 v{T}, 1, v{T}
        v_mov_b32 v{T+3}, 0x1ff
        v_lshlrev_b32 v{T+3}, v{T}, v{T+3}
        v_lshrrev_b32 v{T+2}, v{T+1}, v{T+2}
        v_lshrrev_b32 v{T+3}, v{T+1}, v{T+3}
        v_add_u32 v15, 1, v1
        v_and_b32 v{T}, 3, v15
        v_and_b32 v15, 28, v15
        v_lshl_add_u32 v{T+4}, v2, 3, v15
        v_lshl_add_u32 v{T+4}, v{T+4}, 1, s8
        v_mad_u32_u24 v{vA}, v{T}, s9, v{T+4}
        v_lshlrev_b32 v{T+4}, 2, v2
        v_sub_u32 v15, v15, v{T+4}
        v_lshl_add_u32 v15, v15, 1, s8
        s_movk_i32 s4, 160
        v_mad_u32_u24 v{vK3}, v{T}, s4, v15
        """)
        ldA = lambda d: [f"ds_read_b64 {P(AR+4*d)}, v{vA} offset:{64*d}", f"ds_read_b64 {P(AR+4*d+2)}, v{vA} offset:{64*d+8}"]
        al = sum([ldA(d) for d in range(33)], [])
        oth = []
        for (dst, src) in ((BXB, T+2), (BXA, T+3)):
            for d in range(4):
                oth += [f"v_bfe_i32 v{T+5}, v{src}, {2*d}, 1", f"v_bfe_i32 v{T+6}, v{src}, {2*d+1}, 1",
                        f"v_and_b32 v{T+5}, 0x3f80, v{T+5}", f"v_bfi_b32 v{dst+d}, s15, v{T+6}, v{T+5}"]
        oth += f"""v_lshlrev_b32 v{vKW}, 4, v10
        v_add_u32 v{vXW}, {RX}, v{vKW}
        s_lshl_b32 s13, s{sDG}, 14
        s_add_u32 s13, s13, {WS_XT}
        s_and_b32 s12, s2, 7
        s_lshl_b32 s12, s12, 11
        s_lshl_b32 s4, s58, 7
        s_add_u32 s12, s12, s4
        s_lshr_b32 s4, s2, 3
        s_lshl_b32 s4, s4, 2
        s_add_u32 s12, s12, s4
        s_add_u32 s12, s12, {WS_FL3}
        v_lshlrev_b32 v{vT8}, 3, v10
        v_add_u32 v{vYR}, {YB}, v{vT8}
        s_mov_b32 s11, 0
        s_brev_b32 s68, 1""".split("\n")
        a("s_mov_b32 s15, 0x3f800000")
        L = interleave(al, oth)
        for l in L: a(l)
        self.stamp(5)
        a(f"L_WXR:\nds_read_b32 v11, v{vL4} offset:{C_KD}\nds_read_b32 v15, v{vL4} offset:{C_XR}\ns_waitcnt lgkmcnt(0)\nv_min_u32 v11, v11, v15\nv_cmp_eq_u32 vcc, 0, v11\ns_cbranch_vccnz L_WXR")
        a("v_readfirstlane_b32 s14, v15")
        if self.opt.get("cprio", 2) != self.opt.get("kprio", 2): a(f"s_setprio {self.opt.get('cprio', 2)}")
        self.stamp(6)

        acc = {nt: ACC+4*nt for nt in range(8)}
        started = set()
        def mf(nt, A, B):
            c = Q(acc[nt]) if nt in started else "0"
            started.add(nt)
            return f"{MFMA} {Q(acc[nt])}, {Q(A)}, {Q(B)}, {c}"
        def itB(u):
            tiles = [nt for nt in range(8) if 0 <= 8*nt-u <= 32]
            return (lambda r: [f"ds_read_b128 {Q(r)}, v{vB} offset:{64*(56-u)}"], lambda r: [mf(nt, AR+4*(8*nt-u), r) for nt in tiles], ("B", u))
        def itBox(S, ty):
            off = 64*(56-8*S) + 16*ty; d = ACC+16+8*(S%2)+4*ty
            return (lambda r: [f"ds_read_b128 {Q(r)}, v{vB} offset:{off}"], lambda r: [f"{MFMA} {Q(d)}, {Q(r)}, {Q(BXA if ty else BXB)}, 0"], ("X", S, ty))
        def itK3(D, pairs):
            return (lambda r: [f"ds_read_b64 {P(r)}, v{vK3} offset:{K3O+24+32*D}", f"ds_read_b64 {P(r+2)}, v{vK3} offset:{K3O+24+32*D+640}"],
                    lambda r: [mf(4+Tt, ZF+4*S, r) for (Tt, S) in pairs], ("K3", D, pairs[0][0]))
        items = [itB(-7), itBox(0,0), itBox(0,1), itB(-6), itBox(1,0), itBox(1,1), itB(-5), itB(-4),
                 itBox(2,0), itBox(2,1), itB(-3), itBox(3,0), itBox(3,1), itB(-2), itB(-1)]
        for u in range(0, 57):
            items.append(itB(u))
            if u == 20: items.append(itK3(0, [(0,0),(1,1)]))
            if u == 28: items.append(itK3(1, [(1,0)]))
            if u == 42: items.append(itK3(0, [(2,2),(3,3)]))
            if u == 45: items.append(itK3(1, [(2,1),(3,2)]))
            if u == 47: items.append(itK3(2, [(2,0),(3,1)]))
            if u == 51: items.append(itK3(3, [(3,0)]))
        pos = {it[2]: k for k, it in enumerate(items)}
        fill = {}; hard = set()
        def addf(idx, L): fill.setdefault(idx, []).extend(L)
        def zc(S):
            d = ACC+16+8*(S%2)
            return [f"v_cvt_pk_bf16_f32 v{ZF+4*S}, v{d+3}, v{d+2}", f"v_cvt_pk_bf16_f32 v{ZF+4*S+1}, v{d+1}, v{d}",
                    f"v_cvt_pk_bf16_f32 v{ZF+4*S+2}, v{d+7}, v{d+6}", f"v_cvt_pk_bf16_f32 v{ZF+4*S+3}, v{d+5}, v{d+4}"]
        addf(pos[("B",-5)], zc(0) + zc(1)); hard.add(pos[("X",2,0)])
        addf(pos[("B",-2)], zc(2) + zc(3)); hard.add(pos[("B",0)])
        YF = [C_Y0, C_Y1, C_Y2, C_Y3]
        def ywrite(k):
            return [("lds", None, f"ds_write_b128 v{vYW}, {Q(acc[nt])} offset:{1024*nt}") for nt in (2*k, 2*k+1)] + [("rawlds", self.arr(YF[k], vW4, vONE))]
        def yread(k, tag):
            return [("lds", tag, f"ds_read_b128 {Q(RAWC)}, v{vXW} offset:{4096*k}")] + [("lds", tag, f"ds_read_b64 {P(ACC+8*k+2*c)}, v{vYR} offset:{c*8192+2048*k}") for c in range(4)]
        def eaddr(k, e):
            fl = 12 + k//2; sh = 24 - 8*(2*(k%2)+e)
            if sh: return [f"v_lshlrev_b32 v{14+e}, {sh}, v{fl}", f"v_and_or_b32 v{14+e}, v{14+e}, s68, v{vXO}"]
            return [f"v_and_or_b32 v{14+e}, v{fl}, s68, v{vXO}"]
        def emath(k):
            Y = ACC+8*k; L = []
            for e in range(2):
                L += self.unp(UN+4*e, UN+4*e+1, RAWC+2*e) + self.unp(UN+4*e+2, UN+4*e+3, RAWC+2*e+1)
            for e in range(2):
                for c in range(4): L.append(f"v_add_f32 v{UN+4*e+c}, v{Y+2*c+e}, v{UN+4*e+c}")
            for e in range(2):
                L.append(f"v_cvt_pk_bf16_f32 v{Y+2*e}, v{UN+4*e}, v{UN+4*e+1}")
                L.append(f"v_cvt_pk_bf16_f32 v{Y+2*e+1}, v{UN+4*e+2}, v{UN+4*e+3}")
            return L
        def est(k, e):
            if self.opt.get("nost"): return []
            return [f"buffer_store_dwordx2 {P(ACC+8*k+2*e)}, v{14+e}, {SQ(rOUT)}, s{sO+k} offen offset:{2048*e} {'sc1' if (k >= DQ and self.opt.get('dsc')) else ''}"]
        DQ = self.opt.get("dq", 4)
        def yst(k):
            if k >= DQ: return eaddr(k, 0) + eaddr(k, 1) + est(k, 0) + est(k, 1)
            return ["s_cmp_lg_u32 s14, 2", f"s_cbranch_scc1 L_ES{k}", f"buffer_store_dwordx4 {Q(ACC+8*k)}, v{vKW}, {SQ(rWS)}, s13 offen", f"L_EB{k}:", "s_add_u32 s13, s13, 0x1000"]
        def yfl(k):
            if k >= DQ: return []
            return ["s_waitcnt vmcnt(0)", "s_mov_b64 exec, 1", f"buffer_store_dword v{vTG}, off, {SQ(rWS)}, s12 offset:{512*k}", "s_mov_b64 exec, -1"]
        def check(n, regs):
            L = []
            if len(regs) == 2: L.append(f"v_min_u32 v{regs[0]}, v{regs[0]}, v{regs[1]}")
            L += [f"v_cmp_eq_u32 vcc, 0, v{regs[0]}", f"s_cbranch_vccnz L_SLOW{n}", f"L_BACK{n}:"]
            return [("raw", L)]
        for k in range(3):
            p = pos[("B", 16*k+8)]
            d = (1, 3, 4, 6, 8, 14) if k < 2 else (1, 4, 6, 9, 12, 17)
            addf(p+d[0], ywrite(k))
            fr = [("lds", f"f{k}", f"ds_read_b32 v11, v{vL4} offset:{YF[k]}")]
            if k == 0: fr.append(("lds", "f0", f"ds_read_b32 v15, v{vL4} offset:{C_SEL}"))
            addf(p+d[1], fr)
            addf(p+d[2], [("need", f"f{k}")] + check(k, [11, 15] if k == 0 else [11]) + ([("lds", "y0", f"ds_read_b64 v[12:13], v{vT8} offset:{SELF}")] if k == 0 else []) + yread(k, f"y{k}"))
            addf(p+d[3], [("need", f"y{k}")] + emath(k) + [("raw", yst(k))])
            if k < 2: addf(p+d[5]+self.opt.get("yfd", 10), [("raw", yfl(k))])
        issued = []; done = [0]
        def lds(tag, text): a(text); issued.append(tag)
        def need(tag):
            last = max(i for i, t in enumerate(issued) if t == tag)
            if last >= done[0]:
                n = min(len(issued) - 1 - last, 15)
                a(f"s_waitcnt lgkmcnt({n})"); done[0] = len(issued) - n
        NR = 6; PD = self.opt.get("pd", 5)
        slot = lambda k: RB + 4*(k % NR)
        for k in range(PD):
            for l in items[k][0](slot(k)): lds(("it", k), l)
        queue = []
        def drain(n):
            while queue and n > 0:
                e = queue.pop(0)
                if isinstance(e, str): a(e); n -= 1
                elif e[0] == "need": need(e[1])
                elif e[0] == "lds": lds(e[1], e[2]); n -= 1
                elif e[0] == "raw":
                    for l in e[1]: a(l)
                    n -= 2
                elif e[0] == "rawlds":
                    for l in e[1]: a(l)
                    issued.append(None); n -= 2
        for k, it in enumerate(items):
            if k in hard: drain(1000)
            queue += fill.get(k, [])
            need(("it", k))
            ms = it[1](slot(k))
            for j, m in enumerate(ms):
                a(m)
                if j == 0 and k+PD < len(items):
                    for l in items[k+PD][0](slot(k+PD)): lds(("it", k+PD), l)
                    if len(ms) == 1 or k > pos[("B", 40)]: drain(1)
                else: drain(2 if k > pos[("B", 40)] or k < pos[("B", 0)] else 1 + (len(queue) > 8))
            if it[2] == ("B", 49): lds(None, f"ds_write_b128 v{vYW}, {Q(acc[6])} offset:{1024*6}")
        drain(1000)
        self.stamp(7)
        a(yread(3, None)[0][2])
        a(f"ds_write_b128 v{vYW}, {Q(acc[7])} offset:{1024*7}")
        self.arrive(C_Y3, vW4, vONE)
        for l in yfl(2): a(l)
        em = emath(3)
        a("s_waitcnt lgkmcnt(2)")
        for l in em[:8]: a(l)
        self.wait_flag(C_Y3, vL4, 11)
        for e in yread(3, None)[1:]: a(e[2])
        a("s_waitcnt lgkmcnt(0)")
        for l in em[8:] + yst(3): a(l)
        self.stamp(8)
        for l in yfl(3): a(l)
        if self.stamps or self.opt.get("gamp") == 9:
            a("s_waitcnt vmcnt(0)")
            self.stamp(9)
        a("s_branch L_FIN")
        for n in range(3):
            a(f"L_SLOW{n}:")
            self.wait_flag(YF[n], vL4, 11)
            if n == 0: self.wait_flag(C_SEL, vL4, 11)
            a(f"s_branch L_BACK{n}")
        for k in range(DQ):
            a(f"L_ES{k}:")
            for l in eaddr(k, 0) + eaddr(k, 1) + est(k, 0) + est(k, 1): a(l)
            a(f"s_branch L_EB{k}")

    def fmain(self):
        a = self.a
        GUR = 112; GUF = 48
        WDR = 176; WDF = 112
        XS = 208
        ACC = 16
        vL4 = 1; vW4 = 2; vPW = 3; vPR = 4; vONE = 5; vRS = 6; vE = 7; vNM = 8; vXO = 9
        PRM = 224; TCH = 216
        sSG = 59; sK = 68
        X0 = 16; W0 = 32; S = 48
        a(f"""
        L_F0:
        s_setprio 2
        s_mov_b32 s{sO+1}, {WS_STAT}
        s_lshl_b32 s7, s2, 2
        s_add_u32 s7, s7, s{sW}
        s_lshl_b32 s13, s2, 7
        s_add_u32 s13, s13, {WS_STAT}
        s_lshl_b32 s8, s7, 12
        v_and_b32 v10, 31, v0
        v_lshlrev_b32 v10, 4, v10
        v_lshrrev_b32 v11, 5, v0
        v_lshl_add_u32 v11, v11, 11, v10
        v_add_u32 v11, s8, v11
        s_cmp_lt_u32 s6, 28
        s_cselect_b32 s{sROLE}, 1, 0
        s_lshr_b32 s8, s6, 2
        s_add_u32 s9, s5, 3
        s_and_b32 s9, s9, 7
        s_min_u32 s9, s9, 6
        s_cmp_lt_u32 s6, 28
        s_cselect_b32 s8, s8, s9
        s_mul_i32 s{sSG}, s5, 7
        s_add_u32 s{sSG}, s{sSG}, s8
        s_and_b32 s{sK}, s6, 3
        s_lshl_b32 s8, s{sK}, 2
        s_add_u32 s8, s8, s{sW}
        s_lshl_b32 s8, s8, 6
        s_xor_b32 s9, s{sROLE}, 1
        s_lshl_b32 s9, s9, 5
        s_add_u32 s8, s8, s9
        v_lshrrev_b32 v12, 4, v0
        v_lshl_add_u32 v12, v12, 3, s8
        v_lshlrev_b32 v{vXO}, 1, v12
        s_movk_i32 s10, 7168
        v_mul_u32_u24 v14, s10, v12
        v_and_b32 v12, 7, v0
        v_lshl_add_u32 v14, v12, 4, v14
        s_lshl_b32 s8, s{sSG}, 7
        v_add_u32 v14, s8, v14
        v_and_b32 v12, 8, v0
        v_cmp_ne_u32 vcc, 0, v12
        """)
        self.est(6)
        a("s_waitcnt lgkmcnt(0)")
        self.est(7)
        for i in range(4): a(f"global_load_dwordx4 {Q(X0+4*i)}, v11, {SP(sX)} offset:{512*i} {'nt' if self.opt.get('xnt') else ''}")
        self.wsb()
        a(f"s_load_dword s{sTAG}, {SP(sWS)}, 0")
        for i in range(4): a(f"global_load_dwordx4 {Q(W0+4*i)}, v10, {SP(sWR)} offset:{512*i}")
        a(f"""
        v_mov_b32 v12, s{sWGT}
        v_mov_b32 v13, s{sWGT+1}
        v_mov_b32 v10, s{sWU}
        v_mov_b32 v11, s{sWU+1}
        v_cndmask_b32 v12, v12, v10, vcc
        v_cndmask_b32 v13, v13, v11, vcc
        v_add_co_u32 v102, vcc, v12, v14
        s_movk_i32 s20, 7168
        s_mov_b32 s21, 0
        v_addc_co_u32 v103, vcc, 0, v13, vcc
        """)
        self.est(8)
        a("s_barrier")
        self.est(9)
        NE = self.opt.get("ne", 8)
        GA = "v[102:103]"; S1, S2 = "s[20:21]", "s[22:23]"
        gl = []
        for s in range(2):
            for j in range(8):
                gl.append([f"global_load_dwordx4 {Q(GUR+32*s+4*j)}, {GA}, off {'nt' if self.opt.get('gnt') else ''}"] + ([f"v_lshl_add_u64 {GA}, {S1 if j < 7 else S2}, 0, {GA}"] if (s, j) != (1, 7) else []))
        if self.opt.get("nog"): gl = [[x[0].replace("global_load_dwordx4", "global_load_dword").replace(Q(GUR+4*i), f"v{GUR+4*i}")] for i, x in enumerate(gl)]
        TL = 64; TT = 80; RAW = 64; sLOC = 60
        if True:
            self.srd(rX, sX, 0x400000)
            a(f"""
            s_lshl_b32 s8, s6, 17
            s_lshl_b32 s9, s{sW}, 15
            s_add_u32 s8, s8, s9
            s_lshl_b32 s9, s5, 8
            s_add_u32 s8, s8, s9
            s_add_u32 s9, s8, 4096
            v_lshrrev_b32 v10, 4, v0
            v_and_b32 v11, 15, v0
            v_lshlrev_b32 v11, 4, v11
            v_lshl_add_u32 v14, v10, 13, v11
            """)
            for i in range(4): a(f"buffer_load_dwordx4 {Q(TL+4*i)}, v14, {SQ(rX)}, s{8+i//2} offen offset:{2048*(i%2)}")
            a(f"""
            s_mul_i32 s8, s{sW}, {XSTR}
            s_add_u32 s8, s8, {XR0}
            s_movk_i32 s9, 1088
            v_mad_u32_u24 v96, v10, s9, v11
            v_add_u32 v96, s8, v96
            v_and_b32 v10, 7, v0
            v_lshrrev_b32 v11, 3, v0
            s_movk_i32 s9, 544
            v_lshl_add_u32 v97, v11, 3, s8
            v_mad_u32_u24 v97, v10, s9, v97
            v_lshlrev_b32 v98, 4, v10
            v_lshl_add_u32 v98, v11, 14, v98
            s_lshl_b32 s18, s5, 19
            s_lshl_b32 s9, s6, 9
            s_add_u32 s18, s18, s9
            s_lshl_b32 s9, s{sW}, 7
            s_add_u32 s18, s18, s9
            s_add_u32 s18, s18, {WS_XT}
            s_getreg_b32 s19, hwreg(HW_REG_XCC_ID, 0, 4)
            s_mov_b32 s22, {25*7168}
            s_mov_b32 s23, 0
            s_lshl_b32 s62, s5, 7
            s_add_u32 s62, s62, {WS_FL2}
            v_lshlrev_b32 v99, 10, v0
            """)
            self.srd(rWS, sWS, WS_SIZE); self.srd(rOUT, sOUT, 0x400000); self.srd(rD, sWD, 3584*2048)
        T = 224; TP = 16; E = T+8; KP = 32; CR = T+24; XT = 64
        def kpl():
            for i, so in enumerate((sO+1, 5, 6, 7)): a(f"buffer_load_dwordx4 {Q(KP+4*i)}, v{T+2}, {SQ(rWS)}, s{so} offen sc1")
        a(f"""
        s_lshl_b32 s7, s{sW}, 2
        v_mov_b32 v{vW4}, s7
        v_and_b32 v11, 3, v0
        v_lshlrev_b32 v{vL4}, 2, v11
        v_mov_b32 v{vONE}, 1
        s_lshl_b32 s8, s{sW}, 6
        v_add_u32 v14, s8, v0
        v_lshrrev_b32 v10, 2, v14
        v_lshlrev_b32 v{T+2}, 7, v10
        v_lshl_add_u32 v{T+2}, v11, 4, v{T+2}
        s_mov_b32 s5, {WS_STAT+0x2000}
        s_mov_b32 s6, {WS_STAT+0x4000}
        s_mov_b32 s7, {WS_STAT+0x6000}
        s_mov_b32 s8, 0x3f803f80
        """)
        self.est(10)
        if True:
            a(f"s_waitcnt vmcnt(8)")
            self.est(11)
            for i in range(16):
                c = lambda r: "0" if i == 0 else f"v{r}"
                a(f"v_dot2_f32_bf16 v{S}, v{X0+i}, s8, {c(S)}")
                a(f"v_dot2_f32_bf16 v{S+1}, v{X0+i}, v{X0+i}, {c(S+1)}")
            a("s_waitcnt lgkmcnt(0)")
            self.mktag()
            a(f"v_mov_b32 v{S+11}, s{sTAG}\nv_mov_b32 v100, s{sTAG}\nv_mov_b32 v101, s19\ns_waitcnt vmcnt(4)")
            self.stamp(1)
        for i in range(16):
            c = lambda r: "0" if i == 0 else f"v{r}"
            a(f"v_dot2_f32_bf16 v{S+2}, v{X0+i}, v{W0+i}, {c(S+2)}")
            a(f"v_dot2_f32_bf16 v{S+3}, v{W0+i}, s8, {c(S+3)}")
        a("s_nop 1")
        for sh in ("row_shr:1 row_mask:0xf","row_shr:2 row_mask:0xf","row_shr:4 row_mask:0xf","row_shr:8 row_mask:0xf","row_bcast:15 row_mask:0xa"):
            for r in range(S, S+4): a(f"v_add_f32_dpp v{r}, v{r}, v{r} {sh} bank_mask:0xf")
        a(f"""
        v_mul_f32 v{S}, 0x3a800000, v{S}
        v_mul_f32 v{S+1}, 0x3a800000, v{S+1}
        v_cvt_pk_bf16_f32 v{S+4}, v{S}, v{S}
        v_fma_f32 v{S+1}, -v{S}, v{S}, v{S+1}
        v_max_f32 v{S+1}, 0, v{S+1}
        v_and_b32 v{S+5}, 0xffff0000, v{S+4}
        """)
        self.bf16r(S+1, S+1)
        a(f"v_add_f32 v{S+1}, {f2u(1e-5):#x}, v{S+1}\nv_fma_f32 v{S+2}, -v{S+5}, v{S+3}, v{S+2}")
        self.bf16r(S+1, S+1)
        a(f"""
        v_sqrt_f32 v{S+1}, v{S+1}
        v_lshlrev_b32 v10, 2, v{vW4}
        v_lshlrev_b32 v11, 4, v0
        v_mov_b32 v{S+13}, 0
        v_cvt_pk_bf16_f32 v{S+6}, v{S+1}, v{S+1}
        v_and_b32 v{S+1}, 0xffff0000, v{S+6}
        v_rcp_f32 v{S+1}, v{S+1}
        v_mul_f32 v{S+2}, v{S+2}, v{S+1}
        v_cvt_pk_bf16_f32 v{S+2}, v{S+2}, v{S+2}
        v_bfe_i32 v{S+3}, v{S+2}, 15, 1
        v_or_b32 v{S+3}, 0x80008000, v{S+3}
        v_xor_b32 v{S+7}, v{S+2}, v{S+3}
        s_mov_b32 s8, 0xffff
        v_mov_b32_dpp v{S+8}, v{S+4} row_bcast:31 row_mask:0x8 bank_mask:0xf
        v_mov_b32_dpp v{S+9}, v{S+6} row_bcast:31 row_mask:0x8 bank_mask:0xf
        v_mov_b32_dpp v{S+10}, v{S+7} row_bcast:31 row_mask:0x8 bank_mask:0xf
        v_bfi_b32 v{S+8}, s8, v{S+8}, v{S+4}
        v_bfi_b32 v{S+9}, s8, v{S+9}, v{S+6}
        v_bfi_b32 v{S+10}, s8, v{S+10}, v{S+7}
        s_brev_b64 exec, 1
        ds_write_b128 v10, {Q(S+8)} offset:{STG}
        """)
        self.stamp(2)
        a(f"""
        ds_add_rtn_u32 v{S+12}, v{S+13}, v{vONE} offset:{CNTR}
        s_mov_b64 exec, -1
        s_waitcnt lgkmcnt(0)
        v_readlane_b32 s8, v{S+12}, 63
        s_cmp_lg_u32 s8, 3
        s_cbranch_scc1 L_NOPUB
        s_mov_b64 exec, 0xf
        ds_read_b128 {Q(S+4)}, v11 offset:{STG}
        s_waitcnt lgkmcnt(0)
        buffer_store_dwordx4 {Q(S+4)}, v11, {SQ(rWS)}, s13 offen sc1
        ds_write_b32 v{S+13}, v{vONE} offset:{CNT2}
        s_mov_b64 exec, -1
        s_waitcnt vmcnt(1)
        s_branch L_PUB2
        L_NOPUB:
        """)
        if True:
            a("s_waitcnt vmcnt(0)\nL_PUB2:")
            for i in range(4): a(f"ds_write_b128 v96, {Q(TL+4*i)} offset:{272*i}")
            for j in range(4): a(f"ds_read_b64 {P(TT+4*j)}, v97 offset:{64*j}\nds_read_b64 {P(TT+4*j+2)}, v97 offset:{64*j+272}")
            for j in range(4): a(f"s_waitcnt lgkmcnt({6-2*j})\nbuffer_store_dwordx4 {Q(TT+4*j)}, v98, {SQ(rWS)}, s18 offen\ns_add_u32 s18, s18, 0x20000")
            self.arrive(C_XS, vW4, S+11)
        if self.opt.get("wpub", 1): self.wait_flag(CNT2, S+13, S+12)
        self.stamp(4)
        def xflag(n):
            a(f"""
            s_waitcnt vmcnt({n})
            """)
            self.est(12)
            a(f"""
            s_mov_b64 exec, 1
            ds_add_rtn_u32 v{S+12}, v{S+13}, v{vONE} offset:{CNT3}
            s_waitcnt lgkmcnt(0)
            v_readfirstlane_b32 s8, v{S+12}
            s_cmp_lg_u32 s8, 3
            s_cbranch_scc1 L_NOXF{n}
            s_add_u32 s13, s13, {WS_FL2-WS_STAT}
            buffer_store_dwordx2 v[100:101], v{S+13}, {SQ(rWS)}, s13 offen sc1
            ds_write_b32 v{S+13}, v{vONE} offset:{CNT4}
            L_NOXF{n}:
            s_mov_b64 exec, -1
            """)
            if self.opt.get("wxf", 1): self.wait_flag(CNT4, S+13, S+12)
            self.est(13)
        NB3 = self.opt.get("nb3", 0)
        assert NE <= 8 and NB3 <= NE
        for i, x in enumerate(gl[:NE]):
            if i == NB3: xflag(NB3)
            for l in x: a(l)
        if NB3 == NE: xflag(NE)
        xpoll = f"s_mov_b32 exec_hi, 0\nbuffer_load_dwordx2 v[96:97], v99, {SQ(rWS)}, s62 offen sc1\ns_mov_b32 exec_hi, -1"
        if self.opt.get("kpe", 0): kpl(); a(xpoll)
        def perms(raw, out, nd, nj):
            L = []
            for d in range(nd):
                for jj in range(nj):
                    A = raw+nd*(2*jj)+d; B = raw+nd*(2*jj+1)+d
                    L.append(f"v_perm_b32 v{out+nj*(2*d)+jj}, v{B}, v{A}, s64")
                    L.append(f"v_perm_b32 v{out+nj*(2*d+1)+jj}, v{B}, v{A}, s65")
            return L
        a(f"""
        s_cmp_lg_u32 s{sW}, 0
        s_cbranch_scc1 L_NOZ
        v_lshlrev_b32 v{T}, 4, v0
        v_mov_b32 v{T+4}, 0
        v_mov_b32 v{T+5}, 0
        v_mov_b32 v{T+6}, 0
        v_mov_b32 v{T+7}, 0
        ds_write_b128 v{T}, {Q(T+4)} offset:{UPD}
        ds_write_b128 v{T}, {Q(T+4)} offset:{UPD+1024}
        ds_write_b128 v{T}, {Q(T+4)} offset:{UPD+2048}
        L_NOZ:
        s_lshl_b32 s4, s{sW}, 6
        v_add_u32 v14, s4, v0
        v_lshlrev_b32 v15, 4, v14
        s_mov_b32 s64, 0x05040100
        s_mov_b32 s65, 0x07060302
        v_lshlrev_b32 v{T}, 4, v0
        v_and_b32 v10, 15, v0
        v_lshlrev_b32 v10, 2, v10
        v_and_b32 v11, 48, v0
        s_movk_i32 s4, 0xfff
        v_lshlrev_b32 v{CR}, 1, v14
        v_sub_u32 v{CR}, s4, v{CR}
        v_subrev_u32 v{CR+1}, 1, v{CR}
        v_subrev_u32 v{CR+2}, 512, v{CR}
        v_subrev_u32 v{CR+3}, 513, v{CR}
        v_subrev_u32 v{CR+4}, 1024, v{CR}
        v_subrev_u32 v{CR+5}, 1025, v{CR}
        v_subrev_u32 v{CR+6}, 1536, v{CR}
        v_subrev_u32 v{CR+7}, 1537, v{CR}
        v_lshlrev_b32 v{T+3}, 3, v14
        v_lshrrev_b32 v{T+1}, 4, v14
        v_lshlrev_b32 v{T+1}, 2, v{T+1}
        v_lshlrev_b32 v14, 2, v14
        s_mov_b32 s16, 0
        s_mov_b32 s17, 0xffff0000
        v_lshlrev_b32 v{vPW}, 3, v11
        s_lshl_b32 s8, s{sW}, 12
        s_add_u32 s8, s8, {PRE}
        v_add_u32 v{vPW}, s8, v{vPW}
        v_lshrrev_b32 v12, 5, v0
        v_lshlrev_b32 v{vPR}, 7, v12
        v_bfe_u32 v12, v0, 4, 1
        v_lshl_add_u32 v{vPR}, v12, 3, v{vPR}
        v_bfe_u32 v12, v0, 3, 1
        v_lshl_add_u32 v{vPR}, v12, 9, v{vPR}
        v_and_b32 v12, 7, v0
        v_lshl_add_u32 v{vPR}, v12, 4, v{vPR}
        s_lshl_b32 s8, s{sW}, 10
        s_add_u32 s8, s8, {PRE}
        v_add_u32 v{vPR}, s8, v{vPR}
        v_bfe_u32 v12, v0, 4, 1
        v_lshlrev_b32 v12, 16, v12
        v_lshrrev_b32 v13, 5, v0
        v_lshl_add_u32 v12, v13, 12, v12
        v_lshl_add_u32 v12, v10, 1, v12
        s_lshl_b32 s10, s{sSG}, 17
        s_lshl_b32 s11, s{sK}, 9
        s_add_u32 s10, s10, s11
        s_lshl_b32 s11, s{sW}, 7
        s_add_u32 s10, s10, s11
        """)
        for i in range(8): a(f"v_mov_b32 v{XS+i}, 0x3f803f80")
        def xchk(n, fail):
            a(f"""
            v_cmp_ne_u32 vcc, s{sTAG}, v96
            s_cmp_lg_u32 vcc_lo, 0
            s_cbranch_scc1 {fail}
            v_cmp_ne_u32 vcc, s19, v97
            s_mov_b32 s63, {n+1}
            s_cmp_{"lg" if self.opt.get("forcex") else "eq"}_u32 vcc_lo, 0
            s_cselect_b32 s{sLOC}, 2, 1
            s_cbranch_scc0 L_XSLOW
            """)
            self.stamp(5)
            for k in range(4): a(f"buffer_load_dwordx4 {Q(RAW+4*k)}, v58, {SQ(rWS)}, s13 offen {'' if self.opt.get('xpl') else 'sc1'}\ns_add_u32 s13, s13, 0x1000")
            a(f"L_XBACK{n}:")
        a(f"""
        v_sub_u32 v56, {XR0+1020}, v14
        v_add_u32 v57, {RX}, v15
        v_mov_b32 v58, v15
        s_lshl_b32 s13, s{sDG}, 14
        s_add_u32 s13, s13, {WS_XT}
        s_mov_b32 s63, 0
        """)
        if not self.opt.get("kpe", 0): kpl(); a(xpoll)
        XU = 176; RS = 80; M = 88; PKD = 48
        KM = (30, 8, 14, 28)
        a(f"s_branch L_KPW\nL_KP:\ns_sleep {self.opt.get('ksl', 1)}")
        for i, so in enumerate((sO+1, 5, 6, 7)):
            a(f"s_mov_b64 exec, {SP(KM[i])}\ns_cbranch_execz L_KS{i}\nbuffer_load_dwordx4 {Q(KP+4*i)}, v{T+2}, {SQ(rWS)}, s{so} offen sc1\nL_KS{i}:")
        a(f"""
        s_mov_b64 exec, -1
        s_cmp_lg_u32 s63, 0
        s_cbranch_scc1 L_KPW
        {xpoll}
        L_KPW:
        s_waitcnt vmcnt(0)
        s_add_u32 s16, s16, 1
        v_cmp_ne_u32 s[30:31], s{sTAG}, v{KP+3}
        v_cmp_ne_u32 s[8:9], s{sTAG}, v{KP+7}
        v_cmp_ne_u32 s[14:15], s{sTAG}, v{KP+11}
        v_cmp_ne_u32 s[28:29], s{sTAG}, v{KP+15}
        s_cmp_lg_u32 s63, 0
        s_cbranch_scc1 L_XBACK0
        """)
        xchk(0, "L_XBACK0")
        a(f"""
        s_or_b64 vcc, s[30:31], s[8:9]
        s_or_b64 s[66:67], s[14:15], s[28:29]
        s_or_b64 vcc, vcc, s[66:67]
        s_cbranch_vccz L_KPOK
        s_cmp_lt_u32 s16, 0x4000
        s_cbranch_scc1 L_KP
        L_KPOK:
        s_cmp_lg_u32 s63, 0
        s_cbranch_scc1 L_KP2
        {xpoll}
        L_KP2:
        """)
        self.stamp(3)
        nrm = []
        for i in range(4): nrm += self.unp(RS+2*i, RS+2*i+1, KP+4*i+1)
        for i in range(8): nrm.append(f"v_rcp_f32 v{RS+i}, v{RS+i}")
        for i in range(4): nrm += self.unp(M+2*i, M+2*i+1, KP+4*i)
        for i in range(4): nrm.append(f"v_pk_mul_f32 {P(M+2*i)}, {P(M+2*i)}, {P(RS+2*i)}")
        for c in range(4):
            for k in range(4): nrm.append(f"v_pk_fma_f32 {P(XU+8*c+2*k)}, {P(XU+8*c+2*k)}, {P(RS+2*k)}, {P(M+2*k)} neg_lo:[0,0,1] neg_hi:[0,0,1]")
            r = PKD+4*(c%2)
            for k in range(4): nrm.append(f"v_cvt_pk_bf16_f32 v{r+k}, v{XU+8*c+2*k+1}, v{XU+8*c+2*k}")
            for k in (0,2): nrm.append(f"ds_write2st64_b32 v56, v{r+k}, v{r+k+1} offset0:{18*c+4*(3-k)} offset1:{18*c+4*(2-k)}")
        unp = []
        for i in range(8): unp += self.unp(XU+0*8+i, XU+1*8+i, RAW+2*i) + self.unp(XU+2*8+i, XU+3*8+i, RAW+1+2*i)
        a(f"ds_write2st64_b64 v{T+3}, {P(KP)}, {P(KP+4)} offset0:{MSB//512} offset1:{MSB//512+4}\nds_write2st64_b64 v{T+3}, {P(KP+8)}, {P(KP+12)} offset0:{MSB//512+8} offset1:{MSB//512+12}")
        for k in range(4):
            a(f"v_lshl_or_b32 v{CR+2*k}, v{KP+4*k+2}, 16, v{CR+2*k}\nv_and_or_b32 v{CR+1+2*k}, v{KP+4*k+2}, s17, v{CR+1+2*k}")
        B = T+2
        a(f"v_max_u32 v{B}, v{CR}, v{CR+1}\nv_min_u32 v{B+1}, v{CR}, v{CR+1}\nv_max_u32 v{B+2}, v{CR+4}, v{CR+5}\nv_min_u32 v{B+3}, v{CR+4}, v{CR+5}")
        for j in (2, 3):
            a(f"v_med3_u32 v{B+1}, v{B}, v{B+1}, v{CR+j}\nv_med3_u32 v{B+3}, v{B+2}, v{B+3}, v{CR+j+4}\nv_max_u32 v{B}, v{B}, v{CR+j}\nv_max_u32 v{B+2}, v{B+2}, v{CR+j+4}")
        a(f"""
        v_min_u32 v{B+4}, v{B}, v{B+2}
        v_max_u32 v{B}, v{B}, v{B+2}
        v_max3_u32 v{B+1}, v{B+1}, v{B+3}, v{B+4}
        ds_write_b32 v14, v{B} offset:{LMC}
        """)
        mid = [f"v_add_u32 v15, {KEYS}, v15", f"ds_write2_b32 v15, v{KP+2}, v{KP+6} offset0:0 offset1:1", f"ds_write2_b32 v15, v{KP+10}, v{KP+14} offset0:2 offset1:3", "s_nop 0"]
        for i, sh in enumerate((1,2,4,8)):
            a(mid[i])
            a(f"v_max_u32_dpp v{B}, v{B}, v{B} row_shr:{sh} row_mask:0xf bank_mask:0xf\nv_max_u32_dpp v{B+1}, v{B+1}, v{B+1} row_shr:{sh} row_mask:0xf bank_mask:0xf")
        a(f"""
        s_mov_b32 exec_lo, 0x80008000
        s_mov_b32 exec_hi, 0x80008000
        ds_write2_b32 v{T+1}, v{B}, v{B+1} offset0:{GM//4} offset1:{GM//4+16}
        """)
        self.arrive(C_KEYS, vW4, vONE)
        a(f"""
        s_cmp_lg_u32 s63, 0
        s_cbranch_scc1 L_XBACK1
        s_mov_b32 s16, 0
        s_branch L_XPW
        L_XP:
        s_cmp_ge_u32 s16, 0x4000
        s_cbranch_scc1 L_XBACK1
        s_sleep 1
        {xpoll}
        L_XPW:
        s_add_u32 s16, s16, 1
        s_waitcnt vmcnt(0)
        """)
        xchk(1, "L_XP")
        for l in sum(gl[NE:8], []): a(l)
        a(f"s_cmp_eq_u32 s{sROLE}, 0\ns_cbranch_scc1 L_NG5")
        for l in sum(gl[8:], []): a(l)
        a("L_NG5:")
        self.wait_flag(C_KEYS, vL4, T+1)
        self.stamp(6)
        def rank16(own, four, r, c):
            a(f"v_cmp_gt_u32 vcc, v{four}, v{own}\nv_cmp_gt_u32 s[8:9], v{four+1}, v{own}\nv_cmp_gt_u32 s[14:15], v{four+2}, v{own}\nv_cmp_gt_u32 s[28:29], v{four+3}, v{own}")
            a(f"v_cndmask_b32 v{r}, 0, 1, vcc\nv_cndmask_b32 v{c}, 0, 1, s[8:9]\nv_addc_co_u32 v{r}, vcc, 0, v{r}, s[14:15]\nv_addc_co_u32 v{r}, vcc, v{c}, v{r}, s[28:29]")
            a(f"v_mov_b32 v{c}, v{r}\nv_permlane32_swap_b32 v{r}, v{c}\nv_add_u32 v{r}, v{r}, v{c}\nv_mov_b32 v{c}, v{r}\nv_permlane16_swap_b32 v{r}, v{c}\nv_add_u32 v{r}, v{r}, v{c}")
        a(f"""
        ds_read2_b32 {P(T+2)}, v10 offset0:{GM//4} offset1:{GM//4+16}
        ds_read_b128 {Q(T+4)}, v11 offset:{GM}
        ds_read_b128 {Q(E)}, v{T} offset:{LMC}
        s_waitcnt lgkmcnt(1)
        """)
        rank16(T+2, T+4, T+12, T+13)
        a(f"""
        v_cmp_eq_u32 vcc, 7, v{T+12}
        s_ff1_i32_b32 s5, vcc_lo
        v_readlane_b32 s4, v{T+2}, s5
        s_waitcnt lgkmcnt(0)
        v_cmp_le_u32 vcc, s4, v{T+3}
        {"s_branch" if self.opt.get("forceslow") else "s_cbranch_vccnz"} L_SLOWT
        L_CAND:
        v_cmp_le_u32 s[8:9], s4, v{E}
        v_cmp_le_u32 s[14:15], s4, v{E+1}
        v_cmp_le_u32 s[28:29], s4, v{E+2}
        v_cmp_le_u32 s[30:31], s4, v{E+3}
        s_bcnt1_i32_b64 s5, s[8:9]
        s_bcnt1_i32_b64 s6, s[14:15]
        s_bcnt1_i32_b64 s7, s[28:29]
        s_bcnt1_i32_b64 s16, s[30:31]
        s_add_u32 s6, s6, s5
        s_add_u32 s7, s7, s6
        s_add_u32 s16, s16, s7
        s_cmp_gt_u32 s16, 15
        s_cbranch_scc1 L_TRIM
        """)
        MK = (8, 14, 28, 30)
        for k, (mk, base) in enumerate(zip(MK, ("0", "s5", "s6", "s7"))):
            a(f"v_mbcnt_lo_u32_b32 v{T+12+k}, s{mk}, 0\nv_mbcnt_hi_u32_b32 v{T+12+k}, s{mk+1}, v{T+12+k}\nv_add_lshl_u32 v{T+12+k}, v{T+12+k}, {base}, 2")
            a(f"s_mov_b64 exec, {SP(mk)}\nds_write_b32 v{T+12+k}, v{E+k} offset:{LIST}\ns_mov_b64 exec, -1")
        a(f"""
        s_movk_i32 s4, 0x7ff
        ds_read_b32 v{TP}, v10 offset:{LIST}
        ds_read_b128 {Q(TP+4)}, v11 offset:{LIST}
        s_cmp_lg_u32 s{sROLE}, 1
        s_waitcnt lgkmcnt(1)
        v_bfi_b32 v14, v{TP}, 0, s4
        s_cbranch_scc1 L_NOXS
        v_lshl_add_u32 v15, v14, 11, v{vXO}
        s_mov_b32 exec_lo, 0x7fff7fff
        s_mov_b32 exec_hi, 0x7fff7fff
        buffer_load_dwordx4 {Q(XS)}, v15, {SQ(rX)}, 0 offen
        buffer_load_dwordx4 {Q(XS+4)}, v15, {SQ(rX)}, 0 offen offset:64
        s_mov_b64 exec, -1
        v_lshrrev_b32 v15, 1, v14
        v_lshlrev_b32 v15, 3, v15
        ds_read_b64 v[8:9], v15 offset:{MSB}
        """)
        self.stamp(7)
        WDE = 0
        if self.opt.get("fnt"): a("s_mov_b64 exec, 1")
        a(f"v_lshlrev_b32 v15, 11, v0\nbuffer_load_dword v{TCH+3}, v15, {SQ(rD)}, s10 offen {'nt' if self.opt.get('wnt') else ''}")
        if self.opt.get("fnt"): a("s_mov_b64 exec, -1")
        a(f"s_waitcnt vmcnt({19-NE})\ns_branch L_N2\nL_NOXS:\ns_waitcnt vmcnt({8-NE})\nL_N2:")
        for l in unp + nrm: a(l)
        a(f"v_mov_b32 v59, s{sLOC}")
        self.arrive(C_XR, vW4, 59)
        a("s_waitcnt lgkmcnt(9)")
        rank16(TP, TP+4, TP+8, TP+9)
        a(f"""
        v_cmp_gt_u32 s[30:31], 8, v{TP+8}
        v_lshlrev_b32 v15, 2, v{TP+8}
        v_and_b32 v10, 7, v0
        v_lshlrev_b32 v10, 2, v10
        v_bfe_u32 v{TP+4}, v14, 1, 8
        v_lshrrev_b32 v{TP+5}, 9, v14
        v_lshlrev_b32 v{TP+4}, 3, v{TP+4}
        v_lshl_add_u32 v{TP+4}, v{TP+5}, 1, v{TP+4}
        v_and_b32 v14, 1, v14
        v_add_u32 v{TP+4}, v{TP+4}, v14
        v_mov_b32 v{TP+6}, 0x80
        s_mov_b64 exec, s[30:31]
        ds_write_b32 v15, v{TP} offset:{IDX}
        s_cmp_lg_u32 s{sW}, 0
        s_cbranch_scc1 L_NOSEL
        ds_write_b8 v{TP+4}, v{TP+6} offset:{SELF}
        s_cmp_lg_u32 s2, 255
        s_cbranch_scc1 L_NOSEL
        s_mov_b64 exec, 1
        v_mov_b32 v{TP+6}, s{sTAG}
        buffer_store_dword v{TP+6}, v{vW4}, {SQ(rWS)}, 0 offen sc1
        L_NOSEL:
        s_mov_b64 exec, -1
        ds_read_b32 v{vE}, v10 offset:{IDX}
        """)
        self.wait_flag(C_KD, vL4, 11)
        for k in range(4): a(f"ds_write_b128 v57, {Q(RAW+4*k)} offset:{4096*k}")
        self.arrive(C_SEL, vW4, vONE)
        a(f"""
        s_cmp_lg_u32 s{sROLE}, 1
        s_cbranch_scc1 L_GATHER
        v_lshl_add_u32 v{vPW}, v{TP+8}, 4, v{vPW}
        v_lshlrev_b32 v14, 4, v14
        """)
        HQ = 216; R = 224; BL = 240; BH = 242; t = 244; PQ = 48; DA = 16; HP = 144
        a(f"""
        v_lshlrev_b32 v13, 4, v0
        s_lshl_b32 s4, s{sSG}, 14
        s_add_u32 s4, s4, {WS_H1}
        s_lshl_b32 s6, s{sW}, 12
        s_add_u32 s6, s6, s4
        s_lshl_b32 s5, s{sK}, 10
        s_add_u32 s5, s5, s6
        v_mov_b32 v{HQ+2}, s{sTAG}
        """)
        for s in range(2):
            a(f"s_waitcnt vmcnt({11-8*s})")
            if s == 1: self.stamp(8)
            for l in perms(GUR+32*s, GUF+32*s, 4, 4): a(l)
        a(f"s_waitcnt vmcnt(1)")
        self.stamp(9)
        fill = f"""v_lshrrev_b32 v{vRS}, v14, v9
        v_lshrrev_b32 v{vNM}, v14, v8
        v_lshlrev_b32 v{vRS}, 16, v{vRS}
        v_lshlrev_b32 v{vNM}, 16, v{vNM}
        v_rcp_f32 v{vRS}, v{vRS}
        v_xor_b32 v{vNM}, 0x80000000, v{vNM}""".split("\n")
        M_ = [f"{MFMA} {Q(ACC+4*c)}, {Q(GUF+32*s+4*c)}, {Q(XS+4*s)}, {'0' if s==0 else Q(ACC+4*c)}" for c in range(8) for s in range(2)]
        fm = lambda c: [f"v_fmac_f32_dpp v{ACC+4*c+i}, v{ACC+4*c+i}, v{vNM} row_newbcast:15 row_mask:0xf bank_mask:0xf" for i in range(4)]
        for l in interleave(M_[:6], fill): a(l)
        for l in interleave(M_[6:], sum([fm(c) for c in range(8)], []), per=2): a(l)
        a("s_mov_b64 exec, s[30:31]")
        for c in range(8): a(f"ds_write_b128 v{vPW}, {Q(ACC+4*c)} offset:{512*c}")
        a(f"ds_write_b32 v15, v{vRS} offset:{RSV}")
        self.arrive(C_PRE, vW4, vONE)
        a(f"ds_read_b32 v{vRS}, v10 offset:{RSV}")
        self.wait_flag(C_PRE, vL4, 11)
        for k in range(4):
            for mat in range(2): a(f"ds_read_b64 {P(R+4*k+2*mat)}, v{vPR} offset:{4096*k+256*mat}")
        a("s_waitcnt lgkmcnt(4)")
        for i in range(4): a(f"v_add_f32 v{R+i}, v{R+i}, v{R+4+i}")
        a("s_waitcnt lgkmcnt(0)")
        for i in range(4): a(f"v_add_f32 v{R+8+i}, v{R+8+i}, v{R+12+i}")
        for i in range(4): a(f"v_add_f32 v{R+i}, v{R+i}, v{R+8+i}")
        a(f"""
        v_cvt_pk_bf16_f32 v{HQ}, v{R}, v{R+1}
        v_cvt_pk_bf16_f32 v{HQ+1}, v{R+2}, v{R+3}
        """)
        if self.opt.get("hloc"):
            a(f"s_cmp_eq_u32 s{sLOC}, 2\ns_cbranch_scc1 L_HL\nbuffer_store_dwordx4 {Q(HQ)}, v13, {SQ(rWS)}, s5 offen sc1\ns_branch L_HL2\nL_HL:\nbuffer_store_dwordx4 {Q(HQ)}, v13, {SQ(rWS)}, s5 offen\nL_HL2:")
        else: a(f"buffer_store_dwordx4 {Q(HQ)}, v13, {SQ(rWS)}, s5 offen sc1")
        self.stamp(10)
        if not WDE:
            for ks in range(2):
                for j in range(8):
                    a(f"s_add_u32 s11, s10, {(16*(j>>2) + 8*(j&1) + 4*ks + ((j>>1)&1))*2048}\nbuffer_load_dwordx2 {P(WDR+16*ks+2*j)}, v12, {SQ(rD)}, s11 offen {'nt' if self.opt.get('wnt') else ''}")
        a(f"""
        v_bfe_u32 v10, v0, 3, 1
        v_lshrrev_b32 v11, 4, v0
        v_cmp_ne_u32 s[22:23], 0, v10
        v_lshlrev_b32 v15, 2, v10
        v_lshl_add_u32 v15, v11, 3, v15
        v_lshlrev_b32 v10, 8, v10
        v_lshl_add_u32 v10, v11, 9, v10
        v_lshlrev_b32 v9, 4, v11
        v_and_b32 v11, 7, v0
        v_lshl_add_u32 v10, v11, 4, v10
        s_movk_i32 s5, 144
        v_mad_u32_u24 v15, v11, s5, v15
        v_mad_u32_u24 v9, v11, s5, v9
        s_lshl_b32 s5, s{sW}, 5
        v_add_u32 v15, s5, v15
        s_lshl_b32 s4, s{sSG}, 15
        s_lshl_b32 s5, s{sK}, 13
        s_add_u32 s4, s4, s5
        s_lshl_b32 s5, s{sW}, 11
        s_add_u32 s4, s4, s5
        s_add_u32 s4, s4, {WS_PART}
        v_mul_f32 v12, {LOG2E|0x80000000:#x}, v{vRS}
        v_mul_f32 v14, v{vRS}, v{vRS}
        v_mov_b32 v{PQ+2}, s{sTAG}
        v_mov_b32 v{PQ+6}, s{sTAG}
        """)
        hpl = [f"buffer_load_dwordx3 v[{HP+4*k}:{HP+4*k+2}], v13, {SQ(rWS)}, s6 offen offset:{1024*k} sc1" for k in range(4)]
        if WDE:
            a("s_mov_b32 s16, 0\ns_waitcnt vmcnt(1)")
            for ks in range(2):
                for l in perms(WDR+16*ks, WDF+16*ks, 2, 4): a(l)
            if self.opt.get("hw0", 1): a("s_waitcnt vmcnt(0)")
            for l in hpl: a(l)
        else:
            a(f"s_mov_b32 s16, 0\ns_waitcnt vmcnt({self.opt.get('hw', 8)})")
            for l in hpl: a(l)
            for ks in range(2):
                a(f"s_waitcnt vmcnt({12-8*ks})")
                for l in perms(WDR+16*ks, WDF+16*ks, 2, 4): a(l)
        a("s_branch L_HPW\nL_HP:")
        a(f"s_sleep {self.opt.get('hsl', 3)}")
        for k, mk in enumerate((18, 8, 14, 28)):
            a(f"s_cmp_eq_u64 {SP(mk)}, 0\ns_cbranch_scc1 L_HS{k}\n{hpl[k]}\nL_HS{k}:")
        a(f"""
        L_HPW:
        s_add_u32 s16, s16, 1
        s_waitcnt vmcnt(0)
        v_cmp_ne_u32 s[18:19], s{sTAG}, v{HP+2}
        v_cmp_ne_u32 s[8:9], s{sTAG}, v{HP+6}
        v_cmp_ne_u32 s[14:15], s{sTAG}, v{HP+10}
        v_cmp_ne_u32 s[28:29], s{sTAG}, v{HP+14}
        s_or_b64 vcc, s[18:19], s[8:9]
        s_or_b64 s[20:21], s[14:15], s[28:29]
        s_or_b64 vcc, vcc, s[20:21]
        s_cbranch_vccz L_HOK
        s_cmp_lt_u32 s16, 0x4000
        s_cbranch_scc1 L_HP
        L_HOK:
        """)
        self.stamp(11)
        for k in range(4): self.unpack(R+2*k, R+2*k+1, HP+4*k)
        for i in range(2): a(f"v_add_f32 v{R+i}, v{R+i}, v{R+2+i}\nv_add_f32 v{R+4+i}, v{R+4+i}, v{R+6+i}")
        for i in range(2): a(f"v_add_f32 v{R+i}, v{R+i}, v{R+4+i}")
        for i in range(2): a(f"v_mul_f32 v{t+i}, v12, v{R+i}")
        for i in range(2): a(f"v_exp_f32 v{t+i}, v{t+i}")
        for k in range(4): self.unpack(R+8+2*k, R+8+2*k+1, HP+4*k+1)
        for i in range(2): a(f"v_add_f32 v{t+i}, 1.0, v{t+i}")
        for i in range(2): a(f"v_rcp_f32 v{t+i}, v{t+i}")
        for i in range(2): a(f"v_add_f32 v{R+8+i}, v{R+8+i}, v{R+10+i}\nv_add_f32 v{R+12+i}, v{R+12+i}, v{R+14+i}")
        for i in range(2): a(f"v_mul_f32 v{R+i}, v{R+i}, v14\nv_add_f32 v{R+8+i}, v{R+8+i}, v{R+12+i}")
        for i in range(2): a(f"v_mul_f32 v{R+i}, v{R+i}, v{t+i}")
        for i in range(2): a(f"v_mul_f32 v{R+i}, v{R+i}, v{R+8+i}")
        a(f"""
        v_cvt_pk_bf16_f32 v{t}, v{R}, v{R+1}
        ds_write_b32 v15, v{t} offset:{HB}
        """)
        self.arrive(C_H, vW4, vONE)
        self.wait_flag(C_H, vL4, 11)
        a(f"ds_read_b128 {Q(R)}, v9 offset:{HB}\nds_read_b128 {Q(R+4)}, v9 offset:{HB+64}")
        for ks in range(2):
            a(f"s_waitcnt lgkmcnt({1-ks})")
            for c in range(4): a(f"{MFMA} {Q(DA+4*c)}, {Q(WDF+16*ks+4*c)}, {Q(R+4*ks)}, {'0' if ks == 0 else Q(DA+4*c)}")
        for r in range(2):
            for c in range(4): a(f"v_cndmask_b32 v{DA+4*c+r}, v{DA+4*c+r}, v{DA+4*c+r+2}, s[22:23]")
            a(f"v_cvt_pk_bf16_f32 v{PQ+4*r}, v{DA+r}, v{DA+4+r}\nv_cvt_pk_bf16_f32 v{PQ+4*r+1}, v{DA+8+r}, v{DA+12+r}")
            a(f"buffer_store_dwordx4 {Q(PQ+4*r)}, v10, {SQ(rWS)}, s4 offen offset:{128*r} sc1")
        self.stamp(12)
        GP = 144; U = 176; F = 80; TW = self.opt.get("tw", 2)
        a(f"""
        L_GATHER:
        s_waitcnt lgkmcnt(0)
        s_movk_i32 s4, 0x7ff
        v_bfi_b32 v14, v{vE}, 0, s4
        v_lshrrev_b32 v10, 3, v0
        s_lshl_b32 s4, s{sW}, 3
        v_add_lshl_u32 v10, v10, s4, 15
        v_and_b32 v11, 7, v0
        v_lshlrev_b32 v11, 4, v11
        v_add_u32 v10, v10, v11
        s_lshl_b32 s4, s{sDG}, 7
        s_add_u32 s4, s4, {WS_PART}
        s_mov_b32 s11, 0
        v_bfe_u32 v12, v0, 3, 2
        v_lshlrev_b32 v13, 11, v14
        v_lshl_add_u32 v13, v12, 1, v13
        s_lshl_b32 s8, s{sDG}, 3
        v_add_u32 v13, s8, v13
        buffer_load_ushort v{F}, v13, {SQ(rX)}, 0 offen
        """)
        self.wait_flag(C_SEL, vL4, 15)
        a(f"""
        v_lshrrev_b32 v15, 16, v{vE}
        v_bfe_i32 v{F+2}, v15, 15, 1
        v_not_b32 v{F+2}, v{F+2}
        v_or_b32 v{F+2}, 0x8000, v{F+2}
        v_xor_b32 v15, v15, v{F+2}
        v_lshlrev_b32 v15, 16, v15
        v_mul_f32 v15, {LOG2E|0x80000000:#x}, v15
        v_exp_f32 v15, v15
        v_lshlrev_b32 v{F+3}, 13, v12
        v_add_f32 v15, 1.0, v15
        v_rcp_f32 v15, v15
        v_lshl_add_u32 v{F+3}, v14, 2, v{F+3}
        v_add_u32 v{F+3}, {YB}, v{F+3}
        v_lshl_add_u32 v{F+4}, v12, 2, v11
        s_cmp_lg_u32 s{sLOC}, 2
        s_cbranch_scc1 L_AFT
        s_cmp_ge_u32 s{sW}, {TW}
        s_cbranch_scc1 L_AFT
        """)
        TD = 16; TO = 32; A0 = 92
        a(f"""
        L_TILE:
        s_lshl_b32 s8, s{sW}, 4
        s_cmp_eq_u32 s{sW}, 0
        s_cselect_b32 s8, {C_Y0}, s8
        v_add_u32 v{A0}, s8, v{vL4}
        s_and_b32 s14, s2, 7
        s_lshr_b32 s15, s2, 3
        s_lshl_b32 s16, s14, 11
        s_lshl_b32 s8, s{sW}, 9
        s_add_u32 s16, s16, s8
        s_lshr_b32 s9, s15, 3
        s_lshl_b32 s9, s9, 7
        s_add_u32 s16, s16, s9
        s_add_u32 s16, s16, {WS_FL3}
        s_lshl_b32 s9, s15, 4
        s_add_u32 s8, s8, s9
        s_lshl_b32 s17, s14, 19
        s_lshl_b32 s9, s8, 3
        s_add_u32 s17, s17, s9
        s_add_u32 s17, s17, {WS_XT}
        s_lshl_b32 s18, s8, 11
        s_lshl_b32 s9, s14, 8
        s_add_u32 s18, s18, s9
        s_add_u32 s19, s18, 4096
        s_mul_i32 s9, s{sW}, 4352
        s_add_u32 s9, s9, {PRE}
        s_cmp_eq_u32 s{sW}, 3
        s_cselect_b32 s9, {MSB}, s9
        v_lshlrev_b32 v{A0+1}, 2, v0
        v_and_b32 v{A0+6}, 7, v0
        v_lshrrev_b32 v{A0+7}, 3, v0
        v_lshlrev_b32 v{A0+2}, 4, v{A0+6}
        v_lshl_add_u32 v{A0+2}, v{A0+7}, 14, v{A0+2}
        s_movk_i32 s8, 544
        v_lshl_add_u32 v{A0+3}, v{A0+7}, 3, s9
        v_mad_u32_u24 v{A0+3}, v{A0+6}, s8, v{A0+3}
        v_lshrrev_b32 v{A0+6}, 4, v0
        v_and_b32 v{A0+7}, 15, v0
        v_lshlrev_b32 v{A0+7}, 4, v{A0+7}
        s_movk_i32 s8, 1088
        v_mad_u32_u24 v{A0+4}, v{A0+6}, s8, v{A0+7}
        v_add_u32 v{A0+4}, s9, v{A0+4}
        v_lshl_add_u32 v{A0+5}, v{A0+6}, 13, v{A0+7}
        s_lshl_b32 s8, s15, 6
        s_lshl_b32 s9, s{sW}, 1
        s_add_u32 s8, s8, s9
        v_lshl_add_u32 v{A0+6}, v{A0+6}, 4, s8
        ds_read_u16 v{A0+8}, v{A0+6} offset:{SELF}
        ds_read_u16 v{A0+9}, v{A0+6} offset:{SELF+8}
        s_brev_b32 s8, 1
        s_mov_b32 s20, 0
        s_setprio 0
        """)
        self.wait_flag(0, A0, A0+7, sleep=2)
        a(f"""
        s_setprio 2
        v_lshlrev_b32 v{A0+10}, 24, v{A0+8}
        v_lshlrev_b32 v{A0+11}, 16, v{A0+8}
        v_lshlrev_b32 v{A0+12}, 24, v{A0+9}
        v_lshlrev_b32 v{A0+13}, 16, v{A0+9}
        """)
        for i in range(4): a(f"v_and_or_b32 v{A0+10+i}, v{A0+10+i}, s8, v{A0+5}")
        a(f"""
        s_mov_b32 exec_hi, 0
        L_TP:
        s_sleep {self.opt.get("tsl", 1)}
        buffer_load_dword v{A0+7}, v{A0+1}, {SQ(rWS)}, s16 offen sc1
        s_add_u32 s20, s20, 1
        s_waitcnt vmcnt(0)
        v_cmp_ne_u32 vcc, s{sTAG}, v{A0+7}
        s_cbranch_vccz L_TOK
        s_cmp_lt_u32 s20, 0x4000
        s_cbranch_scc1 L_TP
        L_TOK:
        s_mov_b32 exec_hi, -1
        """)
        for j in range(4): a(f"buffer_load_dwordx4 {Q(TD+4*j)}, v{A0+2}, {SQ(rWS)}, s17 offen sc1\ns_add_u32 s17, s17, 0x20000")
        for j in range(4): a(f"s_waitcnt vmcnt({3-j})\nds_write_b64 v{A0+3}, {P(TD+4*j)} offset:{64*j}\nds_write_b64 v{A0+3}, {P(TD+4*j+2)} offset:{64*j+272}")
        for i in range(4): a(f"ds_read_b128 {Q(TO+4*i)}, v{A0+4} offset:{272*i}")
        for i in range(4): a(f"s_waitcnt lgkmcnt({3-i})\nbuffer_store_dwordx4 {Q(TO+4*i)}, v{A0+10+i}, {SQ(rOUT)}, s{18+i//2} offen offset:{2048*(i%2)} {'sc1' if self.opt.get('osc', 1) else ''}")
        if "wbw" in self.opt:
            a(f"s_lshl_b32 s8, s15, 2\ns_add_u32 s8, s8, s{sW}\ns_cmp_lg_u32 s8, {31*4+self.opt['wbw']}\ns_cbranch_scc1 L_NWB\nbuffer_wbl2 sc1\nL_NWB:")
        if self.stamps or self.opt.get("gamp") == 15:
            a(f"s_cmp_lt_u32 s{sW}, {TW}\ns_cbranch_scc1 L_AFT\ns_waitcnt vmcnt(0)")
            self.stamp(15)
        a(f"""
        s_cmp_ge_u32 s{sW}, {TW}
        s_cbranch_scc1 L_FIN
        L_AFT:
        s_cmp_eq_u32 s{sROLE}, 1
        s_cbranch_scc1 L_GGO
        s_setprio 0
        """)
        self.wait_flag(C_Y3, vL4, F+1, sleep=2)
        a("s_setprio 2\nL_GGO:")
        self.stamp(13)
        a(f"""
        s_mov_b64 s[8:9], -1
        s_cmp_lt_u32 s{sW}, 3
        s_cselect_b64 s[12:13], -1, 0
        s_add_u32 s5, s4, 0x100000
        v_mov_b32 v{GP+4}, 0
        v_mov_b32 v{GP+5}, 0
        v_mov_b32 v{GP+6}, s{sTAG}
        s_waitcnt vmcnt(0)
        """)
        if self.opt.get("gd"): a(f"s_sleep {self.opt['gd']}")
        a("L_GP:")
        for k, mk in enumerate((8, 12)):
            a(f"s_cmp_eq_u64 {SP(mk)}, 0\ns_cbranch_scc1 L_GS{k}\nbuffer_load_dwordx3 v[{GP+4*k}:{GP+4*k+2}], v10, {SQ(rWS)}, s{4+k} offen sc1\nL_GS{k}:")
        a(f"""
        s_add_u32 s11, s11, 1
        s_waitcnt vmcnt(0)
        v_cmp_ne_u32 s[8:9], s{sTAG}, v{GP+2}
        v_cmp_ne_u32 s[12:13], s{sTAG}, v{GP+6}
        s_or_b64 vcc, s[8:9], s[12:13]
        s_cbranch_vccz L_GOT
        s_sleep {self.opt.get("gsl", 2)}
        s_cmp_lt_u32 s11, 0x4000
        s_cbranch_scc1 L_GP
        L_GOT:
        """)
        self.stamp(14)
        for k in range(2):
            self.unpack(U+4*k, U+4*k+1, GP+4*k); self.unpack(U+4*k+2, U+4*k+3, GP+4*k+1)
        for i in range(4): a(f"v_add_f32 v{U+i}, v{U+i}, v{U+4+i}")
        for i in range(4): a(f"v_add_f32_dpp v{U+i}, v{U+i}, v{U+i} row_ror:8 row_mask:0xf bank_mask:0xf")
        a("s_mov_b32 exec_lo, 0x00ff00ff\ns_mov_b32 exec_hi, 0x00ff00ff")
        for i in range(4): a(f"ds_add_f32 v11, v{U+i} offset:{UPD+4*i}")
        self.arrive(C_UPD, vW4, vONE)
        if self.opt.get("dq", 4) < 4: a(f"s_cmp_ge_u32 s{sW}, {self.opt['dq']}\ns_cbranch_scc1 L_FIN")
        a(f"s_lshl_b32 s8, s{sLOC}, 2\ns_add_u32 s8, s{sW}, s8\ns_cmp_ge_u32 s8, {8+TW}\ns_cbranch_scc1 L_TILE\ns_cmp_lg_u32 s{sW}, 0\ns_cbranch_scc1 L_FIN")
        self.wait_flag(C_Y3, vL4, F+1)
        a(f"ds_read_b32 v{F+9}, v{F+3}\nv_lshlrev_b32 v{F}, 16, v{F}")
        self.wait_flag(C_UPD, vL4, F+1)
        a(f"""
        ds_read_b32 v{F+10}, v{F+4} offset:{UPD}
        v_add_f32 v{F}, v{F}, v{F+9}
        s_waitcnt lgkmcnt(0)
        v_fma_f32 v{F}, v{F+10}, v15, v{F}
        v_cvt_pk_bf16_f32 v{F}, v{F}, v{F}
        s_mov_b32 exec_hi, 0
        buffer_store_short v{F}, v13, {SQ(rOUT)}, 0 offen
        s_mov_b64 exec, -1
        """)
        self.stamp(15)
        a("s_branch L_FIN")
        a(f"L_XSLOW:\ns_lshl_b32 s13, s{sDG}, 3\nv_lshlrev_b32 v96, 8, v58")
        for i in range(8): a(f"buffer_load_dwordx2 {P(RAW+2*i)}, v96, {SQ(rX)}, s13 offen offset:{2048*(i%2)}" + ("\ns_add_u32 s13, s13, 0x100000" if i % 2 else ""))
        a("s_cmp_eq_u32 s63, 1\ns_cbranch_scc1 L_XBACK0\ns_branch L_XBACK1")
        a(f"""
        L_TRIM:
        v_subrev_u32 v{T+12}, s4, v{E}
        v_subrev_u32 v{T+13}, s4, v{E+1}
        v_subrev_u32 v{T+14}, s4, v{E+2}
        v_subrev_u32 v{T+15}, s4, v{E+3}
        v_min3_u32 v{T+12}, v{T+12}, v{T+13}, v{T+14}
        v_min_u32 v{T+12}, v{T+12}, v{T+15}
        """)
        for sh in ("row_shr:1 row_mask:0xf","row_shr:2 row_mask:0xf","row_shr:4 row_mask:0xf","row_shr:8 row_mask:0xf","row_bcast:15 row_mask:0xa","row_bcast:31 row_mask:0xc"):
            a(f"v_min_u32_dpp v{T+12}, v{T+12}, v{T+12} {sh} bank_mask:0xf")
        a(f"""
        v_readlane_b32 s5, v{T+12}, 63
        s_add_u32 s4, s4, s5
        s_add_u32 s4, s4, 1
        s_branch L_CAND
        L_SLOWT:
        v_max3_u32 v{T+4}, v{E}, v{E+1}, v{E+2}
        v_max_u32 v{T+4}, v{T+4}, v{E+3}
        s_mov_b32 s4, 0
        s_brev_b32 s5, 1
        L_BS:
        s_or_b32 s6, s4, s5
        v_cmp_le_u32 vcc, s6, v{T+4}
        s_lshr_b32 s5, s5, 1
        s_bcnt1_i32_b64 s7, vcc
        s_cmp_ge_u32 s7, 8
        s_cselect_b32 s4, s6, s4
        s_cmp_lg_u32 s7, 8
        s_cbranch_scc1 L_BS
        v_mbcnt_lo_u32_b32 v{T+5}, vcc_lo, 0
        v_mbcnt_hi_u32_b32 v{T+5}, vcc_hi, v{T+5}
        v_lshlrev_b32 v{T+5}, 2, v{T+5}
        s_mov_b64 exec, vcc
        ds_write_b32 v{T+5}, v0 offset:{LST2}
        s_mov_b64 exec, -1
        v_lshrrev_b32 v{T+6}, 3, v0
        v_lshlrev_b32 v{T+6}, 2, v{T+6}
        ds_read_b32 v{T+5}, v{T+6} offset:{LST2}
        s_waitcnt lgkmcnt(0)
        v_and_b32 v{T+6}, 7, v0
        v_lshl_add_u32 v{T+5}, v{T+5}, 3, v{T+6}
        v_lshlrev_b32 v{T+6}, 3, v{T+5}
        ds_read_b64 {P(T+2)}, v{T+6} offset:{KEYS}
        v_and_b32 v{T+6}, 1, v{T+5}
        v_and_b32 v{T+5}, -2, v{T+5}
        v_lshl_add_u32 v{T+5}, v{T+6}, 10, v{T+5}
        v_sub_u32 v{E}, 0xfff, v{T+5}
        v_sub_u32 v{E+1}, 0xffe, v{T+5}
        v_sub_u32 v{E+2}, 0xdff, v{T+5}
        v_sub_u32 v{E+3}, 0xdfe, v{T+5}
        s_mov_b32 s5, 0xffff0000
        s_waitcnt lgkmcnt(0)
        v_lshl_or_b32 v{E}, v{T+2}, 16, v{E}
        v_and_or_b32 v{E+1}, v{T+2}, s5, v{E+1}
        v_lshl_or_b32 v{E+2}, v{T+3}, 16, v{E+2}
        v_and_or_b32 v{E+3}, v{T+3}, s5, v{E+3}
        s_branch L_CAND
        """)

    def fin(self):
        a = self.a
        a("L_FIN:")
        if self.opt.get("wb"): a("s_waitcnt vmcnt(0)\nbuffer_wbl2 sc1\ns_waitcnt vmcnt(0)")
        if "gamp" in self.opt:
            k = self.opt["gamp"]; half = self.opt.get("gC", 0); mode = self.opt.get("gmode", 0)
            if "gw" in self.opt: a(f"s_cmp_eq_u32 s{sW}, {self.opt['gw']}\ns_cselect_b32 s{sST+2*k}, s{sST+2*k}, 0")
            if "grole" in self.opt: a(f"s_cmp_{'lt' if self.opt['grole'] else 'ge'}_u32 s2, 224\ns_cselect_b32 s{sST+2*k}, s{sST+2*k}, 0")
            a(f"""
            s_lshr_b32 s4, s{sW}, 2
            s_lshl_b32 s4, s4, 10
            s_lshl_b32 s5, s2, 2
            s_add_u32 s4, s4, s5
            s_and_b32 s5, s{sW}, 3
            s_add_u32 s4, s4, s5
            s_lshl_b32 s4, s4, 3
            s_add_u32 s4, s4, {WS_STAMP}
            v_mov_b32 v1, 0
            v_mov_b32 v4, s{sST}
            v_mov_b32 v5, s{sST+2*k}
            s_mov_b64 exec, 1
            buffer_store_dwordx2 v[4:5], v1, {SQ(rWS)}, s4 offen sc1
            s_mov_b64 exec, -1
            s_cmp_lg_u32 s2, 0
            s_cbranch_scc1 L_END
            s_cmp_lg_u32 s{sW}, 0
            s_cbranch_scc1 L_END
            L_GA1:
            s_memrealtime s[6:7]
            s_waitcnt lgkmcnt(0)
            s_sub_u32 s5, s6, s{sST}
            s_cmp_lt_u32 s5, 4000
            s_cbranch_scc1 L_GA1
            v_lshlrev_b32 v1, 3, v0
            s_mov_b32 s4, {WS_STAMP + half*8192}
            s_sub_u32 s8, s{sST}, 1000
            """)
            for i in range(16): a(f"buffer_load_dwordx2 {P(16+2*i)}, v1, {SQ(rWS)}, s4 offen sc1\ns_add_u32 s4, s4, 512")
            a("s_waitcnt vmcnt(0)\nv_mov_b32 v2, -1\nv_mov_b32 v3, 0\nv_mov_b32 v6, 0")
            for i in range(16):
                a(f"v_subrev_u32 v{16+2*i}, s8, v{16+2*i}\nv_min_u32 v2, v2, v{16+2*i}\nv_cmp_ne_u32 vcc, 0, v{17+2*i}\nv_subrev_u32 v{17+2*i}, s8, v{17+2*i}\nv_cndmask_b32 v{17+2*i}, 0, v{17+2*i}, vcc\nv_addc_co_u32 v6, vcc, 0, v6, vcc")
                a(f"v_max_u32 v3, v3, v{17+2*i}" if mode == 0 else f"v_add_u32 v3, v3, v{17+2*i}")
            op = "v_max_u32_dpp" if mode == 0 else "v_add_u32_dpp"
            for sh in ("row_shr:1 row_mask:0xf","row_shr:2 row_mask:0xf","row_shr:4 row_mask:0xf","row_shr:8 row_mask:0xf","row_bcast:15 row_mask:0xa","row_bcast:31 row_mask:0xc"):
                a(f"v_min_u32_dpp v2, v2, v2 {sh} bank_mask:0xf\n{op} v3, v3, v3 {sh} bank_mask:0xf\nv_add_u32_dpp v6, v6, v6 {sh} bank_mask:0xf")
            if mode == 1:
                a("v_cvt_f32_u32 v3, v3\nv_cvt_f32_u32 v6, v6\nv_rcp_f32 v6, v6\nv_mul_f32 v3, v3, v6\nv_cvt_u32_f32 v3, v3")
            a(f"""
            v_readlane_b32 s4, v3, 63
            v_readlane_b32 s5, v2, 63
            s_sub_u32 s4, s4, s5
            s_min_u32 s4, s4, 4000
            s_mul_i32 s4, s4, 10
            s_add_u32 s4, s4, 5000
            L_GA2:
            s_memrealtime s[6:7]
            s_waitcnt lgkmcnt(0)
            s_sub_u32 s5, s6, s{sST}
            s_cmp_lt_u32 s5, s4
            s_cbranch_scc1 L_GA2
            """)
        if "amp" in self.opt:
            k = self.opt["amp"]
            a(f"""
            s_cmp_lg_u32 s2, {self.opt.get('ampb', 0)}
            s_cbranch_scc1 L_END
            s_cmp_lg_u32 s{sW}, {self.opt.get('ampw', 0)}
            s_cbranch_scc1 L_END
            s_sub_u32 s4, s{sST+2*k}, s{sST}
            s_min_u32 s4, s4, 5000
            s_mul_i32 s4, s4, 10
            {"s_mov_b32 s4, %d" % self.opt["fix"] if "fix" in self.opt else ""}
            L_AMP:
            s_memrealtime s[6:7]
            s_waitcnt lgkmcnt(0)
            s_sub_u32 s5, s6, s{sST}
            s_cmp_lt_u32 s5, s4
            s_cbranch_scc1 L_AMP
            """)
        if self.stamps:
            a(f"s_lshl_b32 s4, s2, 3\ns_add_u32 s4, s4, s{sW}\ns_lshl_b32 s4, s4, 7\ns_add_u32 s4, s4, {WS_STAMP}\nv_mov_b32 v1, s4\ns_mov_b64 exec, 1")
            for i in range(8):
                for k in range(4): a(f"v_mov_b32 v{4+k}, s{sST+4*i+k}")
                a(f"buffer_store_dwordx4 v[4:7], v1, {SQ(rWS)}, 0 offen offset:{16*i}")
        a("L_END:\ns_endpgm")

    def build(self):
        if self.stamps:
            for i in range(2, 32, 2): self.a(f"s_mov_b64 {SP(sST+i)}, 0")
        self.prologue(); self.kgen(); self.cmain(); self.fmain(); self.fin()
        body = self.a.finalize()
        if not self.opt.get("noalign"): body = align_pass(body, KN)
        hdr = open("parallel_sum__ssm_conv_s4d__moe_arch_mod__prompt.s.ref").read().split("; Override launch")[0]
        out = hdr + f"; @launch grid=(256,1,1) block=(512,1,1) lds={LDS_END}\n"
        out += f'.amdgcn_target "amdgcn-amd-amdhsa--gfx950"\n.text\n.globl {KN}\n.p2align 8\n.type {KN},@function\n{KN}:\n'
        out += body
        out += f'''.section .rodata,"a"
.p2align 6
.amdhsa_kernel {KN}
  .amdhsa_next_free_vgpr 256
  .amdhsa_next_free_sgpr 102
  .amdhsa_accum_offset 256
  .amdhsa_group_segment_fixed_size 0
  .amdhsa_kernarg_size 120
  .amdhsa_user_sgpr_count 2
  .amdhsa_user_sgpr_kernarg_segment_ptr 1
  .amdhsa_system_sgpr_workgroup_id_x 1
  .amdhsa_float_denorm_mode_32 3
.end_amdhsa_kernel
'''
        return out

if __name__ == "__main__":
    out = sys.argv[1]
    stamps = "--stamps" in sys.argv
    opt = {}
    for x in sys.argv[2:]:
        if "=" in x:
            k, v = x.split("="); opt[k] = int(v, 0)
    open(out, "w").write(G(stamps, opt).build())
```

```python
KN="parallel_sum__ssm_conv_s4d__moe_arch_mod__prompt_kernel"
def head(grid, block, lds=0, name=KN):
    return (f"; @launch grid=({grid},1,1) block=({block},1,1) lds={lds}\n"
      '.amdgcn_target "amdgcn-amd-amdhsa--gfx950"\n.text\n.globl %s\n.p2align 8\n.type %s,@function\n%s:\n' % (name,name,name))
def tail(vgpr=128, sgpr=96, name=KN, accum=None):
    accum = accum or ((vgpr+3)//4*4)
    return ('s_endpgm\n.section .rodata,"a"\n.p2align 6\n.amdhsa_kernel %s\n.amdhsa_next_free_vgpr %d\n.amdhsa_next_free_sgpr %d\n.amdhsa_accum_offset %d\n.amdhsa_group_segment_fixed_size 0\n.amdhsa_kernarg_size 120\n.amdhsa_user_sgpr_count 2\n.amdhsa_user_sgpr_kernarg_segment_ptr 1\n.amdhsa_system_sgpr_workgroup_id_x 1\n.end_amdhsa_kernel\n' % (name,vgpr,sgpr,accum))
```

```python
import sys
sys.path.insert(0, "gen")
from asmlib import Asm
from common import *
def gen(st="", px=128, R=7, sc=1, stream=0, glc="glc"):
    a=Asm(); sST=70
    for i in range(2,32,2): a(f"s_mov_b64 s[{sST+i}:{sST+i+1}], 0")
    a(f"""s_memrealtime s[70:71]
    s_load_dwordx2 s[42:43], s[0:1], 112
    s_getpc_b64 s[14:15]
    v_lshrrev_b32 v1, 6, v0
    v_and_b32 v0, 63, v0
    v_readfirstlane_b32 s3, v1
    v_lshlrev_b32 v2, 7, v0
    v_min_u32 v2, LEND-{KN}-256, v2
    global_load_dword v40, v2, s[14:15]
    v_lshlrev_b32 v9, 4, v0
    s_waitcnt lgkmcnt(0)
    s_load_dword s56, s[42:43], 0
    s_mov_b32 s44, s42
    s_and_b32 s45, s43, 0xffff
    s_mov_b32 s46, 0x10000000
    s_mov_b32 s47, 0x20000
    s_xor_b32 s4, s2, {px}
    s_lshl_b32 s4, s4, 13
    s_add_u32 s4, s4, 0x200000
    s_lshl_b32 s5, s2, 13
    s_add_u32 s5, s5, 0x200000
    v_mov_b32 v3, 0x3ffff0
    buffer_load_dword v41, v3, s[44:47], 0 offen
    s_waitcnt vmcnt(0) lgkmcnt(0)
    s_add_u32 s56, s56, 0x1234567
    LW:
    s_memrealtime s[66:67]
    s_waitcnt lgkmcnt(0)
    s_sub_u32 s66, s66, s70
    s_cmp_lt_u32 s66, 300
    s_cbranch_scc1 LW
    s_cmp_lg_u32 s3, 0
    s_cbranch_scc1 LS
    s_and_b32 s6, s2, {px}
    s_cmp_lg_u32 s6, 0
    s_cbranch_scc1 LB
    """)
    def send(r): a(f"v_mov_b32 v16, s56\nv_mov_b32 v19, s56\ns_mov_b64 exec, 1\nbuffer_store_dwordx4 v[16:19], v9, s[44:47], s4 offen offset:0 {st}\ns_mov_b64 exec, -1\ns_add_u32 s4, s4, 1024")
    def recv(r):
        L=a.label("P")
        if sc: a(f"s_mov_b32 s17, 0\n{L}:\ns_buffer_load_dword s20, s[44:47], s5 {glc}\ns_add_u32 s17, s17, 1\ns_waitcnt lgkmcnt(0)\ns_cmp_eq_u32 s20, s56\ns_cbranch_scc1 {L}X\ns_cmp_lt_u32 s17, 300\ns_cbranch_scc1 {L}\n{L}X:\ns_add_u32 s5, s5, 1024")
        else: a(f"s_mov_b32 s17, 0\ns_mov_b64 exec, 1\n{L}:\nbuffer_load_dword v35, v9, s[44:47], s5 offen sc1\ns_add_u32 s17, s17, 1\ns_waitcnt vmcnt(0)\nv_cmp_ne_u32 vcc, s56, v35\ns_cbranch_vccz {L}X\ns_cmp_lt_u32 s17, 300\ns_cbranch_scc1 {L}\n{L}X:\ns_mov_b64 exec, -1\ns_add_u32 s5, s5, 1024")
    for r in range(R):
        a(f"s_memrealtime s[{72+4*r}:{73+4*r}]")
        send(r); recv(r)
        a(f"s_memrealtime s[{74+4*r}:{75+4*r}]\ns_add_u32 s56, s56, 1")
    a("s_branch LFIN\nLB:")
    for r in range(R):
        recv(r); send(r); a("s_add_u32 s56, s56, 1")
    a("LFIN:\ns_waitcnt lgkmcnt(0)")
    a(f"s_lshl_b32 s24, s2, 7\ns_add_u32 s24, s24, 0x800000\nv_mov_b32 v1, s24\ns_mov_b64 exec, 1")
    for i in range(8):
        for k in range(4): a(f"v_mov_b32 v{4+k}, s{sST+4*i+k}")
        a(f"buffer_store_dwordx4 v[4:7], v1, s[44:47], 0 offen offset:{16*i} sc1")
    a("s_branch LEND\nLS:")
    if stream:
        a("s_lshl_b32 s8, s2, 2\ns_add_u32 s8, s8, s3\ns_sub_u32 s8, s8, 1\ns_lshl_b32 s8, s8, 17\ns_add_u32 s8, s8, 0x1000000\ns_mov_b32 s9, 0\nLSL:")
        a(f"buffer_load_dwordx4 v[20:23], v9, s[44:47], s8 offen\ns_add_u32 s8, s8, 1024\ns_waitcnt vmcnt({stream-1})\ns_add_u32 s9, s9, 1\ns_cmp_lt_u32 s9, 96\ns_cbranch_scc1 LSL\ns_waitcnt vmcnt(0)")
    a("LEND:")
    return head(256,320,100000)+a.finalize()+tail(64,sgpr=102)
V={"l_s":dict(), "l_s_noglc":dict(glc=""), "x_s":dict(st="sc1",px=1), "l_v":dict(sc=0), "x_v":dict(sc=0,st="sc1",px=1),
   "l_s_w4":dict(stream=4), "x_s_w4":dict(st="sc1",px=1,stream=4), "l_v_w4":dict(sc=0,stream=4), "x_v_w4":dict(sc=0,st="sc1",px=1,stream=4),
   "l_s_w8":dict(stream=8), "x_s_w8":dict(st="sc1",px=1,stream=8), "l_v_w8":dict(sc=0,stream=8), "l_v_w3":dict(sc=0,stream=3), "x_v_w3":dict(sc=0,st="sc1",px=1,stream=3), "l_s_w3":dict(stream=3), "x_s_w3":dict(st="sc1",px=1,stream=3)}
for k,v in V.items(): open(f"sk/sp_{k}.s","w").write(gen(**v))
print(" ".join(f"sk/sp_{k}.s" for k in V))
print(",".join(f'"cdna_kernels/exp/sk/sp_{k}.s"' for k in V))
```

```python
import sys, struct
from asmlib import Asm, align_pass

KN = "parallel_sum__ssm_conv_s4d__moe_arch_mod__prompt_kernel"
def f2u(x): return struct.unpack("<I", struct.pack("<f", x))[0]
LOG2E = f2u(1.4426950408889634); INV2PI = f2u(0.15915494309189535)

LIST = 192; IDX = 256; RSV = 288; LST2 = 320; GM = 384; CNTR = 512; CNT2 = 516; CNT3 = 520; CNT4 = 524; C_MS = 528; STG = 576; HB = 4096; UPD = 1024; SELF = 1152; KEYS = 4096; LMC = 8192
TROW = 544
MSB = 9216
VT0 = MSB + 8192; VSTR = 16*TROW
K0 = VT0 + 4*VSTR
KSTR = 2368; K3O = 4*KSTR; KREG = 32*TROW
XR0 = K0 + 4*KREG; XSTR = 4608
YB = VT0; PRE = XR0 + 4*XSTR
LDS_END = PRE + 16384
UOF = 65535 - KREG - 63 & ~63
assert K0 - UOF + 3*KREG < 65536
C_XR, C_Y1, C_Y2, C_Y3, C_KEYS, C_PRE, C_UPD, C_SEL, C_XS, C_Y0, C_KD, C_H = [16*i for i in range(12)]
WS_ALIVE = 0x800
WS_STAT = 0x8000
WS_H1 = 0x10000
WS_PART = 0x100000
WS_XT = 0x300000
WS_FL2 = 0xF0000
WS_FL3 = 0xF8000
WS_STAMP = 0x800000
WS_SIZE = 0x1000000

sX, sLAR, sAI, sCR, sCI, sLDT, sDSK = 16, 18, 20, 22, 24, 26, 28
sWR, sWGT, sWU, sWD = 32, 34, 36, 38
sOUT, sWS = 40, 42
rWS, rX, rOUT = 44, 48, 52
sTAG = 56; sTX = 63; sW = 3; sDG = 57; sJ = 59
sO = 60
sSH = 12
sROLE = 69
sST = 70
rG, rU, rD = 16, 20, 24

def P(r): return f"v[{r}:{r+1}]"
def Q(r): return f"v[{r}:{r+3}]"
def SP(r): return f"s[{r}:{r+1}]"
def SQ(r): return f"s[{r}:{r+3}]"
MOD = ["", "sc0", "sc1", "sc0 sc1", "nt", "sc0 nt", "sc1 nt", "sc0 sc1 nt"]
MFMA = "v_mfma_f32_16x16x32_bf16"

def interleave(main, fill, per=1, start=0):
    out = []; fill = list(fill)
    for k, m in enumerate(main):
        out.append(m)
        if k >= start:
            for _ in range(per):
                if fill: out.append(fill.pop(0))
    return out + fill

class G:
    def __init__(self, stamps=False, opt=None):
        self.a = Asm(); self.stamps = stamps; self.opt = opt or {}
        self.tpos = [v for k, v in self.opt.items() if k in ("tg","tu","td","tga","tgb","tua","tub","tda","tdb")]
        self.NX0 = self.opt.get("nx0", 2); self.NX1 = self.opt.get("nx1", 1); self.NX2 = self.opt.get("nx2", 1)
        self.NB0 = self.opt.get('nb0', 2)
        self.NXA = self.NX0 + self.NX1 + self.NX2
    def hook(self, p):
        for name, reg, ad, base in (("tg", 18, 17, sWGT), ("tu", 19, 17, sWU), ("td", 16, 15, sWD)):
            for h, ex in (("", None), ("a", "hi"), ("b", "lo")):
                if self.opt.get(name+h, -9) == p:
                    if ex: self.a(f"s_mov_b32 exec_{ex}, 0")
                    self.a(f"global_load_dword v{reg}, v{ad}, {SP(base)}")
                    if ex: self.a(f"s_mov_b32 exec_{ex}, -1")
    def est(self, i):
        if self.opt.get("est"): self.a(f"s_memrealtime {SP(sST+2*i)}")
    def xst(self, g, i):
        if self.stamps and self.opt.get("xst") == g: self.a(f"s_memrealtime {SP(sST+2*i)}\ns_waitcnt lgkmcnt(0)")
    def stamp(self, i):
        if self.opt.get("xst") and i >= 12: return
        if self.opt.get("est") and i >= 6 and i < 14: return
        if self.stamps or self.opt.get("amp") == i or self.opt.get("gamp") == i:
            self.a(f"s_memrealtime {SP(sST+2*i)}\ns_waitcnt lgkmcnt(0)")
    def kst(self, i):
        if self.opt.get("kst"): self.a(f"{'s_memtime' if self.opt['kst'] == 2 else 's_memrealtime'} {SP(sST+2*i)}")
    def cst(self, i):
        if self.opt.get("cst"): self.a(f"{'s_memtime' if self.opt['cst'] == 2 else 's_memrealtime'} {SP(sST+2*i)}")
    def unp(self, lo, hi, src):
        return [f"v_lshlrev_b32 v{lo}, 16, v{src}", f"v_and_b32 v{hi}, 0xffff0000, v{src}"]
    def unpack(self, lo, hi, src):
        for l in self.unp(lo, hi, src): self.a(l)
    def bf16r(self, dst, src):
        self.a(f"v_cvt_pk_bf16_f32 v{dst}, v{src}, v{src}\nv_and_b32 v{dst}, 0xffff0000, v{dst}")
    def cmul2(self, d, x, y, t):
        a = self.a
        for q in (0,2): a(f"v_pk_mul_f32 {P(t+q)}, {P(x+q)}, {P(y+q)} op_sel_hi:[1,0]")
        for q in (0,2): a(f"v_pk_fma_f32 {P(d+q)}, {P(x+q)}, {P(y+q)}, {P(t+q)} op_sel:[1,1,0] op_sel_hi:[0,1,1] neg_lo:[1,0,0]")
    def arr(self, off, vw4, vone):
        return ["s_mov_b64 exec, 1", f"ds_write_b32 v{vw4}, v{vone} offset:{off}", "s_mov_b64 exec, -1"]
    def arrive(self, off, vw4, vone):
        for l in self.arr(off, vw4, vone): self.a(l)
    def wait_flag(self, off, vl4, vt, sleep=0):
        L = self.a.label("LW")
        sl = f"s_sleep {sleep}\n" if sleep else ""
        self.a(f"{L}:\n{sl}ds_read_b32 v{vt}, v{vl4} offset:{off}\ns_waitcnt lgkmcnt(0)\nv_cmp_eq_u32 vcc, 0, v{vt}\ns_cbranch_vccnz {L}")
    def srd(self, r, p, size):
        self.a(f"s_mov_b32 s{r}, s{p}\ns_and_b32 s{r+1}, s{p+1}, 0xffff\ns_mov_b32 s{r+2}, {size:#x}\ns_mov_b32 s{r+3}, 0x20000")
    def wsb(self):
        if self.opt.get("wsb"): self.a(f"s_add_u32 s{sWS}, s{sWS}, {self.opt['wsb']:#x}\ns_addc_u32 s{sWS+1}, s{sWS+1}, 0")
    def mktag(self):
        self.a(f"s_mul_i32 s{sTAG}, s{sTAG}, 0x9E3779B1\ns_add_u32 s{sTAG}, s{sTAG}, 0x7F4A7C15\ns_or_b32 s{sTAG}, s{sTAG}, 1\ns_andn2_b32 s{sTAG}, s{sTAG}, 0x1e")

    def prologue(self):
        a = self.a
        if "gamp" in self.opt: a(f"s_mov_b32 s{sST+2*self.opt['gamp']}, 0")
        if self.stamps or "amp" in self.opt or "gamp" in self.opt: a(f"s_memrealtime {SP(sST)}")
        a(f"""
        s_cmp_ge_u32 s2, 256
        s_cbranch_scc1 L_END
        s_load_dwordx16 s[16:31], s[0:1], 0
        s_load_dwordx8 s[32:39], s[0:1], 64
        s_load_dwordx2 {SP(sOUT)}, s[0:1], 96
        s_load_dwordx2 {SP(sWS)}, s[0:1], 112
        s_getpc_b64 s[14:15]
        v_lshrrev_b32 v1, 6, v0
        v_and_b32 v10, 255, v0
        v_and_b32 v0, 63, v0
        v_readfirstlane_b32 s{sW}, v1
        v_lshlrev_b32 v1, 2, v0
        v_mov_b32 v2, 0
        ds_write2st64_b32 v1, v2, v2 offset0:0 offset1:2
        s_and_b32 s5, s2, 7
        s_lshr_b32 s6, s2, 3
        s_lshl_b32 s{sDG}, s5, 5
        s_add_u32 s{sDG}, s{sDG}, s6
        s_and_b32 s58, s{sW}, 3
        {"s_xor_b32 s%d, s%d, 4" % (sW, sW) if self.opt.get("swp", 0) else ""}
        s_lshl_b32 s7, s{sDG}, 2
        s_add_u32 s7, s7, s58
        s_lshl_b32 s7, s7, 8
        v_add_u32 v15, s7, v1
        s_mov_b32 s{sO}, 0
        s_lshl_b32 s4, s{sDG}, 3
        s_cmp_lt_u32 s{sW}, 4
        s_cbranch_scc1 L_F0
        """)
        CPF = self.opt.get("cpf", 4)
        if CPF:
            a(f"""
            s_and_b32 s8, s6, {(1<<CPF)-1}
            s_lshl_b32 s8, s8, 2
            s_add_u32 s8, s8, s58
            s_lshl_b32 s8, s8, {13-CPF}
            v_lshl_add_u32 v2, v0, 7, s8
            v_min_u32 v2, L_END-{KN}-128, v2
            s_mov_b64 exec, {(1<<(64>>CPF))-1:#x}
            global_load_dword v255, v2, s[14:15]
            s_mov_b64 exec, -1
            """)
        else: a(f"""
        v_lshlrev_b32 v2, 7, v10
        v_min_u32 v2, L_END-{KN}-128, v2
        global_load_dword v255, v2, s[14:15]
        """)
        a(f"""
        v_lshlrev_b32 v3, 12, v10
        v_add_u32 v3, s4, v3
        s_waitcnt lgkmcnt(0)
        global_load_dword v224, v15, {SP(sLAR)}
        global_load_dword v225, v15, {SP(sAI)}
        global_load_dword v226, v15, {SP(sCR)}
        global_load_dword v227, v15, {SP(sCI)}
        s_add_u32 s6, s{sLDT}, s4
        s_addc_u32 s7, s{sLDT+1}, 0
        s_load_dwordx2 s[64:65], s[6:7], 0
        s_add_u32 s6, s{sDSK}, s4
        s_addc_u32 s7, s{sDSK+1}, 0
        s_load_dwordx2 s[66:67], s[6:7], 0
        s_barrier
        s_mov_b32 s{sO+1}, 0x100000
        s_mov_b32 s{sO+2}, 0x200000
        s_mov_b32 s{sO+3}, 0x300000
        """)
        self.wsb()
        self.srd(rWS, sWS, WS_SIZE); self.srd(rX, sX, 0x400000); self.srd(rOUT, sOUT, 0x400000)
        if True: a(f"s_setprio {self.opt.get('kprio', 2)}")
        if "probe" in self.opt:
            p = {0: sWS, 1: sOUT, 2: 30, 3: sWD}[self.opt["probe"]]
            off = self.opt.get("poff", 0x200000)
            a(f"s_cmp_lg_u32 s2, 0\ns_cbranch_scc1 L_NPR\ns_cmp_lg_u32 s{sW}, 4\ns_cbranch_scc1 L_NPR\ns_waitcnt vmcnt(0)")
            if self.opt.get("pdelay"): a(f"s_mov_b32 s4, 0\nL_PD:\ns_sleep 100\ns_add_u32 s4, s4, 1\ns_cmp_lt_u32 s4, 10\ns_cbranch_scc1 L_PD")
            a(f"v_mov_b32 v20, {off}\nglobal_load_dword v21, v20, {SP(p)}\ns_waitcnt vmcnt(0)\ns_memrealtime {SP(sST)}\ns_waitcnt lgkmcnt(0)")
            for i in range(8): a(f"v_add_u32 v20, 0x4800, v20\nglobal_load_dword v21, v20, {SP(p)}\ns_waitcnt vmcnt(0)")
            a(f"s_memrealtime {SP(sST+30)}\ns_waitcnt lgkmcnt(0)\nL_NPR:")

    def dt_calc(self, DT):
        self.a(f"""
        s_lshl_b32 s4, s58, 4
        s_lshr_b64 s[6:7], s[64:65], s4
        s_lshl_b32 s6, s6, 16
        v_mov_b32 v{DT}, s6
        v_mul_f32 v{DT}, {LOG2E:#x}, v{DT}
        v_exp_f32 v{DT}, v{DT}
        """)
        self.bf16r(DT, DT)
    def zcalc(self, plar, pai, DT, ER, FI, t):
        a = self.a
        self.unpack(t, t+1, plar)
        self.unpack(t+2, t+3, pai)
        a(f"v_mul_f32 v{t}, {LOG2E:#x}, v{t}\nv_mul_f32 v{t+1}, {LOG2E:#x}, v{t+1}\nv_exp_f32 v{t}, v{t}\nv_exp_f32 v{t+1}, v{t+1}")
        a(f"v_mul_f32 v{t+2}, v{t+2}, v{DT}\nv_mul_f32 v{t+3}, v{t+3}, v{DT}")
        a(f"v_mul_f32 v{FI}, {INV2PI:#x}, v{t+2}\nv_mul_f32 v{FI+1}, {INV2PI:#x}, v{t+3}")
        a(f"v_cvt_pk_bf16_f32 v{t+2}, v{t}, v{t+1}")
        self.unpack(t, t+1, t+2)
        a(f"v_mul_f32 v{t}, v{t}, v{DT}\nv_mul_f32 v{t+1}, v{t+1}, v{DT}")
        a(f"v_mul_f32 v{ER}, {LOG2E|0x80000000:#x}, v{t}\nv_mul_f32 v{ER+1}, {LOG2E|0x80000000:#x}, v{t+1}")
    def cexp(self, E, p, ER, FI, t):
        a = self.a
        if p != 1.0:
            for q in (0,1): a(f"v_mul_f32 v{t+q}, {f2u(p):#x}, v{ER+q}\nv_mul_f32 v{t+2+q}, {f2u(p):#x}, v{FI+q}")
            e, f = t, t+2
        else: e, f = ER, FI
        for q in (0,1): a(f"v_exp_f32 v{t+q}, v{e+q}\nv_fract_f32 v{t+2+q}, v{f+q}")
        for q in (0,1): a(f"v_cos_f32 v{E+2*q}, v{t+2+q}\nv_sin_f32 v{E+2*q+1}, v{t+2+q}")
        for q in (0,1): a(f"v_mul_f32 v{E+2*q}, v{E+2*q}, v{t+q}\nv_mul_f32 v{E+2*q+1}, v{E+2*q+1}, v{t+q}")

    PRM=224; VDT=228; VaW=229; VER=230; VFI=232; VCUR=236; VE8=240; VTMP=244; VPK=248
    def vprep(self):
        a = self.a
        a(f"s_mul_i32 s4, s58, {VSTR}\ns_add_u32 s4, s4, {VT0}\nv_lshl_add_u32 v{self.VaW}, v0, 3, s4")
        a(f"v_add_f32 v{self.VDT}, v{self.VDT}, v{self.VDT}")
        self.unpack(self.VCUR, self.VCUR+2, self.PRM+2)
        self.unpack(self.VCUR+1, self.VCUR+3, self.PRM+3)
        for i in range(4): a(f"v_mul_f32 v{self.VCUR+i}, v{self.VCUR+i}, v{self.VDT}")
        self.cexp(self.VE8, 8.0, self.VER, self.VFI, self.VTMP)
    def vloop(self, n=8):
        a = self.a; L = a.label("LV"); CUR = self.VCUR
        a(f"s_mov_b32 s4, 0\n{L}:")
        for j in range(4):
            r = self.VPK + 2*j
            a(f"v_cvt_pk_bf16_f32 v{r}, v{CUR}, -v{CUR+1}\nv_cvt_pk_bf16_f32 v{r+1}, v{CUR+2}, -v{CUR+3}")
            a(f"ds_write_b64 v{self.VaW}, {P(r)} offset:{j*TROW}")
            self.cmul2(CUR, CUR, self.VE8, self.VTMP)
        a(f"v_add_u32 v{self.VaW}, {4*TROW}, v{self.VaW}\ns_add_u32 s4, s4, 1\ns_cmp_lt_u32 s4, {n}\ns_cbranch_scc1 {L}")

    def kgen(self):
        a = self.a
        DT=228; ER=230; FI=232; PK=220; TMP=236
        VF=48; XF=168; YF=112; DX=[204,208]; DY=[212,216]
        aX=12; aY=13; aV=14; aG=11
        vXO=3; vW4=4; vONE=5; vL4=6; vB=7; vYW=8; vYR=9; vT8=10; vA=1; vK3=2; vKW=33; vXW=32
        zF=200; zT=201; zK=202; aE=203; aE2=46; aE3=47; aKB=35; Z=252
        aVW=180; aUW=188; BXB=244; BXA=248
        i_=16; g_=17; t7=18; t8=19; t9=20; T=22
        a(f"""
        s_mul_i32 s8, s58, {KREG}
        s_add_u32 s8, s8, {K0}
        s_mul_i32 s10, s58, {XSTR}
        s_add_u32 s10, s10, {XR0}
        s_mul_i32 s11, s58, {VSTR}
        s_add_u32 s11, s11, {VT0}
        s_movk_i32 s9, {TROW}
        s_sub_u32 m0, s8, {UOF}
        v_lshl_add_u32 v15, v0, 3, s10
        v_and_b32 v{i_}, 15, v0
        v_lshrrev_b32 v{g_}, 4, v0
        v_lshlrev_b32 v{t7}, 4, v{g_}
        v_mad_u32_u24 v{aX}, v{i_}, s9, v{t7}
        v_add_u32 v{aV}, s11, v{aX}
        v_add_u32 v{aX}, s8, v{aX}
        v_add_u32 v{aG}, s8, v{t7}
        v_cmp_gt_u32 vcc, 3, v{i_}
        v_cndmask_b32 v{t8}, 12, 4, vcc
        v_cmp_eq_u32 vcc, 3, v{i_}
        v_cndmask_b32 v{t8}, v{t8}, 28, vcc
        v_mad_u32_u24 v{aY}, v{t8}, s9, v{aX}
        v_and_b32 v{t9}, 3, v{i_}
        s_sub_u32 s11, s11, {VT0}
        s_lshl_b32 s4, s58, 2
        v_mov_b32 v{vW4}, s4
        v_mov_b32 v{vONE}, 1
        v_lshlrev_b32 v{vL4}, 2, v{t9}
        s_movk_i32 s9, {KSTR}
        v_lshrrev_b32 v{t7}, 2, v0
        v_lshl_add_u32 v{t8}, v{t9}, 3, s8
        v_mad_u32_u24 v{zF}, v{t7}, s9, v{t8}
        s_movk_i32 s4, 160
        v_mad_u32_u24 v{zK}, v{t7}, s4, v{t8}
        v_lshrrev_b32 v{t7}, 3, v0
        v_and_b32 v{t8}, 7, v0
        v_lshl_add_u32 v{t8}, v{t8}, 3, s8
        v_mad_u32_u24 v{zT}, v{t7}, s9, v{t8}
        v_lshrrev_b32 v{t7}, 5, v0
        v_lshlrev_b32 v{t7}, 8, v{t7}
        v_lshl_add_u32 v{t7}, v{i_}, 4, v{t7}
        v_add_u32 v{t7}, s8, v{t7}
        v_and_b32 v{t8}, 1, v{g_}
        v_lshl_add_u32 v{aE}, v{t8}, 3, v{t7}
        v_lshl_add_u32 v{aE2}, v{t8}, 9, v{t7}
        v_and_b32 v{t7}, 1, v{i_}
        s_movk_i32 s4, 640
        v_mul_u32_u24 v{t7}, s4, v{t7}
        v_lshl_add_u32 v{t7}, v{g_}, 5, v{t7}
        v_and_b32 v{t8}, 14, v{i_}
        v_add3_u32 v{aE3}, v{t7}, v{t8}, s8
        v_mov_b32 v{aKB}, s8
        v_mov_b32 v{Z}, 0
        v_mov_b32 v{Z+1}, 0
        """)
        a(f"""
        v_lshlrev_b32 v{vB}, 4, v{g_}
        v_lshlrev_b32 v{t7}, 5, v{i_}
        v_sub_u32 v{vB}, v{vB}, v{t7}
        s_add_u32 s4, s10, 480
        v_add_u32 v{vB}, s4, v{vB}
        s_lshl_b32 s4, s58, 13
        s_add_u32 s4, s4, {YB}
        v_lshlrev_b32 v{t7}, 6, v{i_}
        v_lshl_add_u32 v{t7}, v{g_}, 4, v{t7}
        v_add_u32 v{vYW}, s4, v{t7}
        v_sub_u32 v{T}, 20, v{i_}
        v_lshlrev_b32 v{T+1}, 3, v{g_}
        v_mov_b32 v{T+2}, 0x7f
        v_lshlrev_b32 v{T+2}, v{T}, v{T+2}
        v_subrev_u32 v{T}, 1, v{T}
        v_mov_b32 v{T+3}, 0x1ff
        v_lshlrev_b32 v{T+3}, v{T}, v{T+3}
        v_lshrrev_b32 v{T+2}, v{T+1}, v{T+2}
        v_lshrrev_b32 v{T+3}, v{T+1}, v{T+3}
        v_add_u32 v{t7}, 1, v{i_}
        v_and_b32 v{T}, 3, v{t7}
        v_and_b32 v{t7}, 28, v{t7}
        v_lshl_add_u32 v{T+4}, v{g_}, 3, v{t7}
        v_lshl_add_u32 v{T+4}, v{T+4}, 1, s8
        v_mad_u32_u24 v{vA}, v{T}, s9, v{T+4}
        v_lshlrev_b32 v{T+4}, 2, v{g_}
        v_sub_u32 v{t7}, v{t7}, v{T+4}
        v_lshl_add_u32 v{t7}, v{t7}, 1, s8
        s_movk_i32 s4, 160
        v_mad_u32_u24 v{vK3}, v{T}, s4, v{t7}
        s_mov_b32 s15, 0x3f800000
        """)
        for (dst, src) in ((BXB, T+2), (BXA, T+3)):
            for d in range(4):
                a(f"v_bfe_i32 v{T+5}, v{src}, {2*d}, 1\nv_bfe_i32 v{T+6}, v{src}, {2*d+1}, 1\nv_and_b32 v{T+5}, 0x3f80, v{T+5}\nv_bfi_b32 v{dst+d}, s15, v{T+6}, v{T+5}")
        self.csetup()
        a("s_waitcnt lgkmcnt(0)")
        self.dt_calc(DT)
        xp = f"s_mov_b32 exec_hi, 0\nbuffer_load_dword v255, v254, {SQ(rWS)}, s13 offen\ns_mov_b32 exec_hi, -1"
        XP = self.opt.get("xp", 1)
        if XP: a(f"s_lshl_b32 s4, s58, 12\nv_lshl_add_u32 v254, v0, 7, s4")
        if XP == 2: a(xp + "\ns_waitcnt vmcnt(1)")
        else: a(f"s_waitcnt vmcnt(0)")
        self.stamp(1)
        if XP == 1: a(xp)
        if self.opt.get("ft", 0): a(f"s_buffer_load_dword s30, {SQ(rWS)}, s31 glc")
        if self.opt.get("k2"): a("s_mov_b32 s24, 0\nL_K2:")
        self.zcalc(224, 225, DT, ER, FI, TMP)
        UR = lambda r: 112 + 2*r
        E1024 = 166; BV = {8: 36, 16: 38, 32: 40, 64: 42, 128: 44}
        W = lambda j: 80 + 2*j if j < 16 else 220 + 2*(j % 8)
        CA = 16; CB = 24; CP = 240
        a(f"v_add_f32 v{DT}, v{DT}, v{DT}")
        for q in (0,1): a(f"v_mul_f32 v{CB+4+q}, {f2u(32.0):#x}, v{ER+q}\nv_mul_f32 v{CB+6+q}, {f2u(32.0):#x}, v{FI+q}")
        up = self.unp(CP, CP+2, 226) + self.unp(CP+1, CP+3, 227) + [f"v_mul_f32 v{CP+i}, v{CP+i}, v{DT}" for i in range(4)]
        for q in (0,1): a(f"v_exp_f32 v{CA+4+q}, v{ER+q}\nv_fract_f32 v{CA+6+q}, v{FI+q}\nv_exp_f32 v{CB+4+q}, v{CB+4+q}\nv_fract_f32 v{CB+6+q}, v{CB+6+q}")
        tr = []
        for C_ in (CA, CB):
            for q in (0,1): tr += [f"v_cos_f32 v{C_+2*q}, v{C_+6+q}", f"v_sin_f32 v{C_+2*q+1}, v{C_+6+q}"]
        for l in interleave(tr, up): a(l)
        for C_ in (CA, CB):
            for q in (0,1): a(f"v_mul_f32 v{C_+2*q}, v{C_+2*q}, v{C_+4+q}\nv_mul_f32 v{C_+2*q+1}, v{C_+2*q+1}, v{C_+4+q}")
        cv = lambda d, s_: [f"v_cvt_pk_f16_f32 v{d}, v{s_}, v{s_+1}", f"v_cvt_pk_f16_f32 v{d+1}, v{s_+2}, v{s_+3}"]
        sqm = lambda x: [f"v_pk_mul_f32 {P(x+4+q)}, {P(x+q)}, {P(x+q)} op_sel_hi:[1,0]" for q in (0,2)]
        sqf = lambda x: [f"v_pk_fma_f32 {P(x+q)}, {P(x+q)}, {P(x+q)}, {P(x+4+q)} op_sel:[1,1,0] op_sel_hi:[0,1,1] neg_lo:[1,0,0]" for q in (0,2)]
        def pr(L):
            o = []
            for k in range(0, len(L), 2):
                B_ = L[k:k+2]
                for (d, x, y, c) in B_: o += [f"v_pk_mul_f16 v{d+q}, v{x+q}, v{y+q} op_sel_hi:[1,0]" for q in (0,1)]
                for (d, x, y, c) in B_: o += [f"v_pk_fma_f16 v{d+q}, v{x+q}, v{y+q}, v{d+q} op_sel:[1,1,0] op_sel_hi:[0,1,1] neg_{'hi' if c else 'lo'}:[1,0,0]" for q in (0,1)]
            return o
        issued = []
        def lds(tag, text): a(text); issued.append(tag)
        def need(tag):
            last = max(i for i, t in enumerate(issued) if t == tag)
            a(f"s_waitcnt lgkmcnt({min(len(issued)-1-last, 15)})")
        UP = {0:[0],1:[1],2:[2],3:[3],4:[4],5:[5],6:[6],7:[7],11:[8],12:[9],13:[10,12],14:[11,13],15:[14],16:[15],23:[31],
              8:[16],9:[17],10:[18],24:[19],17:[20],18:[21],19:[22],25:[23],20:[24],21:[25],22:[26],26:[27]}
        pend = []
        def wrow(reg, off): pend.extend([(None, f"ds_write_addtid_b32 v{reg} offset:{off}"), (None, f"ds_write_addtid_b32 v{reg+1} offset:{off+256}")])
        def wu(*rs):
            for r in rs:
                for p_ in UP[r]: wrow(UR(r), UOF + p_*TROW)
        def wv(*js):
            for j in js: wrow(W(j), VT0 + j*TROW)
        def em(L, mf=None, mper=4):
            for k, l in enumerate(L):
                if mf and k % mper == 0: a(mf.pop(0))
                a(l)
        def flush():
            while pend:
                t = pend.pop(0)
                if t[0] == "s": a(t[1])
                else: lds(*t)
        U = lambda d, x, y: (UR(d), UR(x), UR(y) if y >= 0 else E1024, 0)
        V = lambda d, x, y: (W(d), W(x), BV[y], 1)
        self.kst(14)
        em([f"v_mov_b32 v{UR(0)}, 0x3c00", f"v_mov_b32 v{UR(0)+1}, 0x3c00"] + sqm(CA) + sqm(CB) + cv(UR(1), CA) + cv(BV[32], CB) + sqf(CA) + sqf(CB))
        em(sqm(CA) + sqm(CB) + cv(UR(2), CA) + cv(BV[64], CB) + sqf(CA) + sqf(CB))
        em([f"v_cvt_pk_f16_f32 v{W(0)}, v{CP}, -v{CP+1}", f"v_cvt_pk_f16_f32 v{W(0)+1}, v{CP+2}, -v{CP+3}"] + sqm(CA) + sqm(CB) + cv(UR(4), CA) + cv(BV[128], CB) + sqf(CA) + sqf(CB))
        em(pr([U(3,2,1), U(5,4,1)]))
        em(sqm(CA) + cv(UR(8), CA) + cv(UR(11), CB) + sqf(CA))
        wu(0, 1, 2, 4, 3, 5, 8, 11); wrow(BV[128], UOF + 28*TROW); flush()
        em(pr([U(6,4,2), U(7,4,3), U(10,8,2), U(12,11,2), U(13,11,4), U(14,11,6), U(15,11,8), U(16,11,10)]))
        wu(6, 7, 10, 12, 13, 14, 15, 16); flush()
        for s_ in range(8): lds("x", f"ds_read_b128 {Q(XF+4*s_)}, v{aX} offset:{64*s_}")
        a("s_mov_b32 m0, s11")
        self.kst(10)
        BV[8] = UR(8)
        em(cv(BV[16], CA) + pr([V(1,0,8), V(4,0,32), V(2,0,16), V(3,1,16), V(5,1,32), V(8,0,64), V(6,2,32), V(7,3,32)]))
        wv(0, 1, 2, 3, 4, 5, 6, 7, 8); flush()
        em(pr([V(9,1,64), V(12,4,64), V(10,2,64), V(11,3,64), V(13,5,64), V(14,6,64), V(15,7,64), U(9,8,1)]))
        wv(9, 10, 11, 12, 13, 14, 15); flush()
        for s_ in range(8): lds(f"v{s_}", f"ds_read_b128 {Q(VF+4*s_)}, v{aV} offset:{64*s_}")
        for s_ in range(8): lds(f"g{s_}", f"ds_read_b128 {Q(VF+32+4*s_)}, v{aG} offset:{28*TROW+64*s_}")
        a(f"s_sub_u32 m0, s8, {UOF}")
        self.kst(11)
        MF = "v_mfma_f32_16x16x32_f16"
        def mm(D, A, ct, s_): return f"{MF} {Q(D[ct])}, {Q(A+4*s_)}, {Q(VF+32*ct+4*s_)}, {'0' if s_ == 0 else Q(D[ct])}"
        m0 = [mm(DX, XF, 0, s_) for s_ in range(8)]
        em(sqm(CB) + sqf(CB) + cv(UR(17), CB) + sqm(CB) + sqf(CB) + cv(E1024, CB))
        need("v7")
        em(pr([U(20,17,11), U(18,17,4), U(19,17,8), U(23,8,-1), U(21,20,4), U(22,20,8), U(24,15,-1), U(25,19,-1), U(26,22,-1)]), m0, 4)
        wu(9, 17, 20, 18, 19, 23, 21, 22, 24, 25, 26); flush()
        for s_ in range(8): lds(f"y{s_}", f"ds_read_b128 {Q(YF+4*s_)}, v{aY} offset:{64*s_}")
        a("s_mov_b64 exec, 0xffff"); lds(None, f"ds_write_b64 v{zF}, {P(Z)}")
        a("s_mov_b32 exec_lo, -1"); lds(None, f"ds_write_b64 v{zT}, {P(Z)} offset:2080"); lds(None, f"ds_write_b64 v{zK}, {P(Z)} offset:{K3O}")
        a("s_mov_b64 exec, -1")
        self.kst(13)
        TM = 220
        for s_ in range(10):
            mq = []
            if 1 <= s_ <= 8: mq.append(mm(DX, XF, 1, s_-1))
            if 2 <= s_ <= 9:
                if s_ % 2 == 0: need(f"y{s_-1}")
                mq += [mm(DY, YF, 0, s_-2), mm(DY, YF, 1, s_-2)]
            L = []
            if s_ < 8:
                L += [f"v_pk_mul_f16 v{TM+j}, v{VF+4*s_+j}, v{VF+32+4*s_+j} op_sel_hi:[1,0]" for j in range(4)]
                L += [f"v_pk_fma_f16 v{VF+32+4*s_+j}, v{VF+4*s_+j}, v{VF+32+4*s_+j}, v{TM+j} op_sel:[1,1,0] op_sel_hi:[0,1,1] neg_hi:[1,0,0]" for j in range(4)]
            for k in range(len(L)):
                if k % 3 == 2 and mq: a(mq.pop(0))
                a(L[k])
            for m in mq: a(m)
        self.kst(12)
        a("s_lshl_b32 s4, s58, 4\ns_lshr_b64 s[6:7], s[66:67], s4\ns_lshl_b32 s6, s6, 16")
        for r in range(4): a(f"v_permlane32_swap_b32 v{DX[0]+r}, v{DX[1]+r}")
        a(f"v_cvt_pk_bf16_f32 v{PK}, v{DY[0]+3}, v{DY[1]+3}")
        a(f"s_mov_b64 exec, 1\nv_add_f32 v{DX[0]}, s6, v{DX[0]}\nv_add_f32 v{DX[0]}, 1.0, v{DX[0]}\ns_mov_b64 exec, -1")
        for r in range(3): a(f"v_permlane32_swap_b32 v{DY[0]+r}, v{DY[1]+r}")
        for sg in range(4):
            a(f"ds_write_b16 v{aE3}, v{PK} offset:{K3O+32+158*sg}")
            a(f"ds_write_b16_d16_hi v{aE3}, v{PK} offset:{K3O+16+32+158*sg}")
        WL = []
        def expand(X, seq, nl, addr, lag0):
            for sg in range(4):
                nd = nl//2
                base = X + sg*nd
                for d in range(nd):
                    a(f"v_cvt_pk_bf16_f32 v{base+d}, v{seq[sg+2*d]}, v{seq[sg+2*d+1]}")
                off = sg*KSTR + 2*(16+lag0)
                if nd == 2: WL.append(f"ds_write_b64 v{addr}, {P(base)} offset:{off}")
                else: WL.append(f"ds_write_b128 v{addr}, {Q(base)} offset:{off}")
        X0, X1, Y0, Y1 = DX[0], DX[1], DY[0], DY[1]
        expand(48, [X0,X0+1,X0+2,X0+3,Y0,Y0+1,Y0+2], 4, aE, 0)
        expand(56, [X1,X1,X1+1,X1+2,X1+2,X1+2,X1+3], 4, aE, 256)
        expand(64, [Y1]*3+[Y1+1]*3+[Y1+2]*5, 8, aE2, 512)
        a(f"""
        v_cvt_pk_bf16_f32 v80, v{Z}, v{X0}
        v_mov_b32 v81, v50
        v_mov_b32 v82, v79
        v_cvt_pk_bf16_f32 v83, v{Y1+2}, v{Z}
        """)
        for l in WL: a(l)
        a(f"""
        s_mov_b64 exec, 1
        ds_write_b32 v{aKB}, v80 offset:{1*KSTR+28}
        ds_write_b32 v{aKB}, v48 offset:{2*KSTR+28}
        ds_write_b64 v{aKB}, v[80:81] offset:{3*KSTR+24}
        s_brev_b64 exec, 1
        ds_write_b64 v{aKB}, v[78:79] offset:{2080}
        ds_write_b32 v{aKB}, v83 offset:{2088}
        ds_write_b64 v{aKB}, v[78:79] offset:{KSTR+2080}
        ds_write_b64 v{aKB}, v[82:83] offset:{2*KSTR+2080}
        ds_write_b32 v{aKB}, v79 offset:{3*KSTR+2080}
        s_mov_b64 exec, -1
        """)
        self.kst(15)
        if self.opt.get("k2"):
            a("s_cmp_lg_u32 s24, 0\ns_cbranch_scc1 L_K2E")
            self.stamp(11)
            a("s_mov_b32 s24, 1\ns_branch L_K2\nL_K2E:")
        self.stamp(2)

    def csetup(self):
        vYR=9; vT8=10; vKW=33; vXW=32
        self.a(f"""v_lshlrev_b32 v{vKW}, 4, v10
        v_lshlrev_b32 v{vXW}, 2, v10
        v_sub_u32 v{vXW}, {XR0+1020}, v{vXW}
        s_and_b32 s31, s2, 7
        s_lshl_b32 s31, s31, 2
        s_add_u32 s31, s31, s58
        s_lshl_b32 s31, s31, 7
        s_add_u32 s31, s31, {WS_FL2}
        s_lshl_b32 s13, s{sDG}, 14
        s_add_u32 s13, s13, {WS_XT}
        s_and_b32 s12, s2, 7
        s_lshl_b32 s12, s12, 11
        s_lshl_b32 s4, s58, 7
        s_add_u32 s12, s12, s4
        s_lshr_b32 s4, s2, 3
        s_lshl_b32 s4, s4, 2
        s_add_u32 s12, s12, s4
        s_add_u32 s12, s12, {WS_FL3}
        v_lshlrev_b32 v{vT8}, 3, v10
        v_add_u32 v{vYR}, {YB}, v{vT8}
        s_brev_b32 s68, 1""")
    def cmain(self):
        a = self.a
        XU = 16; AR = 48; RB = 180; ACC = 204; ZF = 236; D1 = 252
        G0 = ZF; T = 204; RAW = 180; M = 180; RS = 188; PKD = 196
        vXO=3; vW4=4; vONE=5; vL4=6; vB=7; vYW=8; vYR=9; vT8=10
        vXW=32; RAWC=28; UN=20; vKW=33; vTG=34
        vA = 1; vK3 = 2
        BXB = ZF+8; BXA = ZF+12
        RAW = 16; UN = 36; MS = 180; RS = 188; M = 196; XU = 204; PKD = 36
        self.wait_flag(C_XS, vL4, vTG)
        a(f"""s_buffer_load_dwordx8 s[16:23], {SQ(rWS)}, s31 glc
        v_readfirstlane_b32 s28, v{vTG}
        ds_write_b64 v15, v[252:253] offset:4096
        s_mov_b32 s5, 0
        s_mov_b32 s29, s28
        """)
        al = sum([[f"ds_read_b64 {P(AR+4*d)}, v{vA} offset:{64*d}", f"ds_read_b64 {P(AR+4*d+2)}, v{vA} offset:{64*d+8}"] for d in range(33)], [])
        NA = self.opt.get("na", 40)
        for l in al[:NA]: a(l)
        a(f"""s_branch L_XC
        L_XP:
        s_sleep {self.opt.get("xsl", 2)}
        ds_read_b32 v11, v{vW4} offset:{C_MS}
        s_buffer_load_dwordx8 s[16:23], {SQ(rWS)}, s31 glc
        s_add_u32 s5, s5, 1
        s_waitcnt lgkmcnt(0)
        v_cmp_eq_u32 vcc, 1, v11
        s_cbranch_vccnz L_XSLOW
        s_cmp_ge_u32 s5, 0x4000
        s_cbranch_scc1 L_XSLOW
        L_XC:
        s_waitcnt lgkmcnt(0)""")
        for i in range(4): a(f"s_xor_b64 {SP(16+2*i)}, {SP(16+2*i)}, s[28:29]")
        a(f"""s_or_b64 s[16:17], s[16:17], s[18:19]
        s_or_b64 s[20:21], s[20:21], s[22:23]
        s_or_b64 s[16:17], s[16:17], s[20:21]
        {"s_branch" if self.opt.get("forcex") else "s_cbranch_scc1"} L_XP
        """)
        for k in range(4): a(f"s_add_u32 s4, s13, {0x1000*k}\nbuffer_load_dwordx4 {Q(RAW+4*k)}, v{vKW}, {SQ(rWS)}, s4 offen {MOD[self.opt.get('xro',2)]}")
        a("L_XBACK:")
        self.stamp(3)
        for l in al[NA:]: a(l)
        self.stamp(5)
        self.wait_flag(C_MS, vW4, 11)
        a(f"ds_read2st64_b64 {Q(MS)}, v{vT8} offset0:{MSB//512} offset1:{MSB//512+4}\nds_read2st64_b64 {Q(MS+4)}, v{vT8} offset0:{MSB//512+8} offset1:{MSB//512+12}")
        a(f"s_waitcnt vmcnt(0)")
        self.stamp(4)
        for i in range(8):
            for l in self.unp(XU+0*8+i, XU+1*8+i, RAW+2*i) + self.unp(XU+2*8+i, XU+3*8+i, RAW+1+2*i): a(l)
            if i == 1:
                a("s_waitcnt lgkmcnt(0)")
                for j in range(4): self.unpack(RS+2*j, RS+2*j+1, MS+2*j+1)
            if i >= 2 and i < 6: a(f"v_rcp_f32 v{RS+2*i-4}, v{RS+2*i-4}\nv_rcp_f32 v{RS+2*i-3}, v{RS+2*i-3}")
        for i in range(4): self.unpack(M+2*i, M+2*i+1, MS+2*i)
        for i in range(4): a(f"v_pk_mul_f32 {P(M+2*i)}, {P(M+2*i)}, {P(RS+2*i)}")
        for c in range(4):
            for k in range(4): a(f"v_pk_fma_f32 {P(XU+8*c+2*k)}, {P(XU+8*c+2*k)}, {P(RS+2*k)}, {P(M+2*k)} neg_lo:[0,0,1] neg_hi:[0,0,1]")
            r = PKD+4*(c%2)
            for k in range(4): a(f"v_cvt_pk_bf16_f32 v{r+k}, v{XU+8*c+2*k+1}, v{XU+8*c+2*k}")
            for k in (0,2): a(f"ds_write2st64_b32 v{vXW}, v{r+k}, v{r+k+1} offset0:{18*c+4*(3-k)} offset1:{18*c+4*(2-k)}")
        self.arrive(C_XR, vW4, 11)
        self.wait_flag(C_XR, vL4, 15)
        a("v_cmp_ne_u32 vcc, 2, v15\ns_cmp_eq_u32 vcc_lo, 0\ns_cselect_b32 s14, 2, 1")
        if self.opt.get("cprio", 2) != self.opt.get("kprio", 2): a(f"s_setprio {self.opt.get('cprio', 2)}")
        self.stamp(6)

        acc = {nt: ACC+4*nt for nt in range(8)}
        started = set()
        def mf(nt, A, B):
            c = Q(acc[nt]) if nt in started else "0"
            started.add(nt)
            return f"{MFMA} {Q(acc[nt])}, {Q(A)}, {Q(B)}, {c}"
        def itB(u):
            tiles = [nt for nt in range(8) if 0 <= 8*nt-u <= 32]
            return (lambda r: [f"ds_read_b128 {Q(r)}, v{vB} offset:{64*(56-u)}"], lambda r: [mf(nt, AR+4*(8*nt-u), r) for nt in tiles], ("B", u))
        def itBox(S, ty):
            off = 64*(56-8*S) + 16*ty; d = ACC+16+8*(S%2)+4*ty
            return (lambda r: [f"ds_read_b128 {Q(r)}, v{vB} offset:{off}"], lambda r: [f"{MFMA} {Q(d)}, {Q(r)}, {Q(BXA if ty else BXB)}, 0"], ("X", S, ty))
        def itK3(D, pairs):
            return (lambda r: [f"ds_read_b64 {P(r)}, v{vK3} offset:{K3O+24+32*D}", f"ds_read_b64 {P(r+2)}, v{vK3} offset:{K3O+24+32*D+640}"],
                    lambda r: [mf(4+Tt, ZF+4*S, r) for (Tt, S) in pairs], ("K3", D, pairs[0][0]))
        items = [itB(-7), itBox(0,0), itBox(0,1), itB(-6), itBox(1,0), itBox(1,1), itB(-5), itB(-4),
                 itBox(2,0), itBox(2,1), itB(-3), itBox(3,0), itBox(3,1), itB(-2), itB(-1)]
        for u in range(0, 57):
            items.append(itB(u))
            if u == 20: items.append(itK3(0, [(0,0),(1,1)]))
            if u == 28: items.append(itK3(1, [(1,0)]))
            if u == 42: items.append(itK3(0, [(2,2),(3,3)]))
            if u == 45: items.append(itK3(1, [(2,1),(3,2)]))
            if u == 47: items.append(itK3(2, [(2,0),(3,1)]))
            if u == 51: items.append(itK3(3, [(3,0)]))
        pos = {it[2]: k for k, it in enumerate(items)}
        fill = {}; hard = set()
        def addf(idx, L): fill.setdefault(idx, []).extend(L)
        def zc(S):
            d = ACC+16+8*(S%2)
            return [f"v_cvt_pk_bf16_f32 v{ZF+4*S}, v{d+3}, v{d+2}", f"v_cvt_pk_bf16_f32 v{ZF+4*S+1}, v{d+1}, v{d}",
                    f"v_cvt_pk_bf16_f32 v{ZF+4*S+2}, v{d+7}, v{d+6}", f"v_cvt_pk_bf16_f32 v{ZF+4*S+3}, v{d+5}, v{d+4}"]
        addf(pos[("B",-5)], zc(0) + zc(1)); hard.add(pos[("X",2,0)])
        addf(pos[("B",-2)], zc(2) + zc(3)); hard.add(pos[("B",0)])
        YF = [C_Y0, C_Y1, C_Y2, C_Y3]
        def ywrite(k):
            return [("lds", None, f"ds_write_b128 v{vYW}, {Q(acc[nt])} offset:{1024*nt}") for nt in (2*k, 2*k+1)] + [("rawlds", self.arr(YF[k], vW4, vONE))]
        def yread(k, tag):
            return [("lds", tag, f"ds_read_b64 {P(ACC+8*k+2*c)}, v{vYR} offset:{c*8192+2048*k}") for c in range(4)]
        def eaddr(k, e):
            fl = 12 + k//2; sh = 24 - 8*(2*(k%2)+e)
            if sh: return [f"v_lshlrev_b32 v{14+e}, {sh}, v{fl}", f"v_and_or_b32 v{14+e}, v{14+e}, s68, v{vXO}"]
            return [f"v_and_or_b32 v{14+e}, v{fl}, s68, v{vXO}"]
        def emath(k):
            Y = ACC+8*k; L = []
            for e in range(2):
                L += self.unp(UN+4*e, UN+4*e+1, RAW+4*k+2*e) + self.unp(UN+4*e+2, UN+4*e+3, RAW+4*k+2*e+1)
            for e in range(2):
                for c in range(4): L.append(f"v_add_f32 v{UN+4*e+c}, v{Y+2*c+e}, v{UN+4*e+c}")
            for e in range(2):
                L.append(f"v_cvt_pk_bf16_f32 v{Y+2*e}, v{UN+4*e}, v{UN+4*e+1}")
                L.append(f"v_cvt_pk_bf16_f32 v{Y+2*e+1}, v{UN+4*e+2}, v{UN+4*e+3}")
            return L
        def est(k, e):
            if self.opt.get("nost"): return []
            return [f"buffer_store_dwordx2 {P(ACC+8*k+2*e)}, v{14+e}, {SQ(rOUT)}, s{sO+k} offen offset:{2048*e} {'sc1' if (k >= DQ and self.opt.get('dsc')) else ''}"]
        DQ = self.opt.get("dq", 3)
        def yst(k):
            if k >= DQ: return eaddr(k, 0) + eaddr(k, 1) + est(k, 0) + est(k, 1)
            return ["s_cmp_lg_u32 s14, 2", f"s_cbranch_scc1 L_ES{k}", f"buffer_store_dwordx4 {Q(ACC+8*k)}, v{vKW}, {SQ(rWS)}, s13 offen", f"L_EB{k}:", "s_add_u32 s13, s13, 0x1000"]
        def yfl(k):
            if k >= DQ: return []
            if self.opt.get("nyw") and k < 2: return ["s_mov_b64 exec, 1", f"buffer_store_dword v{vTG}, off, {SQ(rWS)}, s12 offset:{512*k}", "s_mov_b64 exec, -1"]
            return ["s_waitcnt vmcnt(0)", "s_mov_b64 exec, 1", f"buffer_store_dword v{vTG}, off, {SQ(rWS)}, s12 offset:{512*k}", "s_mov_b64 exec, -1"]
        def check(n, regs):
            L = []
            if len(regs) == 2: L.append(f"v_min_u32 v{regs[0]}, v{regs[0]}, v{regs[1]}")
            L += [f"v_cmp_eq_u32 vcc, 0, v{regs[0]}", f"s_cbranch_vccnz L_SLOW{n}", f"L_BACK{n}:"]
            return [("raw", L)]
        for k in range(3):
            p = pos[("B", 16*k+8)]
            d = (1, 3, 4, 6, 8, 14) if k < 2 else (1, 4, 6, 9, 12, 17)
            addf(p+d[0], ywrite(k))
            fr = [("lds", f"f{k}", f"ds_read_b32 v11, v{vL4} offset:{YF[k]}")]
            KS = min(DQ, 2)
            if k == KS: fr.append(("lds", f"f{k}", f"ds_read_b32 v15, v{vL4} offset:{C_SEL}"))
            addf(p+d[1], fr)
            addf(p+d[2], [("need", f"f{k}")] + check(k, [11, 15] if k == KS else [11]) + ([("lds", f"y{k}", f"ds_read_b64 v[12:13], v{vT8} offset:{SELF}")] if k == KS else []) + yread(k, f"y{k}"))
            addf(p+d[3], [("need", f"y{k}")] + emath(k) + [("raw", yst(k))])
            if k < 2: addf(p+d[5]+self.opt.get("yfd", 10), [("raw", yfl(k))])
        issued = []; done = [0]
        def lds(tag, text): a(text); issued.append(tag)
        def need(tag):
            last = max(i for i, t in enumerate(issued) if t == tag)
            if last >= done[0]:
                n = min(len(issued) - 1 - last, 15)
                a(f"s_waitcnt lgkmcnt({n})"); done[0] = len(issued) - n
        NR = 6; PD = self.opt.get("pd", 5)
        slot = lambda k: RB + 4*(k % NR)
        self.cst(14)
        for k in range(PD):
            for l in items[k][0](slot(k)): lds(("it", k), l)
        queue = []
        def drain(n):
            while queue and n > 0:
                e = queue.pop(0)
                if isinstance(e, str): a(e); n -= 1
                elif e[0] == "need": need(e[1])
                elif e[0] == "lds": lds(e[1], e[2]); n -= 1
                elif e[0] == "raw":
                    for l in e[1]: a(l)
                    n -= 2
                elif e[0] == "rawlds":
                    for l in e[1]: a(l)
                    issued.append(None); n -= 2
        for k, it in enumerate(items):
            if k in hard: drain(1000)
            for u_, i_ in ((0, 10), (16, 11), (32, 12), (44, 13)):
                if it[2] == ("B", u_): self.cst(i_)
            queue += fill.get(k, [])
            need(("it", k))
            ms = it[1](slot(k))
            for j, m in enumerate(ms):
                a(m)
                if j == 0 and k+PD < len(items):
                    for l in items[k+PD][0](slot(k+PD)): lds(("it", k+PD), l)
                    if len(ms) == 1 or k > pos[("B", 40)]: drain(1)
                else: drain(2 if k > pos[("B", 40)] or k < pos[("B", 0)] else 1 + (len(queue) > 8))
            if it[2] == ("B", 49): lds(None, f"ds_write_b128 v{vYW}, {Q(acc[6])} offset:{1024*6}")
        drain(1000)
        self.cst(15)
        self.stamp(7)
        a(f"ds_write_b128 v{vYW}, {Q(acc[7])} offset:{1024*7}")
        self.arrive(C_Y3, vW4, vONE)
        for l in yfl(2): a(l)
        em = emath(3)
        for l in em[:8]: a(l)
        self.wait_flag(C_Y3, vL4, 11)
        for e in yread(3, None): a(e[2])
        a("s_waitcnt lgkmcnt(0)")
        for l in em[8:] + yst(3): a(l)
        self.stamp(8)
        for l in yfl(3): a(l)
        if self.stamps or self.opt.get("gamp") == 9:
            a("s_waitcnt vmcnt(0)")
            self.stamp(9)
        a("s_branch L_FIN")
        for n in range(3):
            a(f"L_SLOW{n}:")
            self.wait_flag(YF[n], vL4, 11)
            if n == KS: self.wait_flag(C_SEL, vL4, 11)
            a(f"s_branch L_BACK{n}")
        for k in range(DQ):
            a(f"L_ES{k}:")
            if k < KS:
                self.wait_flag(C_SEL, vL4, 11)
                a(f"ds_read_b64 v[12:13], v{vT8} offset:{SELF}\ns_waitcnt lgkmcnt(0)")
            for l in eaddr(k, 0) + eaddr(k, 1) + est(k, 0) + est(k, 1): a(l)
            a(f"s_branch L_EB{k}")
        a("L_XSLOW:")
        for i in range(8): a(f"buffer_load_dwordx2 {P(RAW+2*i)}, v{vXO}, {SQ(rX)}, s{sO+i//2} offen offset:{2048*(i%2)}")
        a("s_branch L_XBACK")

    def fmain(self):
        a = self.a
        GUR = 112; GUF = 48
        WDR = 176; WDF = 112
        XS = 208
        ACC = 16
        vL4 = 1; vW4 = 2; vPW = 3; vPR = 4; vONE = 5; vRS = 6; vE = 7; vNM = 8; vXO = 9
        PRM = 224; TCH = 216
        sSG = 59; sK = 68
        X0 = 16; W0 = 32; S = 48
        a(f"""
        L_F0:
        s_setprio 2
        s_mov_b32 s{sO+1}, {WS_STAT}
        s_lshl_b32 s7, s2, 2
        s_add_u32 s7, s7, s{sW}
        s_lshl_b32 s13, s2, {7 if self.opt.get("ss") else 6}
        s_add_u32 s13, s13, {WS_STAT}
        s_lshl_b32 s8, s7, 12
        v_and_b32 v10, 31, v0
        v_lshlrev_b32 v10, 4, v10
        v_lshrrev_b32 v11, 5, v0
        v_lshl_add_u32 v11, v11, 11, v10
        v_add_u32 v11, s8, v11
        s_cmp_lt_u32 s6, 28
        s_cselect_b32 s{sROLE}, 1, 0
        s_lshr_b32 s8, s6, 2
        s_add_u32 s9, s5, 3
        s_and_b32 s9, s9, 7
        s_min_u32 s9, s9, 6
        s_cmp_lt_u32 s6, 28
        s_cselect_b32 s8, s8, s9
        s_mul_i32 s{sSG}, s5, 7
        s_add_u32 s{sSG}, s{sSG}, s8
        s_and_b32 s{sK}, s6, 3
        s_lshl_b32 s8, s{sK}, 2
        s_add_u32 s8, s8, s{sW}
        s_lshl_b32 s8, s8, 6
        s_xor_b32 s9, s{sROLE}, 1
        s_lshl_b32 s9, s9, 5
        s_add_u32 s8, s8, s9
        v_lshrrev_b32 v12, 4, v0
        v_lshl_add_u32 v12, v12, 3, s8
        v_lshlrev_b32 v{vXO}, 1, v12
        s_movk_i32 s10, 7168
        v_mul_u32_u24 v14, s10, v12
        v_and_b32 v12, 7, v0
        v_lshl_add_u32 v14, v12, 4, v14
        s_lshl_b32 s8, s{sSG}, 7
        v_add_u32 v14, s8, v14
        v_and_b32 v12, 8, v0
        v_cmp_ne_u32 vcc, 0, v12
        """)
        self.est(6)
        a("s_waitcnt lgkmcnt(0)")
        self.est(7)
        for i in range(4): a(f"global_load_dwordx4 {Q(X0+4*i)}, v11, {SP(sX)} offset:{512*i} {'nt' if self.opt.get('xnt') else ''}")
        self.wsb()
        a(f"s_load_dword s{sTAG}, {SP(sWS)}, 0")
        for i in range(4): a(f"global_load_dwordx4 {Q(W0+4*i)}, v10, {SP(sWR)} offset:{512*i}")
        a(f"""
        v_mov_b32 v12, s{sWGT}
        v_mov_b32 v13, s{sWGT+1}
        v_mov_b32 v10, s{sWU}
        v_mov_b32 v11, s{sWU+1}
        v_cndmask_b32 v12, v12, v10, vcc
        v_cndmask_b32 v13, v13, v11, vcc
        v_add_co_u32 v220, vcc, v12, v14
        s_movk_i32 s20, 7168
        s_mov_b32 s21, 0
        v_addc_co_u32 v221, vcc, 0, v13, vcc
        """)
        self.est(8)
        a("s_barrier")
        self.est(9)
        NE = self.opt.get("ne", 8)
        GA = "v[220:221]"; S1, S2 = "s[20:21]", "s[22:23]"
        gl = []
        for s in range(2):
            for j in range(8):
                gl.append([f"global_load_dwordx4 {Q(GUR+32*s+4*j)}, {GA}, off {'nt' if self.opt.get('gnt') else ''}"] + ([f"v_lshl_add_u64 {GA}, {S1 if j < 7 else S2}, 0, {GA}"] if (s, j) != (1, 7) else []))
        if self.opt.get("nog"): gl = [[x[0].replace("global_load_dwordx4", "global_load_dword").replace(Q(GUR+4*i), f"v{GUR+4*i}")] for i, x in enumerate(gl)]
        TL = 64; TT = 80; RAW = 64; sLOC = 60
        if True:
            self.srd(rX, sX, 0x400000); self.srd(rOUT, sOUT, 0x400000)
            a(f"""
            s_lshl_b32 s8, s6, 17
            s_lshl_b32 s9, s{sW}, 15
            s_add_u32 s8, s8, s9
            s_lshl_b32 s9, s5, 8
            s_add_u32 s8, s8, s9
            s_add_u32 s9, s8, 4096
            v_lshrrev_b32 v10, 4, v0
            v_and_b32 v11, 15, v0
            v_lshlrev_b32 v11, 4, v11
            v_lshl_add_u32 v14, v10, 13, v11
            """)
            for i in range(4): a(f"buffer_load_dwordx4 {Q(TL+4*i)}, v14, {SQ(rX)}, s{8+i//2} offen offset:{2048*(i%2)}")
            a(f"""
            s_mul_i32 s8, s{sW}, {XSTR}
            s_add_u32 s8, s8, {XR0}
            s_movk_i32 s9, 1088
            v_mad_u32_u24 v96, v10, s9, v11
            v_add_u32 v96, s8, v96
            v_and_b32 v10, 7, v0
            v_lshrrev_b32 v11, 3, v0
            s_movk_i32 s9, 544
            v_lshl_add_u32 v97, v11, 3, s8
            v_mad_u32_u24 v97, v10, s9, v97
            v_lshlrev_b32 v98, 4, v10
            v_lshl_add_u32 v98, v11, 14, v98
            s_lshl_b32 s18, s5, 19
            s_lshl_b32 s9, s6, 9
            s_add_u32 s18, s18, s9
            s_lshl_b32 s9, s{sW}, 7
            s_add_u32 s18, s18, s9
            s_add_u32 s18, s18, {WS_XT}
            s_getreg_b32 s19, hwreg(HW_REG_XCC_ID, 0, 4)
            s_mov_b32 s22, {25*7168}
            s_cmp_eq_u32 s{sROLE}, 1
            s_cselect_b32 s22, s22, {(-39*7168)&0xffffffff:#x}
            s_cselect_b32 s23, 0, -1
            s_lshl_b32 s62, s5, 2
            s_bfe_u32 s9, s6, 0x20001
            s_add_u32 s62, s62, s9
            s_lshl_b32 s62, s62, 5
            s_lshr_b32 s9, s6, 3
            s_lshl_b32 s9, s9, 1
            s_add_u32 s62, s62, s9
            s_and_b32 s9, s6, 1
            s_add_u32 s62, s62, s9
            s_lshl_b32 s62, s62, 2
            s_add_u32 s62, s62, {WS_FL2}
            s_lshl_b32 s19, s19, 1
            s_lshl_b32 s9, s5, 2
            s_lshl_b32 s40, 15, s9
            s_mov_b32 s41, s40
            """)
            self.srd(rWS, sWS, WS_SIZE); self.srd(rD, sWD, 3584*2048)
        SS = self.opt.get('ss', 0); T = 224; TP = 16; E = T+8; KP = 32; CR = T+24; XT = 64
        def kpl():
            for i, so in enumerate((sO+1, 5, 6, 7)): a(f"buffer_load_dwordx4 {Q(KP+4*i)}, v{T+2}, {SQ(rWS)}, s{so} offen sc1")
        a(f"""
        s_lshl_b32 s7, s{sW}, 2
        v_mov_b32 v{vW4}, s7
        v_and_b32 v11, 3, v0
        v_lshlrev_b32 v{vL4}, 2, v11
        v_mov_b32 v{vONE}, 1
        s_lshl_b32 s8, s{sW}, 6
        v_add_u32 v14, s8, v0
        v_lshlrev_b32 v{T+2}, 4, v14
        {"v_and_b32 v10, -4, v14" if SS else ""}
        {"v_lshl_add_u32 v%d, v10, 4, v%d" % (T+2, T+2) if SS else ""}
        s_mov_b32 s5, {WS_STAT+(0x1000<<SS)}
        s_mov_b32 s6, {WS_STAT+(0x2000<<SS)}
        s_mov_b32 s7, {WS_STAT+(0x3000<<SS)}
        """)
        vWD = 222
        a(f"""
        s_cmp_lg_u32 s{sW}, 0
        s_cbranch_scc1 L_NOZ
        v_lshlrev_b32 v{T}, 4, v0
        v_mov_b32 v{T+4}, 0
        v_mov_b32 v{T+5}, 0
        v_mov_b32 v{T+6}, 0
        v_mov_b32 v{T+7}, 0
        ds_write_b128 v{T}, {Q(T+4)} offset:{UPD}
        ds_write_b128 v{T}, {Q(T+4)} offset:{UPD+1024}
        ds_write_b128 v{T}, {Q(T+4)} offset:{UPD+2048}
        L_NOZ:
        s_lshl_b32 s4, s{sW}, 6
        v_add_u32 v14, s4, v0
        v_lshlrev_b32 v15, 4, v14
        s_mov_b32 s64, 0x05040100
        s_mov_b32 s65, 0x07060302
        v_lshlrev_b32 v{T}, 4, v0
        v_and_b32 v10, 15, v0
        v_lshlrev_b32 v10, 2, v10
        v_and_b32 v11, 48, v0
        s_movk_i32 s4, 0xfff
        v_lshlrev_b32 v{CR}, 1, v14
        v_sub_u32 v{CR}, s4, v{CR}
        v_subrev_u32 v{CR+1}, 1, v{CR}
        v_subrev_u32 v{CR+2}, 512, v{CR}
        v_subrev_u32 v{CR+3}, 513, v{CR}
        v_subrev_u32 v{CR+4}, 1024, v{CR}
        v_subrev_u32 v{CR+5}, 1025, v{CR}
        v_subrev_u32 v{CR+6}, 1536, v{CR}
        v_subrev_u32 v{CR+7}, 1537, v{CR}
        v_lshlrev_b32 v{T+3}, 3, v14
        v_lshrrev_b32 v{T+1}, 4, v14
        v_lshlrev_b32 v{T+1}, 2, v{T+1}
        v_lshlrev_b32 v14, 2, v14
        s_mov_b32 s16, 0
        s_mov_b32 s17, 0xffff0000
        v_lshlrev_b32 v{vPW}, 3, v11
        s_lshl_b32 s8, s{sW}, 12
        s_add_u32 s8, s8, {PRE}
        v_add_u32 v{vPW}, s8, v{vPW}
        v_lshrrev_b32 v12, 5, v0
        v_lshlrev_b32 v{vPR}, 7, v12
        v_bfe_u32 v12, v0, 4, 1
        v_lshl_add_u32 v{vPR}, v12, 3, v{vPR}
        v_bfe_u32 v12, v0, 3, 1
        v_lshl_add_u32 v{vPR}, v12, 9, v{vPR}
        v_and_b32 v12, 7, v0
        v_lshl_add_u32 v{vPR}, v12, 4, v{vPR}
        s_lshl_b32 s8, s{sW}, 10
        s_add_u32 s8, s8, {PRE}
        v_add_u32 v{vPR}, s8, v{vPR}
        v_bfe_u32 v12, v0, 4, 1
        v_lshlrev_b32 v12, 16, v12
        v_lshrrev_b32 v13, 5, v0
        v_lshl_add_u32 v12, v13, 12, v12
        v_lshl_add_u32 v{vWD}, v10, 1, v12
        s_lshl_b32 s10, s{sSG}, 17
        s_lshl_b32 s11, s{sK}, 9
        s_add_u32 s10, s10, s11
        s_lshl_b32 s11, s{sW}, 7
        s_add_u32 s10, s10, s11
        """)
        a("s_mov_b32 s8, 0x3f803f80")
        self.est(10)
        if True:
            a(f"s_waitcnt vmcnt(8)")
            self.est(11)
            for i in range(16):
                c = lambda r: "0" if i == 0 else f"v{r}"
                a(f"v_dot2_f32_bf16 v{S}, v{X0+i}, s8, {c(S)}")
                a(f"v_dot2_f32_bf16 v{S+1}, v{X0+i}, v{X0+i}, {c(S+1)}")
            a("s_waitcnt lgkmcnt(0)")
            self.mktag()
            a(f"s_or_b32 s{sTX}, s19, s{sTAG}\nv_mov_b32 v{S+11}, s{sTX}\ns_waitcnt vmcnt(4)")
            self.stamp(1)
        for i in range(16):
            c = lambda r: "0" if i == 0 else f"v{r}"
            a(f"v_dot2_f32_bf16 v{S+2}, v{X0+i}, v{W0+i}, {c(S+2)}")
            a(f"v_dot2_f32_bf16 v{S+3}, v{W0+i}, s8, {c(S+3)}")
        a("s_nop 1")
        for sh in ("row_shr:1 row_mask:0xf","row_shr:2 row_mask:0xf","row_shr:4 row_mask:0xf","row_shr:8 row_mask:0xf","row_bcast:15 row_mask:0xa"):
            for r in range(S, S+4): a(f"v_add_f32_dpp v{r}, v{r}, v{r} {sh} bank_mask:0xf")
        a(f"""
        v_mul_f32 v{S}, 0x3a800000, v{S}
        v_mul_f32 v{S+1}, 0x3a800000, v{S+1}
        v_cvt_pk_bf16_f32 v{S+4}, v{S}, v{S}
        v_fma_f32 v{S+1}, -v{S}, v{S}, v{S+1}
        v_max_f32 v{S+1}, 0, v{S+1}
        v_and_b32 v{S+5}, 0xffff0000, v{S+4}
        """)
        self.bf16r(S+1, S+1)
        a(f"v_add_f32 v{S+1}, {f2u(1e-5):#x}, v{S+1}\nv_fma_f32 v{S+2}, -v{S+5}, v{S+3}, v{S+2}")
        self.bf16r(S+1, S+1)
        a(f"""
        v_sqrt_f32 v{S+1}, v{S+1}
        v_lshlrev_b32 v104, 2, v{vW4}
        v_mov_b32 v{S+13}, 0
        v_cvt_pk_bf16_f32 v{S+6}, v{S+1}, v{S+1}
        v_and_b32 v{S+1}, 0xffff0000, v{S+6}
        v_rcp_f32 v{S+1}, v{S+1}
        v_mul_f32 v{S+2}, v{S+2}, v{S+1}
        v_cvt_pk_bf16_f32 v{S+2}, v{S+2}, v{S+2}
        v_bfe_i32 v{S+3}, v{S+2}, 15, 1
        v_or_b32 v{S+3}, 0x80008000, v{S+3}
        v_xor_b32 v{S+7}, v{S+2}, v{S+3}
        s_mov_b32 s8, 0xffff
        v_mov_b32_dpp v{S+8}, v{S+4} row_bcast:31 row_mask:0x8 bank_mask:0xf
        v_mov_b32_dpp v{S+9}, v{S+6} row_bcast:31 row_mask:0x8 bank_mask:0xf
        v_mov_b32_dpp v{S+10}, v{S+7} row_bcast:31 row_mask:0x8 bank_mask:0xf
        v_bfi_b32 v{S+8}, s8, v{S+8}, v{S+4}
        v_bfi_b32 v{S+9}, s8, v{S+9}, v{S+6}
        v_bfi_b32 v{S+10}, s8, v{S+10}, v{S+7}
        s_brev_b64 exec, 1
        ds_write_b128 v104, {Q(S+8)} offset:{STG}
        """)
        self.stamp(2)
        a(f"""
        ds_add_rtn_u32 v{S+12}, v{S+13}, v{vONE} offset:{CNTR}
        s_mov_b64 exec, -1
        s_waitcnt lgkmcnt(0)
        v_readlane_b32 s8, v{S+12}, 63
        s_cmp_lg_u32 s8, 3
        s_cbranch_scc1 L_NOPUB
        s_mov_b64 exec, 0xf
        ds_read_b128 {Q(S+4)}, v{T} offset:{STG}
        s_waitcnt lgkmcnt(0)
        buffer_store_dwordx4 {Q(S+4)}, v{T}, {SQ(rWS)}, s13 offen sc1
        ds_write_b32 v{S+13}, v{vONE} offset:{CNT2}
        s_mov_b64 exec, -1
        s_waitcnt vmcnt(1)
        s_branch L_PUB2
        L_NOPUB:
        """)
        vq = []; vdone = [0]
        def vis(tag, text, ld=1): a(text); vq.append((tag, ld))
        def vw(n):
            if len(vq) - n > vdone[0]: a(f"s_waitcnt vmcnt({n})"); vdone[0] = len(vq) - n
        def vfor(tag): vw(len(vq) - 1 - max(i for i, t in enumerate(vq) if t[0] == tag))
        def vwin(W):
            idx = [i for i, t in enumerate(vq) if t[1]]
            if len(idx) >= W: vw(len(vq) - 1 - idx[-W])
        gi = [0]
        def G(W=None):
            if W: vwin(W)
            vis(f"g{gi[0]}", "\n".join(gl[gi[0]])); gi[0] += 1
        di = [0]; vWD = 222
        def D(n=1):
            for _ in range(n):
                if di[0] >= 16: return
                ks, j = di[0]//8, di[0]%8
                vis(f"d{di[0]}", f"s_add_u32 s11, s10, {(16*(j>>2) + 8*(j&1) + 4*ks + ((j>>1)&1))*2048}\nbuffer_load_dwordx2 {P(WDR+16*ks+2*j)}, v{vWD}, {SQ(rD)}, s11 offen"); di[0] += 1
        N0 = self.opt.get("n0", 0); WN = self.opt.get("wn", 4); NP = self.opt.get("np", 12); XF = self.opt.get("xf", N0+WN); GA_ = self.opt.get("ga", 4)
        a("s_waitcnt vmcnt(0)\nL_PUB2:")
        for i in range(N0): G()
        for i in range(4): a(f"ds_write_b128 v96, {Q(TL+4*i)} offset:{272*i}")
        for j in range(4): a(f"ds_read_b64 {P(TT+4*j)}, v97 offset:{64*j}\nds_read_b64 {P(TT+4*j+2)}, v97 offset:{64*j+272}")
        for j in range(4): vis("xt", f"s_waitcnt lgkmcnt({6-2*j})\nbuffer_store_dwordx4 {Q(TT+4*j)}, v98, {SQ(rWS)}, s18 offen {MOD[self.opt.get('xso',0)]}\ns_add_u32 s18, s18, 0x20000", 0)
        self.arrive(C_XS, vW4, S+11)
        if self.opt.get("wpub", 1): self.wait_flag(CNT2, S+13, S+12)
        self.stamp(4)
        def xflag():
            vfor("xt")
            a(f"""
            s_mov_b64 exec, 1
            ds_add_rtn_u32 v{S+12}, v{S+13}, v{vONE} offset:{CNT3}
            s_waitcnt lgkmcnt(0)
            v_readfirstlane_b32 s8, v{S+12}
            s_cmp_lg_u32 s8, 3
            s_cbranch_scc1 L_NOXF
            buffer_store_dword v{S+11}, off, {SQ(rWS)}, s62
            L_NOXF:
            s_mov_b64 exec, -1
            """)
            self.stamp(5)
        while gi[0] < WN:
            if gi[0] == XF: xflag()
            G()
        def perms(raw, out, nd, nj):
            L = []
            for d in range(nd):
                for jj in range(nj):
                    A = raw+nd*(2*jj)+d; B = raw+nd*(2*jj+1)+d
                    L.append(f"v_perm_b32 v{out+nj*(2*d)+jj}, v{B}, v{A}, s64")
                    L.append(f"v_perm_b32 v{out+nj*(2*d+1)+jj}, v{B}, v{A}, s65")
            return L
        if self.opt.get("ht"):
            a(f"s_lshl_b32 s4, s{sSG}, 14\ns_lshl_b32 s8, s{sW}, 12\ns_add_u32 s4, s4, s8\ns_lshl_b32 s8, s{sK}, 10\ns_add_u32 s4, s4, s8\ns_add_u32 s4, s4, {WS_H1}")
            if self.opt["ht"] == 1: vis("ht", f"buffer_load_dwordx4 v[216:219], v{T}, {SQ(rWS)}, s4 offen")
            else: vis("ht", f"s_cmp_lg_u32 s{sROLE}, 1\ns_cbranch_scc1 L_NHT\nv_mov_b32 v218, 0\nbuffer_store_dwordx4 v[216:219], v{T}, {SQ(rWS)}, s4 offen\nL_NHT:", 0); vq.pop()
        while gi[0] < NP:
            if gi[0] == XF: xflag()
            G(WN)
        if XF >= NP: xflag()
        for i, so in enumerate((sO+1, 5, 6, 7)):
            if self.opt.get("pw", 1): vwin(WN)
            vis("kp", f"buffer_load_dwordx4 {Q(KP+4*i)}, v{T+2}, {SQ(rWS)}, s{so} offen sc1")
        p0 = [0]
        def perm0():
            if p0[0] == 0 and gi[0] >= 8:
                vfor("g7"); p0[0] = 1
                for l in perms(GUR, GUF, 4, 4): a(l)
        if self.opt.get("pe", 0): perm0()
        for i in range(GA_):
            if gi[0] < 16: G(WN + self.opt.get("wx", 0))
            else: vwin(WN); D(2)
        vfor("kp")
        KM = (30, 8, 14, 28)
        a(f"s_branch L_KPW\nL_KP:\ns_sleep {self.opt.get('ksl', 1)}")
        for i, so in enumerate((sO+1, 5, 6, 7)):
            a(f"s_mov_b64 exec, {SP(KM[i])}\ns_cbranch_execz L_KS{i}\nbuffer_load_dwordx4 {Q(KP+4*i)}, v{T+2}, {SQ(rWS)}, s{so} offen sc1\nL_KS{i}:")
        a(f"""
        s_mov_b64 exec, -1
        s_waitcnt vmcnt(0)
        L_KPW:
        s_add_u32 s16, s16, 1
        v_xor_b32 v{TP}, s{sTX}, v{KP+3}
        v_xor_b32 v{TP+1}, s{sTX}, v{KP+7}
        v_xor_b32 v{TP+2}, s{sTX}, v{KP+11}
        v_xor_b32 v{TP+3}, s{sTX}, v{KP+15}
        v_cmp_lt_u32 s[30:31], 31, v{TP}
        v_cmp_lt_u32 s[8:9], 31, v{TP+1}
        v_cmp_lt_u32 s[14:15], 31, v{TP+2}
        v_cmp_lt_u32 s[28:29], 31, v{TP+3}
        v_or3_b32 v{TP}, v{TP}, v{TP+1}, v{TP+2}
        s_or_b64 vcc, s[30:31], s[8:9]
        s_or_b64 s[66:67], s[14:15], s[28:29]
        s_or_b64 vcc, vcc, s[66:67]
        s_cbranch_vccz L_KPOK
        s_cmp_lt_u32 s16, 0x4000
        s_cbranch_scc1 L_KP
        L_KPOK:
        v_or_b32 v{TP}, v{TP}, v{TP+3}
        v_cmp_ne_u32 vcc, 0, v{TP}
        s_and_b64 vcc, vcc, s[40:41]
        s_cselect_b32 s8, 1, {1 if self.opt.get("forcex") else 2}
        v_mov_b32 v{TP}, s8
        """)
        self.stamp(3)
        def more(n):
            for _ in range(n):
                if gi[0] < 16: G()
                elif di[0] < self.opt.get("d1", 8): D(2)
        a(f"ds_write2st64_b64 v{T+3}, {P(KP)}, {P(KP+4)} offset0:{MSB//512} offset1:{MSB//512+4}\nds_write2st64_b64 v{T+3}, {P(KP+8)}, {P(KP+12)} offset0:{MSB//512+8} offset1:{MSB//512+12}")
        self.arrive(C_MS, vW4, TP)
        more(self.opt.get("m0", 1))
        for k in range(4):
            a(f"v_lshl_or_b32 v{CR+2*k}, v{KP+4*k+2}, 16, v{CR+2*k}\nv_and_or_b32 v{CR+1+2*k}, v{KP+4*k+2}, s17, v{CR+1+2*k}")
        B = T+2
        a(f"v_max_u32 v{B}, v{CR}, v{CR+1}\nv_min_u32 v{B+1}, v{CR}, v{CR+1}\nv_max_u32 v{B+2}, v{CR+4}, v{CR+5}\nv_min_u32 v{B+3}, v{CR+4}, v{CR+5}")
        for j in (2, 3):
            a(f"v_med3_u32 v{B+1}, v{B}, v{B+1}, v{CR+j}\nv_med3_u32 v{B+3}, v{B+2}, v{B+3}, v{CR+j+4}\nv_max_u32 v{B}, v{B}, v{CR+j}\nv_max_u32 v{B+2}, v{B+2}, v{CR+j+4}")
        a(f"""
        v_min_u32 v{B+4}, v{B}, v{B+2}
        v_max_u32 v{B}, v{B}, v{B+2}
        v_max3_u32 v{B+1}, v{B+1}, v{B+3}, v{B+4}
        ds_write_b32 v14, v{B} offset:{LMC}
        """)
        mid = [f"v_add_u32 v15, {KEYS}, v15", f"ds_write2_b32 v15, v{KP+2}, v{KP+6} offset0:0 offset1:1", f"ds_write2_b32 v15, v{KP+10}, v{KP+14} offset0:2 offset1:3", "s_nop 0"]
        for i, sh in enumerate((1,2,4,8)):
            a(mid[i])
            a(f"v_max_u32_dpp v{B}, v{B}, v{B} row_shr:{sh} row_mask:0xf bank_mask:0xf\nv_max_u32_dpp v{B+1}, v{B+1}, v{B+1} row_shr:{sh} row_mask:0xf bank_mask:0xf")
        a(f"""
        s_mov_b32 exec_lo, 0x80008000
        s_mov_b32 exec_hi, 0x80008000
        ds_write2_b32 v{T+1}, v{B}, v{B+1} offset0:{GM//4} offset1:{GM//4+16}
        """)
        self.arrive(C_KEYS, vW4, TP)
        more(self.opt.get("m1", 2))
        self.wait_flag(C_KEYS, vL4, T+1)
        a(f"v_cmp_ne_u32 s[12:13], 2, v{T+1}")
        self.stamp(6)
        def rank16(own, four, r, c):
            a(f"v_cmp_gt_u32 vcc, v{four}, v{own}\nv_cmp_gt_u32 s[8:9], v{four+1}, v{own}\nv_cmp_gt_u32 s[14:15], v{four+2}, v{own}\nv_cmp_gt_u32 s[28:29], v{four+3}, v{own}")
            a(f"v_cndmask_b32 v{r}, 0, 1, vcc\nv_cndmask_b32 v{c}, 0, 1, s[8:9]\nv_addc_co_u32 v{r}, vcc, 0, v{r}, s[14:15]\nv_addc_co_u32 v{r}, vcc, v{c}, v{r}, s[28:29]")
            a(f"v_mov_b32 v{c}, v{r}\nv_permlane32_swap_b32 v{r}, v{c}\nv_add_u32 v{r}, v{r}, v{c}\nv_mov_b32 v{c}, v{r}\nv_permlane16_swap_b32 v{r}, v{c}\nv_add_u32 v{r}, v{r}, v{c}")
        a(f"""
        ds_read2_b32 {P(T+2)}, v10 offset0:{GM//4} offset1:{GM//4+16}
        ds_read_b128 {Q(T+4)}, v11 offset:{GM}
        ds_read_b128 {Q(E)}, v{T} offset:{LMC}
        s_waitcnt lgkmcnt(1)
        """)
        rank16(T+2, T+4, T+12, T+13)
        a(f"""
        v_cmp_eq_u32 vcc, 7, v{T+12}
        s_ff1_i32_b32 s5, vcc_lo
        v_readlane_b32 s4, v{T+2}, s5
        s_waitcnt lgkmcnt(0)
        v_cmp_le_u32 vcc, s4, v{T+3}
        {"s_branch" if self.opt.get("forceslow") else "s_cbranch_vccnz"} L_SLOWT
        L_CAND:
        v_cmp_le_u32 s[8:9], s4, v{E}
        v_cmp_le_u32 s[14:15], s4, v{E+1}
        v_cmp_le_u32 s[28:29], s4, v{E+2}
        v_cmp_le_u32 s[30:31], s4, v{E+3}
        s_bcnt1_i32_b64 s5, s[8:9]
        s_bcnt1_i32_b64 s6, s[14:15]
        s_bcnt1_i32_b64 s7, s[28:29]
        s_bcnt1_i32_b64 s16, s[30:31]
        s_add_u32 s6, s6, s5
        s_add_u32 s7, s7, s6
        s_add_u32 s16, s16, s7
        s_cmp_gt_u32 s16, 16
        s_cbranch_scc1 L_TRIM
        """)
        MK = (8, 14, 28, 30)
        for k, (mk, base) in enumerate(zip(MK, ("0", "s5", "s6", "s7"))):
            a(f"v_mbcnt_lo_u32_b32 v{T+12+k}, s{mk}, 0\nv_mbcnt_hi_u32_b32 v{T+12+k}, s{mk+1}, v{T+12+k}\nv_add_lshl_u32 v{T+12+k}, v{T+12+k}, {base}, 2")
            a(f"s_mov_b64 exec, {SP(mk)}\nds_write_b32 v{T+12+k}, v{E+k} offset:{LIST}\ns_mov_b64 exec, -1")
        while gi[0] < 16: G()
        a(f"""
        s_movk_i32 s4, 0x7ff
        ds_read_b32 v{TP}, v10 offset:{LIST}
        ds_read_b128 {Q(TP+4)}, v11 offset:{LIST}
        s_cmp_lg_u32 s{sROLE}, 1
        s_waitcnt lgkmcnt(1)
        v_bfi_b32 v14, v{TP}, 0, s4
        s_cbranch_scc1 L_NOXS
        v_lshl_add_u32 v15, v14, 11, v{vXO}
        """)
        vis("xs", f"buffer_load_dwordx4 {Q(XS)}, v15, {SQ(rX)}, 0 offen")
        vis("xs", f"buffer_load_dwordx4 {Q(XS+4)}, v15, {SQ(rX)}, 0 offen offset:64")
        a(f"""
        v_lshrrev_b32 v15, 1, v14
        v_lshlrev_b32 v15, 3, v15
        ds_read_b64 v[8:9], v15 offset:{MSB}
        """)
        self.stamp(7)
        D(self.opt.get("d2", 8) - di[0])
        a("L_NOXS:\ns_waitcnt lgkmcnt(0)")
        rank16(TP, TP+4, TP+8, TP+9)
        a(f"""
        v_cmp_gt_u32 s[30:31], 8, v{TP+8}
        v_lshlrev_b32 v15, 2, v{TP+8}
        v_and_b32 v10, 7, v0
        v_lshlrev_b32 v10, 2, v10
        v_bfe_u32 v{TP+4}, v14, 1, 8
        v_lshrrev_b32 v{TP+5}, 9, v14
        v_lshlrev_b32 v{TP+4}, 3, v{TP+4}
        v_lshl_add_u32 v{TP+4}, v{TP+5}, 1, v{TP+4}
        v_and_b32 v14, 1, v14
        v_add_u32 v{TP+4}, v{TP+4}, v14
        v_mov_b32 v{TP+6}, 0x80
        s_mov_b64 exec, s[30:31]
        ds_write_b32 v15, v{TP} offset:{IDX}
        s_cmp_lg_u32 s{sW}, 0
        s_cbranch_scc1 L_NOSEL
        ds_write_b8 v{TP+4}, v{TP+6} offset:{SELF}
        s_cmp_lg_u32 s2, 255
        s_cbranch_scc1 L_NOSEL
        s_mov_b64 exec, 1
        v_mov_b32 v{TP+6}, s{sTAG}
        buffer_store_dword v{TP+6}, v{vW4}, {SQ(rWS)}, 0 offen sc1
        L_NOSEL:
        s_mov_b64 exec, -1
        ds_read_b32 v{vE}, v10 offset:{IDX}
        """)
        self.arrive(C_SEL, vW4, vONE)
        a(f"""
        s_cmp_lg_u32 s{sROLE}, 1
        s_cbranch_scc1 L_GATHER
        v_lshl_add_u32 v{vPW}, v{TP+8}, 4, v{vPW}
        v_lshlrev_b32 v14, 4, v14
        """)
        HQ = 216; R = 224; BL = 240; BH = 242; t = 244; PQ = 48; DA = 16; HP = 144
        a(f"""
        v_lshlrev_b32 v13, 4, v0
        s_lshl_b32 s4, s{sSG}, 14
        s_add_u32 s4, s4, {WS_H1}
        s_lshl_b32 s6, s{sW}, 12
        s_add_u32 s6, s6, s4
        s_lshl_b32 s5, s{sK}, 10
        s_add_u32 s5, s5, s6
        v_mov_b32 v{HQ+2}, s{sTAG}
        """)
        NMF = 240
        a(f"""v_lshrrev_b32 v{vRS}, v14, v9
        v_lshrrev_b32 v{vNM}, v14, v8
        v_lshlrev_b32 v{vRS}, 16, v{vRS}
        v_xor_b32 v{vNM}, 0x8000, v{vNM}
        v_rcp_f32 v{vRS}, v{vRS}""")
        for i in range(4): a(f"v_perm_b32 v{NMF+i}, v{vNM}, v{vNM}, s64")
        perm0()
        M0 = lambda s_: [f"{MFMA} {Q(ACC+4*c)}, {Q(GUF+32*s_+4*c)}, {Q(NMF)}, {'0' if s_==0 else Q(ACC+4*c)}" for c in range(8)]
        vfor("g15")
        pm = perms(GUR+32, GUF+32, 4, 4)
        for l in interleave(M0(0), pm, per=4): a(l)
        self.stamp(8)
        for l in M0(1): a(l)
        vfor("xs")
        self.stamp(9)
        for s_ in range(2):
            for c in range(8):
                a(f"{MFMA} {Q(ACC+4*c)}, {Q(GUF+32*s_+4*c)}, {Q(XS+4*s_)}, {Q(ACC+4*c)}")
                if di[0] < self.opt.get("d3", 16) and s_ == 0: D()
        a("s_mov_b64 exec, s[30:31]")
        for c in range(8): a(f"ds_write_b128 v{vPW}, {Q(ACC+4*c)} offset:{512*c}")
        a(f"ds_write_b32 v15, v{vRS} offset:{RSV}")
        self.arrive(C_PRE, vW4, vONE)
        a(f"ds_read_b32 v{vRS}, v10 offset:{RSV}")
        self.wait_flag(C_PRE, vL4, 11)
        for k in range(4):
            for mat in range(2): a(f"ds_read_b64 {P(R+4*k+2*mat)}, v{vPR} offset:{4096*k+256*mat}")
        a("s_waitcnt lgkmcnt(4)")
        for i in range(4): a(f"v_add_f32 v{R+i}, v{R+i}, v{R+4+i}")
        a("s_waitcnt lgkmcnt(0)")
        for i in range(4): a(f"v_add_f32 v{R+8+i}, v{R+8+i}, v{R+12+i}")
        for i in range(4): a(f"v_add_f32 v{R+i}, v{R+i}, v{R+8+i}")
        a(f"""
        s_cmp_eq_u32 s12, 0
        v_cvt_pk_bf16_f32 v{HQ}, v{R}, v{R+1}
        v_cvt_pk_bf16_f32 v{HQ+1}, v{R+2}, v{R+3}
        """)
        vis("hq", f"s_cbranch_scc0 L_HSC\nbuffer_store_dwordx4 {Q(HQ)}, v13, {SQ(rWS)}, s5 offen\nL_HSB:", 0)
        self.stamp(10)
        D(16)
        a(f"""
        v_bfe_u32 v10, v0, 3, 1
        v_lshrrev_b32 v11, 4, v0
        v_cmp_ne_u32 s[22:23], 0, v10
        v_lshlrev_b32 v15, 2, v10
        v_lshl_add_u32 v15, v11, 3, v15
        v_lshlrev_b32 v10, 8, v10
        v_lshl_add_u32 v10, v11, 9, v10
        v_lshlrev_b32 v9, 4, v11
        v_and_b32 v11, 7, v0
        v_lshl_add_u32 v10, v11, 4, v10
        s_movk_i32 s5, 144
        v_mad_u32_u24 v15, v11, s5, v15
        v_mad_u32_u24 v9, v11, s5, v9
        s_lshl_b32 s5, s{sW}, 5
        v_add_u32 v15, s5, v15
        s_lshl_b32 s4, s{sSG}, 15
        s_lshl_b32 s5, s{sK}, 13
        s_add_u32 s4, s4, s5
        s_lshl_b32 s5, s{sW}, 11
        s_add_u32 s4, s4, s5
        s_add_u32 s4, s4, {WS_PART}
        v_mul_f32 v12, {LOG2E|0x80000000:#x}, v{vRS}
        v_mul_f32 v14, v{vRS}, v{vRS}
        v_mov_b32 v{PQ+2}, s{sTAG}
        v_mov_b32 v{PQ+6}, s{sTAG}
        """)
        hpl = [f"buffer_load_dwordx3 v[{HP+4*k}:{HP+4*k+2}], v13, {SQ(rWS)}, s6 offen offset:{1024*k} sc1" for k in range(4)]
        a("s_mov_b32 s16, 0")
        vfor("d7")
        self.xst(1, 12)
        for l in perms(WDR, WDF, 2, 4): a(l)
        if self.opt.get("hw0", 0): vfor("hq")
        for l in hpl: vis("hp", l)
        vfor("d15")
        self.xst(1, 13)
        for l in perms(WDR+16, WDF+16, 2, 4): a(l)
        if self.opt.get("xst") == 1: a("s_waitcnt vmcnt(0)")
        self.xst(1, 14)
        a("s_branch L_HPW\nL_HP:")
        a(f"s_sleep {self.opt.get('hsl', 3)}")
        for k, mk in enumerate((18, 8, 14, 28)):
            a(f"s_cmp_eq_u64 {SP(mk)}, 0\ns_cbranch_scc1 L_HS{k}\n{hpl[k]}\nL_HS{k}:")
        a(f"""
        L_HPW:
        s_add_u32 s16, s16, 1
        s_waitcnt vmcnt(0)
        v_cmp_ne_u32 s[18:19], s{sTAG}, v{HP+2}
        v_cmp_ne_u32 s[8:9], s{sTAG}, v{HP+6}
        v_cmp_ne_u32 s[14:15], s{sTAG}, v{HP+10}
        v_cmp_ne_u32 s[28:29], s{sTAG}, v{HP+14}
        s_or_b64 vcc, s[18:19], s[8:9]
        s_or_b64 s[20:21], s[14:15], s[28:29]
        s_or_b64 vcc, vcc, s[20:21]
        s_cbranch_vccz L_HOK
        s_cmp_lt_u32 s16, 0x4000
        s_cbranch_scc1 L_HP
        L_HOK:
        """)
        self.stamp(11)
        for k in range(4): self.unpack(R+2*k, R+2*k+1, HP+4*k)
        for i in range(2): a(f"v_add_f32 v{R+i}, v{R+i}, v{R+2+i}\nv_add_f32 v{R+4+i}, v{R+4+i}, v{R+6+i}")
        for i in range(2): a(f"v_add_f32 v{R+i}, v{R+i}, v{R+4+i}")
        for i in range(2): a(f"v_mul_f32 v{t+i}, v12, v{R+i}")
        for i in range(2): a(f"v_exp_f32 v{t+i}, v{t+i}")
        for k in range(4): self.unpack(R+8+2*k, R+8+2*k+1, HP+4*k+1)
        for i in range(2): a(f"v_add_f32 v{t+i}, 1.0, v{t+i}")
        for i in range(2): a(f"v_rcp_f32 v{t+i}, v{t+i}")
        for i in range(2): a(f"v_add_f32 v{R+8+i}, v{R+8+i}, v{R+10+i}\nv_add_f32 v{R+12+i}, v{R+12+i}, v{R+14+i}")
        for i in range(2): a(f"v_mul_f32 v{R+i}, v{R+i}, v14\nv_add_f32 v{R+8+i}, v{R+8+i}, v{R+12+i}")
        for i in range(2): a(f"v_mul_f32 v{R+i}, v{R+i}, v{t+i}")
        for i in range(2): a(f"v_mul_f32 v{R+i}, v{R+i}, v{R+8+i}")
        a(f"""
        v_cvt_pk_bf16_f32 v{t}, v{R}, v{R+1}
        ds_write_b32 v15, v{t} offset:{HB}
        """)
        self.arrive(C_H, vW4, vONE)
        self.wait_flag(C_H, vL4, 11)
        a(f"ds_read_b128 {Q(R)}, v9 offset:{HB}\nds_read_b128 {Q(R+4)}, v9 offset:{HB+64}")
        for ks in range(2):
            a(f"s_waitcnt lgkmcnt({1-ks})")
            for c in range(4): a(f"{MFMA} {Q(DA+4*c)}, {Q(WDF+16*ks+4*c)}, {Q(R+4*ks)}, {'0' if ks == 0 else Q(DA+4*c)}")
        for r in range(2):
            for c in range(4): a(f"v_cndmask_b32 v{DA+4*c+r}, v{DA+4*c+r}, v{DA+4*c+r+2}, s[22:23]")
            a(f"v_cvt_pk_bf16_f32 v{PQ+4*r}, v{DA+r}, v{DA+4+r}\nv_cvt_pk_bf16_f32 v{PQ+4*r+1}, v{DA+8+r}, v{DA+12+r}")
            a(f"buffer_store_dwordx4 {Q(PQ+4*r)}, v10, {SQ(rWS)}, s4 offen offset:{128*r} sc1")
        self.stamp(12)
        GP = 144; U = 176; F = 80; TW = self.opt.get("tw", 2)
        a(f"""
        L_GATHER:
        s_waitcnt lgkmcnt(0)
        s_movk_i32 s4, 0x7ff
        v_bfi_b32 v14, v{vE}, 0, s4
        v_lshrrev_b32 v10, 3, v0
        s_lshl_b32 s4, s{sW}, 3
        v_add_lshl_u32 v10, v10, s4, 15
        v_and_b32 v11, 7, v0
        v_lshlrev_b32 v11, 4, v11
        v_add_u32 v10, v10, v11
        s_lshl_b32 s4, s{sDG}, 7
        s_add_u32 s4, s4, {WS_PART}
        s_mov_b32 s11, 0
        v_bfe_u32 v12, v0, 3, 2
        v_lshlrev_b32 v13, 11, v14
        v_lshl_add_u32 v13, v12, 1, v13
        s_lshl_b32 s8, s{sDG}, 3
        v_add_u32 v13, s8, v13
        buffer_load_ushort v{F}, v13, {SQ(rX)}, 0 offen
        """)
        self.wait_flag(C_SEL, vL4, 15)
        a(f"""
        s_cmp_eq_u32 s12, 0
        s_cselect_b32 s{sLOC}, 2, 1
        v_lshrrev_b32 v15, 16, v{vE}
        v_bfe_i32 v{F+2}, v15, 15, 1
        v_not_b32 v{F+2}, v{F+2}
        v_or_b32 v{F+2}, 0x8000, v{F+2}
        v_xor_b32 v15, v15, v{F+2}
        v_lshlrev_b32 v15, 16, v15
        v_mul_f32 v15, {LOG2E|0x80000000:#x}, v15
        v_exp_f32 v15, v15
        v_lshlrev_b32 v{F+3}, 13, v12
        v_add_f32 v15, 1.0, v15
        v_rcp_f32 v15, v15
        v_lshl_add_u32 v{F+3}, v14, 2, v{F+3}
        v_add_u32 v{F+3}, {YB}, v{F+3}
        v_lshl_add_u32 v{F+4}, v12, 2, v11
        s_cmp_lg_u32 s{sLOC}, 2
        s_cbranch_scc1 L_AFT
        s_cmp_ge_u32 s{sW}, {TW}
        s_cbranch_scc1 L_AFT
        """)
        TD = 16; TO = 32; A0 = 92
        a(f"""
        L_TILE:
        s_lshl_b32 s8, s{sW}, 4
        s_cmp_eq_u32 s{sW}, 0
        s_cselect_b32 s8, {C_Y0}, s8
        v_add_u32 v{A0}, s8, v{vL4}
        s_and_b32 s14, s2, 7
        s_lshr_b32 s15, s2, 3
        s_lshl_b32 s16, s14, 11
        s_lshl_b32 s8, s{sW}, 9
        s_add_u32 s16, s16, s8
        s_lshr_b32 s9, s15, 3
        s_lshl_b32 s9, s9, 7
        s_add_u32 s16, s16, s9
        s_add_u32 s16, s16, {WS_FL3}
        s_lshl_b32 s9, s15, 4
        s_add_u32 s8, s8, s9
        s_lshl_b32 s17, s14, 19
        s_lshl_b32 s9, s8, 3
        s_add_u32 s17, s17, s9
        s_add_u32 s17, s17, {WS_XT}
        s_lshl_b32 s18, s8, 11
        s_lshl_b32 s9, s14, 8
        s_add_u32 s18, s18, s9
        s_add_u32 s19, s18, 4096
        s_mul_i32 s9, s{sW}, 4352
        s_add_u32 s9, s9, {PRE}
        s_cmp_eq_u32 s{sW}, 3
        s_cselect_b32 s9, {MSB}, s9
        v_lshlrev_b32 v{A0+1}, 2, v0
        v_and_b32 v{A0+6}, 7, v0
        v_lshrrev_b32 v{A0+7}, 3, v0
        v_lshlrev_b32 v{A0+2}, 4, v{A0+6}
        v_lshl_add_u32 v{A0+2}, v{A0+7}, 14, v{A0+2}
        s_movk_i32 s8, 544
        v_lshl_add_u32 v{A0+3}, v{A0+7}, 3, s9
        v_mad_u32_u24 v{A0+3}, v{A0+6}, s8, v{A0+3}
        v_lshrrev_b32 v{A0+6}, 4, v0
        v_and_b32 v{A0+7}, 15, v0
        v_lshlrev_b32 v{A0+7}, 4, v{A0+7}
        s_movk_i32 s8, 1088
        v_mad_u32_u24 v{A0+4}, v{A0+6}, s8, v{A0+7}
        v_add_u32 v{A0+4}, s9, v{A0+4}
        v_lshl_add_u32 v{A0+5}, v{A0+6}, 13, v{A0+7}
        s_lshl_b32 s8, s15, 6
        s_lshl_b32 s9, s{sW}, 1
        s_add_u32 s8, s8, s9
        v_lshl_add_u32 v{A0+6}, v{A0+6}, 4, s8
        ds_read_u16 v{A0+8}, v{A0+6} offset:{SELF}
        ds_read_u16 v{A0+9}, v{A0+6} offset:{SELF+8}
        s_brev_b32 s8, 1
        s_mov_b32 s20, 0
        s_setprio 0
        """)
        self.wait_flag(0, A0, A0+7, sleep=2)
        a(f"""
        s_setprio 2
        v_lshlrev_b32 v{A0+10}, 24, v{A0+8}
        v_lshlrev_b32 v{A0+11}, 16, v{A0+8}
        v_lshlrev_b32 v{A0+12}, 24, v{A0+9}
        v_lshlrev_b32 v{A0+13}, 16, v{A0+9}
        """)
        for i in range(4): a(f"v_and_or_b32 v{A0+10+i}, v{A0+10+i}, s8, v{A0+5}")
        a(f"""
        s_mov_b32 exec_hi, 0
        L_TP:
        s_sleep {self.opt.get("tsl", 1)}
        buffer_load_dword v{A0+7}, v{A0+1}, {SQ(rWS)}, s16 offen sc1
        s_add_u32 s20, s20, 1
        s_waitcnt vmcnt(0)
        v_cmp_ne_u32 vcc, s{sTX}, v{A0+7}
        s_cbranch_vccz L_TOK
        s_cmp_lt_u32 s20, 0x4000
        s_cbranch_scc1 L_TP
        L_TOK:
        s_mov_b32 exec_hi, -1
        """)
        for j in range(4): a(f"buffer_load_dwordx4 {Q(TD+4*j)}, v{A0+2}, {SQ(rWS)}, s17 offen sc1\ns_add_u32 s17, s17, 0x20000")
        for j in range(4): a(f"s_waitcnt vmcnt({3-j})\nds_write_b64 v{A0+3}, {P(TD+4*j)} offset:{64*j}\nds_write_b64 v{A0+3}, {P(TD+4*j+2)} offset:{64*j+272}")
        for i in range(4): a(f"ds_read_b128 {Q(TO+4*i)}, v{A0+4} offset:{272*i}")
        for i in range(4): a(f"s_waitcnt lgkmcnt({3-i})\nbuffer_store_dwordx4 {Q(TO+4*i)}, v{A0+10+i}, {SQ(rOUT)}, s{18+i//2} offen offset:{2048*(i%2)} {'sc1' if self.opt.get('osc', 1) else ''}")
        if "wbw" in self.opt:
            a(f"s_lshl_b32 s8, s15, 2\ns_add_u32 s8, s8, s{sW}\ns_cmp_lg_u32 s8, {31*4+self.opt['wbw']}\ns_cbranch_scc1 L_NWB\nbuffer_wbl2 sc1\nL_NWB:")
        if self.stamps or self.opt.get("gamp") == 15:
            a(f"s_cmp_lt_u32 s{sW}, {TW}\ns_cbranch_scc1 L_AFT\ns_waitcnt vmcnt(0)")
            self.stamp(15)
        a(f"""
        s_cmp_ge_u32 s{sW}, {TW}
        s_cbranch_scc1 L_FIN
        L_AFT:
        s_cmp_eq_u32 s{sROLE}, 1
        s_cbranch_scc1 L_GGO
        s_setprio 0
        """)
        self.wait_flag(C_Y3, vL4, F+1, sleep=2)
        a("s_setprio 2\nL_GGO:")
        self.stamp(13)
        a(f"""
        s_mov_b64 s[8:9], -1
        s_cmp_lt_u32 s{sW}, 3
        s_cselect_b64 s[12:13], -1, 0
        s_add_u32 s5, s4, 0x100000
        v_mov_b32 v{GP+4}, 0
        v_mov_b32 v{GP+5}, 0
        v_mov_b32 v{GP+6}, s{sTAG}
        s_waitcnt vmcnt(0)
        """)
        if self.opt.get("gd"): a(f"s_sleep {self.opt['gd']}")
        a("L_GP:")
        for k, mk in enumerate((8, 12)):
            a(f"s_cmp_eq_u64 {SP(mk)}, 0\ns_cbranch_scc1 L_GS{k}\nbuffer_load_dwordx3 v[{GP+4*k}:{GP+4*k+2}], v10, {SQ(rWS)}, s{4+k} offen sc1\nL_GS{k}:")
        a(f"""
        s_add_u32 s11, s11, 1
        s_waitcnt vmcnt(0)
        v_cmp_ne_u32 s[8:9], s{sTAG}, v{GP+2}
        v_cmp_ne_u32 s[12:13], s{sTAG}, v{GP+6}
        s_or_b64 vcc, s[8:9], s[12:13]
        s_cbranch_vccz L_GOT
        s_sleep {self.opt.get("gsl", 2)}
        s_cmp_lt_u32 s11, 0x4000
        s_cbranch_scc1 L_GP
        L_GOT:
        """)
        self.stamp(14)
        for k in range(2):
            self.unpack(U+4*k, U+4*k+1, GP+4*k); self.unpack(U+4*k+2, U+4*k+3, GP+4*k+1)
        for i in range(4): a(f"v_add_f32 v{U+i}, v{U+i}, v{U+4+i}")
        for i in range(4): a(f"v_add_f32_dpp v{U+i}, v{U+i}, v{U+i} row_ror:8 row_mask:0xf bank_mask:0xf")
        a("s_mov_b32 exec_lo, 0x00ff00ff\ns_mov_b32 exec_hi, 0x00ff00ff")
        for i in range(4): a(f"ds_add_f32 v11, v{U+i} offset:{UPD+4*i}")
        self.arrive(C_UPD, vW4, vONE)
        if self.opt.get("dq", 3) < 4: a(f"s_cmp_ge_u32 s{sW}, {self.opt.get('dq', 3)}\ns_cbranch_scc1 L_FIN")
        a(f"s_lshl_b32 s8, s{sLOC}, 2\ns_add_u32 s8, s{sW}, s8\ns_cmp_ge_u32 s8, {8+TW}\ns_cbranch_scc1 L_TILE\ns_cmp_lg_u32 s{sW}, 0\ns_cbranch_scc1 L_FIN")
        self.wait_flag(C_Y3, vL4, F+1)
        a(f"ds_read_b32 v{F+9}, v{F+3}\nv_lshlrev_b32 v{F}, 16, v{F}")
        self.wait_flag(C_UPD, vL4, F+1)
        a(f"""
        ds_read_b32 v{F+10}, v{F+4} offset:{UPD}
        v_add_f32 v{F}, v{F}, v{F+9}
        s_waitcnt lgkmcnt(0)
        v_fma_f32 v{F}, v{F+10}, v15, v{F}
        v_cvt_pk_bf16_f32 v{F}, v{F}, v{F}
        s_mov_b32 exec_hi, 0
        buffer_store_short v{F}, v13, {SQ(rOUT)}, 0 offen
        s_mov_b64 exec, -1
        """)
        self.stamp(15)
        a("s_branch L_FIN")
        a(f"L_HSC:\nbuffer_store_dwordx4 {Q(HQ)}, v13, {SQ(rWS)}, s5 offen sc1\ns_branch L_HSB")
        a(f"""
        L_TRIM:
        v_subrev_u32 v{T+12}, s4, v{E}
        v_subrev_u32 v{T+13}, s4, v{E+1}
        v_subrev_u32 v{T+14}, s4, v{E+2}
        v_subrev_u32 v{T+15}, s4, v{E+3}
        v_min3_u32 v{T+12}, v{T+12}, v{T+13}, v{T+14}
        v_min_u32 v{T+12}, v{T+12}, v{T+15}
        """)
        for sh in ("row_shr:1 row_mask:0xf","row_shr:2 row_mask:0xf","row_shr:4 row_mask:0xf","row_shr:8 row_mask:0xf","row_bcast:15 row_mask:0xa","row_bcast:31 row_mask:0xc"):
            a(f"v_min_u32_dpp v{T+12}, v{T+12}, v{T+12} {sh} bank_mask:0xf")
        a(f"""
        v_readlane_b32 s5, v{T+12}, 63
        s_add_u32 s4, s4, s5
        s_add_u32 s4, s4, 1
        s_branch L_CAND
        L_SLOWT:
        v_max3_u32 v{T+4}, v{E}, v{E+1}, v{E+2}
        v_max_u32 v{T+4}, v{T+4}, v{E+3}
        s_mov_b32 s4, 0
        s_brev_b32 s5, 1
        L_BS:
        s_or_b32 s6, s4, s5
        v_cmp_le_u32 vcc, s6, v{T+4}
        s_lshr_b32 s5, s5, 1
        s_bcnt1_i32_b64 s7, vcc
        s_cmp_ge_u32 s7, 8
        s_cselect_b32 s4, s6, s4
        s_cmp_lg_u32 s7, 8
        s_cbranch_scc1 L_BS
        v_mbcnt_lo_u32_b32 v{T+5}, vcc_lo, 0
        v_mbcnt_hi_u32_b32 v{T+5}, vcc_hi, v{T+5}
        v_lshlrev_b32 v{T+5}, 2, v{T+5}
        s_mov_b64 exec, vcc
        ds_write_b32 v{T+5}, v0 offset:{LST2}
        s_mov_b64 exec, -1
        v_lshrrev_b32 v{T+6}, 3, v0
        v_lshlrev_b32 v{T+6}, 2, v{T+6}
        ds_read_b32 v{T+5}, v{T+6} offset:{LST2}
        s_waitcnt lgkmcnt(0)
        v_and_b32 v{T+6}, 7, v0
        v_lshl_add_u32 v{T+5}, v{T+5}, 3, v{T+6}
        v_lshlrev_b32 v{T+6}, 3, v{T+5}
        ds_read_b64 {P(T+2)}, v{T+6} offset:{KEYS}
        v_and_b32 v{T+6}, 1, v{T+5}
        v_and_b32 v{T+5}, -2, v{T+5}
        v_lshl_add_u32 v{T+5}, v{T+6}, 10, v{T+5}
        v_sub_u32 v{E}, 0xfff, v{T+5}
        v_sub_u32 v{E+1}, 0xffe, v{T+5}
        v_sub_u32 v{E+2}, 0xdff, v{T+5}
        v_sub_u32 v{E+3}, 0xdfe, v{T+5}
        s_mov_b32 s5, 0xffff0000
        s_waitcnt lgkmcnt(0)
        v_lshl_or_b32 v{E}, v{T+2}, 16, v{E}
        v_and_or_b32 v{E+1}, v{T+2}, s5, v{E+1}
        v_lshl_or_b32 v{E+2}, v{T+3}, 16, v{E+2}
        v_and_or_b32 v{E+3}, v{T+3}, s5, v{E+3}
        s_branch L_CAND
        """)

    def fin(self):
        a = self.a
        a("L_FIN:")
        if self.opt.get("wb"): a("s_waitcnt vmcnt(0)\nbuffer_wbl2 sc1\ns_waitcnt vmcnt(0)")
        if "gamp" in self.opt:
            k = self.opt["gamp"]; half = self.opt.get("gC", 0); mode = self.opt.get("gmode", 0)
            if "gw" in self.opt: a(f"s_cmp_eq_u32 s{sW}, {self.opt['gw']}\ns_cselect_b32 s{sST+2*k}, s{sST+2*k}, 0")
            if "grole" in self.opt: a(f"s_cmp_{'lt' if self.opt['grole'] else 'ge'}_u32 s2, 224\ns_cselect_b32 s{sST+2*k}, s{sST+2*k}, 0")
            a(f"""
            s_lshr_b32 s4, s{sW}, 2
            s_lshl_b32 s4, s4, 10
            s_lshl_b32 s5, s2, 2
            s_add_u32 s4, s4, s5
            s_and_b32 s5, s{sW}, 3
            s_add_u32 s4, s4, s5
            s_lshl_b32 s4, s4, 3
            s_add_u32 s4, s4, {WS_STAMP}
            v_mov_b32 v1, 0
            v_mov_b32 v4, s{sST}
            v_mov_b32 v5, s{sST+2*k}
            s_mov_b64 exec, 1
            buffer_store_dwordx2 v[4:5], v1, {SQ(rWS)}, s4 offen sc1
            s_mov_b64 exec, -1
            s_cmp_lg_u32 s2, 0
            s_cbranch_scc1 L_END
            s_cmp_lg_u32 s{sW}, 0
            s_cbranch_scc1 L_END
            L_GA1:
            s_memrealtime s[6:7]
            s_waitcnt lgkmcnt(0)
            s_sub_u32 s5, s6, s{sST}
            s_cmp_lt_u32 s5, 4000
            s_cbranch_scc1 L_GA1
            v_lshlrev_b32 v1, 3, v0
            s_mov_b32 s4, {WS_STAMP + half*8192}
            s_sub_u32 s8, s{sST}, 1000
            """)
            for i in range(16): a(f"buffer_load_dwordx2 {P(16+2*i)}, v1, {SQ(rWS)}, s4 offen sc1\ns_add_u32 s4, s4, 512")
            a("s_waitcnt vmcnt(0)\nv_mov_b32 v2, -1\nv_mov_b32 v3, 0\nv_mov_b32 v6, 0")
            for i in range(16):
                a(f"v_subrev_u32 v{16+2*i}, s8, v{16+2*i}\nv_min_u32 v2, v2, v{16+2*i}\nv_cmp_ne_u32 vcc, 0, v{17+2*i}\nv_subrev_u32 v{17+2*i}, s8, v{17+2*i}\nv_cndmask_b32 v{17+2*i}, 0, v{17+2*i}, vcc\nv_addc_co_u32 v6, vcc, 0, v6, vcc")
                a(f"v_max_u32 v3, v3, v{17+2*i}" if mode == 0 else f"v_add_u32 v3, v3, v{17+2*i}")
            op = "v_max_u32_dpp" if mode == 0 else "v_add_u32_dpp"
            for sh in ("row_shr:1 row_mask:0xf","row_shr:2 row_mask:0xf","row_shr:4 row_mask:0xf","row_shr:8 row_mask:0xf","row_bcast:15 row_mask:0xa","row_bcast:31 row_mask:0xc"):
                a(f"v_min_u32_dpp v2, v2, v2 {sh} bank_mask:0xf\n{op} v3, v3, v3 {sh} bank_mask:0xf\nv_add_u32_dpp v6, v6, v6 {sh} bank_mask:0xf")
            if mode == 1:
                a("v_cvt_f32_u32 v3, v3\nv_cvt_f32_u32 v6, v6\nv_rcp_f32 v6, v6\nv_mul_f32 v3, v3, v6\nv_cvt_u32_f32 v3, v3")
            a(f"""
            v_readlane_b32 s4, v3, 63
            v_readlane_b32 s5, v2, 63
            s_sub_u32 s4, s4, s5
            s_min_u32 s4, s4, 4000
            s_mul_i32 s4, s4, 10
            s_add_u32 s4, s4, 5000
            L_GA2:
            s_memrealtime s[6:7]
            s_waitcnt lgkmcnt(0)
            s_sub_u32 s5, s6, s{sST}
            s_cmp_lt_u32 s5, s4
            s_cbranch_scc1 L_GA2
            """)
        if "amp" in self.opt:
            k = self.opt["amp"]
            a(f"""
            s_cmp_lg_u32 s2, {self.opt.get('ampb', 0)}
            s_cbranch_scc1 L_END
            s_cmp_lg_u32 s{sW}, {self.opt.get('ampw', 0)}
            s_cbranch_scc1 L_END
            s_sub_u32 s4, s{sST+2*k}, s{sST}
            s_min_u32 s4, s4, 5000
            s_mul_i32 s4, s4, 10
            {"s_mov_b32 s4, %d" % self.opt["fix"] if "fix" in self.opt else ""}
            L_AMP:
            s_memrealtime s[6:7]
            s_waitcnt lgkmcnt(0)
            s_sub_u32 s5, s6, s{sST}
            s_cmp_lt_u32 s5, s4
            s_cbranch_scc1 L_AMP
            """)
        if self.stamps and (self.opt.get("kst") == 2 or self.opt.get("cst") == 2):
            a(f"s_cmp_lt_u32 s{sW}, 4\ns_cbranch_scc1 L_NKC")
            for i in (10, 11, 12, 13, 15, 14):
                a(f"s_sub_u32 s{sST+2*i}, s{sST+2*i}, s{sST+28}\ns_add_u32 s{sST+2*i}, s{sST+2*i}, s{sST}\ns_addc_u32 s{sST+2*i+1}, s{sST+1}, 0")
            a("L_NKC:")
        if self.stamps:
            a(f"s_lshl_b32 s4, s2, 3\ns_add_u32 s4, s4, s{sW}\ns_lshl_b32 s4, s4, 7\ns_add_u32 s4, s4, {WS_STAMP}\nv_mov_b32 v1, s4\ns_mov_b64 exec, 1")
            for i in range(8):
                for k in range(4): a(f"v_mov_b32 v{4+k}, s{sST+4*i+k}")
                a(f"buffer_store_dwordx4 v[4:7], v1, {SQ(rWS)}, 0 offen offset:{16*i}")
        a("L_END:\ns_endpgm")

    def build(self):
        if self.stamps:
            for i in range(2, 32, 2): self.a(f"s_mov_b64 {SP(sST+i)}, 0")
        self.prologue(); self.kgen(); self.cmain(); self.fmain(); self.fin()
        body = self.a.finalize()
        if not self.opt.get("noalign"): body = align_pass(body, KN)
        hdr = open("parallel_sum__ssm_conv_s4d__moe_arch_mod__prompt.s.ref").read().split("; Override launch")[0]
        out = hdr + f"; @launch grid=(256,1,1) block=(512,1,1) lds={LDS_END}\n"
        out += f'.amdgcn_target "amdgcn-amd-amdhsa--gfx950"\n.text\n.globl {KN}\n.p2align 8\n.type {KN},@function\n{KN}:\n'
        out += body
        out += f'''.section .rodata,"a"
.p2align 6
.amdhsa_kernel {KN}
  .amdhsa_next_free_vgpr 256
  .amdhsa_next_free_sgpr 102
  .amdhsa_accum_offset 256
  .amdhsa_group_segment_fixed_size 0
  .amdhsa_kernarg_size 120
  .amdhsa_user_sgpr_count 2
  .amdhsa_user_sgpr_kernarg_segment_ptr 1
  .amdhsa_system_sgpr_workgroup_id_x 1
  .amdhsa_float_denorm_mode_32 3
.end_amdhsa_kernel
'''
        return out

if __name__ == "__main__":
    out = sys.argv[1]
    stamps = "--stamps" in sys.argv
    opt = {}
    for x in sys.argv[2:]:
        if "=" in x:
            k, v = x.split("="); opt[k] = int(v, 0)
    open(out, "w").write(G(stamps, opt).build())
```

```python
import sys, struct
from asmlib import Asm, align_pass

KN = "parallel_sum__ssm_conv_s4d__moe_arch_mod__prompt_kernel"
def f2u(x): return struct.unpack("<I", struct.pack("<f", x))[0]
LOG2E = f2u(1.4426950408889634); INV2PI = f2u(0.15915494309189535)

LIST = 192; IDX = 256; RSV = 288; LST2 = 320; GM = 384; CNTR = 512; CNT2 = 516; CNT3 = 520; CNT4 = 524; C_MS = 528; C_XI = 544; C_TL = 560; STG = 576; HB = 4096; UPD = 1024; SELF = 1152; KEYS = 4096; LMC = 8192
TROW = 544
MSB = 9216
VT0 = MSB + 8192; VSTR = 16*TROW
K0 = VT0 + 4*VSTR
KSTR = 2368; K3O = 4*KSTR; KREG = 32*TROW
XR0 = K0 + 4*KREG; XSTR = 4608
YB = VT0; PRE = XR0 + 4*XSTR
LDS_END = PRE + 16384
UOF = 65535 - KREG - 63 & ~63
assert K0 - UOF + 3*KREG < 65536
C_XR, C_Y1, C_Y2, C_Y3, C_KEYS, C_PRE, C_UPD, C_SEL, C_XS, C_Y0, C_KD, C_H = [16*i for i in range(12)]
WS_ALIVE = 0x800
WS_STAT = 0x780000
WS_H1 = 0x10000
WS_PART = 0x100000
WS_XT = 0x300000
WS_FL3 = 0xF0000
WS_FL2 = 0x700000
WS_STAMP = 0x800000
WS_SIZE = 0x1000000

sX, sLAR, sAI, sCR, sCI, sLDT, sDSK = 16, 18, 20, 22, 24, 26, 28
sWR, sWGT, sWU, sWD = 32, 34, 36, 38
sOUT, sWS = 40, 42
rWS, rX, rOUT = 44, 48, 52
sTAG = 56; sTX = 63; sW = 3; sDG = 57; sJ = 59
sO = 60
sSH = 12
sROLE = 69
sST = 70
rG, rU, rD = 16, 20, 24

def P(r): return f"v[{r}:{r+1}]"
def Q(r): return f"v[{r}:{r+3}]"
def SP(r): return f"s[{r}:{r+1}]"
def SQ(r): return f"s[{r}:{r+3}]"
MOD = ["", "sc0", "sc1", "sc0 sc1", "nt", "sc0 nt", "sc1 nt", "sc0 sc1 nt"]
MFMA = "v_mfma_f32_16x16x32_bf16"

def interleave(main, fill, per=1, start=0):
    out = []; fill = list(fill)
    for k, m in enumerate(main):
        out.append(m)
        if k >= start:
            for _ in range(per):
                if fill: out.append(fill.pop(0))
    return out + fill

class G:
    def __init__(self, stamps=False, opt=None):
        self.a = Asm(); self.stamps = stamps; self.opt = dict(dq=4, xf=0, wn=4, np=4, ga=1, wx=1, m0=4, m1=4, sm=0, xe=6, xpr=1, ct=3, gw=0, tla=0); self.opt.update(opt or {})
        self.tpos = [v for k, v in self.opt.items() if k in ("tg","tu","td","tga","tgb","tua","tub","tda","tdb")]
        self.NX0 = self.opt.get("nx0", 2); self.NX1 = self.opt.get("nx1", 1); self.NX2 = self.opt.get("nx2", 1)
        self.NB0 = self.opt.get('nb0', 2)
        self.NXA = self.NX0 + self.NX1 + self.NX2
    def hook(self, p):
        for name, reg, ad, base in (("tg", 18, 17, sWGT), ("tu", 19, 17, sWU), ("td", 16, 15, sWD)):
            for h, ex in (("", None), ("a", "hi"), ("b", "lo")):
                if self.opt.get(name+h, -9) == p:
                    if ex: self.a(f"s_mov_b32 exec_{ex}, 0")
                    self.a(f"global_load_dword v{reg}, v{ad}, {SP(base)}")
                    if ex: self.a(f"s_mov_b32 exec_{ex}, -1")
    def est(self, i):
        if self.opt.get("est"): self.a(f"s_memrealtime {SP(sST+2*i)}")
    def xst(self, g, i):
        if self.stamps and self.opt.get("xst") == g: self.a(f"s_memrealtime {SP(sST+2*i)}\ns_waitcnt lgkmcnt(0)")
    def stamp(self, i):
        if self.opt.get("xst") and i >= 12: return
        if self.opt.get("est") and i >= 6 and i < 14: return
        if self.stamps or self.opt.get("amp") == i or self.opt.get("gamp") == i:
            self.a(f"s_memrealtime {SP(sST+2*i)}\ns_waitcnt lgkmcnt(0)")
    def kst(self, i):
        if self.opt.get("kst"): self.a(f"{'s_memtime' if self.opt['kst'] == 2 else 's_memrealtime'} {SP(sST+2*i)}")
    def cst(self, i):
        if self.opt.get("cst"): self.a(f"{'s_memtime' if self.opt['cst'] == 2 else 's_memrealtime'} {SP(sST+2*i)}")
    def unp(self, lo, hi, src):
        return [f"v_lshlrev_b32 v{lo}, 16, v{src}", f"v_and_b32 v{hi}, 0xffff0000, v{src}"]
    def unpack(self, lo, hi, src):
        for l in self.unp(lo, hi, src): self.a(l)
    def bf16r(self, dst, src):
        self.a(f"v_cvt_pk_bf16_f32 v{dst}, v{src}, v{src}\nv_and_b32 v{dst}, 0xffff0000, v{dst}")
    def cmul2(self, d, x, y, t):
        a = self.a
        for q in (0,2): a(f"v_pk_mul_f32 {P(t+q)}, {P(x+q)}, {P(y+q)} op_sel_hi:[1,0]")
        for q in (0,2): a(f"v_pk_fma_f32 {P(d+q)}, {P(x+q)}, {P(y+q)}, {P(t+q)} op_sel:[1,1,0] op_sel_hi:[0,1,1] neg_lo:[1,0,0]")
    def arr(self, off, vw4, vone):
        return ["s_mov_b64 exec, 1", f"ds_write_b32 v{vw4}, v{vone} offset:{off}", "s_mov_b64 exec, -1"]
    def arrive(self, off, vw4, vone):
        for l in self.arr(off, vw4, vone): self.a(l)
    def wait_flag(self, off, vl4, vt, sleep=0):
        L = self.a.label("LW")
        sl = f"s_sleep {sleep}\n" if sleep else ""
        self.a(f"{L}:\n{sl}ds_read_b32 v{vt}, v{vl4} offset:{off}\ns_waitcnt lgkmcnt(0)\nv_cmp_eq_u32 vcc, 0, v{vt}\ns_cbranch_vccnz {L}")
    def srd(self, r, p, size):
        self.a(f"s_mov_b32 s{r}, s{p}\ns_and_b32 s{r+1}, s{p+1}, 0xffff\ns_mov_b32 s{r+2}, {size:#x}\ns_mov_b32 s{r+3}, 0x20000")
    def wsb(self):
        if self.opt.get("wsb"): self.a(f"s_add_u32 s{sWS}, s{sWS}, {self.opt['wsb']:#x}\ns_addc_u32 s{sWS+1}, s{sWS+1}, 0")
    def mktag(self):
        self.a(f"s_mul_i32 s{sTAG}, s{sTAG}, 0x9E3779B1\ns_add_u32 s{sTAG}, s{sTAG}, 0x7F4A7C15\ns_or_b32 s{sTAG}, s{sTAG}, 1\ns_andn2_b32 s{sTAG}, s{sTAG}, 0x1e")

    def prologue(self):
        a = self.a
        if "gamp" in self.opt: a(f"s_mov_b32 s{sST+2*self.opt['gamp']}, 0")
        if self.stamps or "amp" in self.opt or "gamp" in self.opt: a(f"s_memrealtime {SP(sST)}")
        a(f"""
        s_cmp_ge_u32 s2, 256
        s_cbranch_scc1 L_END
        s_load_dwordx16 s[16:31], s[0:1], 0
        s_load_dwordx8 s[32:39], s[0:1], 64
        s_load_dwordx2 {SP(sOUT)}, s[0:1], 96
        s_load_dwordx2 {SP(sWS)}, s[0:1], 112
        s_getpc_b64 s[14:15]
        v_lshrrev_b32 v1, 6, v0
        v_and_b32 v10, 255, v0
        v_and_b32 v0, 63, v0
        v_readfirstlane_b32 s{sW}, v1
        v_lshlrev_b32 v1, 2, v0
        v_mov_b32 v2, 0
        ds_write2st64_b32 v1, v2, v2 offset0:0 offset1:2
        s_and_b32 s5, s2, 7
        s_lshr_b32 s6, s2, 3
        s_lshl_b32 s{sDG}, s5, 5
        s_add_u32 s{sDG}, s{sDG}, s6
        s_and_b32 s58, s{sW}, 3
        {"s_xor_b32 s%d, s%d, 4" % (sW, sW) if self.opt.get("swp", 0) else ""}
        s_lshl_b32 s7, s{sDG}, 2
        s_add_u32 s7, s7, s58
        s_lshl_b32 s7, s7, 8
        v_add_u32 v15, s7, v1
        s_mov_b32 s{sO}, 0
        s_lshl_b32 s4, s{sDG}, 3
        s_cmp_lt_u32 s{sW}, 4
        s_cbranch_scc1 L_F0
        """)
        CPF = self.opt.get("cpf", 4)
        if CPF:
            a(f"""
            s_and_b32 s8, s6, {(1<<CPF)-1}
            s_lshl_b32 s8, s8, 2
            s_add_u32 s8, s8, s58
            s_lshl_b32 s8, s8, {13-CPF}
            s_mov_b32 s69, s8
            v_lshl_add_u32 v2, v0, 7, s8
            v_min_u32 v2, L_END-{KN}-128, v2
            s_mov_b64 exec, {(1<<(64>>CPF))-1:#x}
            global_load_dword v255, v2, s[14:15]
            s_mov_b64 exec, -1
            """)
        else: a(f"""
        v_lshlrev_b32 v2, 7, v10
        v_min_u32 v2, L_END-{KN}-128, v2
        global_load_dword v255, v2, s[14:15]
        """)
        a(f"""
        v_lshlrev_b32 v3, 12, v10
        v_add_u32 v3, s4, v3
        s_lshl_b32 s8, s5, 5
        s_add_u32 s8, s8, s58
        s_lshl_b32 s8, s8, 7
        s_add_u32 s8, s8, {WS_FL3}
        v_lshl_add_u32 v2, v0, 9, s8
        s_lshl_b32 s59, s5, 2
        s_add_u32 s59, s59, s58
        s_lshl_b32 s59, s59, 5
        s_add_u32 s59, s59, s6
        s_lshl_b32 s59, s59, 9
        s_add_u32 s59, s59, {WS_FL2}
        s_sub_u32 s8, s59, 512
        v_lshl_add_u32 v4, v0, 7, s8
        v_cmp_lt_u32 vcc, 3, v0
        v_cndmask_b32 v2, v2, v4, vcc
        s_lshl_b32 s8, s2, 6
        s_add_u32 s8, s8, {WS_STAT}
        {"v_writelane_b32 v2, s8, 3" if self.opt.get("sp", 1) else ""}
        s_waitcnt lgkmcnt(0)
        """)
        FP = self.opt.get("fp", (16 << self.opt.get("nst", 3)) - 1)
        fpi = f"s_cmp_ge_u32 s6, {self.opt.get('fq', 32)}\ns_cbranch_scc1 L_NFP\ns_mov_b64 exec, {FP}\nglobal_load_dword v255, v2, {SP(sWS)}\ns_mov_b64 exec, -1\nL_NFP:"
        if FP and self.opt.get("fo", 0) == 0: a(fpi)
        a(f"""
        global_load_dword v224, v15, {SP(sLAR)}
        global_load_dword v225, v15, {SP(sAI)}
        global_load_dword v226, v15, {SP(sCR)}
        global_load_dword v227, v15, {SP(sCI)}
        {fpi if FP and self.opt.get("fo", 0) == 1 else ""}
        s_add_u32 s6, s{sLDT}, s4
        s_addc_u32 s7, s{sLDT+1}, 0
        s_load_dwordx2 s[64:65], s[6:7], 0
        s_add_u32 s6, s{sDSK}, s4
        s_addc_u32 s7, s{sDSK+1}, 0
        s_load_dwordx2 s[66:67], s[6:7], 0
        s_barrier
        s_mov_b64 s[26:27], s[14:15]
        s_mov_b32 s{sO+1}, 0x100000
        s_mov_b32 s{sO+2}, 0x200000
        s_mov_b32 s{sO+3}, 0x300000
        """)
        self.wsb()
        self.srd(rWS, sWS, WS_SIZE); self.srd(rX, sX, 0x400000); self.srd(rOUT, sOUT, 0x400000)
        if True: a(f"s_setprio {self.opt.get('kprio', 2)}")
        if "probe" in self.opt:
            p = {0: sWS, 1: sOUT, 2: 30, 3: sWD}[self.opt["probe"]]
            off = self.opt.get("poff", 0x200000)
            a(f"s_cmp_lg_u32 s2, 0\ns_cbranch_scc1 L_NPR\ns_cmp_lg_u32 s{sW}, 4\ns_cbranch_scc1 L_NPR\ns_waitcnt vmcnt(0)")
            if self.opt.get("pdelay"): a(f"s_mov_b32 s4, 0\nL_PD:\ns_sleep 100\ns_add_u32 s4, s4, 1\ns_cmp_lt_u32 s4, 10\ns_cbranch_scc1 L_PD")
            a(f"v_mov_b32 v20, {off}\nglobal_load_dword v21, v20, {SP(p)}\ns_waitcnt vmcnt(0)\ns_memrealtime {SP(sST)}\ns_waitcnt lgkmcnt(0)")
            for i in range(8): a(f"v_add_u32 v20, 0x4800, v20\nglobal_load_dword v21, v20, {SP(p)}\ns_waitcnt vmcnt(0)")
            a(f"s_memrealtime {SP(sST+30)}\ns_waitcnt lgkmcnt(0)\nL_NPR:")

    def xissue(self):
        self.xn = getattr(self, "xn", 0) + 1
        if self.xn > 1: self.a(f"s_cmp_lg_u32 s30, 0\ns_cbranch_scc1 L_XI{self.xn}")
        self.a(f"ds_read_b32 v34, v6 offset:{C_XS}\ns_buffer_load_dwordx8 s[16:23], {SQ(rWS)}, s31 {'glc' if self.opt.get('g0') else ''}\nL_XI{self.xn}:")
    def xcmp(self):
        a = self.a
        for i in range(4): a(f"s_xor_b64 {SP(16+2*i)}, {SP(16+2*i)}, s[28:29]")
        a("s_or_b64 s[16:17], s[16:17], s[18:19]\ns_or_b64 s[20:21], s[20:21], s[22:23]\ns_or_b64 s[16:17], s[16:17], s[20:21]")
    def xloads(self):
        if self.opt.get("xpr"): self.a("s_setprio 3")
        self.xloads_()
        if self.opt.get("df", 1): self.arrive(C_XI, 4, 5)
        if self.opt.get("xpr"): self.a(f"s_setprio {self.opt.get('kprio', 2)}")
    def xloads_(self):
        for k in range(4): self.a(f"s_add_u32 s4, s13, {0x1000*k}\nbuffer_load_dwordx4 {Q(16+4*k)}, v33, {SQ(rWS)}, s4 offen {MOD[self.opt.get('xro',2)]}")
    def xcheck(self):
        a = self.a; n = self.xn
        if n > 1: a(f"s_cmp_lg_u32 s30, 0\ns_cbranch_scc1 L_XE{n}")
        a(f"s_waitcnt lgkmcnt(0)\nv_readfirstlane_b32 s28, v34\ns_add_u32 s31, s31, 64\ns_mov_b32 s29, s28\ns_cmp_eq_u32 s28, 0\ns_cbranch_scc1 L_XE{n}")
        self.xcmp()
        a(f"{'s_branch' if self.opt.get('forcex') else 's_cbranch_scc1'} L_XE{n}")
        self.xloads()
        a("s_mov_b32 s30, 1")
        self.stamp(10)
        a(f"L_XE{n}:")
    def refresh(self):
        CPF = self.opt.get("cpf", 4)
        return ["v_lshl_add_u32 v35, v0, 7, s69", f"v_min_u32 v35, L_END-{KN}-128, v35", f"s_mov_b64 exec, {(1<<(64>>CPF))-1:#x}", f"global_load_dword v{35 if self.opt.get('rf') == 4 else 16}, v35, s[26:27]", "s_mov_b64 exec, -1"]
    def tsetup(self, k0, lbase, lstr, V, S):
        vLA, vW, vR, vOA, vS, t0, t1, vFA = range(V, V+8)
        self.a(f"""
        s_lshr_b32 s8, s2, 3
        s_and_b32 s9, s2, 7
        s_lshr_b32 s{S+5}, s58, 1
        s_add_u32 s{S+5}, s{S+5}, {k0}
        v_lshrrev_b32 v{t0}, 3, v0
        v_and_b32 v{t1}, 7, v0
        s_lshl_b32 s{S+4}, s8, 5
        s_add_u32 s{S+4}, s{S+4}, s{S+5}
        v_lshrrev_b32 v{vS}, 4, v0
        v_lshl_add_u32 v{vS}, v{vS}, 2, s{S+4}
        v_and_b32 v{vOA}, 1, v{t0}
        v_lshl_add_u32 v{vS}, v{vS}, 1, v{vOA}
        ds_read_u8 v{vFA}, v{vS} offset:{SELF}
        ds_read_u8 v{vS}, v{vS} offset:{SELF+32}
        s_mul_i32 s{S+4}, s58, {lstr}
        s_add_u32 s{S+4}, s{S+4}, {lbase}
        v_lshl_add_u32 v{vW}, v{t0}, 3, s{S+4}
        v_lshl_add_u32 v{vR}, v{t1}, 4, s{S+4}
        s_movk_i32 s{S+4}, 288
        v_mad_u32_u24 v{vW}, v{t1}, s{S+4}, v{vW}
        s_movk_i32 s{S+4}, 144
        v_mad_u32_u24 v{vR}, v{t0}, s{S+4}, v{vR}
        v_lshlrev_b32 v{t1}, 4, v{t1}
        v_lshl_add_u32 v{vLA}, v{t0}, 14, v{t1}
        v_lshl_add_u32 v{t0}, v{t0}, 11, v{t1}
        s_and_b32 s{S+4}, s58, 1
        s_lshl_b32 s{S+1}, s9, 1
        s_add_u32 s{S+1}, s{S+1}, s{S+4}
        s_lshl_b32 s{S+5}, s{S+5}, 5
        s_add_u32 s{S+5}, s{S+5}, s8
        s_lshl_b32 s{S}, s{S+1}, 18
        s_lshl_b32 s{S+4}, s{S+5}, 7
        s_add_u32 s{S}, s{S}, s{S+4}
        s_add_u32 s{S}, s{S}, {WS_XT}
        s_lshl_b32 s{S+2}, s{S+5}, 15
        s_lshl_b32 s{S+1}, s{S+1}, 7
        s_add_u32 s{S+2}, s{S+2}, s{S+1}
        s_add_u32 s{S+3}, s{S+2}, 0x4000
        s_add_u32 s{S+1}, s{S}, 0x20000
        s_lshl_b32 s{S+4}, s9, 5
        s_lshr_b32 s8, s8, 3
        s_add_u32 s{S+4}, s{S+4}, s8
        s_lshl_b32 s{S+4}, s{S+4}, 7
        s_add_u32 s{S+4}, s{S+4}, {WS_FL3 + 256*k0}
        s_mov_b32 s{S+5}, 0
        s_waitcnt lgkmcnt(0)
        v_lshl_or_b32 v{vOA}, v{vFA}, 24, v{t0}
        v_lshl_or_b32 v{vS}, v{vS}, 24, v{t0}
        v_lshlrev_b32 v{vFA}, 2, v0
        """)
    def tpoll(self, V, S, tag, sl):
        L = self.a.label("LT")
        self.a(f"""
        s_mov_b32 exec_hi, 0
        {L}:
        buffer_load_dword v{V+5}, v{V+7}, {SQ(rWS)}, s{S+4} offen sc1
        s_add_u32 s{S+5}, s{S+5}, 1
        s_waitcnt vmcnt(0)
        v_cmp_ne_u32 vcc, {tag}, v{V+5}
        s_cbranch_vccz {L}K
        s_sleep {sl}
        s_cmp_lt_u32 s{S+5}, 0x4000
        s_cbranch_scc1 {L}
        {L}K:
        s_mov_b32 exec_hi, -1
        """)
    def tload(self, V, S, D):
        for i in range(2): self.a(f"buffer_load_dwordx4 {Q(D+4*i)}, v{V}, {SQ(rWS)}, s{S+i} offen sc1")
    def tstore(self, V, S, D):
        a = self.a
        for i in range(2): a(f"s_waitcnt vmcnt({1-i})\nds_write_b64 v{V+1}, {P(D+4*i)} offset:{64*i}\nds_write_b64 v{V+1}, {P(D+4*i+2)} offset:{64*i+144}")
        for i in range(2): a(f"ds_read_b128 {Q(D+8+4*i)}, v{V+2} offset:{1152*i}")
        for i in range(2): a(f"s_waitcnt lgkmcnt({1-i})\nbuffer_store_dwordx4 {Q(D+8+4*i)}, v{V+3+i}, {SQ(rOUT)}, s{S+2+i} offen {'sc1' if self.opt.get('osc', 1) else ''}")
    def dt_calc(self, DT):
        self.a(f"""
        s_lshl_b32 s4, s58, 4
        s_lshr_b64 s[6:7], s[64:65], s4
        s_lshl_b32 s6, s6, 16
        v_mov_b32 v{DT}, s6
        v_mul_f32 v{DT}, {LOG2E:#x}, v{DT}
        v_exp_f32 v{DT}, v{DT}
        """)
        self.bf16r(DT, DT)
    def zcalc(self, plar, pai, DT, ER, FI, t):
        a = self.a
        self.unpack(t, t+1, plar)
        self.unpack(t+2, t+3, pai)
        a(f"v_mul_f32 v{t}, {LOG2E:#x}, v{t}\nv_mul_f32 v{t+1}, {LOG2E:#x}, v{t+1}\nv_exp_f32 v{t}, v{t}\nv_exp_f32 v{t+1}, v{t+1}")
        a(f"v_mul_f32 v{t+2}, v{t+2}, v{DT}\nv_mul_f32 v{t+3}, v{t+3}, v{DT}")
        a(f"v_mul_f32 v{FI}, {INV2PI:#x}, v{t+2}\nv_mul_f32 v{FI+1}, {INV2PI:#x}, v{t+3}")
        a(f"v_cvt_pk_bf16_f32 v{t+2}, v{t}, v{t+1}")
        self.unpack(t, t+1, t+2)
        a(f"v_mul_f32 v{t}, v{t}, v{DT}\nv_mul_f32 v{t+1}, v{t+1}, v{DT}")
        a(f"v_mul_f32 v{ER}, {LOG2E|0x80000000:#x}, v{t}\nv_mul_f32 v{ER+1}, {LOG2E|0x80000000:#x}, v{t+1}")
    def cexp(self, E, p, ER, FI, t):
        a = self.a
        if p != 1.0:
            for q in (0,1): a(f"v_mul_f32 v{t+q}, {f2u(p):#x}, v{ER+q}\nv_mul_f32 v{t+2+q}, {f2u(p):#x}, v{FI+q}")
            e, f = t, t+2
        else: e, f = ER, FI
        for q in (0,1): a(f"v_exp_f32 v{t+q}, v{e+q}\nv_fract_f32 v{t+2+q}, v{f+q}")
        for q in (0,1): a(f"v_cos_f32 v{E+2*q}, v{t+2+q}\nv_sin_f32 v{E+2*q+1}, v{t+2+q}")
        for q in (0,1): a(f"v_mul_f32 v{E+2*q}, v{E+2*q}, v{t+q}\nv_mul_f32 v{E+2*q+1}, v{E+2*q+1}, v{t+q}")

    PRM=224; VDT=228; VaW=229; VER=230; VFI=232; VCUR=236; VE8=240; VTMP=244; VPK=248
    def vprep(self):
        a = self.a
        a(f"s_mul_i32 s4, s58, {VSTR}\ns_add_u32 s4, s4, {VT0}\nv_lshl_add_u32 v{self.VaW}, v0, 3, s4")
        a(f"v_add_f32 v{self.VDT}, v{self.VDT}, v{self.VDT}")
        self.unpack(self.VCUR, self.VCUR+2, self.PRM+2)
        self.unpack(self.VCUR+1, self.VCUR+3, self.PRM+3)
        for i in range(4): a(f"v_mul_f32 v{self.VCUR+i}, v{self.VCUR+i}, v{self.VDT}")
        self.cexp(self.VE8, 8.0, self.VER, self.VFI, self.VTMP)
    def vloop(self, n=8):
        a = self.a; L = a.label("LV"); CUR = self.VCUR
        a(f"s_mov_b32 s4, 0\n{L}:")
        for j in range(4):
            r = self.VPK + 2*j
            a(f"v_cvt_pk_bf16_f32 v{r}, v{CUR}, -v{CUR+1}\nv_cvt_pk_bf16_f32 v{r+1}, v{CUR+2}, -v{CUR+3}")
            a(f"ds_write_b64 v{self.VaW}, {P(r)} offset:{j*TROW}")
            self.cmul2(CUR, CUR, self.VE8, self.VTMP)
        a(f"v_add_u32 v{self.VaW}, {4*TROW}, v{self.VaW}\ns_add_u32 s4, s4, 1\ns_cmp_lt_u32 s4, {n}\ns_cbranch_scc1 {L}")

    def kgen(self):
        a = self.a
        DT=228; ER=230; FI=232; PK=220; TMP=236
        VF=48; XF=168; YF=112; DX=[204,208]; DY=[212,216]
        aX=12; aY=13; aV=14; aG=11
        vXO=3; vW4=4; vONE=5; vL4=6; vB=7; vYW=8; vYR=9; vT8=10; vA=1; vK3=2; vKW=33; vXW=32
        zF=200; zT=201; zK=202; aE=203; aE2=46; aE3=47; aKB=35; Z=252
        aVW=180; aUW=188; BXB=244; BXA=248
        i_=16; g_=17; t7=18; t8=19; t9=20; T=22
        a(f"""
        s_mul_i32 s8, s58, {KREG}
        s_add_u32 s8, s8, {K0}
        s_mul_i32 s10, s58, {XSTR}
        s_add_u32 s10, s10, {XR0}
        s_mul_i32 s11, s58, {VSTR}
        s_add_u32 s11, s11, {VT0}
        s_movk_i32 s9, {TROW}
        s_sub_u32 m0, s8, {UOF}
        v_lshl_add_u32 v15, v0, 3, s10
        v_and_b32 v{i_}, 15, v0
        v_lshrrev_b32 v{g_}, 4, v0
        v_lshlrev_b32 v{t7}, 4, v{g_}
        v_mad_u32_u24 v{aX}, v{i_}, s9, v{t7}
        v_add_u32 v{aV}, s11, v{aX}
        v_add_u32 v{aX}, s8, v{aX}
        v_add_u32 v{aG}, s8, v{t7}
        v_cmp_gt_u32 vcc, 3, v{i_}
        v_cndmask_b32 v{t8}, 12, 4, vcc
        v_cmp_eq_u32 vcc, 3, v{i_}
        v_cndmask_b32 v{t8}, v{t8}, 28, vcc
        v_mad_u32_u24 v{aY}, v{t8}, s9, v{aX}
        v_and_b32 v{t9}, 3, v{i_}
        s_sub_u32 s11, s11, {VT0}
        s_lshl_b32 s4, s58, 2
        v_mov_b32 v{vW4}, s4
        v_mov_b32 v{vONE}, 1
        v_lshlrev_b32 v{vL4}, 2, v{t9}
        s_movk_i32 s9, {KSTR}
        v_lshrrev_b32 v{t7}, 2, v0
        v_lshl_add_u32 v{t8}, v{t9}, 3, s8
        v_mad_u32_u24 v{zF}, v{t7}, s9, v{t8}
        s_movk_i32 s4, 160
        v_mad_u32_u24 v{zK}, v{t7}, s4, v{t8}
        v_lshrrev_b32 v{t7}, 3, v0
        v_and_b32 v{t8}, 7, v0
        v_lshl_add_u32 v{t8}, v{t8}, 3, s8
        v_mad_u32_u24 v{zT}, v{t7}, s9, v{t8}
        v_lshrrev_b32 v{t7}, 5, v0
        v_lshlrev_b32 v{t7}, 8, v{t7}
        v_lshl_add_u32 v{t7}, v{i_}, 4, v{t7}
        v_add_u32 v{t7}, s8, v{t7}
        v_and_b32 v{t8}, 1, v{g_}
        v_lshl_add_u32 v{aE}, v{t8}, 3, v{t7}
        v_lshl_add_u32 v{aE2}, v{t8}, 9, v{t7}
        v_and_b32 v{t7}, 1, v{i_}
        s_movk_i32 s4, 640
        v_mul_u32_u24 v{t7}, s4, v{t7}
        v_lshl_add_u32 v{t7}, v{g_}, 5, v{t7}
        v_and_b32 v{t8}, 14, v{i_}
        v_add3_u32 v{aE3}, v{t7}, v{t8}, s8
        v_mov_b32 v{aKB}, s8
        v_mov_b32 v{Z}, 0
        v_mov_b32 v{Z+1}, 0
        """)
        a(f"""
        v_lshlrev_b32 v{vB}, 4, v{g_}
        v_lshlrev_b32 v{t7}, 5, v{i_}
        v_sub_u32 v{vB}, v{vB}, v{t7}
        s_add_u32 s4, s10, 480
        v_add_u32 v{vB}, s4, v{vB}
        s_lshl_b32 s4, s58, 13
        s_add_u32 s4, s4, {YB}
        v_lshlrev_b32 v{t7}, 6, v{i_}
        v_lshl_add_u32 v{t7}, v{g_}, 4, v{t7}
        v_add_u32 v{vYW}, s4, v{t7}
        v_sub_u32 v{T}, 20, v{i_}
        v_lshlrev_b32 v{T+1}, 3, v{g_}
        v_mov_b32 v{T+2}, 0x7f
        v_lshlrev_b32 v{T+2}, v{T}, v{T+2}
        v_subrev_u32 v{T}, 1, v{T}
        v_mov_b32 v{T+3}, 0x1ff
        v_lshlrev_b32 v{T+3}, v{T}, v{T+3}
        v_lshrrev_b32 v{T+2}, v{T+1}, v{T+2}
        v_lshrrev_b32 v{T+3}, v{T+1}, v{T+3}
        v_add_u32 v{t7}, 1, v{i_}
        v_and_b32 v{T}, 3, v{t7}
        v_and_b32 v{t7}, 28, v{t7}
        v_lshl_add_u32 v{T+4}, v{g_}, 3, v{t7}
        v_lshl_add_u32 v{T+4}, v{T+4}, 1, s8
        v_mad_u32_u24 v{vA}, v{T}, s9, v{T+4}
        v_lshlrev_b32 v{T+4}, 2, v{g_}
        v_sub_u32 v{t7}, v{t7}, v{T+4}
        v_lshl_add_u32 v{t7}, v{t7}, 1, s8
        s_movk_i32 s4, 160
        v_mad_u32_u24 v{vK3}, v{T}, s4, v{t7}
        s_mov_b32 s15, 0x3f800000
        """)
        for (dst, src) in ((BXB, T+2), (BXA, T+3)):
            for d in range(4):
                a(f"v_bfe_i32 v{T+5}, v{src}, {2*d}, 1\nv_bfe_i32 v{T+6}, v{src}, {2*d+1}, 1\nv_and_b32 v{T+5}, 0x3f80, v{T+5}\nv_bfi_b32 v{dst+d}, s15, v{T+6}, v{T+5}")
        self.csetup()
        a("s_waitcnt lgkmcnt(0)")
        self.dt_calc(DT)
        xp = f"s_mov_b32 exec_hi, 0\nbuffer_load_dword v255, v254, {SQ(rWS)}, s13 offen\ns_mov_b32 exec_hi, -1"
        XP = self.opt.get("xp", 1)
        if XP: a(f"s_lshl_b32 s4, s58, 12\nv_lshl_add_u32 v254, v0, 7, s4")
        if XP == 2: a(xp + "\ns_waitcnt vmcnt(1)")
        else: a(f"s_waitcnt vmcnt(0)")
        self.stamp(1)
        if XP == 1: a(xp)
        if self.opt.get("ft", 0): a(f"s_buffer_load_dword s30, {SQ(rWS)}, s31 glc")
        if self.opt.get("k2"): a("s_mov_b32 s24, 0\nL_K2:")
        self.zcalc(224, 225, DT, ER, FI, TMP)
        UR = lambda r: 112 + 2*r
        E1024 = 166; BV = {8: 36, 16: 38, 32: 40, 64: 42, 128: 44}
        W = lambda j: 80 + 2*j if j < 16 else 220 + 2*(j % 8)
        CA = 16; CB = 24; CP = 240
        a(f"v_add_f32 v{DT}, v{DT}, v{DT}")
        for q in (0,1): a(f"v_mul_f32 v{CB+4+q}, {f2u(32.0):#x}, v{ER+q}\nv_mul_f32 v{CB+6+q}, {f2u(32.0):#x}, v{FI+q}")
        up = self.unp(CP, CP+2, 226) + self.unp(CP+1, CP+3, 227) + [f"v_mul_f32 v{CP+i}, v{CP+i}, v{DT}" for i in range(4)]
        for q in (0,1): a(f"v_exp_f32 v{CA+4+q}, v{ER+q}\nv_fract_f32 v{CA+6+q}, v{FI+q}\nv_exp_f32 v{CB+4+q}, v{CB+4+q}\nv_fract_f32 v{CB+6+q}, v{CB+6+q}")
        tr = []
        for C_ in (CA, CB):
            for q in (0,1): tr += [f"v_cos_f32 v{C_+2*q}, v{C_+6+q}", f"v_sin_f32 v{C_+2*q+1}, v{C_+6+q}"]
        for l in interleave(tr, up): a(l)
        for C_ in (CA, CB):
            for q in (0,1): a(f"v_mul_f32 v{C_+2*q}, v{C_+2*q}, v{C_+4+q}\nv_mul_f32 v{C_+2*q+1}, v{C_+2*q+1}, v{C_+4+q}")
        cv = lambda d, s_: [f"v_cvt_pk_f16_f32 v{d}, v{s_}, v{s_+1}", f"v_cvt_pk_f16_f32 v{d+1}, v{s_+2}, v{s_+3}"]
        sqm = lambda x: [f"v_pk_mul_f32 {P(x+4+q)}, {P(x+q)}, {P(x+q)} op_sel_hi:[1,0]" for q in (0,2)]
        sqf = lambda x: [f"v_pk_fma_f32 {P(x+q)}, {P(x+q)}, {P(x+q)}, {P(x+4+q)} op_sel:[1,1,0] op_sel_hi:[0,1,1] neg_lo:[1,0,0]" for q in (0,2)]
        def pr(L):
            o = []
            for k in range(0, len(L), 2):
                B_ = L[k:k+2]
                for (d, x, y, c) in B_: o += [f"v_pk_mul_f16 v{d+q}, v{x+q}, v{y+q} op_sel_hi:[1,0]" for q in (0,1)]
                for (d, x, y, c) in B_: o += [f"v_pk_fma_f16 v{d+q}, v{x+q}, v{y+q}, v{d+q} op_sel:[1,1,0] op_sel_hi:[0,1,1] neg_{'hi' if c else 'lo'}:[1,0,0]" for q in (0,1)]
            return o
        issued = []
        def lds(tag, text): a(text); issued.append(tag)
        def need(tag):
            last = max(i for i, t in enumerate(issued) if t == tag)
            a(f"s_waitcnt lgkmcnt({min(len(issued)-1-last, 15)})")
        UP = {0:[0],1:[1],2:[2],3:[3],4:[4],5:[5],6:[6],7:[7],11:[8],12:[9],13:[10,12],14:[11,13],15:[14],16:[15],23:[31],
              8:[16],9:[17],10:[18],24:[19],17:[20],18:[21],19:[22],25:[23],20:[24],21:[25],22:[26],26:[27]}
        pend = []
        def wrow(reg, off): pend.extend([(None, f"ds_write_addtid_b32 v{reg} offset:{off}"), (None, f"ds_write_addtid_b32 v{reg+1} offset:{off+256}")])
        def wu(*rs):
            for r in rs:
                for p_ in UP[r]: wrow(UR(r), UOF + p_*TROW)
        def wv(*js):
            for j in js: wrow(W(j), VT0 + j*TROW)
        def em(L, mf=None, mper=4):
            for k, l in enumerate(L):
                if mf and k % mper == 0: a(mf.pop(0))
                a(l)
        def flush():
            while pend:
                t = pend.pop(0)
                if t[0] == "s": a(t[1])
                else: lds(*t)
        U = lambda d, x, y: (UR(d), UR(x), UR(y) if y >= 0 else E1024, 0)
        V = lambda d, x, y: (W(d), W(x), BV[y], 1)
        self.kst(14)
        em([f"v_mov_b32 v{UR(0)}, 0x3c00", f"v_mov_b32 v{UR(0)+1}, 0x3c00"] + sqm(CA) + sqm(CB) + cv(UR(1), CA) + cv(BV[32], CB) + sqf(CA) + sqf(CB))
        em(sqm(CA) + sqm(CB) + cv(UR(2), CA) + cv(BV[64], CB) + sqf(CA) + sqf(CB))
        em([f"v_cvt_pk_f16_f32 v{W(0)}, v{CP}, -v{CP+1}", f"v_cvt_pk_f16_f32 v{W(0)+1}, v{CP+2}, -v{CP+3}"] + sqm(CA) + sqm(CB) + cv(UR(4), CA) + cv(BV[128], CB) + sqf(CA) + sqf(CB))
        em(pr([U(3,2,1), U(5,4,1)]))
        em(sqm(CA) + cv(UR(8), CA) + cv(UR(11), CB) + sqf(CA))
        wu(0, 1, 2, 4, 3, 5, 8, 11); wrow(BV[128], UOF + 28*TROW); flush()
        em(pr([U(6,4,2), U(7,4,3), U(10,8,2), U(12,11,2), U(13,11,4), U(14,11,6), U(15,11,8), U(16,11,10)]))
        wu(6, 7, 10, 12, 13, 14, 15, 16); flush()
        for s_ in range(8): lds("x", f"ds_read_b128 {Q(XF+4*s_)}, v{aX} offset:{64*s_}")
        a("s_mov_b32 m0, s11")
        self.kst(10)
        BV[8] = UR(8)
        em(cv(BV[16], CA) + pr([V(1,0,8), V(4,0,32), V(2,0,16), V(3,1,16), V(5,1,32), V(8,0,64), V(6,2,32), V(7,3,32)]))
        wv(0, 1, 2, 3, 4, 5, 6, 7, 8); flush()
        em(pr([V(9,1,64), V(12,4,64), V(10,2,64), V(11,3,64), V(13,5,64), V(14,6,64), V(15,7,64), U(9,8,1)]))
        wv(9, 10, 11, 12, 13, 14, 15); flush()
        for s_ in range(8): lds(f"v{s_}", f"ds_read_b128 {Q(VF+4*s_)}, v{aV} offset:{64*s_}")
        for s_ in range(8): lds(f"g{s_}", f"ds_read_b128 {Q(VF+32+4*s_)}, v{aG} offset:{28*TROW+64*s_}")
        a(f"s_sub_u32 m0, s8, {UOF}")
        self.kst(11)
        MF = "v_mfma_f32_16x16x32_f16"
        def mm(D, A, ct, s_): return f"{MF} {Q(D[ct])}, {Q(A+4*s_)}, {Q(VF+32*ct+4*s_)}, {'0' if s_ == 0 else Q(D[ct])}"
        m0 = [mm(DX, XF, 0, s_) for s_ in range(8)]
        em(sqm(CB) + sqf(CB) + cv(UR(17), CB) + sqm(CB) + sqf(CB) + cv(E1024, CB))
        need("v7")
        XE = self.opt.get("xe", 1)
        if XE & 1: self.xissue()
        em(pr([U(20,17,11), U(18,17,4), U(19,17,8), U(23,8,-1), U(21,20,4), U(22,20,8), U(24,15,-1), U(25,19,-1), U(26,22,-1)]), m0, 4)
        if XE & 1: self.xcheck()
        wu(9, 17, 20, 18, 19, 23, 21, 22, 24, 25, 26); flush()
        for s_ in range(8): lds(f"y{s_}", f"ds_read_b128 {Q(YF+4*s_)}, v{aY} offset:{64*s_}")
        a("s_mov_b64 exec, 0xffff"); lds(None, f"ds_write_b64 v{zF}, {P(Z)}")
        a("s_mov_b32 exec_lo, -1"); lds(None, f"ds_write_b64 v{zT}, {P(Z)} offset:2080"); lds(None, f"ds_write_b64 v{zK}, {P(Z)} offset:{K3O}")
        a("s_mov_b64 exec, -1")
        self.kst(13)
        if XE & 2: self.xissue()
        TM = 220
        for s_ in range(10):
            mq = []
            if 1 <= s_ <= 8: mq.append(mm(DX, XF, 1, s_-1))
            if 2 <= s_ <= 9:
                if s_ % 2 == 0: need(f"y{s_-1}")
                mq += [mm(DY, YF, 0, s_-2), mm(DY, YF, 1, s_-2)]
            L = []
            if s_ < 8:
                L += [f"v_pk_mul_f16 v{TM+j}, v{VF+4*s_+j}, v{VF+32+4*s_+j} op_sel_hi:[1,0]" for j in range(4)]
                L += [f"v_pk_fma_f16 v{VF+32+4*s_+j}, v{VF+4*s_+j}, v{VF+32+4*s_+j}, v{TM+j} op_sel:[1,1,0] op_sel_hi:[0,1,1] neg_hi:[1,0,0]" for j in range(4)]
            for k in range(len(L)):
                if k % 3 == 2 and mq: a(mq.pop(0))
                a(L[k])
            for m in mq: a(m)
        self.kst(12)
        if XE & 2: self.xcheck()
        if XE & 4: self.xissue()
        a("s_lshl_b32 s4, s58, 4\ns_lshr_b64 s[6:7], s[66:67], s4\ns_lshl_b32 s6, s6, 16")
        for r in range(4): a(f"v_permlane32_swap_b32 v{DX[0]+r}, v{DX[1]+r}")
        a(f"v_cvt_pk_bf16_f32 v{PK}, v{DY[0]+3}, v{DY[1]+3}")
        a(f"s_mov_b64 exec, 1\nv_add_f32 v{DX[0]}, s6, v{DX[0]}\nv_add_f32 v{DX[0]}, 1.0, v{DX[0]}\ns_mov_b64 exec, -1")
        for r in range(3): a(f"v_permlane32_swap_b32 v{DY[0]+r}, v{DY[1]+r}")
        for sg in range(4):
            a(f"ds_write_b16 v{aE3}, v{PK} offset:{K3O+32+158*sg}")
            a(f"ds_write_b16_d16_hi v{aE3}, v{PK} offset:{K3O+16+32+158*sg}")
        WL = []
        def expand(X, seq, nl, addr, lag0):
            for sg in range(4):
                nd = nl//2
                base = X + sg*nd
                for d in range(nd):
                    a(f"v_cvt_pk_bf16_f32 v{base+d}, v{seq[sg+2*d]}, v{seq[sg+2*d+1]}")
                off = sg*KSTR + 2*(16+lag0)
                if nd == 2: WL.append(f"ds_write_b64 v{addr}, {P(base)} offset:{off}")
                else: WL.append(f"ds_write_b128 v{addr}, {Q(base)} offset:{off}")
        X0, X1, Y0, Y1 = DX[0], DX[1], DY[0], DY[1]
        expand(48, [X0,X0+1,X0+2,X0+3,Y0,Y0+1,Y0+2], 4, aE, 0)
        expand(56, [X1,X1,X1+1,X1+2,X1+2,X1+2,X1+3], 4, aE, 256)
        expand(64, [Y1]*3+[Y1+1]*3+[Y1+2]*5, 8, aE2, 512)
        a(f"""
        v_cvt_pk_bf16_f32 v80, v{Z}, v{X0}
        v_mov_b32 v81, v50
        v_mov_b32 v82, v79
        v_cvt_pk_bf16_f32 v83, v{Y1+2}, v{Z}
        """)
        if XE & 4: self.xcheck()
        for l in WL: a(l)
        a(f"""
        s_mov_b64 exec, 1
        ds_write_b32 v{aKB}, v80 offset:{1*KSTR+28}
        ds_write_b32 v{aKB}, v48 offset:{2*KSTR+28}
        ds_write_b64 v{aKB}, v[80:81] offset:{3*KSTR+24}
        s_brev_b64 exec, 1
        ds_write_b64 v{aKB}, v[78:79] offset:{2080}
        ds_write_b32 v{aKB}, v83 offset:{2088}
        ds_write_b64 v{aKB}, v[78:79] offset:{KSTR+2080}
        ds_write_b64 v{aKB}, v[82:83] offset:{2*KSTR+2080}
        ds_write_b32 v{aKB}, v79 offset:{3*KSTR+2080}
        s_mov_b64 exec, -1
        """)
        self.kst(15)
        if self.opt.get("k2"):
            a("s_cmp_lg_u32 s24, 0\ns_cbranch_scc1 L_K2E")
            self.stamp(11)
            a("s_mov_b32 s24, 1\ns_branch L_K2\nL_K2E:")
        self.stamp(2)

    def csetup(self):
        vYR=9; vT8=10; vKW=33; vXW=32
        self.a(f"""v_lshlrev_b32 v{vKW}, 4, v10
        v_lshlrev_b32 v{vXW}, 2, v10
        v_sub_u32 v{vXW}, {XR0+1020}, v{vXW}
        s_mov_b32 s31, s59
        s_lshl_b32 s13, s{sDG}, 14
        s_add_u32 s13, s13, {WS_XT}
        s_and_b32 s12, s2, 7
        s_lshl_b32 s12, s12, 12
        s_lshl_b32 s4, s58, 7
        s_add_u32 s12, s12, s4
        s_lshr_b32 s4, s2, 3
        s_lshl_b32 s4, s4, 2
        s_add_u32 s12, s12, s4
        s_add_u32 s12, s12, {WS_FL3}
        v_lshlrev_b32 v{vT8}, 3, v10
        v_add_u32 v{vYR}, {YB}, v{vT8}
        s_mov_b32 s30, 0
        s_brev_b32 s68, 1""")
        if self.opt.get("ct") == 2: self.a(f"""
            s_lshr_b32 s38, s2, 3
            s_and_b32 s39, s2, 7
            s_lshl_b32 s37, s38, 2
            s_add_u32 s37, s37, s58
            s_lshl_b32 s36, s37, 4
            s_lshl_b32 s35, s37, 13
            s_lshl_b32 s4, s39, 8
            s_add_u32 s35, s35, s4
            s_lshl_b32 s32, s39, 19
            s_lshl_b32 s4, s37, 5
            s_add_u32 s32, s32, s4
            s_add_u32 s32, s32, {WS_XT}
            s_add_u32 s33, s32, 0x1000
            s_lshl_b32 s34, s39, 12
            s_lshr_b32 s4, s38, 3
            s_lshl_b32 s4, s4, 7
            s_add_u32 s34, s34, s4
            s_add_u32 s34, s34, {WS_FL3}""")
    def cmain(self):
        a = self.a
        XU = 16; AR = 48; RB = 180; ACC = 204; ZF = 236; D1 = 252
        G0 = ZF; T = 204; RAW = 180; M = 180; RS = 188; PKD = 196
        vXO=3; vW4=4; vONE=5; vL4=6; vB=7; vYW=8; vYR=9; vT8=10
        vXW=32; RAWC=28; UN=20; vKW=33; vTG=34
        vA = 1; vK3 = 2
        BXB = ZF+8; BXA = ZF+12
        RAW = 16; UN = 36; MS = 180; RS = 188; M = 196; XU = 204; PKD = 36
        XE = self.opt.get("xe", 1)
        self.wait_flag(C_XS, vL4, vTG)
        a(f"""s_cmp_lg_u32 s30, 0
        s_cbranch_scc1 L_XS1
        s_buffer_load_dwordx8 s[16:23], {SQ(rWS)}, s31 {'glc' if self.opt.get('g1') else ''}
        L_XS1:
        v_readfirstlane_b32 s28, v{vTG}
        ds_write_b64 v15, v[252:253] offset:4096
        s_mov_b32 s5, 0
        s_mov_b32 s29, s28
        """)
        al = sum([[f"ds_read_b64 {P(AR+4*d)}, v{vA} offset:{64*d}", f"ds_read_b64 {P(AR+4*d+2)}, v{vA} offset:{64*d+8}"] for d in range(33)], [])
        NA = self.opt.get("na", 40)
        for l in al[:NA]: a(l)
        a(f"""s_cmp_lg_u32 s30, 0
        s_cbranch_scc1 L_XA
        s_waitcnt lgkmcnt(0)""")
        self.xcmp()
        a(f"""{"s_branch" if self.opt.get("forcex") else "s_cbranch_scc1"} L_XF""")
        self.xloads()
        a("L_XA:")
        self.stamp(3)
        for l in al[NA:]: a(l)
        a("L_XBACK:")
        def xfail():
            a(f"L_XF:\ns_add_u32 s31, s31, 64\ns_buffer_load_dwordx8 s[16:23], {SQ(rWS)}, s31")
            for l in al[NA:]: a(l)
            a(f"""s_branch L_XC
            L_XP:
            s_sleep {self.opt.get("xsl", 2)}
            ds_read_b32 v11, v{vW4} offset:{C_MS}
            s_cmp_ge_u32 s5, {2*self.opt.get("nst", 3)-2-getattr(self, "xn", 0)}
            s_cbranch_scc1 L_XG
            s_add_u32 s31, s31, 64
            s_buffer_load_dwordx8 s[16:23], {SQ(rWS)}, s31
            s_branch L_XH
            L_XG:
            s_buffer_load_dwordx8 s[16:23], {SQ(rWS)}, s31 glc
            L_XH:
            s_add_u32 s5, s5, 1
            s_waitcnt lgkmcnt(0)
            v_cmp_eq_u32 vcc, 1, v11
            s_cbranch_vccnz L_XSLOW
            s_cmp_ge_u32 s5, 0x4000
            s_cbranch_scc1 L_XSLOW
            L_XC:
            s_waitcnt lgkmcnt(0)""")
            self.xcmp()
            a(f"""{"s_branch" if self.opt.get("forcex") else "s_cbranch_scc1"} L_XP""")
            self.xloads()
            self.stamp(3)
            a("s_branch L_XBACK")
        a(f"s_waitcnt vmcnt(3)")
        self.stamp(5)
        NRS = 44; NM = 46
        def nunp(k): return sum([self.unp(UN+4*e, UN+4*e+1, RAW+4*k+2*e) + self.unp(UN+4*e+2, UN+4*e+3, RAW+4*k+2*e+1) for e in range(2)], [])
        def nrd(k): return f"ds_read_b64 v[12:13], v{vT8} offset:{MSB+2048*k}"
        def nmath(pk):
            L = self.unp(NRS, NRS+1, 13) + [f"v_rcp_f32 v{NRS}, v{NRS}", f"v_rcp_f32 v{NRS+1}, v{NRS+1}"] + self.unp(NM, NM+1, 12)
            if pk:
                L += [f"v_pk_mul_f32 {P(NM)}, {P(NM)}, {P(NRS)}"]
                L += [f"v_pk_fma_f32 {P(UN+4*e+c)}, {P(UN+4*e+c)}, {P(NRS)}, {P(NM)} op_sel:[0,{e},{e}] op_sel_hi:[1,{e},{e}] neg_lo:[0,0,1] neg_hi:[0,0,1]" for c in (0, 2) for e in range(2)]
            else:
                L += [f"v_mul_f32 v{NM+e}, v{NM+e}, v{NRS+e}" for e in range(2)]
                L += [f"v_fma_f32 v{UN+4*e+c}, v{UN+4*e+c}, v{NRS+e}, -v{NM+e}" for c in range(4) for e in range(2)]
            L += [f"v_cvt_pk_bf16_f32 v{UN+c}, v{UN+4+c}, v{UN+c}" for c in range(4)]
            return L
        def nwr(k): return [f"ds_write2st64_b32 v{vXW}, v{UN+c}, v{UN+c+1} offset0:{18*c+4*(3-k)} offset1:{18*(c+1)+4*(3-k)}" for c in (0, 2)]
        for l in nunp(0): a(l)
        RF = self.opt.get("rf", 0)
        a(f"L_MSW:\nds_read_b32 v11, v{vW4} offset:{C_MS}\n{nrd(0)}\ns_waitcnt lgkmcnt(0)\nv_cmp_eq_u32 vcc, 0, v11\ns_cbranch_vccnz L_MSW")
        self.stamp(4)
        for l in nmath(1) + nwr(0): a(l)
        self.arrive(C_XR, vW4, 11)
        if self.opt.get("cprio", 2) != self.opt.get("kprio", 2): a(f"s_setprio {self.opt.get('cprio', 2)}")

        acc = {nt: ACC+4*nt for nt in range(8)}
        started = set(); ZS = [236, 240, 252, 248]
        def mf(nt, A, B):
            c = Q(acc[nt]) if nt in started else "0"
            started.add(nt)
            return f"{MFMA} {Q(acc[nt])}, {Q(A)}, {Q(B)}, {c}"
        def itB(u):
            tiles = [nt for nt in range(8) if 0 <= 8*nt-u <= 32]
            return (lambda r: [f"ds_read_b128 {Q(r)}, v{vB} offset:{64*(56-u)}"], lambda r: [mf(nt, AR+4*(8*nt-u), r) for nt in tiles], ("B", u))
        def itBox(S, ty):
            off = 64*(56-8*S) + 16*ty; d = ACC+16+8*min(S, 1)+4*ty
            return (lambda r: [f"ds_read_b128 {Q(r)}, v{vB} offset:{off}"], lambda r: [f"{MFMA} {Q(d)}, {Q(r)}, {Q(BXA if ty else BXB)}, 0"], ("X", S, ty))
        def itK3(D, pairs):
            return (lambda r: [f"ds_read_b64 {P(r)}, v{vK3} offset:{K3O+24+32*D}", f"ds_read_b64 {P(r+2)}, v{vK3} offset:{K3O+24+32*D+640}"],
                    lambda r: [mf(4+Tt, ZS[S], r) for (Tt, S) in pairs], ("K3", D, pairs[0][0]))
        items = [itB(-7), itBox(0,0), itBox(0,1), itB(-6), itBox(1,0), itBox(1,1), itB(-5), itB(-4), itB(-3), itB(-2), itB(-1)]
        for u in range(0, 57):
            items.append(itB(u))
            if u == 9: items += [itBox(2,0), itBox(2,1)]
            if u == 12: items += [itBox(3,0), itBox(3,1)]
            if u == 20: items.append(itK3(0, [(0,0),(1,1)]))
            if u == 28: items.append(itK3(1, [(1,0)]))
            if u == 42: items.append(itK3(0, [(2,2),(3,3)]))
            if u == 45: items.append(itK3(1, [(2,1),(3,2)]))
            if u == 47: items.append(itK3(2, [(2,0),(3,1)]))
            if u == 51: items.append(itK3(3, [(3,0)]))
        pos = {it[2]: k for k, it in enumerate(items)}
        fill = {}; front = {}; dead = {}
        NR = 6; PD = self.opt.get("pd", 5)
        def addf(idx, L): fill.setdefault(idx, []).extend(L)
        def mark(name, idx): dead.setdefault(idx, []).append(name); return [("mark", name)]
        def zc(S):
            d = ACC+16+8*min(S, 1)
            z = ZS[S]
            return [f"v_cvt_pk_bf16_f32 v{z}, v{d+3}, v{d+2}", f"v_cvt_pk_bf16_f32 v{z+1}, v{d+1}, v{d}",
                    f"v_cvt_pk_bf16_f32 v{z+2}, v{d+7}, v{d+6}", f"v_cvt_pk_bf16_f32 v{z+3}, v{d+5}, v{d+4}"]
        def norm(k, vm): return [("lds", f"m{k}", nrd(k))] + ([f"s_waitcnt vmcnt({vm})"] if vm is not None else []) + nunp(k) + [("need", f"m{k}")] + nmath(0) + [("lds", None, l) for l in nwr(k)]
        addf(0, norm(1, 2) + [("rawlds", self.arr(C_KD, vW4, vONE))])
        addf(pos[("B",-5)], zc(0) + zc(1) + mark("z1", pos[("B",0)]))
        addf(pos[("B",0)], norm(2, 0) + ([("raw", self.refresh())] if RF == 4 else []))
        front[pos[("B",11)]] = zc(2) + mark("z2", pos[("X",3,0)])
        front[pos[("B",14)]] = zc(3) + mark("z3", pos[("B",16)])
        YF = [C_Y0, C_Y1, C_Y2, C_Y3]
        def ywrite(k):
            return [("lds", None, f"ds_write_b128 v{vYW}, {Q(acc[nt])} offset:{1024*nt}") for nt in (2*k, 2*k+1)] + [("rawlds", self.arr(YF[k], vW4, vONE))]
        def yread(k, tag):
            return [("lds", tag, f"ds_read_b64 {P(ACC+8*k+2*c)}, v{vYR} offset:{c*8192+2048*k}") for c in range(4)]
        def eaddr(k, e):
            fl = 12 + k//2; sh = 24 - 8*(2*(k%2)+e)
            if sh: return [f"v_lshlrev_b32 v{14+e}, {sh}, v{fl}", f"v_and_or_b32 v{14+e}, v{14+e}, s68, v{vXO}"]
            return [f"v_and_or_b32 v{14+e}, v{fl}, s68, v{vXO}"]
        def emath(k):
            Y = ACC+8*k; L = []
            for e in range(2):
                L += self.unp(UN+4*e, UN+4*e+1, RAW+4*k+2*e) + self.unp(UN+4*e+2, UN+4*e+3, RAW+4*k+2*e+1)
            for e in range(2):
                for c in range(4): L.append(f"v_add_f32 v{UN+4*e+c}, v{Y+2*c+e}, v{UN+4*e+c}")
            for e in range(2):
                L.append(f"v_cvt_pk_bf16_f32 v{Y+2*e}, v{UN+4*e}, v{UN+4*e+1}")
                L.append(f"v_cvt_pk_bf16_f32 v{Y+2*e+1}, v{UN+4*e+2}, v{UN+4*e+3}")
            return L
        def est(k, e):
            if self.opt.get("nost"): return []
            return [f"buffer_store_dwordx2 {P(ACC+8*k+2*e)}, v{14+e}, {SQ(rOUT)}, s{sO+k} offen offset:{2048*e} {'sc1' if (k >= DQ and self.opt.get('dsc')) else ''}"]
        DQ = self.opt.get("dq", 3)
        def yst(k):
            if k >= DQ: return eaddr(k, 0) + eaddr(k, 1) + est(k, 0) + est(k, 1)
            return ["s_cmp_lg_u32 s14, 2", f"s_cbranch_scc1 L_ES{k}", f"buffer_store_dwordx4 {Q(ACC+8*k)}, v{vKW}, {SQ(rWS)}, s13 offen", f"L_EB{k}:", "s_add_u32 s13, s13, 0x1000"]
        YFM = self.opt.get("yfm", 1); CT = self.opt.get("ct")
        def yfl(k):
            if k >= DQ: return []
            if YFM: return ["s_waitcnt vmcnt(1)", "s_mov_b64 exec, 1", f"buffer_store_dword v{vTG}, off, {SQ(rWS)}, s12 offset:{512*k}", "s_mov_b64 exec, -1"]
            if self.opt.get("nyw") and k < 2: return ["s_mov_b64 exec, 1", f"buffer_store_dword v{vTG}, off, {SQ(rWS)}, s12 offset:{512*k}", "s_mov_b64 exec, -1"]
            return ["s_waitcnt vmcnt(0)", "s_mov_b64 exec, 1", f"buffer_store_dword v{vTG}, off, {SQ(rWS)}, s12 offset:{512*k}", "s_mov_b64 exec, -1"]
        def check(n, regs):
            L = []
            if len(regs) == 2: L.append(f"v_min_u32 v{regs[0]}, v{regs[0]}, v{regs[1]}")
            L += [f"v_cmp_eq_u32 vcc, 0, v{regs[0]}", f"s_cbranch_vccnz L_SLOW{n}", f"L_BACK{n}:"]
            return [("raw", L)]
        front[pos[("B", 9)]-PD-3] = [("lds", "n1", f"ds_read_b32 v11, v{vL4} offset:{C_KD}")]
        front[pos[("B", 9)]-PD-1] = [("need", "n1")] + check(3, [11]) + mark("n1", pos[("B", 9)]-PD)
        for k in range(3):
            p = pos[("B", 16*k+8)]
            d = (1, 3, 4, 6, 8, 14) if k < 2 else (1, 4, 6, 9, 12, 17)
            addf(p+d[0], ywrite(k))
            fr = [("lds", f"f{k}", f"ds_read_b32 v11, v{vL4} offset:{YF[k]}")]
            KS = min(DQ, 2)
            if k == KS: fr.append(("lds", f"f{k}", f"ds_read_b32 v15, v{vL4} offset:{C_SEL}"))
            addf(p+d[1], fr)
            addf(p+d[2], [("need", f"f{k}")] + check(k, [11, 15] if k == KS else [11]) + (mark(f"c{k}", pos[("B", 16*k+25)]-PD) if k < 2 else []) + ([("lds", f"y{k}", f"ds_read_b64 v[12:13], v{vT8} offset:{SELF}")] if k == KS else []) + yread(k, f"y{k}"))
            addf(p+d[3], [("need", f"y{k}")] + emath(k) + [("raw", yst(k))])
            if k == 0: addf(p+d[3], norm(3, None))
            if k < 2 and RF >> k & 1: addf(p+d[3], [("raw", self.refresh())])
            if CT == 2:
                TD = 204; vTA = 212; vOA = 213; vFA = 214; vF = 215; SF = 216; vSA = 217; OA = 218; t0 = 16
                fl = f"buffer_load_dword v{vF}, v{vFA}, {SQ(rWS)}, s34 offen sc1"
                if k == 1:
                    addf(p+d[3], f"""v_bfe_u32 v{t0}, v0, 4, 1
                    v_lshrrev_b32 v{t0+1}, 5, v0
                    v_and_b32 v{t0+2}, 15, v0
                    v_lshl_add_u32 v{vSA}, v{t0}, 3, s36
                    v_lshl_add_u32 v{vTA}, v{t0+2}, 1, v{t0+1}
                    v_lshlrev_b32 v{vTA}, 14, v{vTA}
                    v_lshl_add_u32 v{vTA}, v{t0}, 4, v{vTA}
                    v_lshl_add_u32 v{vOA}, v{t0}, 1, v{t0+1}
                    v_lshlrev_b32 v{vOA}, 11, v{vOA}
                    v_lshl_add_u32 v{vOA}, v{t0+2}, 4, v{vOA}
                    v_add_u32 v{vOA}, s35, v{vOA}
                    v_and_b32 v{vFA}, 31, v0
                    v_lshlrev_b32 v{vFA}, 2, v{vFA}
                    v_lshlrev_b32 v{t0+1}, 3, v{t0+1}""".split("\n"))
                    addf(pos[("B", self.opt.get("fa", 39))], [("raw", ["s_waitcnt vmcnt(0)"] + yfl(0)[1:])])
                if k == 2:
                    addf(p+d[2], [("lds", "y2", f"ds_read_b32 v{SF}, v{vSA} offset:{SELF}")])
                    fill[p+d[3]].insert(self.opt.get("fb", 1), fl)
            elif CT:
                if k == 2: addf(p+self.opt.get("fa", 2), [("raw", ["s_waitcnt vmcnt(0)"] + yfl(0)[1:])])
            elif YFM:
                if k: addf(p+d[3], [("raw", yfl(k-1))])
            elif k < 2: addf(p+d[5]+self.opt.get("yfd", 10), [("raw", yfl(k))])
        issued = []; done = [0]
        def lds(tag, text): a(text); issued.append(tag)
        def need(tag):
            last = max(i for i, t in enumerate(issued) if t == tag)
            if last >= done[0]:
                n = min(len(issued) - 1 - last, 15)
                a(f"s_waitcnt lgkmcnt({n})"); done[0] = len(issued) - n
        slot = lambda k: RB + 4*(k % NR)
        a(f"L_XRW:\nds_read_b32 v15, v{vL4} offset:{C_XR}")
        for k in range(PD):
            for l in items[k][0](slot(k)): lds(("it", k), l)
        a(f"s_waitcnt lgkmcnt({PD})\nv_cmp_eq_u32 vcc, 0, v15\ns_cbranch_vccnz L_XRW")
        a("v_cmp_ne_u32 vcc, 2, v15\ns_cmp_eq_u32 vcc_lo, 0\ns_cselect_b32 s14, 2, 1")
        self.stamp(6)
        self.cst(14)
        queue = []; passed = set()
        def drain(n):
            while queue and n > 0:
                e = queue.pop(0)
                if isinstance(e, str): a(e); n -= 1
                elif e[0] == "need": need(e[1])
                elif e[0] == "mark": passed.add(e[1])
                elif e[0] == "lds": lds(e[1], e[2]); n -= 1
                elif e[0] == "raw":
                    for l in e[1]: a(l)
                    n -= 2
                elif e[0] == "rawlds":
                    for l in e[1]: a(l)
                    issued.append(None); n -= 2
        for k, it in enumerate(items):
            for nm in dead.get(k, []):
                while nm not in passed:
                    if queue[0][0] != "mark": print("; deadline drain", nm, queue[0], file=sys.stderr)
                    drain(1)
            for u_, i_ in ((0, 10), (16, 11), (32, 12), (44, 13)):
                if it[2] == ("B", u_): self.cst(i_)
            queue += fill.get(k, [])
            queue[0:0] = front.get(k, [])
            need(("it", k))
            ms = it[1](slot(k))
            for j, m in enumerate(ms):
                a(m)
                if j == 0 and k+PD < len(items):
                    for l in items[k+PD][0](slot(k+PD)): lds(("it", k+PD), l)
                    if len(ms) == 1 or k > pos[("B", 40)]: drain(1)
                else: drain(2 if k > pos[("B", 40)] or k < pos[("B", 0)] else 1 + (len(queue) > 8))
            if it[2] == ("B", 49): lds(None, f"ds_write_b128 v{vYW}, {Q(acc[6])} offset:{1024*6}")
        drain(1000)
        self.cst(15)
        self.stamp(7)
        a(f"ds_write_b128 v{vYW}, {Q(acc[7])} offset:{1024*7}")
        self.arrive(C_Y3, vW4, vONE)
        if not YFM:
            for l in yfl(2): a(l)
        em = emath(3)
        if CT == 2:
            tl = lambda k: f"buffer_load_dwordx4 {Q(TD+4*k)}, v{vTA}, {SQ(rWS)}, s{32+k} offen sc1"
            ts = lambda k: f"v_permlane32_swap_b32 v{TD+4*k}, v{TD+4*k+2}\nv_permlane32_swap_b32 v{TD+4*k+1}, v{TD+4*k+3}\nbuffer_store_dwordx4 {Q(TD+4*k)}, v{OA+k}, {SQ(rOUT)}, s{sO+k} offen {'sc1' if self.opt.get('osc', 1) else ''}"
            a(f"""s_waitcnt vmcnt(2)
            v_cmp_ne_u32 s[20:21], v{vTG}, v{vF}
            v_lshrrev_b32 v{SF}, v{t0+1}, v{SF}
            s_cmp_lg_u32 s20, 0
            s_cbranch_scc1 L_TN
            {tl(0)}
            {tl(1)}
            L_TN:
            v_lshlrev_b32 v{OA}, 24, v{SF}
            v_lshlrev_b32 v{OA+1}, 8, v{SF}
            v_and_or_b32 v{OA}, v{OA}, s68, v{vOA}
            v_and_or_b32 v{OA+1}, v{OA+1}, s68, v{vOA}""")
        for l in em[:8]: a(l)
        self.wait_flag(C_Y3, vL4, 11)
        for e in yread(3, None): a(e[2])
        a("s_waitcnt lgkmcnt(0)")
        for l in em[8:] + yst(3): a(l)
        self.stamp(8)
        if CT == 2:
            a(f"""
            s_cmp_lg_u32 s14, 2
            s_cbranch_scc1 L_FIN
            s_mov_b32 s21, 0
            s_cmp_eq_u32 s20, 0
            s_cbranch_scc1 L_TC
            L_TP:
            {fl}
            s_add_u32 s21, s21, 1
            s_waitcnt vmcnt(0)
            v_cmp_ne_u32 vcc, v{vTG}, v{vF}
            s_cbranch_vccz L_TALL
            s_sleep {self.opt.get("tsl", 1)}
            s_cmp_lt_u32 s21, 0x4000
            s_cbranch_scc1 L_TP
            L_TALL:
            {tl(0)}
            {tl(1)}
            s_waitcnt vmcnt(0)
            L_TC:
            s_waitcnt vmcnt(2)
            """)
            self.stamp(11)
            a(f"{ts(0)}\n{ts(1)}")
            if self.stamps: a("s_waitcnt vmcnt(0)")
            self.stamp(12)
        elif CT == 3:
            a("s_cmp_lg_u32 s14, 2\ns_cbranch_scc1 L_CNL")
            self.tsetup(2, K0, KREG, 64, 16)
            a("s_waitcnt vmcnt(0)")
            for l in yfl(1)[1:]: a(l)
            self.stamp(9)
            self.tpoll(64, 16, f"v{vTG}", self.opt.get("tsl", 1))
            self.tload(64, 16, 48)
            self.arrive(C_TL, vW4, vONE)
            self.stamp(11)
            self.tstore(64, 16, 48)
            if self.stamps: a("s_waitcnt vmcnt(0)")
            self.stamp(12)
            a("s_branch L_FIN\nL_CNL:")
            self.arrive(C_TL, vW4, vONE)
        elif CT:
            TD = 48; vTA = 64; vOA = 65; vFA = 66; vF = 67; SF = 68; OA = 70; t0 = 74
            a(f"""
            s_cmp_lg_u32 s14, 2
            s_cbranch_scc1 L_FIN
            s_lshr_b32 s6, s2, 3
            s_and_b32 s5, s2, 7
            s_lshl_b32 s7, s6, 2
            s_add_u32 s7, s7, s58
            v_bfe_u32 v{t0}, v0, 4, 1
            v_lshrrev_b32 v{t0+1}, 5, v0
            v_and_b32 v{t0+2}, 15, v0
            s_lshl_b32 s8, s7, 4
            v_lshl_add_u32 v{t0+3}, v{t0}, 3, s8
            ds_read_b64 {P(SF)}, v{t0+3} offset:{SELF}
            v_lshl_add_u32 v{vTA}, v{t0+2}, 1, v{t0+1}
            v_lshlrev_b32 v{vTA}, 14, v{vTA}
            v_lshl_add_u32 v{vTA}, v{t0}, 4, v{vTA}
            v_lshl_add_u32 v{vOA}, v{t0}, 1, v{t0+1}
            v_lshlrev_b32 v{vOA}, 11, v{vOA}
            v_lshl_add_u32 v{vOA}, v{t0+2}, 4, v{vOA}
            s_lshl_b32 s8, s7, 13
            s_lshl_b32 s9, s5, 8
            s_add_u32 s8, s8, s9
            v_add_u32 v{vOA}, s8, v{vOA}
            v_and_b32 v{vFA}, 31, v0
            v_lshlrev_b32 v{vFA}, 2, v{vFA}
            v_lshl_add_u32 v{vFA}, v{t0+1}, 9, v{vFA}
            s_lshl_b32 s16, s5, 19
            s_lshl_b32 s8, s7, 5
            s_add_u32 s16, s16, s8
            s_add_u32 s16, s16, {WS_XT}
            s_add_u32 s17, s16, 0x1000
            s_add_u32 s18, s16, 0x2000
            s_add_u32 s19, s16, 0x3000
            s_lshl_b32 s20, s5, 12
            s_lshr_b32 s8, s6, 3
            s_lshl_b32 s8, s8, 7
            s_add_u32 s20, s20, s8
            s_add_u32 s20, s20, {WS_FL3}
            v_lshlrev_b32 v{t0+1}, 3, v{t0+1}
            s_mov_b32 s21, 0
            s_mov_b32 s22, 0
            s_waitcnt lgkmcnt(0)
            v_lshrrev_b32 v{SF}, v{t0+1}, v{SF}
            v_lshrrev_b32 v{SF+1}, v{t0+1}, v{SF+1}
            """)
            for k in range(4): a(f"v_lshlrev_b32 v{OA+k}, {24 if k % 2 == 0 else 8}, v{SF+k//2}")
            for k in range(4): a(f"v_and_or_b32 v{OA+k}, v{OA+k}, s68, v{vOA}")
            a("s_waitcnt vmcnt(0)")
            for l in yfl(1)[1:]: a(l)
            self.stamp(9)
            tl = lambda k: f"buffer_load_dwordx4 {Q(TD+4*k)}, v{vTA}, {SQ(rWS)}, s{16+k} offen sc1"
            ts = lambda k: f"v_permlane32_swap_b32 v{TD+4*k}, v{TD+4*k+2}\nv_permlane32_swap_b32 v{TD+4*k+1}, v{TD+4*k+3}\nbuffer_store_dwordx4 {Q(TD+4*k)}, v{OA+k}, {SQ(rOUT)}, s{sO+k} offen {'sc1' if self.opt.get('osc', 1) else ''}"
            a(f"""
            L_TP:
            buffer_load_dword v{vF}, v{vFA}, {SQ(rWS)}, s20 offen sc1
            s_add_u32 s21, s21, 1
            s_waitcnt vmcnt(0)
            v_cmp_ne_u32 vcc, v{vTG}, v{vF}
            s_cmp_eq_u32 vcc_hi, 0
            s_cbranch_scc1 L_TALL
            s_or_b32 s8, vcc_lo, s22
            s_cbranch_scc1 L_TSL
            s_bcnt1_i32_b32 s8, vcc_hi
            s_cmp_lt_u32 s8, {self.opt.get("tth", 0)}
            s_cbranch_scc1 L_TSL
            {tl(0)}
            {tl(1)}
            s_mov_b32 s22, 1
            s_waitcnt vmcnt(1)
            {ts(0)}
            s_waitcnt vmcnt(1)
            {ts(1)}
            L_TSL:
            s_sleep {self.opt.get("tsl", 1)}
            s_cmp_lt_u32 s21, 0x4000
            s_cbranch_scc1 L_TP
            L_TALL:
            {tl(2)}
            {tl(3)}
            """)
            self.stamp(11)
            a(f"""
            s_cmp_lg_u32 s22, 0
            s_cbranch_scc1 L_TB
            {tl(0)}
            {tl(1)}
            s_waitcnt vmcnt(0)
            {ts(0)}
            {ts(1)}
            s_branch L_TC
            L_TB:
            s_waitcnt vmcnt(0)
            L_TC:
            {ts(2)}
            {ts(3)}
            """)
            if self.stamps: a("s_waitcnt vmcnt(0)")
            self.stamp(12)
        else:
            if YFM:
                for l in yfl(2): a(l)
            for l in yfl(3): a(l)
            if self.stamps or self.opt.get("gamp") == 9:
                a("s_waitcnt vmcnt(0)")
                self.stamp(9)
        a("s_branch L_FIN")
        for n in range(3):
            a(f"L_SLOW{n}:")
            self.wait_flag(YF[n], vL4, 11)
            if n == KS: self.wait_flag(C_SEL, vL4, 11)
            a(f"s_branch L_BACK{n}")
        a("L_SLOW3:")
        self.wait_flag(C_KD, vL4, 11)
        a("s_branch L_BACK3")
        for k in range(DQ):
            a(f"L_ES{k}:")
            if k < KS:
                self.wait_flag(C_SEL, vL4, 11)
                a(f"ds_read_b64 v[12:13], v{vT8} offset:{SELF}\ns_waitcnt lgkmcnt(0)")
            for l in eaddr(k, 0) + eaddr(k, 1) + est(k, 0) + est(k, 1): a(l)
            a(f"s_branch L_EB{k}")
        xfail()
        a("L_XSLOW:")
        for i in range(8): a(f"buffer_load_dwordx2 {P(RAW+2*i)}, v{vXO}, {SQ(rX)}, s{sO+i//2} offen offset:{2048*(i%2)}")
        a("s_waitcnt vmcnt(0)\ns_branch L_XBACK")

    def fmain(self):
        a = self.a
        GUR = 112; GUF = 48
        WDR = 176; WDF = 112
        XS = 208
        ACC = 16
        vL4 = 1; vW4 = 2; vPW = 3; vPR = 4; vONE = 5; vRS = 6; vE = 7; vNM = 8; vXO = 9
        PRM = 224; TCH = 216
        sSG = 59; sK = 68
        X0 = 16; W0 = 32; S = 48
        a(f"""
        L_F0:
        s_setprio 2
        s_mov_b32 s{sO+1}, {WS_STAT}
        s_lshl_b32 s7, s2, 2
        s_add_u32 s7, s7, s{sW}
        s_lshl_b32 s13, s2, {7 if self.opt.get("ss") else 6}
        s_add_u32 s13, s13, {WS_STAT}
        s_lshl_b32 s8, s7, 12
        v_and_b32 v10, 31, v0
        v_lshlrev_b32 v10, 4, v10
        v_lshrrev_b32 v11, 5, v0
        v_lshl_add_u32 v11, v11, 11, v10
        v_add_u32 v11, s8, v11
        s_cmp_lt_u32 s6, 28
        s_cselect_b32 s{sROLE}, 1, 0
        s_lshr_b32 s8, s6, 2
        s_add_u32 s9, s5, 3
        s_and_b32 s9, s9, 7
        s_min_u32 s9, s9, 6
        s_cmp_lt_u32 s6, 28
        s_cselect_b32 s8, s8, s9
        s_mul_i32 s{sSG}, s5, 7
        s_add_u32 s{sSG}, s{sSG}, s8
        s_and_b32 s{sK}, s6, 3
        s_lshl_b32 s8, s{sK}, 2
        s_add_u32 s8, s8, s{sW}
        s_lshl_b32 s8, s8, 6
        s_xor_b32 s9, s{sROLE}, 1
        s_lshl_b32 s9, s9, 5
        s_add_u32 s8, s8, s9
        v_lshrrev_b32 v12, 4, v0
        v_lshl_add_u32 v12, v12, 3, s8
        v_lshlrev_b32 v{vXO}, 1, v12
        s_movk_i32 s10, 7168
        v_mul_u32_u24 v14, s10, v12
        v_and_b32 v12, 7, v0
        v_lshl_add_u32 v14, v12, 4, v14
        s_lshl_b32 s8, s{sSG}, 7
        v_add_u32 v14, s8, v14
        v_and_b32 v12, 8, v0
        v_cmp_ne_u32 vcc, 0, v12
        """)
        self.est(6)
        a("s_waitcnt lgkmcnt(0)")
        self.est(7)
        for i in range(4): a(f"global_load_dwordx4 {Q(X0+4*i)}, v11, {SP(sX)} offset:{512*i} {'nt' if self.opt.get('xnt') else ''}")
        self.wsb()
        a(f"s_load_dword s{sTAG}, {SP(sWS)}, 0")
        for i in range(4): a(f"global_load_dwordx4 {Q(W0+4*i)}, v10, {SP(sWR)} offset:{512*i}")
        a(f"""
        v_mov_b32 v12, s{sWGT}
        v_mov_b32 v13, s{sWGT+1}
        v_mov_b32 v10, s{sWU}
        v_mov_b32 v11, s{sWU+1}
        v_cndmask_b32 v12, v12, v10, vcc
        v_cndmask_b32 v13, v13, v11, vcc
        v_add_co_u32 v220, vcc, v12, v14
        s_movk_i32 s20, 7168
        s_mov_b32 s21, 0
        v_addc_co_u32 v221, vcc, 0, v13, vcc
        """)
        self.est(8)
        a("s_barrier")
        self.est(9)
        NE = self.opt.get("ne", 8)
        GA = "v[220:221]"; S1, S2 = "s[20:21]", "s[22:23]"
        gl = []
        for s in range(2):
            for j in range(8):
                gl.append([f"global_load_dwordx4 {Q(GUR+32*s+4*j)}, {GA}, off {'nt' if self.opt.get('gnt') else ''}"] + ([f"v_lshl_add_u64 {GA}, {S1 if j < 7 else S2}, 0, {GA}"] if (s, j) != (1, 7) else []))
        if self.opt.get("nog"): gl = [[x[0].replace("global_load_dwordx4", "global_load_dword").replace(Q(GUR+4*i), f"v{GUR+4*i}")] for i, x in enumerate(gl)]
        TL = 64; TT = 80; RAW = 64; sLOC = 60
        if True:
            self.srd(rX, sX, 0x400000); self.srd(rOUT, sOUT, 0x400000)
            a(f"""
            s_lshl_b32 s8, s6, 17
            s_lshl_b32 s9, s{sW}, 15
            s_add_u32 s8, s8, s9
            s_lshl_b32 s9, s5, 8
            s_add_u32 s8, s8, s9
            s_add_u32 s9, s8, 4096
            v_lshrrev_b32 v10, 4, v0
            v_and_b32 v11, 15, v0
            v_lshlrev_b32 v11, 4, v11
            v_lshl_add_u32 v14, v10, 13, v11
            """)
            for i in range(4): a(f"buffer_load_dwordx4 {Q(TL+4*i)}, v14, {SQ(rX)}, s{8+i//2} offen offset:{2048*(i%2)}")
            a(f"""
            s_mul_i32 s8, s{sW}, {XSTR}
            s_add_u32 s8, s8, {XR0}
            s_movk_i32 s9, 1088
            v_mad_u32_u24 v96, v10, s9, v11
            v_add_u32 v96, s8, v96
            v_and_b32 v10, 7, v0
            v_lshrrev_b32 v11, 3, v0
            s_movk_i32 s9, 544
            v_lshl_add_u32 v97, v11, 3, s8
            v_mad_u32_u24 v97, v10, s9, v97
            v_lshlrev_b32 v98, 4, v10
            v_lshl_add_u32 v98, v11, 14, v98
            s_lshl_b32 s18, s5, 19
            s_lshl_b32 s9, s6, 9
            s_add_u32 s18, s18, s9
            s_lshl_b32 s9, s{sW}, 7
            s_add_u32 s18, s18, s9
            s_add_u32 s18, s18, {WS_XT}
            s_getreg_b32 s19, hwreg(HW_REG_XCC_ID, 0, 4)
            s_mov_b32 s22, {25*7168}
            s_cmp_eq_u32 s{sROLE}, 1
            s_cselect_b32 s22, s22, {(-39*7168)&0xffffffff:#x}
            s_cselect_b32 s23, 0, -1
            s_lshl_b32 s62, s5, 2
            s_bfe_u32 s9, s6, 0x20001
            s_add_u32 s62, s62, s9
            s_lshl_b32 s62, s62, 12
            s_lshr_b32 s9, s6, 3
            s_lshl_b32 s9, s9, 1
            s_add_u32 s62, s62, s9
            s_and_b32 s9, s6, 1
            s_add_u32 s62, s62, s9
            s_lshl_b32 s62, s62, 2
            s_add_u32 s62, s62, {WS_FL2}
            s_lshl_b32 s19, s19, 1
            s_lshl_b32 s9, s5, 2
            s_lshl_b32 s40, 15, s9
            s_mov_b32 s41, s40
            """)
            self.srd(rWS, sWS, WS_SIZE); self.srd(rD, sWD, 3584*2048)
        SS = self.opt.get('ss', 0); T = 224; TP = 16; E = T+8; KP = 32; CR = T+24; XT = 64
        def kpl():
            for i, so in enumerate((sO+1, 5, 6, 7)): a(f"buffer_load_dwordx4 {Q(KP+4*i)}, v{T+2}, {SQ(rWS)}, s{so} offen sc1")
        a(f"""
        s_lshl_b32 s7, s{sW}, 2
        v_mov_b32 v{vW4}, s7
        v_and_b32 v11, 3, v0
        v_lshlrev_b32 v{vL4}, 2, v11
        v_mov_b32 v{vONE}, 1
        s_lshl_b32 s8, s{sW}, 6
        v_add_u32 v14, s8, v0
        v_lshlrev_b32 v{T+2}, 4, v14
        {"v_and_b32 v10, -4, v14" if SS else ""}
        {"v_lshl_add_u32 v%d, v10, 4, v%d" % (T+2, T+2) if SS else ""}
        v_lshlrev_b32 v105, 4, v11
        v_lshrrev_b32 v63, 2, v0
        v_lshl_add_u32 v63, v63, 14, v105
        s_lshl_b32 s4, s5, 14
        v_add_u32 v223, {"s4" if self.opt.get("sm", 2) == 1 else 0}, v{T+2}
        s_mov_b32 s5, {WS_STAT+(0x1000<<SS)}
        s_mov_b32 s6, {WS_STAT+(0x2000<<SS)}
        s_mov_b32 s7, {WS_STAT+(0x3000<<SS)}
        """)
        vWD = 222
        a(f"""
        s_cmp_lg_u32 s{sW}, 0
        s_cbranch_scc1 L_NOZ
        v_lshlrev_b32 v{T}, 4, v0
        v_mov_b32 v{T+4}, 0
        v_mov_b32 v{T+5}, 0
        v_mov_b32 v{T+6}, 0
        v_mov_b32 v{T+7}, 0
        ds_write_b128 v{T}, {Q(T+4)} offset:{UPD}
        ds_write_b128 v{T}, {Q(T+4)} offset:{UPD+1024}
        ds_write_b128 v{T}, {Q(T+4)} offset:{UPD+2048}
        L_NOZ:
        s_lshl_b32 s4, s{sW}, 6
        v_add_u32 v14, s4, v0
        v_lshlrev_b32 v15, 4, v14
        s_mov_b32 s64, 0x05040100
        s_mov_b32 s65, 0x07060302
        v_lshlrev_b32 v{T}, 4, v0
        v_and_b32 v10, 15, v0
        v_lshlrev_b32 v10, 2, v10
        v_and_b32 v11, 48, v0
        s_movk_i32 s4, 0xfff
        v_lshlrev_b32 v{CR}, 1, v14
        v_sub_u32 v{CR}, s4, v{CR}
        v_subrev_u32 v{CR+1}, 1, v{CR}
        v_subrev_u32 v{CR+2}, 512, v{CR}
        v_subrev_u32 v{CR+3}, 513, v{CR}
        v_subrev_u32 v{CR+4}, 1024, v{CR}
        v_subrev_u32 v{CR+5}, 1025, v{CR}
        v_subrev_u32 v{CR+6}, 1536, v{CR}
        v_subrev_u32 v{CR+7}, 1537, v{CR}
        v_lshlrev_b32 v{T+3}, 3, v14
        v_lshrrev_b32 v{T+1}, 4, v14
        v_lshlrev_b32 v{T+1}, 2, v{T+1}
        v_lshlrev_b32 v14, 2, v14
        s_mov_b32 s16, 0
        s_mov_b32 s17, 0xffff0000
        v_lshlrev_b32 v{vPW}, 3, v11
        s_lshl_b32 s8, s{sW}, 12
        s_add_u32 s8, s8, {PRE}
        v_add_u32 v{vPW}, s8, v{vPW}
        v_lshrrev_b32 v12, 5, v0
        v_lshlrev_b32 v{vPR}, 7, v12
        v_bfe_u32 v12, v0, 4, 1
        v_lshl_add_u32 v{vPR}, v12, 3, v{vPR}
        v_bfe_u32 v12, v0, 3, 1
        v_lshl_add_u32 v{vPR}, v12, 9, v{vPR}
        v_and_b32 v12, 7, v0
        v_lshl_add_u32 v{vPR}, v12, 4, v{vPR}
        s_lshl_b32 s8, s{sW}, 10
        s_add_u32 s8, s8, {PRE}
        v_add_u32 v{vPR}, s8, v{vPR}
        v_bfe_u32 v12, v0, 4, 1
        v_lshlrev_b32 v12, 16, v12
        v_lshrrev_b32 v13, 5, v0
        v_lshl_add_u32 v12, v13, 12, v12
        v_lshl_add_u32 v{vWD}, v10, 1, v12
        s_lshl_b32 s10, s{sSG}, 17
        s_lshl_b32 s11, s{sK}, 9
        s_add_u32 s10, s10, s11
        s_lshl_b32 s11, s{sW}, 7
        s_add_u32 s10, s10, s11
        """)
        a("s_mov_b32 s8, 0x3f803f80")
        self.est(10)
        if True:
            a(f"s_waitcnt vmcnt(8)")
            self.est(11)
            for i in range(16):
                c = lambda r: "0" if i == 0 else f"v{r}"
                a(f"v_dot2_f32_bf16 v{S}, v{X0+i}, s8, {c(S)}")
                a(f"v_dot2_f32_bf16 v{S+1}, v{X0+i}, v{X0+i}, {c(S+1)}")
            a("s_waitcnt lgkmcnt(0)")
            self.mktag()
            a(f"s_or_b32 s{sTX}, s19, s{sTAG}\nv_mov_b32 v{S+11}, s{sTX}\ns_waitcnt vmcnt(4)")
            self.stamp(1)
        for i in range(16):
            c = lambda r: "0" if i == 0 else f"v{r}"
            a(f"v_dot2_f32_bf16 v{S+2}, v{X0+i}, v{W0+i}, {c(S+2)}")
            a(f"v_dot2_f32_bf16 v{S+3}, v{W0+i}, s8, {c(S+3)}")
        a("s_nop 1")
        for sh in ("row_shr:1 row_mask:0xf","row_shr:2 row_mask:0xf","row_shr:4 row_mask:0xf","row_shr:8 row_mask:0xf","row_bcast:15 row_mask:0xa"):
            for r in range(S, S+4): a(f"v_add_f32_dpp v{r}, v{r}, v{r} {sh} bank_mask:0xf")
        a(f"""
        v_mul_f32 v{S}, 0x3a800000, v{S}
        v_mul_f32 v{S+1}, 0x3a800000, v{S+1}
        v_cvt_pk_bf16_f32 v{S+4}, v{S}, v{S}
        v_fma_f32 v{S+1}, -v{S}, v{S}, v{S+1}
        v_max_f32 v{S+1}, 0, v{S+1}
        v_and_b32 v{S+5}, 0xffff0000, v{S+4}
        """)
        self.bf16r(S+1, S+1)
        a(f"v_add_f32 v{S+1}, {f2u(1e-5):#x}, v{S+1}\nv_fma_f32 v{S+2}, -v{S+5}, v{S+3}, v{S+2}")
        self.bf16r(S+1, S+1)
        a(f"""
        v_sqrt_f32 v{S+1}, v{S+1}
        v_lshlrev_b32 v104, 2, v{vW4}
        v_mov_b32 v{S+13}, 0
        v_and_b32 v{S+14}, 62, v0
        v_mad_u32_u24 v{S+14}, v{S+14}, 3, v0
        v_lshlrev_b32 v{S+14}, 6, v{S+14}
        v_cvt_pk_bf16_f32 v{S+6}, v{S+1}, v{S+1}
        v_and_b32 v{S+1}, 0xffff0000, v{S+6}
        v_rcp_f32 v{S+1}, v{S+1}
        v_mul_f32 v{S+2}, v{S+2}, v{S+1}
        v_cvt_pk_bf16_f32 v{S+2}, v{S+2}, v{S+2}
        v_bfe_i32 v{S+3}, v{S+2}, 15, 1
        v_or_b32 v{S+3}, 0x80008000, v{S+3}
        v_xor_b32 v{S+7}, v{S+2}, v{S+3}
        s_mov_b32 s8, 0xffff
        v_mov_b32_dpp v{S+8}, v{S+4} row_bcast:31 row_mask:0x8 bank_mask:0xf
        v_mov_b32_dpp v{S+9}, v{S+6} row_bcast:31 row_mask:0x8 bank_mask:0xf
        v_mov_b32_dpp v{S+10}, v{S+7} row_bcast:31 row_mask:0x8 bank_mask:0xf
        v_bfi_b32 v{S+8}, s8, v{S+8}, v{S+4}
        v_bfi_b32 v{S+9}, s8, v{S+9}, v{S+6}
        v_bfi_b32 v{S+10}, s8, v{S+10}, v{S+7}
        s_brev_b64 exec, 1
        ds_write_b128 v104, {Q(S+8)} offset:{STG}
        """)
        self.stamp(2)
        SM = self.opt.get("sm", 2); NCB = self.opt.get("ncb", 4); NCP = [1, 8, 1 << NCB][SM]
        a(f"""
        ds_add_rtn_u32 v{S+12}, v{S+13}, v{vONE} offset:{CNTR}
        s_mov_b64 exec, -1
        s_waitcnt lgkmcnt(0)
        v_readlane_b32 s8, v{S+12}, 63
        s_cmp_lg_u32 s8, 3
        s_cbranch_scc1 L_NOPUB
        s_bfm_b64 exec, {4*NCP & 63}, 0
        {"s_mov_b64 exec, -1" if NCP == 16 else ""}
        ds_read_b128 {Q(S+4)}, v105 offset:{STG}
        s_waitcnt lgkmcnt(0)
        buffer_store_dwordx4 {Q(S+4)}, v63, {SQ(rWS)}, s13 offen sc1
        ds_write_b32 v{S+13}, v{vONE} offset:{CNT2}
        s_mov_b64 exec, -1
        s_waitcnt vmcnt(1)
        s_branch L_PUB2
        L_NOPUB:
        """)
        vq = []; vdone = [0]
        def vis(tag, text, ld=1): a(text); vq.append((tag, ld))
        def vw(n):
            if len(vq) - n > vdone[0]: a(f"s_waitcnt vmcnt({n})"); vdone[0] = len(vq) - n
        def vfor(tag): vw(len(vq) - 1 - max(i for i, t in enumerate(vq) if t[0] == tag))
        def vwin(W):
            idx = [i for i, t in enumerate(vq) if t[1]]
            if len(idx) >= W: vw(len(vq) - 1 - idx[-W])
        gi = [0]
        def G(W=None):
            if W: vwin(W)
            vis(f"g{gi[0]}", "\n".join(gl[gi[0]])); gi[0] += 1
        di = [0]; vWD = 222
        def D(n=1):
            for _ in range(n):
                if di[0] >= 16: return
                ks, j = di[0]//8, di[0]%8
                vis(f"d{di[0]}", f"s_add_u32 s11, s10, {(16*(j>>2) + 8*(j&1) + 4*ks + ((j>>1)&1))*2048}\nbuffer_load_dwordx2 {P(WDR+16*ks+2*j)}, v{vWD}, {SQ(rD)}, s11 offen"); di[0] += 1
        N0 = self.opt.get("n0", 0); WN = self.opt.get("wn", 4); NP = self.opt.get("np", 12); XF = self.opt.get("xf", N0+WN); GA_ = self.opt.get("ga", 4)
        a("s_waitcnt vmcnt(0)\nL_PUB2:")
        for i in range(N0): G()
        for i in range(4): a(f"ds_write_b128 v96, {Q(TL+4*i)} offset:{272*i}")
        for j in range(4): a(f"ds_read_b64 {P(TT+4*j)}, v97 offset:{64*j}\nds_read_b64 {P(TT+4*j+2)}, v97 offset:{64*j+272}")
        for j in range(4): vis("xt", f"s_waitcnt lgkmcnt({6-2*j})\nbuffer_store_dwordx4 {Q(TT+4*j)}, v98, {SQ(rWS)}, s18 offen {MOD[self.opt.get('xso',0)]}\ns_add_u32 s18, s18, 0x20000", 0)
        self.arrive(C_XS, vW4, S+11)
        if self.opt.get("wpub", 1): self.wait_flag(CNT2, S+13, S+12)
        self.stamp(4)
        def xflag():
            vfor("xt")
            a(f"""
            s_mov_b64 exec, 1
            ds_add_rtn_u32 v{S+12}, v{S+13}, v{vONE} offset:{CNT3}
            s_waitcnt lgkmcnt(0)
            v_readfirstlane_b32 s8, v{S+12}
            s_cmp_lg_u32 s8, 3
            s_mov_b64 exec, -1
            s_cbranch_scc1 L_NOXF
            """)
            for i in range(self.opt.get("nst", 3)): a(f"buffer_store_dword v{S+11}, v{S+14}, {SQ(rWS)}, s62 offen offset:{128*i}")
            a(f"""
            L_NOXF:
            """)
            self.stamp(5)
        while gi[0] < min(WN, NP):
            if gi[0] == XF: xflag()
            G()
        def perms(raw, out, nd, nj):
            L = []
            for d in range(nd):
                for jj in range(nj):
                    A = raw+nd*(2*jj)+d; B = raw+nd*(2*jj+1)+d
                    L.append(f"v_perm_b32 v{out+nj*(2*d)+jj}, v{B}, v{A}, s64")
                    L.append(f"v_perm_b32 v{out+nj*(2*d+1)+jj}, v{B}, v{A}, s65")
            return L
        if self.opt.get("ht"):
            a(f"s_lshl_b32 s4, s{sSG}, 14\ns_lshl_b32 s8, s{sW}, 12\ns_add_u32 s4, s4, s8\ns_lshl_b32 s8, s{sK}, 10\ns_add_u32 s4, s4, s8\ns_add_u32 s4, s4, {WS_H1}")
            if self.opt["ht"] == 1: vis("ht", f"buffer_load_dwordx4 v[216:219], v{T}, {SQ(rWS)}, s4 offen")
            else: vis("ht", f"s_cmp_lg_u32 s{sROLE}, 1\ns_cbranch_scc1 L_NHT\nv_mov_b32 v218, 0\nbuffer_store_dwordx4 v[216:219], v{T}, {SQ(rWS)}, s4 offen\nL_NHT:", 0); vq.pop()
        while gi[0] < NP:
            if gi[0] == XF: xflag()
            G(WN)
        if XF >= NP: xflag()
        def slot(): a(f"s_memrealtime s[66:67]\ns_waitcnt lgkmcnt(0)\ns_bfe_u32 s4, s66, {self.opt.get('tsb', 4) | NCB << 16:#x}\ns_lshl_b32 s4, s4, 14\nv_add_u32 v223, s4, v{T+2}")
        for i, so in enumerate((sO+1, 5, 6, 7)):
            if self.opt.get("pw", 1): vwin(WN)
            if SM == 2 and (i == 0 or self.opt.get("se", 0)): slot()
            vis("kp", f"buffer_load_dwordx4 {Q(KP+4*i)}, v223, {SQ(rWS)}, s{so} offen {'' if SM == 2 else 'sc1'}")
        p0 = [0]
        def perm0():
            if p0[0] == 0 and gi[0] >= 8:
                vfor("g7"); p0[0] = 1
                for l in perms(GUR, GUF, 4, 4): a(l)
        if self.opt.get("pe", 0): perm0()
        for i in range(GA_):
            if gi[0] < 16: G(WN + self.opt.get("wx", 0))
            else: vwin(WN); D(2)
        vfor("kp")
        KM = (30, 8, 14, 28)
        a(f"s_branch L_KPW\nL_KP:\ns_sleep {self.opt.get('ksl', 1)}")
        if SM == 2:
            a(f"s_cmp_ge_u32 s16, {self.opt.get('npl', 10)}\ns_cbranch_scc1 L_KQ")
            slot()
            for i, so in enumerate((sO+1, 5, 6, 7)):
                a(f"s_mov_b64 exec, {SP(KM[i])}\ns_cbranch_execz L_KT{i}\nbuffer_load_dwordx4 {Q(KP+4*i)}, v223, {SQ(rWS)}, s{so} offen\nL_KT{i}:")
            a("s_branch L_KS3\nL_KQ:")
        for i, so in enumerate((sO+1, 5, 6, 7)):
            a(f"s_mov_b64 exec, {SP(KM[i])}\ns_cbranch_execz L_KS{i}\nbuffer_load_dwordx4 {Q(KP+4*i)}, v223, {SQ(rWS)}, s{so} offen sc1\nL_KS{i}:")
        a(f"""
        s_mov_b64 exec, -1
        s_waitcnt vmcnt(0)
        L_KPW:
        s_add_u32 s16, s16, 1
        v_xor_b32 v{TP}, s{sTX}, v{KP+3}
        v_xor_b32 v{TP+1}, s{sTX}, v{KP+7}
        v_xor_b32 v{TP+2}, s{sTX}, v{KP+11}
        v_xor_b32 v{TP+3}, s{sTX}, v{KP+15}
        v_cmp_lt_u32 s[30:31], 31, v{TP}
        v_cmp_lt_u32 s[8:9], 31, v{TP+1}
        v_cmp_lt_u32 s[14:15], 31, v{TP+2}
        v_cmp_lt_u32 s[28:29], 31, v{TP+3}
        v_or3_b32 v{TP}, v{TP}, v{TP+1}, v{TP+2}
        s_or_b64 vcc, s[30:31], s[8:9]
        s_or_b64 s[66:67], s[14:15], s[28:29]
        s_or_b64 vcc, vcc, s[66:67]
        s_cbranch_vccz L_KPOK
        s_cmp_lt_u32 s16, 0x4000
        s_cbranch_scc1 L_KP
        L_KPOK:
        v_or_b32 v{TP}, v{TP}, v{TP+3}
        v_cmp_ne_u32 vcc, 0, v{TP}
        s_and_b64 vcc, vcc, s[40:41]
        s_cselect_b32 s8, 1, {1 if self.opt.get("forcex") else 2}
        v_mov_b32 v{TP}, s8
        """)
        self.stamp(3)
        def more(n):
            for _ in range(n):
                if gi[0] < 16: G()
                elif di[0] < self.opt.get("d1", 8): D(2)
        DF = self.opt.get("df", 1); vXI = TP+1
        def cap(n):
            k = len(a.lines); more(n); L = a.lines[k:]; del a.lines[k:]; return L
        if DF: a(f"ds_read_b32 v{vXI}, v{vL4} offset:{C_XI}")
        a(f"ds_write2st64_b64 v{T+3}, {P(KP)}, {P(KP+4)} offset0:{MSB//512} offset1:{MSB//512+4}\nds_write2st64_b64 v{T+3}, {P(KP+8)}, {P(KP+12)} offset0:{MSB//512+8} offset1:{MSB//512+12}")
        self.arrive(C_MS, vW4, TP)
        if not DF: more(self.opt.get("m0", 1))
        for k in range(4):
            a(f"v_lshl_or_b32 v{CR+2*k}, v{KP+4*k+2}, 16, v{CR+2*k}\nv_and_or_b32 v{CR+1+2*k}, v{KP+4*k+2}, s17, v{CR+1+2*k}")
        if DF:
            B0 = cap(self.opt.get("m0", 1)); B1 = cap(self.opt.get("m1", 2))
            a(f"s_waitcnt lgkmcnt(3)\nv_cmp_eq_u32 s[66:67], 0, v{vXI}\ns_cmp_lg_u32 s66, 0\ns_cbranch_scc1 L_NB0")
            a.lines += B0
            a("L_NB0:")
        B = T+2
        a(f"v_max_u32 v{B}, v{CR}, v{CR+1}\nv_min_u32 v{B+1}, v{CR}, v{CR+1}\nv_max_u32 v{B+2}, v{CR+4}, v{CR+5}\nv_min_u32 v{B+3}, v{CR+4}, v{CR+5}")
        for j in (2, 3):
            a(f"v_med3_u32 v{B+1}, v{B}, v{B+1}, v{CR+j}\nv_med3_u32 v{B+3}, v{B+2}, v{B+3}, v{CR+j+4}\nv_max_u32 v{B}, v{B}, v{CR+j}\nv_max_u32 v{B+2}, v{B+2}, v{CR+j+4}")
        a(f"""
        v_min_u32 v{B+4}, v{B}, v{B+2}
        v_max_u32 v{B}, v{B}, v{B+2}
        v_max3_u32 v{B+1}, v{B+1}, v{B+3}, v{B+4}
        ds_write_b32 v14, v{B} offset:{LMC}
        """)
        if DF: a(f"ds_read_b32 v{vXI}, v{vL4} offset:{C_XI}")
        mid = [f"v_add_u32 v15, {KEYS}, v15", f"ds_write2_b32 v15, v{KP+2}, v{KP+6} offset0:0 offset1:1", f"ds_write2_b32 v15, v{KP+10}, v{KP+14} offset0:2 offset1:3", "s_nop 0"]
        for i, sh in enumerate((1,2,4,8)):
            a(mid[i])
            a(f"v_max_u32_dpp v{B}, v{B}, v{B} row_shr:{sh} row_mask:0xf bank_mask:0xf\nv_max_u32_dpp v{B+1}, v{B+1}, v{B+1} row_shr:{sh} row_mask:0xf bank_mask:0xf")
        a(f"""
        s_mov_b32 exec_lo, 0x80008000
        s_mov_b32 exec_hi, 0x80008000
        ds_write2_b32 v{T+1}, v{B}, v{B+1} offset0:{GM//4} offset1:{GM//4+16}
        """)
        self.arrive(C_KEYS, vW4, TP)
        if not DF: more(self.opt.get("m1", 2))
        else:
            a(f"s_waitcnt lgkmcnt(4)\nv_cmp_eq_u32 vcc, 0, v{vXI}\ns_mov_b32 s67, vcc_lo\ns_cbranch_vccnz L_NB1\ns_cmp_eq_u32 s66, 0\ns_cbranch_scc1 L_NB2")
            a.lines += B0
            a("L_NB2:")
            a.lines += B1
            a("L_NB1:")
        self.wait_flag(C_KEYS, vL4, T+1)
        a(f"v_cmp_ne_u32 s[12:13], 2, v{T+1}")
        self.stamp(6)
        def rank16(own, four, r, c):
            a(f"v_cmp_gt_u32 vcc, v{four}, v{own}\nv_cmp_gt_u32 s[8:9], v{four+1}, v{own}\nv_cmp_gt_u32 s[14:15], v{four+2}, v{own}\nv_cmp_gt_u32 s[28:29], v{four+3}, v{own}")
            a(f"v_cndmask_b32 v{r}, 0, 1, vcc\nv_cndmask_b32 v{c}, 0, 1, s[8:9]\nv_addc_co_u32 v{r}, vcc, 0, v{r}, s[14:15]\nv_addc_co_u32 v{r}, vcc, v{c}, v{r}, s[28:29]")
            a(f"v_mov_b32 v{c}, v{r}\nv_permlane32_swap_b32 v{r}, v{c}\nv_add_u32 v{r}, v{r}, v{c}\nv_mov_b32 v{c}, v{r}\nv_permlane16_swap_b32 v{r}, v{c}\nv_add_u32 v{r}, v{r}, v{c}")
        a(f"""
        ds_read2_b32 {P(T+2)}, v10 offset0:{GM//4} offset1:{GM//4+16}
        ds_read_b128 {Q(T+4)}, v11 offset:{GM}
        ds_read_b128 {Q(E)}, v{T} offset:{LMC}
        s_waitcnt lgkmcnt(1)
        """)
        rank16(T+2, T+4, T+12, T+13)
        a(f"""
        v_cmp_eq_u32 vcc, 7, v{T+12}
        s_ff1_i32_b32 s5, vcc_lo
        v_readlane_b32 s4, v{T+2}, s5
        s_waitcnt lgkmcnt(0)
        v_cmp_le_u32 vcc, s4, v{T+3}
        {"s_branch" if self.opt.get("forceslow") else "s_cbranch_vccnz"} L_SLOWT
        L_CAND:
        v_cmp_le_u32 s[8:9], s4, v{E}
        v_cmp_le_u32 s[14:15], s4, v{E+1}
        v_cmp_le_u32 s[28:29], s4, v{E+2}
        v_cmp_le_u32 s[30:31], s4, v{E+3}
        s_bcnt1_i32_b64 s5, s[8:9]
        s_bcnt1_i32_b64 s6, s[14:15]
        s_bcnt1_i32_b64 s7, s[28:29]
        s_bcnt1_i32_b64 s16, s[30:31]
        s_add_u32 s6, s6, s5
        s_add_u32 s7, s7, s6
        s_add_u32 s16, s16, s7
        s_cmp_gt_u32 s16, 16
        s_cbranch_scc1 L_TRIM
        """)
        MK = (8, 14, 28, 30)
        for k, (mk, base) in enumerate(zip(MK, ("0", "s5", "s6", "s7"))):
            a(f"v_mbcnt_lo_u32_b32 v{T+12+k}, s{mk}, 0\nv_mbcnt_hi_u32_b32 v{T+12+k}, s{mk+1}, v{T+12+k}\nv_add_lshl_u32 v{T+12+k}, v{T+12+k}, {base}, 2")
            a(f"s_mov_b64 exec, {SP(mk)}\nds_write_b32 v{T+12+k}, v{E+k} offset:{LIST}\ns_mov_b64 exec, -1")
        if DF:
            a("s_cmp_eq_u32 s67, 0\ns_cbranch_scc1 L_NB3")
            a.lines += B0 + B1
            a("L_NB3:")
        while gi[0] < 16: G()
        a(f"""
        s_movk_i32 s4, 0x7ff
        ds_read_b32 v{TP}, v10 offset:{LIST}
        ds_read_b128 {Q(TP+4)}, v11 offset:{LIST}
        s_cmp_lg_u32 s{sROLE}, 1
        s_waitcnt lgkmcnt(1)
        v_bfi_b32 v14, v{TP}, 0, s4
        s_cbranch_scc1 L_NOXS
        v_lshl_add_u32 v15, v14, 11, v{vXO}
        """)
        vis("xs", f"buffer_load_dwordx4 {Q(XS)}, v15, {SQ(rX)}, 0 offen")
        vis("xs", f"buffer_load_dwordx4 {Q(XS+4)}, v15, {SQ(rX)}, 0 offen offset:64")
        a(f"""
        v_lshrrev_b32 v15, 1, v14
        v_lshlrev_b32 v15, 3, v15
        ds_read_b64 v[8:9], v15 offset:{MSB}
        """)
        self.stamp(7)
        PT = self.opt.get("pt", 0)
        def ptouch():
            a(f"""s_mul_i32 s8, s{sW}, 14
            v_add_lshl_u32 v223, v0, s8, 15
            s_lshl_b32 s8, s{sDG}, 7
            s_add_u32 s8, s8, {WS_PART}
            s_mov_b64 exec, 0x3fff""")
            vis("pt", f"buffer_load_dword v219, v223, {SQ(rWS)}, s8 offen {MOD[self.opt.get('ptm', 2)]}")
            a("s_mov_b64 exec, -1")
        if PT == 4: ptouch()
        D(self.opt.get("d2", 8) - di[0])
        if PT == 3: ptouch()
        a("L_NOXS:\ns_waitcnt lgkmcnt(0)")
        rank16(TP, TP+4, TP+8, TP+9)
        a(f"""
        v_cmp_gt_u32 s[30:31], 8, v{TP+8}
        v_lshlrev_b32 v15, 2, v{TP+8}
        v_and_b32 v10, 7, v0
        v_lshlrev_b32 v10, 2, v10
        v_bfe_u32 v{TP+4}, v14, 1, 8
        v_lshrrev_b32 v{TP+5}, 9, v14
        v_lshlrev_b32 v{TP+4}, 3, v{TP+4}
        v_lshl_add_u32 v{TP+4}, v{TP+5}, 1, v{TP+4}
        v_and_b32 v14, 1, v14
        v_add_u32 v{TP+4}, v{TP+4}, v14
        v_mov_b32 v{TP+6}, 0x80
        s_mov_b64 exec, s[30:31]
        ds_write_b32 v15, v{TP} offset:{IDX}
        s_cmp_lg_u32 s{sW}, 0
        s_cbranch_scc1 L_NOSEL
        ds_write_b8 v{TP+4}, v{TP+6} offset:{SELF}
        s_cmp_lg_u32 s2, 255
        s_cbranch_scc1 L_NOSEL
        s_mov_b64 exec, 1
        v_mov_b32 v{TP+6}, s{sTAG}
        buffer_store_dword v{TP+6}, v{vW4}, {SQ(rWS)}, 0 offen sc1
        L_NOSEL:
        s_mov_b64 exec, -1
        ds_read_b32 v{vE}, v10 offset:{IDX}
        """)
        self.arrive(C_SEL, vW4, vONE)
        a(f"""
        s_cmp_lg_u32 s{sROLE}, 1
        s_cbranch_scc1 L_GATHER
        v_lshl_add_u32 v{vPW}, v{TP+8}, 4, v{vPW}
        v_lshlrev_b32 v14, 4, v14
        """)
        HQ = 216; R = 224; BL = 240; BH = 242; t = 244; PQ = 48; DA = 16; HP = 144
        a(f"""
        v_lshlrev_b32 v13, 4, v0
        s_lshl_b32 s4, s{sSG}, 14
        s_add_u32 s4, s4, {WS_H1}
        s_lshl_b32 s6, s{sW}, 12
        s_add_u32 s6, s6, s4
        s_lshl_b32 s5, s{sK}, 10
        s_add_u32 s5, s5, s6
        v_mov_b32 v{HQ+2}, s{sTAG}
        """)
        NMF = 240
        a(f"""v_lshrrev_b32 v{vRS}, v14, v9
        v_lshrrev_b32 v{vNM}, v14, v8
        v_lshlrev_b32 v{vRS}, 16, v{vRS}
        v_xor_b32 v{vNM}, 0x8000, v{vNM}
        v_rcp_f32 v{vRS}, v{vRS}""")
        for i in range(4): a(f"v_perm_b32 v{NMF+i}, v{vNM}, v{vNM}, s64")
        if "fprio" in self.opt: a(f"s_setprio {self.opt['fprio']}")
        perm0()
        M0 = lambda s_: [f"{MFMA} {Q(ACC+4*c)}, {Q(GUF+32*s_+4*c)}, {Q(NMF)}, {'0' if s_==0 else Q(ACC+4*c)}" for c in range(8)]
        vfor("g15")
        pm = perms(GUR+32, GUF+32, 4, 4)
        for l in interleave(M0(0), pm, per=4): a(l)
        self.stamp(8)
        for l in M0(1): a(l)
        vfor("xs")
        self.stamp(9)
        for s_ in range(2):
            for c in range(8):
                a(f"{MFMA} {Q(ACC+4*c)}, {Q(GUF+32*s_+4*c)}, {Q(XS+4*s_)}, {Q(ACC+4*c)}")
                if di[0] < self.opt.get("d3", 16) and s_ == 0: D()
        self.xst(5, 12)
        a("s_mov_b64 exec, s[30:31]")
        for c in range(8): a(f"ds_write_b128 v{vPW}, {Q(ACC+4*c)} offset:{512*c}")
        a(f"ds_write_b32 v15, v{vRS} offset:{RSV}")
        self.arrive(C_PRE, vW4, vONE)
        a(f"ds_read_b32 v{vRS}, v10 offset:{RSV}")
        self.xst(5, 13)
        self.wait_flag(C_PRE, vL4, 11)
        self.xst(5, 14)
        for k in range(4):
            for mat in range(2): a(f"ds_read_b64 {P(R+4*k+2*mat)}, v{vPR} offset:{4096*k+256*mat}")
        a("s_waitcnt lgkmcnt(4)")
        for i in range(4): a(f"v_add_f32 v{R+i}, v{R+i}, v{R+4+i}")
        a("s_waitcnt lgkmcnt(0)")
        for i in range(4): a(f"v_add_f32 v{R+8+i}, v{R+8+i}, v{R+12+i}")
        for i in range(4): a(f"v_add_f32 v{R+i}, v{R+i}, v{R+8+i}")
        a(f"""
        s_cmp_eq_u32 s12, 0
        v_cvt_pk_bf16_f32 v{HQ}, v{R}, v{R+1}
        v_cvt_pk_bf16_f32 v{HQ+1}, v{R+2}, v{R+3}
        """)
        vis("hq", f"s_cbranch_scc0 L_HSC\nbuffer_store_dwordx4 {Q(HQ)}, v13, {SQ(rWS)}, s5 offen\nL_HSB:", 0)
        self.stamp(10)
        if PT == 2: ptouch()
        D(16)
        a(f"""
        v_bfe_u32 v10, v0, 3, 1
        v_lshrrev_b32 v11, 4, v0
        v_cmp_ne_u32 s[22:23], 0, v10
        v_lshlrev_b32 v15, 2, v10
        v_lshl_add_u32 v15, v11, 3, v15
        v_lshlrev_b32 v10, 8, v10
        v_lshl_add_u32 v10, v11, 9, v10
        v_lshlrev_b32 v9, 4, v11
        v_and_b32 v11, 7, v0
        v_lshl_add_u32 v10, v11, 4, v10
        s_movk_i32 s5, 144
        v_mad_u32_u24 v15, v11, s5, v15
        v_mad_u32_u24 v9, v11, s5, v9
        s_lshl_b32 s5, s{sW}, 5
        v_add_u32 v15, s5, v15
        s_lshl_b32 s4, s{sSG}, 15
        s_lshl_b32 s5, s{sK}, 13
        s_add_u32 s4, s4, s5
        s_lshl_b32 s5, s{sW}, 11
        s_add_u32 s4, s4, s5
        s_add_u32 s4, s4, {WS_PART}
        v_mul_f32 v12, {LOG2E|0x80000000:#x}, v{vRS}
        v_mul_f32 v14, v{vRS}, v{vRS}
        v_mov_b32 v{PQ+2}, s{sTAG}
        v_mov_b32 v{PQ+6}, s{sTAG}
        """)
        hpl = [f"buffer_load_dwordx3 v[{HP+4*k}:{HP+4*k+2}], v13, {SQ(rWS)}, s6 offen offset:{1024*k} sc1" for k in range(4)]
        a("s_mov_b32 s16, 0")
        vfor("d7")
        self.xst(1, 12)
        for l in perms(WDR, WDF, 2, 4): a(l)
        if self.opt.get("hw0", 0): vfor("hq")
        for l in hpl: vis("hp", l)
        if PT == 1: ptouch()
        vfor("d15")
        self.xst(1, 13)
        for l in perms(WDR+16, WDF+16, 2, 4): a(l)
        if self.opt.get("xst") == 1: a("s_waitcnt vmcnt(0)")
        self.xst(1, 14)
        a("s_branch L_HPW\nL_HP:")
        a(f"s_sleep {self.opt.get('hsl', 3)}")
        for k, mk in enumerate((18, 8, 14, 28)):
            a(f"s_cmp_eq_u64 {SP(mk)}, 0\ns_cbranch_scc1 L_HS{k}\n{hpl[k]}\nL_HS{k}:")
        a(f"""
        L_HPW:
        s_add_u32 s16, s16, 1
        s_waitcnt vmcnt(0)
        v_cmp_ne_u32 s[18:19], s{sTAG}, v{HP+2}
        v_cmp_ne_u32 s[8:9], s{sTAG}, v{HP+6}
        v_cmp_ne_u32 s[14:15], s{sTAG}, v{HP+10}
        v_cmp_ne_u32 s[28:29], s{sTAG}, v{HP+14}
        s_or_b64 vcc, s[18:19], s[8:9]
        s_or_b64 s[20:21], s[14:15], s[28:29]
        s_or_b64 vcc, vcc, s[20:21]
        s_cbranch_vccz L_HOK
        s_cmp_lt_u32 s16, 0x4000
        s_cbranch_scc1 L_HP
        L_HOK:
        """)
        self.stamp(11)
        for k in range(4): self.unpack(R+2*k, R+2*k+1, HP+4*k)
        for i in range(2): a(f"v_add_f32 v{R+i}, v{R+i}, v{R+2+i}\nv_add_f32 v{R+4+i}, v{R+4+i}, v{R+6+i}")
        for i in range(2): a(f"v_add_f32 v{R+i}, v{R+i}, v{R+4+i}")
        for i in range(2): a(f"v_mul_f32 v{t+i}, v12, v{R+i}")
        for i in range(2): a(f"v_exp_f32 v{t+i}, v{t+i}")
        for k in range(4): self.unpack(R+8+2*k, R+8+2*k+1, HP+4*k+1)
        for i in range(2): a(f"v_add_f32 v{t+i}, 1.0, v{t+i}")
        for i in range(2): a(f"v_rcp_f32 v{t+i}, v{t+i}")
        for i in range(2): a(f"v_add_f32 v{R+8+i}, v{R+8+i}, v{R+10+i}\nv_add_f32 v{R+12+i}, v{R+12+i}, v{R+14+i}")
        for i in range(2): a(f"v_mul_f32 v{R+i}, v{R+i}, v14\nv_add_f32 v{R+8+i}, v{R+8+i}, v{R+12+i}")
        for i in range(2): a(f"v_mul_f32 v{R+i}, v{R+i}, v{t+i}")
        for i in range(2): a(f"v_mul_f32 v{R+i}, v{R+i}, v{R+8+i}")
        a(f"""
        v_cvt_pk_bf16_f32 v{t}, v{R}, v{R+1}
        ds_write_b32 v15, v{t} offset:{HB}
        """)
        self.arrive(C_H, vW4, vONE)
        self.xst(6, 12)
        self.wait_flag(C_H, vL4, 11)
        self.xst(6, 13)
        a(f"ds_read_b128 {Q(R)}, v9 offset:{HB}\nds_read_b128 {Q(R+4)}, v9 offset:{HB+64}")
        for ks in range(2):
            a(f"s_waitcnt lgkmcnt({1-ks})")
            for c in range(4): a(f"{MFMA} {Q(DA+4*c)}, {Q(WDF+16*ks+4*c)}, {Q(R+4*ks)}, {'0' if ks == 0 else Q(DA+4*c)}")
        self.xst(6, 14)
        for r in range(2):
            for c in range(4): a(f"v_cndmask_b32 v{DA+4*c+r}, v{DA+4*c+r}, v{DA+4*c+r+2}, s[22:23]")
            a(f"v_cvt_pk_bf16_f32 v{PQ+4*r}, v{DA+r}, v{DA+4+r}\nv_cvt_pk_bf16_f32 v{PQ+4*r+1}, v{DA+8+r}, v{DA+12+r}")
            a(f"buffer_store_dwordx4 {Q(PQ+4*r)}, v10, {SQ(rWS)}, s4 offen offset:{128*r} sc1")
        self.stamp(12); self.xst(6, 15)
        GP = 144; U = 176; F = 80; TW = self.opt.get("tw", 2)
        a(f"""
        L_GATHER:
        s_waitcnt lgkmcnt(0)
        s_movk_i32 s4, 0x7ff
        v_bfi_b32 v14, v{vE}, 0, s4
        v_lshrrev_b32 v10, 3, v0
        s_lshl_b32 s4, s{sW}, 3
        v_add_lshl_u32 v10, v10, s4, 15
        v_and_b32 v11, 7, v0
        v_lshlrev_b32 v11, 4, v11
        v_add_u32 v10, v10, v11
        s_lshl_b32 s4, s{sDG}, 7
        s_add_u32 s4, s4, {WS_PART}
        s_mov_b32 s11, 0
        v_bfe_u32 v12, v0, 3, 2
        v_lshlrev_b32 v13, 11, v14
        v_lshl_add_u32 v13, v12, 1, v13
        s_lshl_b32 s8, s{sDG}, 3
        v_add_u32 v13, s8, v13
        buffer_load_ushort v{F}, v13, {SQ(rX)}, 0 offen
        """)
        self.wait_flag(C_SEL, vL4, 15)
        a(f"""
        s_cmp_eq_u32 s12, 0
        s_cselect_b32 s{sLOC}, 2, 1
        v_lshrrev_b32 v15, 16, v{vE}
        v_bfe_i32 v{F+2}, v15, 15, 1
        v_not_b32 v{F+2}, v{F+2}
        v_or_b32 v{F+2}, 0x8000, v{F+2}
        v_xor_b32 v15, v15, v{F+2}
        v_lshlrev_b32 v15, 16, v15
        v_mul_f32 v15, {LOG2E|0x80000000:#x}, v15
        v_exp_f32 v15, v15
        v_lshlrev_b32 v{F+3}, 13, v12
        v_add_f32 v15, 1.0, v15
        v_rcp_f32 v15, v15
        v_lshl_add_u32 v{F+3}, v14, 2, v{F+3}
        v_add_u32 v{F+3}, {YB}, v{F+3}
        v_bfrev_b32 v{F+4}, v12
        v_lshrrev_b32 v{F+4}, 22, v{F+4}
        v_add_u32 v{F+4}, v{F+4}, v11
        v_lshrrev_b32 v{F+4}, 2, v{F+4}
        s_lshl_b32 s8, s{sW}, 8
        v_lshl_add_u32 v{F+5}, v0, 2, s8
        """)
        if not self.opt.get("ct"): self.ftile()
        if self.opt.get("ct") == 3:
            a(f"s_cmp_lg_u32 s12, 0\ns_cbranch_scc1 L_AFT")
            self.tsetup(0, PRE, 4096, 96, 16)
            a("s_setprio 0")
            self.wait_flag(C_Y2, vL4, F+1, sleep=2)
            self.tpoll(96, 16, f"s{sTX}", self.opt.get("fsl", 3))
            self.tload(96, 16, 104)
            self.tstore(96, 16, 104)
            a("L_AFT:\ns_setprio 0")
            self.xst(7, 12)
            self.wait_flag(C_TL, vL4 if self.opt.get("tla", 1) else vW4, F+1, sleep=1)
        else:
            a(f"""
            L_AFT:
            s_cmp_eq_u32 s{sROLE}, 1
            s_cbranch_scc1 L_GGO
            s_setprio 0
            """)
            self.wait_flag(C_Y3, vL4, F+1, sleep=2)
        a("s_setprio 2\nL_GGO:")
        self.stamp(13); self.xst(3, 12)
        a(f"""
        s_mov_b64 s[8:9], -1
        s_cmp_lt_u32 s{sW}, 3
        s_cselect_b64 s[12:13], -1, 0
        s_add_u32 s5, s4, 0x100000
        v_mov_b32 v{GP+4}, 0
        v_mov_b32 v{GP+5}, 0
        v_mov_b32 v{GP+6}, s{sTAG}
        {"s_waitcnt vmcnt(0)" if self.opt.get("gw", 0) else ""}
        """)
        self.xst(3, 13)
        if self.opt.get("gd"): a(f"s_sleep {self.opt['gd']}")
        a("L_GP:")
        for k, mk in enumerate((8, 12)):
            a(f"s_cmp_eq_u64 {SP(mk)}, 0\ns_cbranch_scc1 L_GS{k}\nbuffer_load_dwordx3 v[{GP+4*k}:{GP+4*k+2}], v10, {SQ(rWS)}, s{4+k} offen sc1\nL_GS{k}:")
        a(f"""
        s_add_u32 s11, s11, 1
        s_waitcnt vmcnt(0)
        v_cmp_ne_u32 s[8:9], s{sTAG}, v{GP+2}
        v_cmp_ne_u32 s[12:13], s{sTAG}, v{GP+6}
        s_or_b64 vcc, s[8:9], s[12:13]
        s_cbranch_vccz L_GOT
        s_sleep {self.opt.get("gsl", 2)}
        s_cmp_lt_u32 s11, 0x4000
        s_cbranch_scc1 L_GP
        L_GOT:
        """)
        self.stamp(14); self.xst(2, 12)
        if self.opt.get("xst") == 3: a(f"s_mov_b32 s{sST+2*15+1}, s{sST+1}\ns_mul_i32 s8, s11, 100\ns_add_u32 s{sST+2*15}, s{sST}, s8")
        self.xst(3, 14)
        for k in range(2):
            self.unpack(U+4*k, U+4*k+1, GP+4*k); self.unpack(U+4*k+2, U+4*k+3, GP+4*k+1)
        for i in range(4): a(f"v_add_f32 v{U+i}, v{U+i}, v{U+4+i}")
        a(f"""v_permlane32_swap_b32 v{U}, v{U+1}
        v_permlane32_swap_b32 v{U+2}, v{U+3}
        v_add_f32 v{U}, v{U}, v{U+1}
        v_add_f32 v{U+2}, v{U+2}, v{U+3}
        v_permlane16_swap_b32 v{U}, v{U+2}
        v_add_f32 v{U}, v{U}, v{U+2}
        v_add_f32_dpp v{U}, v{U}, v{U} row_ror:8 row_mask:0xf bank_mask:0xf
        ds_write_b32 v{F+5}, v{U} offset:{LMC}""")
        self.arrive(C_UPD, vW4, vONE)
        self.xst(2, 13); self.xst(4, 12)
        if self.opt.get("dq", 3) < 4 and not self.opt.get("ct"): a(f"s_cmp_ge_u32 s{sW}, {self.opt.get('dq', 3)}\ns_cbranch_scc1 L_FIN")
        if not self.opt.get("ct"): a(f"s_lshl_b32 s8, s{sLOC}, 2\ns_add_u32 s8, s{sW}, s8\ns_cmp_ge_u32 s8, {8+TW}\ns_cbranch_scc1 L_TILE")
        a(f"s_cmp_lg_u32 s{sW}, 0\ns_cbranch_scc1 L_FIN")
        self.xst(4, 13)
        a(f"""
        v_lshlrev_b32 v{F}, 16, v{F}
        L_FW:
        ds_read2_b32 {P(F+6)}, v{vL4} offset0:{C_Y3//4} offset1:{C_UPD//4}
        ds_read_b32 v{F+9}, v{F+3}
        ds_read2st64_b32 {P(F+10)}, v{F+4} offset0:{LMC//256} offset1:{LMC//256+1}
        ds_read2st64_b32 {P(F+12)}, v{F+4} offset0:{LMC//256+2} offset1:{LMC//256+3}
        s_waitcnt lgkmcnt(3)
        v_min_u32 v{F+6}, v{F+6}, v{F+7}
        v_cmp_eq_u32 vcc, 0, v{F+6}
        s_cbranch_vccnz L_FW
        s_waitcnt lgkmcnt(1)
        v_add_f32 v{F}, v{F}, v{F+9}
        v_add_f32 v{F+10}, v{F+10}, v{F+11}
        s_waitcnt lgkmcnt(0)
        v_add_f32 v{F+12}, v{F+12}, v{F+13}
        v_add_f32 v{F+10}, v{F+10}, v{F+12}
        v_fma_f32 v{F}, v{F+10}, v15, v{F}
        v_cvt_pk_bf16_f32 v{F}, v{F}, v{F}
        s_mov_b32 exec_hi, 0
        buffer_store_short v{F}, v13, {SQ(rOUT)}, 0 offen
        s_mov_b64 exec, -1
        """)
        self.stamp(15)
        a("s_branch L_FIN")
        a(f"L_HSC:\nbuffer_store_dwordx4 {Q(HQ)}, v13, {SQ(rWS)}, s5 offen sc1\ns_branch L_HSB")
        a(f"""
        L_TRIM:
        v_subrev_u32 v{T+12}, s4, v{E}
        v_subrev_u32 v{T+13}, s4, v{E+1}
        v_subrev_u32 v{T+14}, s4, v{E+2}
        v_subrev_u32 v{T+15}, s4, v{E+3}
        v_min3_u32 v{T+12}, v{T+12}, v{T+13}, v{T+14}
        v_min_u32 v{T+12}, v{T+12}, v{T+15}
        """)
        for sh in ("row_shr:1 row_mask:0xf","row_shr:2 row_mask:0xf","row_shr:4 row_mask:0xf","row_shr:8 row_mask:0xf","row_bcast:15 row_mask:0xa","row_bcast:31 row_mask:0xc"):
            a(f"v_min_u32_dpp v{T+12}, v{T+12}, v{T+12} {sh} bank_mask:0xf")
        a(f"""
        v_readlane_b32 s5, v{T+12}, 63
        s_add_u32 s4, s4, s5
        s_add_u32 s4, s4, 1
        s_branch L_CAND
        L_SLOWT:
        v_max3_u32 v{T+4}, v{E}, v{E+1}, v{E+2}
        v_max_u32 v{T+4}, v{T+4}, v{E+3}
        s_mov_b32 s4, 0
        s_brev_b32 s5, 1
        L_BS:
        s_or_b32 s6, s4, s5
        v_cmp_le_u32 vcc, s6, v{T+4}
        s_lshr_b32 s5, s5, 1
        s_bcnt1_i32_b64 s7, vcc
        s_cmp_ge_u32 s7, 8
        s_cselect_b32 s4, s6, s4
        s_cmp_lg_u32 s7, 8
        s_cbranch_scc1 L_BS
        v_mbcnt_lo_u32_b32 v{T+5}, vcc_lo, 0
        v_mbcnt_hi_u32_b32 v{T+5}, vcc_hi, v{T+5}
        v_lshlrev_b32 v{T+5}, 2, v{T+5}
        s_mov_b64 exec, vcc
        ds_write_b32 v{T+5}, v0 offset:{LST2}
        s_mov_b64 exec, -1
        v_lshrrev_b32 v{T+6}, 3, v0
        v_lshlrev_b32 v{T+6}, 2, v{T+6}
        ds_read_b32 v{T+5}, v{T+6} offset:{LST2}
        s_waitcnt lgkmcnt(0)
        v_and_b32 v{T+6}, 7, v0
        v_lshl_add_u32 v{T+5}, v{T+5}, 3, v{T+6}
        v_lshlrev_b32 v{T+6}, 3, v{T+5}
        ds_read_b64 {P(T+2)}, v{T+6} offset:{KEYS}
        v_and_b32 v{T+6}, 1, v{T+5}
        v_and_b32 v{T+5}, -2, v{T+5}
        v_lshl_add_u32 v{T+5}, v{T+6}, 10, v{T+5}
        v_sub_u32 v{E}, 0xfff, v{T+5}
        v_sub_u32 v{E+1}, 0xffe, v{T+5}
        v_sub_u32 v{E+2}, 0xdff, v{T+5}
        v_sub_u32 v{E+3}, 0xdfe, v{T+5}
        s_mov_b32 s5, 0xffff0000
        s_waitcnt lgkmcnt(0)
        v_lshl_or_b32 v{E}, v{T+2}, 16, v{E}
        v_and_or_b32 v{E+1}, v{T+2}, s5, v{E+1}
        v_lshl_or_b32 v{E+2}, v{T+3}, 16, v{E+2}
        v_and_or_b32 v{E+3}, v{T+3}, s5, v{E+3}
        s_branch L_CAND
        """)

    def ftile(self):
        a = self.a; vL4 = 1; sLOC = 60; TW = self.opt.get("tw", 2)
        a(f"""
        s_cmp_lg_u32 s{sLOC}, 2
        s_cbranch_scc1 L_AFT
        s_cmp_ge_u32 s{sW}, {TW}
        s_cbranch_scc1 L_AFT
        """)
        TD = 16; TO = 32; A0 = 92
        a(f"""
        L_TILE:
        s_lshl_b32 s8, s{sW}, 4
        s_cmp_eq_u32 s{sW}, 0
        s_cselect_b32 s8, {C_Y0}, s8
        v_add_u32 v{A0}, s8, v{vL4}
        s_and_b32 s14, s2, 7
        s_lshr_b32 s15, s2, 3
        s_lshl_b32 s16, s14, 12
        s_lshl_b32 s8, s{sW}, 9
        s_add_u32 s16, s16, s8
        s_lshr_b32 s9, s15, 3
        s_lshl_b32 s9, s9, 7
        s_add_u32 s16, s16, s9
        s_add_u32 s16, s16, {WS_FL3}
        s_lshl_b32 s9, s15, 4
        s_add_u32 s8, s8, s9
        s_lshl_b32 s17, s14, 19
        s_lshl_b32 s9, s8, 3
        s_add_u32 s17, s17, s9
        s_add_u32 s17, s17, {WS_XT}
        s_lshl_b32 s18, s8, 11
        s_lshl_b32 s9, s14, 8
        s_add_u32 s18, s18, s9
        s_add_u32 s19, s18, 4096
        s_mul_i32 s9, s{sW}, 4352
        s_add_u32 s9, s9, {PRE}
        s_cmp_eq_u32 s{sW}, 3
        s_cselect_b32 s9, {MSB}, s9
        v_lshlrev_b32 v{A0+1}, 2, v0
        v_and_b32 v{A0+6}, 7, v0
        v_lshrrev_b32 v{A0+7}, 3, v0
        v_lshlrev_b32 v{A0+2}, 4, v{A0+6}
        v_lshl_add_u32 v{A0+2}, v{A0+7}, 14, v{A0+2}
        s_movk_i32 s8, 544
        v_lshl_add_u32 v{A0+3}, v{A0+7}, 3, s9
        v_mad_u32_u24 v{A0+3}, v{A0+6}, s8, v{A0+3}
        v_lshrrev_b32 v{A0+6}, 4, v0
        v_and_b32 v{A0+7}, 15, v0
        v_lshlrev_b32 v{A0+7}, 4, v{A0+7}
        s_movk_i32 s8, 1088
        v_mad_u32_u24 v{A0+4}, v{A0+6}, s8, v{A0+7}
        v_add_u32 v{A0+4}, s9, v{A0+4}
        v_lshl_add_u32 v{A0+5}, v{A0+6}, 13, v{A0+7}
        s_lshl_b32 s8, s15, 6
        s_lshl_b32 s9, s{sW}, 1
        s_add_u32 s8, s8, s9
        v_lshl_add_u32 v{A0+6}, v{A0+6}, 4, s8
        ds_read_u16 v{A0+8}, v{A0+6} offset:{SELF}
        ds_read_u16 v{A0+9}, v{A0+6} offset:{SELF+8}
        s_brev_b32 s8, 1
        s_mov_b32 s20, 0
        s_setprio 0
        """)
        self.wait_flag(0, A0, A0+7, sleep=2)
        a(f"""
        s_setprio 2
        v_lshlrev_b32 v{A0+10}, 24, v{A0+8}
        v_lshlrev_b32 v{A0+11}, 16, v{A0+8}
        v_lshlrev_b32 v{A0+12}, 24, v{A0+9}
        v_lshlrev_b32 v{A0+13}, 16, v{A0+9}
        """)
        for i in range(4): a(f"v_and_or_b32 v{A0+10+i}, v{A0+10+i}, s8, v{A0+5}")
        a(f"""
        s_mov_b32 exec_hi, 0
        L_TP:
        s_sleep {self.opt.get("tsl", 1)}
        buffer_load_dword v{A0+7}, v{A0+1}, {SQ(rWS)}, s16 offen sc1
        s_add_u32 s20, s20, 1
        s_waitcnt vmcnt(0)
        v_cmp_ne_u32 vcc, s{sTX}, v{A0+7}
        s_cbranch_vccz L_TOK
        s_cmp_lt_u32 s20, 0x4000
        s_cbranch_scc1 L_TP
        L_TOK:
        s_mov_b32 exec_hi, -1
        """)
        for j in range(4): a(f"buffer_load_dwordx4 {Q(TD+4*j)}, v{A0+2}, {SQ(rWS)}, s17 offen sc1\ns_add_u32 s17, s17, 0x20000")
        for j in range(4): a(f"s_waitcnt vmcnt({3-j})\nds_write_b64 v{A0+3}, {P(TD+4*j)} offset:{64*j}\nds_write_b64 v{A0+3}, {P(TD+4*j+2)} offset:{64*j+272}")
        for i in range(4): a(f"ds_read_b128 {Q(TO+4*i)}, v{A0+4} offset:{272*i}")
        for i in range(4): a(f"s_waitcnt lgkmcnt({3-i})\nbuffer_store_dwordx4 {Q(TO+4*i)}, v{A0+10+i}, {SQ(rOUT)}, s{18+i//2} offen offset:{2048*(i%2)} {'sc1' if self.opt.get('osc', 1) else ''}")
        if "wbw" in self.opt:
            a(f"s_lshl_b32 s8, s15, 2\ns_add_u32 s8, s8, s{sW}\ns_cmp_lg_u32 s8, {31*4+self.opt['wbw']}\ns_cbranch_scc1 L_NWB\nbuffer_wbl2 sc1\nL_NWB:")
        if self.stamps or self.opt.get("gamp") == 15:
            a(f"s_cmp_lt_u32 s{sW}, {TW}\ns_cbranch_scc1 L_AFT\ns_waitcnt vmcnt(0)")
            self.stamp(15)
        a(f"""
        s_cmp_ge_u32 s{sW}, {TW}
        s_cbranch_scc1 L_FIN
        """)
    def fin(self):
        a = self.a
        a("L_FIN:")
        if self.opt.get("wb"): a("s_waitcnt vmcnt(0)\nbuffer_wbl2 sc1\ns_waitcnt vmcnt(0)")
        if "gamp" in self.opt:
            k = self.opt["gamp"]; half = self.opt.get("gC", 0); mode = self.opt.get("gmode", 0)
            if "gw" in self.opt: a(f"s_cmp_eq_u32 s{sW}, {self.opt['gw']}\ns_cselect_b32 s{sST+2*k}, s{sST+2*k}, 0")
            if "grole" in self.opt: a(f"s_cmp_{'lt' if self.opt['grole'] else 'ge'}_u32 s2, 224\ns_cselect_b32 s{sST+2*k}, s{sST+2*k}, 0")
            a(f"""
            s_lshr_b32 s4, s{sW}, 2
            s_lshl_b32 s4, s4, 10
            s_lshl_b32 s5, s2, 2
            s_add_u32 s4, s4, s5
            s_and_b32 s5, s{sW}, 3
            s_add_u32 s4, s4, s5
            s_lshl_b32 s4, s4, 3
            s_add_u32 s4, s4, {WS_STAMP}
            v_mov_b32 v1, 0
            v_mov_b32 v4, s{sST}
            v_mov_b32 v5, s{sST+2*k}
            s_mov_b64 exec, 1
            buffer_store_dwordx2 v[4:5], v1, {SQ(rWS)}, s4 offen sc1
            s_mov_b64 exec, -1
            s_cmp_lg_u32 s2, 0
            s_cbranch_scc1 L_END
            s_cmp_lg_u32 s{sW}, 0
            s_cbranch_scc1 L_END
            L_GA1:
            s_memrealtime s[6:7]
            s_waitcnt lgkmcnt(0)
            s_sub_u32 s5, s6, s{sST}
            s_cmp_lt_u32 s5, 4000
            s_cbranch_scc1 L_GA1
            v_lshlrev_b32 v1, 3, v0
            s_mov_b32 s4, {WS_STAMP + half*8192}
            s_sub_u32 s8, s{sST}, 1000
            """)
            for i in range(16): a(f"buffer_load_dwordx2 {P(16+2*i)}, v1, {SQ(rWS)}, s4 offen sc1\ns_add_u32 s4, s4, 512")
            a("s_waitcnt vmcnt(0)\nv_mov_b32 v2, -1\nv_mov_b32 v3, 0\nv_mov_b32 v6, 0")
            for i in range(16):
                a(f"v_subrev_u32 v{16+2*i}, s8, v{16+2*i}\nv_min_u32 v2, v2, v{16+2*i}\nv_cmp_ne_u32 vcc, 0, v{17+2*i}\nv_subrev_u32 v{17+2*i}, s8, v{17+2*i}\nv_cndmask_b32 v{17+2*i}, 0, v{17+2*i}, vcc\nv_addc_co_u32 v6, vcc, 0, v6, vcc")
                a(f"v_max_u32 v3, v3, v{17+2*i}" if mode == 0 else f"v_add_u32 v3, v3, v{17+2*i}")
            op = "v_max_u32_dpp" if mode == 0 else "v_add_u32_dpp"
            for sh in ("row_shr:1 row_mask:0xf","row_shr:2 row_mask:0xf","row_shr:4 row_mask:0xf","row_shr:8 row_mask:0xf","row_bcast:15 row_mask:0xa","row_bcast:31 row_mask:0xc"):
                a(f"v_min_u32_dpp v2, v2, v2 {sh} bank_mask:0xf\n{op} v3, v3, v3 {sh} bank_mask:0xf\nv_add_u32_dpp v6, v6, v6 {sh} bank_mask:0xf")
            if mode == 1:
                a("v_cvt_f32_u32 v3, v3\nv_cvt_f32_u32 v6, v6\nv_rcp_f32 v6, v6\nv_mul_f32 v3, v3, v6\nv_cvt_u32_f32 v3, v3")
            a(f"""
            v_readlane_b32 s4, v3, 63
            v_readlane_b32 s5, v2, 63
            s_sub_u32 s4, s4, s5
            s_min_u32 s4, s4, 4000
            s_mul_i32 s4, s4, 10
            s_add_u32 s4, s4, 5000
            L_GA2:
            s_memrealtime s[6:7]
            s_waitcnt lgkmcnt(0)
            s_sub_u32 s5, s6, s{sST}
            s_cmp_lt_u32 s5, s4
            s_cbranch_scc1 L_GA2
            """)
        if "amp" in self.opt:
            k = self.opt["amp"]
            a(f"""
            s_cmp_lg_u32 s2, {self.opt.get('ampb', 0)}
            s_cbranch_scc1 L_END
            s_cmp_lg_u32 s{sW}, {self.opt.get('ampw', 0)}
            s_cbranch_scc1 L_END
            s_sub_u32 s4, s{sST+2*k}, s{sST}
            s_min_u32 s4, s4, 5000
            s_mul_i32 s4, s4, 10
            {"s_mov_b32 s4, %d" % self.opt["fix"] if "fix" in self.opt else ""}
            L_AMP:
            s_memrealtime s[6:7]
            s_waitcnt lgkmcnt(0)
            s_sub_u32 s5, s6, s{sST}
            s_cmp_lt_u32 s5, s4
            s_cbranch_scc1 L_AMP
            """)
        if self.stamps and (self.opt.get("kst") == 2 or self.opt.get("cst") == 2):
            a(f"s_cmp_lt_u32 s{sW}, 4\ns_cbranch_scc1 L_NKC")
            for i in (10, 11, 12, 13, 15, 14):
                a(f"s_sub_u32 s{sST+2*i}, s{sST+2*i}, s{sST+28}\ns_add_u32 s{sST+2*i}, s{sST+2*i}, s{sST}\ns_addc_u32 s{sST+2*i+1}, s{sST+1}, 0")
            a("L_NKC:")
        if self.stamps:
            a(f"s_lshl_b32 s4, s2, 3\ns_add_u32 s4, s4, s{sW}\ns_lshl_b32 s4, s4, 7\ns_add_u32 s4, s4, {WS_STAMP}\nv_mov_b32 v1, s4\ns_mov_b64 exec, 1")
            for i in range(8):
                for k in range(4): a(f"v_mov_b32 v{4+k}, s{sST+4*i+k}")
                a(f"buffer_store_dwordx4 v[4:7], v1, {SQ(rWS)}, 0 offen offset:{16*i}")
        a("L_END:\ns_endpgm")

    def build(self):
        if self.stamps:
            for i in range(2, 32, 2): self.a(f"s_mov_b64 {SP(sST+i)}, 0")
        self.prologue(); self.kgen(); self.cmain(); self.fmain(); self.fin()
        body = self.a.finalize()
        if not self.opt.get("noalign"): body = align_pass(body, KN)
        hdr = open("parallel_sum__ssm_conv_s4d__moe_arch_mod__prompt.s.ref").read().split("; Override launch")[0]
        out = hdr + f"; @launch grid=(256,1,1) block=(512,1,1) lds={LDS_END}\n"
        out += f'.amdgcn_target "amdgcn-amd-amdhsa--gfx950"\n.text\n.globl {KN}\n.p2align 8\n.type {KN},@function\n{KN}:\n'
        out += body
        out += f'''.section .rodata,"a"
.p2align 6
.amdhsa_kernel {KN}
  .amdhsa_next_free_vgpr 256
  .amdhsa_next_free_sgpr 102
  .amdhsa_accum_offset 256
  .amdhsa_group_segment_fixed_size 0
  .amdhsa_kernarg_size 120
  .amdhsa_user_sgpr_count 2
  .amdhsa_user_sgpr_kernarg_segment_ptr 1
  .amdhsa_system_sgpr_workgroup_id_x 1
  .amdhsa_float_denorm_mode_32 3
.end_amdhsa_kernel
'''
        return out

if __name__ == "__main__":
    out = sys.argv[1]
    stamps = "--stamps" in sys.argv
    opt = {}
    for x in sys.argv[2:]:
        if "=" in x:
            k, v = x.split("="); opt[k] = int(v, 0)
    open(out, "w").write(G(stamps, opt).build())
```

```python
import sys, struct
from asmlib import Asm, align_pass

KN = "parallel_sum__ssm_conv_s4d__moe_arch_mod__prompt_kernel"
def f2u(x): return struct.unpack("<I", struct.pack("<f", x))[0]
LOG2E = f2u(1.4426950408889634); INV2PI = f2u(0.15915494309189535)

LIST = 192; IDX = 256; RSV = 288; LST2 = 320; GM = 384; CNTR = 512; CNT2 = 516; CNT3 = 520; CNT4 = 524; C_MS = 528; C_XI = 544; C_TL = 560; STG = 576; HB = 4096; UPD = 1024; SELF = 1152; KEYS = 4096; LMC = 8192
TROW = 544
MSB = 9216
VT0 = MSB + 8192; VSTR = 16*TROW
K0 = VT0 + 4*VSTR
KSTR = 2368; K3O = 4*KSTR; K2O = K3O + 1280; KREG = 32*TROW
XR0 = K0 + 4*KREG; XSTR = 4608
YB = VT0; PRE = XR0 + 4*XSTR
LDS_END = PRE + 16384
UOF = 65535 - KREG - 63 & ~63
assert K0 - UOF + 3*KREG < 65536
C_XR, C_Y1, C_Y2, C_Y3, C_KEYS, C_PRE, C_UPD, C_SEL, C_XS, C_Y0, C_KD, C_H = [16*i for i in range(12)]
WS_ALIVE = 0x800
WS_STAT = 0x780000
WS_H1 = 0x10000
WS_PART = 0x100000
WS_XT = 0x300000
WS_FL3 = 0xF0000
WS_FL2 = 0x700000
WS_STAMP = 0x800000
WS_SIZE = 0x1000000

sX, sLAR, sAI, sCR, sCI, sLDT, sDSK = 16, 18, 20, 22, 24, 26, 28
sWR, sWGT, sWU, sWD = 32, 34, 36, 38
sOUT, sWS = 40, 42
rWS, rX, rOUT = 44, 48, 52
sTAG = 56; sTX = 63; sW = 3; sDG = 57; sJ = 59
sO = 60
sSH = 12
sROLE = 69
sST = 70
rG, rU, rD = 16, 20, 24

def P(r): return f"v[{r}:{r+1}]"
def Q(r): return f"v[{r}:{r+3}]"
def SP(r): return f"s[{r}:{r+1}]"
def SQ(r): return f"s[{r}:{r+3}]"
MOD = ["", "sc0", "sc1", "sc0 sc1", "nt", "sc0 nt", "sc1 nt", "sc0 sc1 nt"]
MFMA = "v_mfma_f32_16x16x32_bf16"

def interleave(main, fill, per=1, start=0):
    out = []; fill = list(fill)
    for k, m in enumerate(main):
        out.append(m)
        if k >= start:
            for _ in range(per):
                if fill: out.append(fill.pop(0))
    return out + fill

class RM(int):
    def __new__(c, L): o = int.__new__(c, L[0]); o.L = L; return o
    def __add__(o, i): return o.L[i]
class G:
    def __init__(self, stamps=False, opt=None):
        self.a = Asm(); self.stamps = stamps; self.opt = dict(dq=4, xf=0, wn=4, np=5, ga=0, wx=1, m0=4, m1=4, sm=0, xe=6, xpr=1, ct=3, gw=0, tla=1, pw=0)
        if (opt or {}).get('v13', 1): self.opt.update(kb=1, k3a=26, k3b=33, x0=0, x1=8, x2=16, x3=24, kd0=4, kd1=5, kd2=5, kd3=5, lat=6, fd=4, kdd=5, n3e=1, b0=2, b1=130, bm=8, tq=165, x4=37, kd4=9, x5=48, kd5=6, ke5=1, tg0=150, dmin=16, tp=130, sg0=130, flg=197, fag=182, pz=3, pzm=0, ag=0, cprio=1, hsl=1, np=4, ga=1, lg=1, m0=3, m1=3, na=20, fsl=1)
        self.opt.update(opt or {})
        self.tpos = [v for k, v in self.opt.items() if k in ("tg","tu","td","tga","tgb","tua","tub","tda","tdb")]
        self.NX0 = self.opt.get("nx0", 2); self.NX1 = self.opt.get("nx1", 1); self.NX2 = self.opt.get("nx2", 1)
        self.NB0 = self.opt.get('nb0', 2)
        self.GARB = 229 if self.opt.get('kb') else 255
        self.TVM = RM([35, 236, 237, 238, 239, 172, 173, 174]); self.SB = 36 if self.opt.get('kb') else 16
        self.NXA = self.NX0 + self.NX1 + self.NX2
    def hook(self, p):
        for name, reg, ad, base in (("tg", 18, 17, sWGT), ("tu", 19, 17, sWU), ("td", 16, 15, sWD)):
            for h, ex in (("", None), ("a", "hi"), ("b", "lo")):
                if self.opt.get(name+h, -9) == p:
                    if ex: self.a(f"s_mov_b32 exec_{ex}, 0")
                    self.a(f"global_load_dword v{reg}, v{ad}, {SP(base)}")
                    if ex: self.a(f"s_mov_b32 exec_{ex}, -1")
    def est(self, i):
        if self.opt.get("est"): self.a(f"s_memrealtime {SP(sST+2*i)}")
    def xst(self, g, i):
        if self.stamps and self.opt.get("xst") == g: self.a(f"s_memrealtime {SP(sST+2*i)}\ns_waitcnt lgkmcnt(0)")
    def stamp(self, i):
        if self.opt.get("xst") and i >= 12: return
        if self.opt.get("est") and i >= 6 and i < 14: return
        if self.stamps or self.opt.get("amp") == i or self.opt.get("gamp") == i:
            self.a(f"s_memrealtime {SP(sST+2*i)}\ns_waitcnt lgkmcnt(0)")
    def kst(self, i):
        if self.opt.get("kst"): self.a(f"{'s_memtime' if self.opt['kst'] == 2 else 's_memrealtime'} {SP(sST+2*i)}")
    def cst(self, i):
        if self.opt.get("cst"): self.a(f"{'s_memtime' if self.opt['cst'] == 2 else 's_memrealtime'} {SP(sST+2*i)}")
    def unp(self, lo, hi, src):
        return [f"v_lshlrev_b32 v{lo}, 16, v{src}", f"v_and_b32 v{hi}, 0xffff0000, v{src}"]
    def unpack(self, lo, hi, src):
        for l in self.unp(lo, hi, src): self.a(l)
    def bf16r(self, dst, src):
        self.a(f"v_cvt_pk_bf16_f32 v{dst}, v{src}, v{src}\nv_and_b32 v{dst}, 0xffff0000, v{dst}")
    def cmul2(self, d, x, y, t):
        a = self.a
        for q in (0,2): a(f"v_pk_mul_f32 {P(t+q)}, {P(x+q)}, {P(y+q)} op_sel_hi:[1,0]")
        for q in (0,2): a(f"v_pk_fma_f32 {P(d+q)}, {P(x+q)}, {P(y+q)}, {P(t+q)} op_sel:[1,1,0] op_sel_hi:[0,1,1] neg_lo:[1,0,0]")
    def arr(self, off, vw4, vone):
        return ["s_mov_b64 exec, 1", f"ds_write_b32 v{vw4}, v{vone} offset:{off}", "s_mov_b64 exec, -1"]
    def arrive(self, off, vw4, vone):
        for l in self.arr(off, vw4, vone): self.a(l)
    def wait_flag(self, off, vl4, vt, sleep=0):
        L = self.a.label("LW")
        sl = f"s_sleep {sleep}\n" if sleep else ""
        self.a(f"{L}:\n{sl}ds_read_b32 v{vt}, v{vl4} offset:{off}\ns_waitcnt lgkmcnt(0)\nv_cmp_eq_u32 vcc, 0, v{vt}\ns_cbranch_vccnz {L}")
    def srd(self, r, p, size):
        self.a(f"s_mov_b32 s{r}, s{p}\ns_and_b32 s{r+1}, s{p+1}, 0xffff\ns_mov_b32 s{r+2}, {size:#x}\ns_mov_b32 s{r+3}, 0x20000")
    def wsb(self):
        if self.opt.get("wsb"): self.a(f"s_add_u32 s{sWS}, s{sWS}, {self.opt['wsb']:#x}\ns_addc_u32 s{sWS+1}, s{sWS+1}, 0")
    def mktag(self):
        self.a(f"s_mul_i32 s{sTAG}, s{sTAG}, 0x9E3779B1\ns_add_u32 s{sTAG}, s{sTAG}, 0x7F4A7C15\ns_or_b32 s{sTAG}, s{sTAG}, 1\ns_andn2_b32 s{sTAG}, s{sTAG}, 0x1e")

    def prologue(self):
        a = self.a
        if "gamp" in self.opt: a(f"s_mov_b32 s{sST+2*self.opt['gamp']}, 0")
        if self.stamps or "amp" in self.opt or "gamp" in self.opt: a(f"s_memrealtime {SP(sST)}")
        a(f"""
        s_cmp_ge_u32 s2, 256
        s_cbranch_scc1 L_END
        s_load_dwordx16 s[16:31], s[0:1], 0
        s_load_dwordx8 s[32:39], s[0:1], 64
        s_load_dwordx2 {SP(sOUT)}, s[0:1], 96
        s_load_dwordx2 {SP(sWS)}, s[0:1], 112
        s_getpc_b64 s[14:15]
        v_lshrrev_b32 v1, 6, v0
        v_and_b32 v10, 255, v0
        v_and_b32 v0, 63, v0
        v_readfirstlane_b32 s{sW}, v1
        v_lshlrev_b32 v1, 2, v0
        v_mov_b32 v2, 0
        ds_write2st64_b32 v1, v2, v2 offset0:0 offset1:2
        s_and_b32 s5, s2, 7
        s_lshr_b32 s6, s2, 3
        s_lshl_b32 s{sDG}, s5, 5
        s_add_u32 s{sDG}, s{sDG}, s6
        s_and_b32 s58, s{sW}, 3
        {"s_xor_b32 s%d, s%d, 4" % (sW, sW) if self.opt.get("swp", 0) else ""}
        s_lshl_b32 s7, s{sDG}, 2
        s_add_u32 s7, s7, s58
        s_lshl_b32 s7, s7, 8
        v_add_u32 v15, s7, v1
        s_mov_b32 s{sO}, 0
        s_lshl_b32 s4, s{sDG}, 3
        s_cmp_lt_u32 s{sW}, 4
        s_cbranch_scc1 L_F0
        """)
        CPF = self.opt.get("cpf", 4)
        if CPF:
            a(f"""
            s_and_b32 s8, s6, {(1<<CPF)-1}
            s_lshl_b32 s8, s8, 2
            s_add_u32 s8, s8, s58
            s_lshl_b32 s8, s8, {13-CPF}
            s_mov_b32 s69, s8
            v_lshl_add_u32 v2, v0, 7, s8
            v_min_u32 v2, L_END-{KN}-128, v2
            s_mov_b64 exec, {(1<<(64>>CPF))-1:#x}
            global_load_dword v{self.GARB}, v2, s[14:15]
            s_mov_b64 exec, -1
            """)
        else: a(f"""
        v_lshlrev_b32 v2, 7, v10
        v_min_u32 v2, L_END-{KN}-128, v2
        global_load_dword v{self.GARB}, v2, s[14:15]
        """)
        a(f"""
        v_lshlrev_b32 v3, 12, v10
        v_add_u32 v3, s4, v3
        s_lshl_b32 s8, s5, 5
        s_add_u32 s8, s8, s58
        s_lshl_b32 s8, s8, 7
        s_add_u32 s8, s8, {WS_FL3}
        v_lshl_add_u32 v2, v0, 9, s8
        s_lshl_b32 s59, s5, 2
        s_add_u32 s59, s59, s58
        s_lshl_b32 s59, s59, 5
        s_add_u32 s59, s59, s6
        s_lshl_b32 s59, s59, 9
        s_add_u32 s59, s59, {WS_FL2}
        s_sub_u32 s8, s59, 512
        v_lshl_add_u32 v4, v0, 7, s8
        v_cmp_lt_u32 vcc, 3, v0
        v_cndmask_b32 v2, v2, v4, vcc
        s_lshl_b32 s8, s2, 6
        s_add_u32 s8, s8, {WS_STAT}
        {"v_writelane_b32 v2, s8, 3" if self.opt.get("sp", 1) else ""}
        s_waitcnt lgkmcnt(0)
        """)
        FP = self.opt.get("fp", (16 << self.opt.get("nst", 3)) - 1)
        fpi = f"s_cmp_ge_u32 s6, {self.opt.get('fq', 32)}\ns_cbranch_scc1 L_NFP\ns_mov_b64 exec, {FP}\nglobal_load_dword v{self.GARB}, v2, {SP(sWS)}\ns_mov_b64 exec, -1\nL_NFP:"
        if FP and self.opt.get("fo", 0) == 0: a(fpi)
        a(f"""
        global_load_dword v224, v15, {SP(sLAR)}
        global_load_dword v225, v15, {SP(sAI)}
        global_load_dword v226, v15, {SP(sCR)}
        global_load_dword v227, v15, {SP(sCI)}
        {fpi if FP and self.opt.get("fo", 0) == 1 else ""}
        s_add_u32 s6, s{sLDT}, s4
        s_addc_u32 s7, s{sLDT+1}, 0
        s_load_dwordx2 s[64:65], s[6:7], 0
        s_add_u32 s6, s{sDSK}, s4
        s_addc_u32 s7, s{sDSK+1}, 0
        s_load_dwordx2 s[66:67], s[6:7], 0
        s_barrier
        s_mov_b64 s[26:27], s[14:15]
        s_mov_b32 s{sO+1}, 0x100000
        s_mov_b32 s{sO+2}, 0x200000
        s_mov_b32 s{sO+3}, 0x300000
        """)
        self.wsb()
        self.srd(rWS, sWS, WS_SIZE); self.srd(rX, sX, 0x400000); self.srd(rOUT, sOUT, 0x400000)
        if True: a(f"s_setprio {self.opt.get('kprio', 2)}")
        if "probe" in self.opt:
            p = {0: sWS, 1: sOUT, 2: 30, 3: sWD}[self.opt["probe"]]
            off = self.opt.get("poff", 0x200000)
            a(f"s_cmp_lg_u32 s2, 0\ns_cbranch_scc1 L_NPR\ns_cmp_lg_u32 s{sW}, 4\ns_cbranch_scc1 L_NPR\ns_waitcnt vmcnt(0)")
            if self.opt.get("pdelay"): a(f"s_mov_b32 s4, 0\nL_PD:\ns_sleep 100\ns_add_u32 s4, s4, 1\ns_cmp_lt_u32 s4, 10\ns_cbranch_scc1 L_PD")
            a(f"v_mov_b32 v20, {off}\nglobal_load_dword v21, v20, {SP(p)}\ns_waitcnt vmcnt(0)\ns_memrealtime {SP(sST)}\ns_waitcnt lgkmcnt(0)")
            for i in range(8): a(f"v_add_u32 v20, 0x4800, v20\nglobal_load_dword v21, v20, {SP(p)}\ns_waitcnt vmcnt(0)")
            a(f"s_memrealtime {SP(sST+30)}\ns_waitcnt lgkmcnt(0)\nL_NPR:")

    def xissue(self):
        self.xn = getattr(self, "xn", 0) + 1
        if self.xn > 1: self.a(f"s_cmp_lg_u32 s30, 0\ns_cbranch_scc1 L_XI{self.xn}")
        self.a(f"ds_read_b32 v34, v6 offset:{C_XS}\ns_buffer_load_dwordx8 s[16:23], {SQ(rWS)}, s31 {'glc' if self.opt.get('g0') else ''}\nL_XI{self.xn}:")
    def xcmp(self):
        a = self.a
        for i in range(4): a(f"s_xor_b64 {SP(16+2*i)}, {SP(16+2*i)}, s[28:29]")
        a("s_or_b64 s[16:17], s[16:17], s[18:19]\ns_or_b64 s[20:21], s[20:21], s[22:23]\ns_or_b64 s[16:17], s[16:17], s[20:21]")
    def xloads(self):
        if self.opt.get("xpr"): self.a("s_setprio 3")
        self.xloads_()
        if self.opt.get("df", 1): self.arrive(C_XI, 4, 5)
        if self.opt.get("xpr"): self.a(f"s_setprio {self.opt.get('kprio', 2)}")
    def xloads_(self):
        if self.opt.get("sch", 1):
            for k in range(4): self.a(f"buffer_load_dwordx4 {Q(16+4*k)}, v33, {SQ(rWS)}, s{32+k} offen {MOD[self.opt.get('xro',2)]}")
            return
        for k in range(4): self.a(f"s_add_u32 s4, s13, {0x1000*k}\nbuffer_load_dwordx4 {Q(16+4*k)}, v33, {SQ(rWS)}, s4 offen {MOD[self.opt.get('xro',2)]}")
    def xcheck(self):
        a = self.a; n = self.xn
        if n > 1: a(f"s_cmp_lg_u32 s30, 0\ns_cbranch_scc1 L_XE{n}")
        a(f"s_waitcnt lgkmcnt(0)\nv_readfirstlane_b32 s28, v34\ns_add_u32 s31, s31, 64\ns_mov_b32 s29, s28\ns_cmp_eq_u32 s28, 0\ns_cbranch_scc1 L_XE{n}")
        self.xcmp()
        a(f"{'s_branch' if self.opt.get('forcex') else 's_cbranch_scc1'} L_XE{n}")
        self.xloads()
        a("s_mov_b32 s30, 1")
        if not self.opt.get("cst"): self.stamp(10)
        a(f"L_XE{n}:")
    def refresh(self):
        CPF = self.opt.get("cpf", 4)
        return ["v_lshl_add_u32 v35, v0, 7, s69", f"v_min_u32 v35, L_END-{KN}-128, v35", f"s_mov_b64 exec, {(1<<(64>>CPF))-1:#x}", f"global_load_dword v{35 if self.opt.get('rf') == 4 else 16}, v35, s[26:27]", "s_mov_b64 exec, -1"]
    def tsetup(self, k0, lbase, lstr, V, S):
        vLA, vW, vR, vOA, vS, t0, t1, vFA = [V+i for i in range(8)]
        self.a(f"""
        s_lshr_b32 s8, s2, 3
        s_and_b32 s9, s2, 7
        s_lshr_b32 s{S+5}, s58, 1
        s_add_u32 s{S+5}, s{S+5}, {k0}
        v_lshrrev_b32 v{t0}, 3, v0
        v_and_b32 v{t1}, 7, v0
        s_lshl_b32 s{S+4}, s8, 5
        s_add_u32 s{S+4}, s{S+4}, s{S+5}
        v_lshrrev_b32 v{vS}, 4, v0
        v_lshl_add_u32 v{vS}, v{vS}, 2, s{S+4}
        v_and_b32 v{vOA}, 1, v{t0}
        v_lshl_add_u32 v{vS}, v{vS}, 1, v{vOA}
        ds_read_u8 v{vFA}, v{vS} offset:{SELF}
        ds_read_u8 v{vS}, v{vS} offset:{SELF+32}
        s_mul_i32 s{S+4}, s58, {lstr}
        s_add_u32 s{S+4}, s{S+4}, {lbase}
        v_lshl_add_u32 v{vW}, v{t0}, 3, s{S+4}
        v_lshl_add_u32 v{vR}, v{t1}, 4, s{S+4}
        s_movk_i32 s{S+4}, 288
        v_mad_u32_u24 v{vW}, v{t1}, s{S+4}, v{vW}
        s_movk_i32 s{S+4}, 144
        v_mad_u32_u24 v{vR}, v{t0}, s{S+4}, v{vR}
        v_lshlrev_b32 v{t1}, 4, v{t1}
        v_lshl_add_u32 v{vLA}, v{t0}, 14, v{t1}
        v_lshl_add_u32 v{t0}, v{t0}, 11, v{t1}
        s_and_b32 s{S+4}, s58, 1
        s_lshl_b32 s{S+1}, s9, 1
        s_add_u32 s{S+1}, s{S+1}, s{S+4}
        s_lshl_b32 s{S+5}, s{S+5}, 5
        s_add_u32 s{S+5}, s{S+5}, s8
        s_lshl_b32 s{S}, s{S+1}, 18
        s_lshl_b32 s{S+4}, s{S+5}, 7
        s_add_u32 s{S}, s{S}, s{S+4}
        s_add_u32 s{S}, s{S}, {WS_XT}
        s_lshl_b32 s{S+2}, s{S+5}, 15
        s_lshl_b32 s{S+1}, s{S+1}, 7
        s_add_u32 s{S+2}, s{S+2}, s{S+1}
        s_add_u32 s{S+3}, s{S+2}, 0x4000
        s_add_u32 s{S+1}, s{S}, 0x20000
        s_lshl_b32 s{S+4}, s9, 5
        s_lshr_b32 s8, s8, 3
        s_add_u32 s{S+4}, s{S+4}, s8
        s_lshl_b32 s{S+4}, s{S+4}, 7
        s_add_u32 s{S+4}, s{S+4}, {WS_FL3 + 256*k0}
        s_mov_b32 s{S+5}, 0
        s_waitcnt lgkmcnt(0)
        v_lshl_or_b32 v{vOA}, v{vFA}, 24, v{t0}
        v_lshl_or_b32 v{vS}, v{vS}, 24, v{t0}
        v_lshlrev_b32 v{vFA}, 2, v0
        """)
    def tpoll(self, V, S, tag, sl):
        L = self.a.label("LT")
        self.a(f"""
        s_mov_b32 exec_hi, 0
        {L}:
        buffer_load_dword v{V+5}, v{V+7}, {SQ(rWS)}, s{S+4} offen sc1
        s_add_u32 s{S+5}, s{S+5}, 1
        s_waitcnt vmcnt(0)
        v_cmp_ne_u32 vcc, {tag}, v{V+5}
        s_cbranch_vccz {L}K
        s_sleep {sl}
        s_cmp_lt_u32 s{S+5}, 0x4000
        s_cbranch_scc1 {L}
        {L}K:
        s_mov_b32 exec_hi, -1
        """)
    def tload(self, V, S, D):
        for i in range(2): self.a(f"buffer_load_dwordx4 {Q(D+4*i)}, v{V}, {SQ(rWS)}, s{S+i} offen sc1")
    def tstore(self, V, S, D, mod=None, novm=0):
        a = self.a
        for i in range(2): a(("" if novm else f"s_waitcnt vmcnt({1-i})\n") + f"ds_write_b64 v{V+1}, {P(D+4*i)} offset:{64*i}\nds_write_b64 v{V+1}, {P(D+4*i+2)} offset:{64*i+144}")
        for i in range(2): a(f"ds_read_b128 {Q(D+8+4*i)}, v{V+2} offset:{1152*i}")
        for i in range(2): a(f"s_waitcnt lgkmcnt({1-i})\nbuffer_store_dwordx4 {Q(D+8+4*i)}, v{V+(3+i)}, {SQ(rOUT)}, s{S+2+i} offen {MOD[mod] if mod is not None else 'sc1' if self.opt.get('osc', 1) else ''}")
    def dt_calc(self, DT):
        self.a(f"""
        s_lshl_b32 s4, s58, 4
        s_lshr_b64 s[6:7], s[64:65], s4
        s_lshl_b32 s6, s6, 16
        v_mov_b32 v{DT}, s6
        v_mul_f32 v{DT}, {LOG2E:#x}, v{DT}
        v_exp_f32 v{DT}, v{DT}
        """)
        self.bf16r(DT, DT)
    def zcalc(self, plar, pai, DT, ER, FI, t):
        a = self.a
        self.unpack(t, t+1, plar)
        self.unpack(t+2, t+3, pai)
        a(f"v_mul_f32 v{t}, {LOG2E:#x}, v{t}\nv_mul_f32 v{t+1}, {LOG2E:#x}, v{t+1}\nv_exp_f32 v{t}, v{t}\nv_exp_f32 v{t+1}, v{t+1}")
        a(f"v_mul_f32 v{t+2}, v{t+2}, v{DT}\nv_mul_f32 v{t+3}, v{t+3}, v{DT}")
        a(f"v_mul_f32 v{FI}, {INV2PI:#x}, v{t+2}\nv_mul_f32 v{FI+1}, {INV2PI:#x}, v{t+3}")
        a(f"v_cvt_pk_bf16_f32 v{t+2}, v{t}, v{t+1}")
        self.unpack(t, t+1, t+2)
        a(f"v_mul_f32 v{t}, v{t}, v{DT}\nv_mul_f32 v{t+1}, v{t+1}, v{DT}")
        a(f"v_mul_f32 v{ER}, {LOG2E|0x80000000:#x}, v{t}\nv_mul_f32 v{ER+1}, {LOG2E|0x80000000:#x}, v{t+1}")
    def cexp(self, E, p, ER, FI, t):
        a = self.a
        if p != 1.0:
            for q in (0,1): a(f"v_mul_f32 v{t+q}, {f2u(p):#x}, v{ER+q}\nv_mul_f32 v{t+2+q}, {f2u(p):#x}, v{FI+q}")
            e, f = t, t+2
        else: e, f = ER, FI
        for q in (0,1): a(f"v_exp_f32 v{t+q}, v{e+q}\nv_fract_f32 v{t+2+q}, v{f+q}")
        for q in (0,1): a(f"v_cos_f32 v{E+2*q}, v{t+2+q}\nv_sin_f32 v{E+2*q+1}, v{t+2+q}")
        for q in (0,1): a(f"v_mul_f32 v{E+2*q}, v{E+2*q}, v{t+q}\nv_mul_f32 v{E+2*q+1}, v{E+2*q+1}, v{t+q}")

    PRM=224; VDT=228; VaW=229; VER=230; VFI=232; VCUR=236; VE8=240; VTMP=244; VPK=248
    def vprep(self):
        a = self.a
        a(f"s_mul_i32 s4, s58, {VSTR}\ns_add_u32 s4, s4, {VT0}\nv_lshl_add_u32 v{self.VaW}, v0, 3, s4")
        a(f"v_add_f32 v{self.VDT}, v{self.VDT}, v{self.VDT}")
        self.unpack(self.VCUR, self.VCUR+2, self.PRM+2)
        self.unpack(self.VCUR+1, self.VCUR+3, self.PRM+3)
        for i in range(4): a(f"v_mul_f32 v{self.VCUR+i}, v{self.VCUR+i}, v{self.VDT}")
        self.cexp(self.VE8, 8.0, self.VER, self.VFI, self.VTMP)
    def vloop(self, n=8):
        a = self.a; L = a.label("LV"); CUR = self.VCUR
        a(f"s_mov_b32 s4, 0\n{L}:")
        for j in range(4):
            r = self.VPK + 2*j
            a(f"v_cvt_pk_bf16_f32 v{r}, v{CUR}, -v{CUR+1}\nv_cvt_pk_bf16_f32 v{r+1}, v{CUR+2}, -v{CUR+3}")
            a(f"ds_write_b64 v{self.VaW}, {P(r)} offset:{j*TROW}")
            self.cmul2(CUR, CUR, self.VE8, self.VTMP)
        a(f"v_add_u32 v{self.VaW}, {4*TROW}, v{self.VaW}\ns_add_u32 s4, s4, 1\ns_cmp_lt_u32 s4, {n}\ns_cbranch_scc1 {L}")

    def kgen(self):
        a = self.a
        DT=228; ER=230; FI=232; PK=220; TMP=236
        VF=48; XF=168; YF=112; DX=[204,208]; DY=[212,216]
        aX=12; aY=13; aV=14; aG=11
        vXO=3; vW4=4; vONE=5; vL4=6; vB=7; vYW=8; vYR=9; vT8=10; vA=1; vK3=2; vKW=33; vXW=32
        zF=200; zT=201; zK=202; aE=203; aE2=46; aE3=47; aKB=35; Z=252
        aVW=180; aUW=188; BXB=244; BXA=248
        i_=16; g_=17; t7=18; t8=19; t9=20; T=22; KB = self.opt.get("kb", 0); XPA = 254
        if KB:
            TMP = 48; Z = 234; aKB = 71; XPA = 18; TVM = self.TVM; SB = self.SB
            k0_ = len(a.lines); self.tsetup(2, K0, KREG, TVM, SB); TL_ = [l.strip() for l in a.lines[k0_:] if l.strip()]; del a.lines[k0_:]
            for l in TL_[:-4]:
                if not l.startswith("ds_"): a(l.replace(f"v_lshl_add_u32 v{TVM+5}, v{TVM+5}, 11", f"v_lshl_add_u32 v{TVM+3}, v{TVM+5}, 11"))
            a(f"s_sub_u32 s{SB+6}, s{SB+4}, 512")
            self.TLate = [l for l in TL_ if l.startswith("ds_")] + ["s_waitcnt", f"v_lshl_or_b32 v{TVM+4}, v{TVM+4}, 24, v{TVM+3}", f"v_lshl_or_b32 v{TVM+3}, v{TVM+7}, 24, v{TVM+3}", TL_[-1]]
        a(f"""
        s_mul_i32 s8, s58, {KREG}
        s_add_u32 s8, s8, {K0}
        s_mul_i32 s10, s58, {XSTR}
        s_add_u32 s10, s10, {XR0}
        s_mul_i32 s11, s58, {VSTR}
        s_add_u32 s11, s11, {VT0}
        s_movk_i32 s9, {TROW}
        s_sub_u32 m0, s8, {UOF}
        v_lshl_add_u32 v15, v0, 3, s10
        v_and_b32 v{i_}, 15, v0
        v_lshrrev_b32 v{g_}, 4, v0
        v_lshlrev_b32 v{t7}, 4, v{g_}
        v_mad_u32_u24 v{aX}, v{i_}, s9, v{t7}
        v_add_u32 v{aV}, s11, v{aX}
        v_add_u32 v{aX}, s8, v{aX}
        v_add_u32 v{aG}, s8, v{t7}
        v_cmp_gt_u32 vcc, 3, v{i_}
        v_cndmask_b32 v{t8}, 12, 4, vcc
        v_cmp_eq_u32 vcc, 3, v{i_}
        v_cndmask_b32 v{t8}, v{t8}, 28, vcc
        v_mad_u32_u24 v{aY}, v{t8}, s9, v{aX}
        v_and_b32 v{t9}, 3, v{i_}
        s_sub_u32 s11, s11, {VT0}
        s_lshl_b32 s4, s58, 2
        v_mov_b32 v{vW4}, s4
        v_mov_b32 v{vONE}, 1
        v_lshlrev_b32 v{vL4}, 2, v{t9}
        s_movk_i32 s9, {KSTR}
        v_lshrrev_b32 v{t7}, 2, v0
        v_lshl_add_u32 v{t8}, v{t9}, 3, s8
        v_mad_u32_u24 v{zF}, v{t7}, s9, v{t8}
        s_movk_i32 s4, 160
        v_mad_u32_u24 v{zK}, v{t7}, s4, v{t8}
        v_lshrrev_b32 v{t7}, 3, v0
        v_and_b32 v{t8}, 7, v0
        v_lshl_add_u32 v{t8}, v{t8}, 3, s8
        v_mad_u32_u24 v{zT}, v{t7}, s9, v{t8}
        v_lshrrev_b32 v{t7}, 5, v0
        v_lshlrev_b32 v{t7}, 8, v{t7}
        v_lshl_add_u32 v{t7}, v{i_}, 4, v{t7}
        v_add_u32 v{t7}, s8, v{t7}
        v_and_b32 v{t8}, 1, v{g_}
        v_lshl_add_u32 v{aE}, v{t8}, 3, v{t7}
        {f"v_lshl_add_u32 v{aE2}, v{t8}, 9, v{t7}" if not KB else f"v_lshlrev_b32 v{aE2}, 5, v{t8}"}
        v_and_b32 v{t7}, 1, v{i_}
        s_movk_i32 s4, 640
        v_mul_u32_u24 v{t7}, s4, v{t7}
        {f"v_lshl_add_u32 v{aE2}, v{t7}, 1, v{aE2}" if KB else ""}
        v_lshl_add_u32 v{t7}, v{g_}, 5, v{t7}
        v_and_b32 v{t8}, 14, v{i_}
        v_add3_u32 v{aE3}, v{t7}, v{t8}, s8
        {f"v_add3_u32 v{aE2}, v{aE2}, v{t8}, s8" if KB else ""}
        {f"v_lshrrev_b32 v{t7}, 5, v0" if KB else ""}
        {f"v_lshl_add_u32 v{aE2}, v{t7}, 4, v{aE2}" if KB else ""}
        {"" if KB else f"v_mov_b32 v{aKB}, s8"}
        v_mov_b32 v{Z}, 0
        v_mov_b32 v{Z+1}, 0
        """)
        a(f"""
        v_lshlrev_b32 v{vB}, 4, v{g_}
        v_lshlrev_b32 v{t7}, 5, v{i_}
        v_sub_u32 v{vB}, v{vB}, v{t7}
        s_add_u32 s4, s10, 480
        v_add_u32 v{vB}, s4, v{vB}
        s_lshl_b32 s4, s58, 13
        s_add_u32 s4, s4, {YB}
        v_lshlrev_b32 v{t7}, 6, v{i_}
        {f"v_bfe_u32 v{T}, v{i_}, 1, 2" if self.opt.get("ys", 1) else ""}
        {f"v_xor_b32 v{T}, v{T}, v{g_}" if self.opt.get("ys", 1) else ""}
        v_lshl_add_u32 v{t7}, v{T if self.opt.get("ys", 1) else g_}, 4, v{t7}
        v_add_u32 v{vYW}, s4, v{t7}
        v_sub_u32 v{T}, 20, v{i_}
        v_lshlrev_b32 v{T+1}, 3, v{g_}
        v_mov_b32 v{T+2}, 0x7f
        v_lshlrev_b32 v{T+2}, v{T}, v{T+2}
        v_subrev_u32 v{T}, 1, v{T}
        v_mov_b32 v{T+3}, 0x1ff
        v_lshlrev_b32 v{T+3}, v{T}, v{T+3}
        v_lshrrev_b32 v{T+2}, v{T+1}, v{T+2}
        v_lshrrev_b32 v{T+3}, v{T+1}, v{T+3}
        v_add_u32 v{t7}, 1, v{i_}
        v_and_b32 v{T}, 3, v{t7}
        v_and_b32 v{t7}, 28, v{t7}
        v_lshl_add_u32 v{T+4}, v{g_}, 3, v{t7}
        v_lshl_add_u32 v{T+4}, v{T+4}, 1, s8
        v_mad_u32_u24 v{vA}, v{T}, s9, v{T+4}
        v_lshlrev_b32 v{T+4}, 2, v{g_}
        v_sub_u32 v{t7}, v{t7}, v{T+4}
        v_lshl_add_u32 v{t7}, v{t7}, 1, s8
        s_movk_i32 s4, 160
        v_mad_u32_u24 v{vK3}, v{T}, s4, v{t7}
        s_mov_b32 s15, 0x3f800000
        """)
        if KB:
            a(f"""v_sub_u32 v{T}, 18, v{i_}
            v_lshlrev_b32 v{T+4}, v{T}, 7
            v_add_u32 v{T}, 3, v{T}
            v_lshlrev_b32 v{T+5}, v{T}, 31
            v_and_b32 v{T+2}, 0xff, v{T+2}
            v_and_b32 v{T+3}, 0xff, v{T+3}
            v_bfe_u32 v{T+4}, v{T+4}, v{T+1}, 8
            v_bfe_u32 v{T+5}, v{T+5}, v{T+1}, 8""")
            for j in range(4): a(f"v_lshl_or_b32 v{T+2+j}, v{T+2+j}, 15, v{T+2+j}")
            for d in range(4):
                for j, bx in enumerate((BXB, BXA, 240, 252)): a(f"v_and_b32 v{bx+d}, {0x10001 << 2*d:#x}, v{T+2+j}")
                for j, bx in enumerate((BXB, BXA, 240, 252)): a(f"v_mul_u32_u24 v{bx+d}, {0x3f80 >> 2*d:#x}, v{bx+d}")
        for (dst, src) in ((BXB, T+2), (BXA, T+3)):
            for d in range(0 if KB else 4):
                a(f"v_bfe_i32 v{T+5}, v{src}, {2*d}, 1\nv_bfe_i32 v{T+6}, v{src}, {2*d+1}, 1\nv_and_b32 v{T+5}, 0x3f80, v{T+5}\nv_bfi_b32 v{dst+d}, s15, v{T+6}, v{T+5}")
        self.csetup()
        a("s_waitcnt lgkmcnt(0)")
        self.dt_calc(DT)
        xp = f"s_mov_b32 exec_hi, 0\nbuffer_load_dword v{self.GARB}, v{XPA}, {SQ(rWS)}, s13 offen\ns_mov_b32 exec_hi, -1"
        XP = self.opt.get("xp", 1)
        if XP: a(f"s_lshl_b32 s4, s58, 12\nv_lshl_add_u32 v{XPA}, v0, 7, s4")
        if XP == 2: a(xp + "\ns_waitcnt vmcnt(1)")
        else: a(f"s_waitcnt vmcnt(0)")
        self.stamp(1)
        if XP == 1: a(xp)
        TT_ = self.opt.get("tt", 0)
        if TT_:
            a(f"""s_cmp_gt_u32 s58, 1
            s_cbranch_scc1 L_NTT
            {"s_cmp_lt_u32 s2, %d" % self.opt.get("tq0", 248) if TT_ == 2 else ""}
            {"s_cbranch_scc1 L_NTT" if TT_ == 2 else ""}
            s_and_b32 s4, s2, 7
            s_mul_i32 s4, s4, {7 << 15}
            s_lshl_b32 s5, s{sDG}, 7
            s_cmp_eq_u32 s58, 0
            s_cselect_b32 s4, s5, s4
            s_cselect_b32 s5, 15, 12
            s_add_u32 s4, s4, {WS_PART}
            v_lshlrev_b32 v{XPA}, s5, v0
            s_mov_b32 exec_hi, 0xffffff
            buffer_load_dword v{self.GARB}, v{XPA}, {SQ(rWS)}, s4 offen {MOD[self.opt.get("ttm", 2)]}
            s_mov_b32 exec_hi, -1
            L_NTT:""")
        if self.opt.get("ft", 0): a(f"s_buffer_load_dword s30, {SQ(rWS)}, s31 glc")
        if self.opt.get("k2"): a("s_mov_b32 s24, 0\nL_K2:")
        self.zcalc(224, 225, DT, ER, FI, TMP)
        UR = lambda r: 112 + 2*r
        E1024 = 166; BV = {8: 36, 16: 38, 32: 40, 64: 42, 128: 44}
        W = lambda j: 80 + 2*j if j < 16 else 220 + 2*(j % 8)
        CA = 16; CB = 24; CP = 204 if KB else 240
        a(f"v_add_f32 v{DT}, v{DT}, v{DT}")
        for q in (0,1): a(f"v_mul_f32 v{CB+4+q}, {f2u(32.0):#x}, v{ER+q}\nv_mul_f32 v{CB+6+q}, {f2u(32.0):#x}, v{FI+q}")
        up = self.unp(CP, CP+2, 226) + self.unp(CP+1, CP+3, 227) + [f"v_mul_f32 v{CP+i}, v{CP+i}, v{DT}" for i in range(4)]
        for q in (0,1): a(f"v_exp_f32 v{CA+4+q}, v{ER+q}\nv_fract_f32 v{CA+6+q}, v{FI+q}\nv_exp_f32 v{CB+4+q}, v{CB+4+q}\nv_fract_f32 v{CB+6+q}, v{CB+6+q}")
        tr = []
        for C_ in (CA, CB):
            for q in (0,1): tr += [f"v_cos_f32 v{C_+2*q}, v{C_+6+q}", f"v_sin_f32 v{C_+2*q+1}, v{C_+6+q}"]
        for l in interleave(tr, up): a(l)
        for C_ in (CA, CB):
            for q in (0,1): a(f"v_mul_f32 v{C_+2*q}, v{C_+2*q}, v{C_+4+q}\nv_mul_f32 v{C_+2*q+1}, v{C_+2*q+1}, v{C_+4+q}")
        cv = lambda d, s_: [f"v_cvt_pk_f16_f32 v{d}, v{s_}, v{s_+1}", f"v_cvt_pk_f16_f32 v{d+1}, v{s_+2}, v{s_+3}"]
        sqm = lambda x: [f"v_pk_mul_f32 {P(x+4+q)}, {P(x+q)}, {P(x+q)} op_sel_hi:[1,0]" for q in (0,2)]
        sqf = lambda x: [f"v_pk_fma_f32 {P(x+q)}, {P(x+q)}, {P(x+q)}, {P(x+4+q)} op_sel:[1,1,0] op_sel_hi:[0,1,1] neg_lo:[1,0,0]" for q in (0,2)]
        def pr(L):
            o = []
            for k in range(0, len(L), 2):
                B_ = L[k:k+2]
                for (d, x, y, c) in B_: o += [f"v_pk_mul_f16 v{d+q}, v{x+q}, v{y+q} op_sel_hi:[1,0]" for q in (0,1)]
                for (d, x, y, c) in B_: o += [f"v_pk_fma_f16 v{d+q}, v{x+q}, v{y+q}, v{d+q} op_sel:[1,1,0] op_sel_hi:[0,1,1] neg_{'hi' if c else 'lo'}:[1,0,0]" for q in (0,1)]
            return o
        issued = []
        def lds(tag, text): a(text); issued.append(tag)
        def need(tag):
            last = max(i for i, t in enumerate(issued) if t == tag)
            a(f"s_waitcnt lgkmcnt({min(len(issued)-1-last, 15)})")
        UP = {0:[0],1:[1],2:[2],3:[3],4:[4],5:[5],6:[6],7:[7],11:[8],12:[9],13:[10,12],14:[11,13],15:[14],16:[15],23:[31],
              8:[16],9:[17],10:[18],24:[19],17:[20],18:[21],19:[22],25:[23],20:[24],21:[25],22:[26],26:[27]}
        pend = []
        def wrow(reg, off): pend.extend([(None, f"ds_write_addtid_b32 v{reg} offset:{off}"), (None, f"ds_write_addtid_b32 v{reg+1} offset:{off+256}")])
        def wu(*rs):
            for r in rs:
                for p_ in UP[r]: wrow(UR(r), UOF + p_*TROW)
        def wv(*js):
            for j in js: wrow(W(j), VT0 + j*TROW)
        def em(L, mf=None, mper=4):
            for k, l in enumerate(L):
                if mf and k % mper == 0: a(mf.pop(0))
                a(l)
        def flush():
            while pend:
                t = pend.pop(0)
                if t[0] == "s": a(t[1])
                else: lds(*t)
        U = lambda d, x, y: (UR(d), UR(x), UR(y) if y >= 0 else E1024, 0)
        V = lambda d, x, y: (W(d), W(x), BV[y], 1)
        self.kst(14)
        em([f"v_mov_b32 v{UR(0)}, 0x3c00", f"v_mov_b32 v{UR(0)+1}, 0x3c00"] + sqm(CA) + sqm(CB) + cv(UR(1), CA) + cv(BV[32], CB) + sqf(CA) + sqf(CB))
        em(sqm(CA) + sqm(CB) + cv(UR(2), CA) + cv(BV[64], CB) + sqf(CA) + sqf(CB))
        em([f"v_cvt_pk_f16_f32 v{W(0)}, v{CP}, -v{CP+1}", f"v_cvt_pk_f16_f32 v{W(0)+1}, v{CP+2}, -v{CP+3}"] + sqm(CA) + sqm(CB) + cv(UR(4), CA) + cv(BV[128], CB) + sqf(CA) + sqf(CB))
        em(pr([U(3,2,1), U(5,4,1)]))
        em(sqm(CA) + cv(UR(8), CA) + cv(UR(11), CB) + sqf(CA))
        wu(0, 1, 2, 4, 3, 5, 8, 11); wrow(BV[128], UOF + 28*TROW); flush()
        em(pr([U(6,4,2), U(7,4,3), U(10,8,2), U(12,11,2), U(13,11,4), U(14,11,6), U(15,11,8), U(16,11,10)]))
        wu(6, 7, 10, 12, 13, 14, 15, 16); flush()
        for s_ in range(8): lds("x", f"ds_read_b128 {Q(XF+4*s_)}, v{aX} offset:{64*s_}")
        a("s_mov_b32 m0, s11")
        self.kst(10)
        BV[8] = UR(8)
        em(cv(BV[16], CA) + pr([V(1,0,8), V(4,0,32), V(2,0,16), V(3,1,16), V(5,1,32), V(8,0,64), V(6,2,32), V(7,3,32)]))
        wv(0, 1, 2, 3, 4, 5, 6, 7, 8); flush()
        em(pr([V(9,1,64), V(12,4,64), V(10,2,64), V(11,3,64), V(13,5,64), V(14,6,64), V(15,7,64), U(9,8,1)]))
        wv(9, 10, 11, 12, 13, 14, 15); flush()
        for s_ in range(8): lds(f"v{s_}", f"ds_read_b128 {Q(VF+4*s_)}, v{aV} offset:{64*s_}")
        for s_ in range(8): lds(f"g{s_}", f"ds_read_b128 {Q(VF+32+4*s_)}, v{aG} offset:{28*TROW+64*s_}")
        a(f"s_sub_u32 m0, s8, {UOF}")
        self.kst(11)
        MF = "v_mfma_f32_16x16x32_f16"
        def mm(D, A, ct, s_): return f"{MF} {Q(D[ct])}, {Q(A+4*s_)}, {Q(VF+32*ct+4*s_)}, {'0' if s_ == 0 else Q(D[ct])}"
        m0 = [mm(DX, XF, 0, s_) for s_ in range(8)]
        em(sqm(CB) + sqf(CB) + cv(UR(17), CB) + sqm(CB) + sqf(CB) + cv(E1024, CB))
        need("v7")
        XE = self.opt.get("xe", 1)
        if XE & 1: self.xissue()
        em(pr([U(20,17,11), U(18,17,4), U(19,17,8), U(23,8,-1), U(21,20,4), U(22,20,8), U(24,15,-1), U(25,19,-1), U(26,22,-1)]), m0, 4)
        if XE & 1: self.xcheck()
        wu(9, 17, 20, 18, 19, 23, 21, 22, 24, 25, 26); flush()
        for s_ in range(8): lds(f"y{s_}", f"ds_read_b128 {Q(YF+4*s_)}, v{aY} offset:{64*s_}")
        a("s_mov_b64 exec, 0xffff"); lds(None, f"ds_write_b64 v{zF}, {P(Z)}")
        a("s_mov_b32 exec_lo, -1"); lds(None, f"ds_write2_b64 v{zT}, {P(Z)}, {P(Z)} offset0:132 offset1:140" if KB else f"ds_write_b64 v{zT}, {P(Z)} offset:2080"); lds(None, f"ds_write_b64 v{zK}, {P(Z)} offset:{K3O}")
        a("s_mov_b64 exec, -1")
        if KB:
            for o in (0, 64, 96): lds(None, f"ds_write_b64 v{zK}, {P(Z)} offset:{K2O+o}")
        self.kst(13)
        if XE & 2: self.xissue()
        TM = 220
        for s_ in range(10):
            mq = []
            if 1 <= s_ <= 8: mq.append(mm(DX, XF, 1, s_-1))
            if 2 <= s_ <= 9:
                if s_ % 2 == 0: need(f"y{s_-1}")
                mq += [mm(DY, YF, 0, s_-2), mm(DY, YF, 1, s_-2)]
            L = []
            if s_ < 8:
                L += [f"v_pk_mul_f16 v{TM+j}, v{VF+4*s_+j}, v{VF+32+4*s_+j} op_sel_hi:[1,0]" for j in range(4)]
                L += [f"v_pk_fma_f16 v{VF+32+4*s_+j}, v{VF+4*s_+j}, v{VF+32+4*s_+j}, v{TM+j} op_sel:[1,1,0] op_sel_hi:[0,1,1] neg_hi:[1,0,0]" for j in range(4)]
            for k in range(len(L)):
                if k % 3 == 2 and mq: a(mq.pop(0))
                a(L[k])
            for m in mq: a(m)
        self.kst(12)
        if XE & 2: self.xcheck()
        if XE & 4: self.xissue()
        a("s_lshl_b32 s4, s58, 4\ns_lshr_b64 s[6:7], s[66:67], s4\ns_lshl_b32 s6, s6, 16")
        for r in range(4): a(f"v_permlane32_swap_b32 v{DX[0]+r}, v{DX[1]+r}")
        a(f"v_cvt_pk_bf16_f32 v{PK}, v{DY[0]+3}, v{DY[1]+3}")
        a(f"s_mov_b64 exec, 1\nv_add_f32 v{DX[0]}, s6, v{DX[0]}\nv_add_f32 v{DX[0]}, 1.0, v{DX[0]}\ns_mov_b64 exec, -1")
        for r in range(3): a(f"v_permlane32_swap_b32 v{DY[0]+r}, v{DY[1]+r}")
        for sg in range(4):
            a(f"ds_write_b16 v{aE3}, v{PK} offset:{K3O+32+158*sg}")
            a(f"ds_write_b16_d16_hi v{aE3}, v{PK} offset:{K3O+16+32+158*sg}")
        WL = []
        def expand(X, seq, nl, addr, lag0):
            for sg in range(4):
                nd = nl//2
                base = X + sg*nd
                for d in range(nd):
                    a(f"v_cvt_pk_bf16_f32 v{base+d}, v{seq[sg+2*d]}, v{seq[sg+2*d+1]}")
                off = sg*KSTR + 2*(16+lag0)
                if nd == 2: WL.append(f"ds_write_b64 v{addr}, {P(base)} offset:{off}")
                else: WL.append(f"ds_write_b128 v{addr}, {Q(base)} offset:{off}")
        X0, X1, Y0, Y1 = DX[0], DX[1], DY[0], DY[1]
        expand(48, [X0,X0+1,X0+2,X0+3,Y0,Y0+1,Y0+2], 4, aE, 0)
        expand(56, [X1,X1,X1+1,X1+2,X1+2,X1+2,X1+3], 4, aE, 256)
        if KB:
            a(f"""
            v_cvt_pk_bf16_f32 v64, v{Y1+1}, v{Y1+2}
            v_mov_b32 v{aKB}, s8
            v_cvt_pk_bf16_f32 v80, v{Z}, v{X0}
            v_mov_b32 v81, v50
            v_cvt_pk_bf16_f32 v66, v{Y1}, v{Y1}
            v_cvt_pk_bf16_f32 v67, v{Y1}, v{Z}
            v_cvt_pk_bf16_f32 v68, v{Z}, v{Y1+2}
            v_cvt_pk_bf16_f32 v69, v{Y1+2}, v{Z}
            v_cvt_pk_bf16_f32 v70, v{Y1+2}, v{Y1+2}
            """)
            if XE & 4: self.xcheck()
            for l in WL: a(l)
            for sg in range(4):
                a(f"ds_write_b16 v{aE2}, v64 offset:{K2O+32+158*sg}")
                a(f"ds_write_b16_d16_hi v{aE2}, v64 offset:{K2O+640+32+158*sg}")
            a(f"""
            s_mov_b64 exec, 1
            ds_write_b32 v{aKB}, v80 offset:{1*KSTR+28}
            ds_write_b32 v{aKB}, v48 offset:{2*KSTR+28}
            ds_write_b64 v{aKB}, v[80:81] offset:{3*KSTR+24}
            ds_write_b64 v{aKB}, v[66:67] offset:1056
            ds_write_b32 v{aKB}, v66 offset:{KSTR+1056}
            ds_write_b16 v{aKB}, v66 offset:{2*KSTR+1056}
            ds_write_b16 v{aKB}, v66 offset:{3*KSTR+1054}
            ds_write_b16 v{aKB}, v56 offset:{2*KSTR+542}
            ds_write_b16 v{aKB}, v56 offset:{3*KSTR+540}
            s_brev_b64 exec, 1
            ds_write_b32 v{aKB}, v68 offset:1124
            ds_write_b32 v{aKB}, v69 offset:1128
            ds_write_b32 v{aKB}, v70 offset:{KSTR+1124}
            ds_write_b64 v{aKB}, v[68:69] offset:{2*KSTR+1120}
            ds_write_b32 v{aKB}, v70 offset:{3*KSTR+1120}
            s_mov_b64 exec, -1
            """)
        else:
            expand(64, [Y1]*3+[Y1+1]*3+[Y1+2]*5, 8, aE2, 512)
            a(f"""
            v_cvt_pk_bf16_f32 v80, v{Z}, v{X0}
            v_mov_b32 v81, v50
            v_mov_b32 v82, v79
            v_cvt_pk_bf16_f32 v83, v{Y1+2}, v{Z}
            """)
            if XE & 4: self.xcheck()
            for l in WL: a(l)
            a(f"""
            s_mov_b64 exec, 1
            ds_write_b32 v{aKB}, v80 offset:{1*KSTR+28}
            ds_write_b32 v{aKB}, v48 offset:{2*KSTR+28}
            ds_write_b64 v{aKB}, v[80:81] offset:{3*KSTR+24}
            s_brev_b64 exec, 1
            ds_write_b64 v{aKB}, v[78:79] offset:{2080}
            ds_write_b32 v{aKB}, v83 offset:{2088}
            ds_write_b64 v{aKB}, v[78:79] offset:{KSTR+2080}
            ds_write_b64 v{aKB}, v[82:83] offset:{2*KSTR+2080}
            ds_write_b32 v{aKB}, v79 offset:{3*KSTR+2080}
            s_mov_b64 exec, -1
            """)
        self.kst(15)
        if self.opt.get("k2"):
            a("s_cmp_lg_u32 s24, 0\ns_cbranch_scc1 L_K2E")
            self.stamp(11)
            a("s_mov_b32 s24, 1\ns_branch L_K2\nL_K2E:")
        self.stamp(2)

    def csetup(self):
        vYR=9; vT8=10; vKW=33; vXW=32
        self.a(f"""v_lshlrev_b32 v{vKW}, 4, v10
        v_lshlrev_b32 v{vXW}, 2, v10
        v_sub_u32 v{vXW}, {XR0+1020}, v{vXW}
        s_mov_b32 s31, s59
        s_lshl_b32 s13, s{sDG}, 14
        s_add_u32 s13, s13, {WS_XT}
        s_and_b32 s12, s2, 7
        s_lshl_b32 s12, s12, 12
        s_lshl_b32 s4, s58, 7
        s_add_u32 s12, s12, s4
        s_lshr_b32 s4, s2, 3
        s_lshl_b32 s4, s4, 2
        s_add_u32 s12, s12, s4
        s_add_u32 s12, s12, {WS_FL3}
        {f"v_and_b32 v{vYR}, 0x30, v10" if self.opt.get("ys", 1) else ""}
        v_lshlrev_b32 v{vT8}, 3, v10
        {f"v_xor_b32 v{vYR}, v{vYR}, v{vT8}" if self.opt.get("ys", 1) else ""}
        v_add_u32 v{vYR}, {YB}, v{vYR if self.opt.get("ys", 1) else vT8}
        s_mov_b32 s30, 0
        s_brev_b32 s68, 1""")
        if self.opt.get("sch", 1): self.a("s_mov_b32 s32, s13\ns_add_u32 s33, s13, 0x1000\ns_add_u32 s34, s13, 0x2000\ns_add_u32 s35, s13, 0x3000")
        if self.opt.get("ct") == 2: self.a(f"""
            s_lshr_b32 s38, s2, 3
            s_and_b32 s39, s2, 7
            s_lshl_b32 s37, s38, 2
            s_add_u32 s37, s37, s58
            s_lshl_b32 s36, s37, 4
            s_lshl_b32 s35, s37, 13
            s_lshl_b32 s4, s39, 8
            s_add_u32 s35, s35, s4
            s_lshl_b32 s32, s39, 19
            s_lshl_b32 s4, s37, 5
            s_add_u32 s32, s32, s4
            s_add_u32 s32, s32, {WS_XT}
            s_add_u32 s33, s32, 0x1000
            s_lshl_b32 s34, s39, 12
            s_lshr_b32 s4, s38, 3
            s_lshl_b32 s4, s4, 7
            s_add_u32 s34, s34, s4
            s_add_u32 s34, s34, {WS_FL3}""")
    def cmain(self):
        a = self.a
        XU = 16; AR = 48; RB = 180; ACC = 204; ZF = 236; D1 = 252
        G0 = ZF; T = 204; RAW = 180; M = 180; RS = 188; PKD = 196
        vXO=3; vW4=4; vONE=5; vL4=6; vB=7; vYW=8; vYR=9; vT8=10
        vXW=32; RAWC=28; UN=20; vKW=33; vTG=34
        vA = 1; vK3 = 2
        BXB = ZF+8; BXA = ZF+12
        RAW = 16; UN = 36; MS = 180; RS = 188; M = 196; XU = 204; PKD = 36
        XE = self.opt.get("xe", 1)
        self.wait_flag(C_XS, vL4, vTG)
        a(f"""s_cmp_lg_u32 s30, 0
        s_cbranch_scc1 L_XS1
        s_buffer_load_dwordx8 s[16:23], {SQ(rWS)}, s31 {'glc' if self.opt.get('g1') else ''}
        L_XS1:
        v_readfirstlane_b32 s28, v{vTG}
        ds_write_b64 v15, {P(234 if self.opt.get('kb') else 252)} offset:4096
        s_mov_b32 s5, 0
        s_mov_b32 s29, s28
        """)
        al = sum([[f"ds_read_b64 {P(AR+4*d)}, v{vA} offset:{64*d}", f"ds_read_b64 {P(AR+4*d+2)}, v{vA} offset:{64*d+8}"] for d in range(33)], [])
        KB = self.opt.get("kb", 0); KB2 = 120; BX3 = 240; BX5 = 252; BT = 152; BT3 = 168
        if KB: al = al[:36] + sum([[f"ds_read_b64 {P(KB2+8*D+4*h)}, v{vK3} offset:{K2O+1280*h+24+32*D}", f"ds_read_b64 {P(KB2+8*D+4*h+2)}, v{vK3} offset:{K2O+1280*h+24+32*D+640}"] for D in range(3) for h in range(2)], [])
        NA = self.opt.get("na", 30 if KB else 40)
        for l in al[:NA]: a(l)
        a(f"""s_cmp_lg_u32 s30, 0
        s_cbranch_scc1 L_XA
        s_waitcnt lgkmcnt(0)""")
        self.xcmp()
        a(f"""{"s_branch" if self.opt.get("forcex") else "s_cbranch_scc1"} L_XF""")
        self.xloads()
        a("L_XA:")
        self.stamp(3)
        for l in al[NA:]: a(l)
        a("L_XBACK:")
        if self.opt.get("ed"): a("s_movk_i32 s36, 0x3f80\ns_mov_b32 s15, 0x3f800000")
        def xfail():
            a(f"L_XF:\ns_add_u32 s31, s31, 64\ns_buffer_load_dwordx8 s[16:23], {SQ(rWS)}, s31")
            for l in al[NA:]: a(l)
            a(f"""s_branch L_XC
            L_XP:
            s_sleep {self.opt.get("xsl", 2)}
            ds_read_b32 v11, v{vW4} offset:{C_MS}
            s_cmp_ge_u32 s5, {2*self.opt.get("nst", 3)-2-getattr(self, "xn", 0)}
            s_cbranch_scc1 L_XG
            s_add_u32 s31, s31, 64
            s_buffer_load_dwordx8 s[16:23], {SQ(rWS)}, s31
            s_branch L_XH
            L_XG:
            s_buffer_load_dwordx8 s[16:23], {SQ(rWS)}, s31 glc
            L_XH:
            s_add_u32 s5, s5, 1
            s_waitcnt lgkmcnt(0)
            v_cmp_eq_u32 vcc, 1, v11
            s_cbranch_vccnz L_XSLOW
            s_cmp_ge_u32 s5, 0x4000
            s_cbranch_scc1 L_XSLOW
            L_XC:
            s_waitcnt lgkmcnt(0)""")
            self.xcmp()
            a(f"""{"s_branch" if self.opt.get("forcex") else "s_cbranch_scc1"} L_XP""")
            self.xloads()
            self.stamp(3)
            a("s_branch L_XBACK")
        if self.opt.get("sg0") == 0:
            a("v_mov_b32 v204, -1\nv_mov_b32 v205, -1\nv_mov_b32 v206, -1\nv_mov_b32 v207, -1\ns_waitcnt vmcnt(0)")
            for i in range(2): a(f"buffer_store_dwordx4 v[204:207], v{vKW}, {SQ(rWS)}, s{34+i} offen")
        else: a(f"s_waitcnt vmcnt(3)")
        self.stamp(5)
        NRS = 44; NM = 46
        def nunp(k): return sum([self.unp(UN+4*e, UN+4*e+1, RAW+4*k+2*e) + self.unp(UN+4*e+2, UN+4*e+3, RAW+4*k+2*e+1) for e in range(2)], [])
        def nrd(k): return f"ds_read_b64 v[12:13], v{vT8} offset:{MSB+2048*k}"
        def nmath(pk):
            L = self.unp(NRS, NRS+1, 13) + [f"v_rcp_f32 v{NRS}, v{NRS}", f"v_rcp_f32 v{NRS+1}, v{NRS+1}"] + self.unp(NM, NM+1, 12)
            if pk:
                L += [f"v_pk_mul_f32 {P(NM)}, {P(NM)}, {P(NRS)}"]
                L += [f"v_pk_fma_f32 {P(UN+4*e+c)}, {P(UN+4*e+c)}, {P(NRS)}, {P(NM)} op_sel:[0,{e},{e}] op_sel_hi:[1,{e},{e}] neg_lo:[0,0,1] neg_hi:[0,0,1]" for c in (0, 2) for e in range(2)]
            else:
                L += [f"v_mul_f32 v{NM+e}, v{NM+e}, v{NRS+e}" for e in range(2)]
                L += [f"v_fma_f32 v{UN+4*e+c}, v{UN+4*e+c}, v{NRS+e}, -v{NM+e}" for c in range(4) for e in range(2)]
            L += [f"v_cvt_pk_bf16_f32 v{UN+c}, v{UN+4+c}, v{UN+c}" for c in range(4)]
            return L
        def nwr(k): return [f"ds_write2st64_b32 v{vXW}, v{UN+c}, v{UN+c+1} offset0:{18*c+4*(3-k)} offset1:{18*(c+1)+4*(3-k)}" for c in (0, 2)]
        for l in nunp(0): a(l)
        RF = self.opt.get("rf", 0)
        a(f"L_MSW:\nds_read_b32 v11, v{vW4} offset:{C_MS}\n{nrd(0)}\ns_waitcnt lgkmcnt(0)\nv_cmp_eq_u32 vcc, 0, v11\ns_cbranch_vccnz L_MSW")
        self.stamp(4)
        for l in nmath(1) + nwr(0): a(l)
        self.arrive(C_XR, vW4, 11)
        if self.opt.get("cprio", 2) != self.opt.get("kprio", 2): a(f"s_setprio {self.opt.get('cprio', 2)}")

        acc = {nt: ACC+4*nt for nt in range(8)}
        started = set(); ZS = [176, 144, 148, 244] if KB else [236, 240, 252, 248]
        def mf(nt, A, B):
            c = Q(acc[nt]) if nt in started else "0"
            started.add(nt)
            return f"{MFMA} {Q(acc[nt])}, {Q(A)}, {Q(B)}, {c}"
        def itB(u):
            tiles = [nt for nt in range(8) if 0 <= 8*nt-u <= 32]
            return (lambda r: [f"ds_read_b128 {Q(r)}, v{vB} offset:{64*(56-u)}"], lambda r: [mf(nt, AR+4*(8*nt-u), r) for nt in tiles], ("B", u))
        def itBox(S, ty):
            off = 64*(56-8*S) + 16*ty; d = ACC+16+8*min(S, 1)+4*ty
            return (lambda r: [f"ds_read_b128 {Q(r)}, v{vB} offset:{off}"], lambda r: [f"{MFMA} {Q(d)}, {Q(r)}, {Q(BXA if ty else BXB)}, 0"], ("X", S, ty))
        def itK3(D, pairs):
            return (lambda r: [f"ds_read_b64 {P(r)}, v{vK3} offset:{K3O+24+32*D}", f"ds_read_b64 {P(r+2)}, v{vK3} offset:{K3O+24+32*D+640}"],
                    lambda r: [mf(4+Tt, ZS[S], r) for (Tt, S) in pairs], ("K3", D, pairs[0][0]))
        items = [itB(-7), itBox(0,0), itBox(0,1), itB(-6), itBox(1,0), itBox(1,1), itB(-5), itB(-4), itB(-3), itB(-2), itB(-1)]
        for u in range(0, 57):
            items.append(itB(u))
            if u == 9: items += [itBox(2,0), itBox(2,1)]
            if u == 12: items += [itBox(3,0), itBox(3,1)]
            if u == 20: items.append(itK3(0, [(0,0),(1,1)]))
            if u == 28: items.append(itK3(1, [(1,0)]))
            if u == 42: items.append(itK3(0, [(2,2),(3,3)]))
            if u == 45: items.append(itK3(1, [(2,1),(3,2)]))
            if u == 47: items.append(itK3(2, [(2,0),(3,1)]))
            if u == 51: items.append(itK3(3, [(3,0)]))
        if KB:
            O = self.opt.get
            def bxm(S, ty, r): return [f"{MFMA} {Q(BT+8*ty)}, {Q(r)}, {Q(BX3)}, 0", f"{MFMA} {Q(BT+8*ty+4)}, {Q(r)}, {Q(BX5)}, 0"] + ([f"{MFMA} {Q(BT3+4*ty)}, {Q(r)}, {Q(BXA if ty else BXB)}, 0"] if S < 4 else [])
            def itB(u):
                tiles = [nt for nt in range(8) if 0 <= 8*nt-u <= 16 or 8*nt-u == 32]
                return (lambda r: [f"ds_read_b128 {Q(r)}, v{vB} offset:{64*(56-u)}"], lambda r: [mf(nt, AR+4*min(8*nt-u, 17), r) for nt in tiles], ("B", u))
            def itBox(S, ty): return (lambda r: [f"ds_read_b128 {Q(r)}, v{vB} offset:{64*(56-8*S) + 16*ty}"], lambda r: bxm(S, ty, r), ("X", S, ty))
            def itK2(S, h): return (None, lambda r: [mf(S+2+D, BT+8*h+2, KB2+8*D+4*h) for D in range(3) if S+2+D < 8], ("K2", S, h))
            XP_ = [O("x0", -7), O("x1", -1), O("x2", 10), O("x3", 17), O("x4", 26), O("x5", 36)]; KD_ = O("k2d", 3)
            K3P = {O("k3a", 22): (0, [(0,0),(1,1)]), O("k3b", 31): (1, [(1,0)]), 42: (0, [(2,2),(3,3)]), 45: (1, [(2,1),(3,2)]), 47: (2, [(2,0),(3,1)]), 51: (3, [(3,0)])}
            items = []; share = {}
            for u in range(-7, 57):
                items.append(itB(u))
                for S in range(6):
                    if u == XP_[S]:
                        items.append(itBox(S, 0))
                        if u == 8*S: share[("X", S, 0)] = ("B", u)
                    if u == XP_[S]+1: items.append(itBox(S, 1))
                    if u == XP_[S]+O(f"kd{S}", KD_): items.append(itK2(S, 0))
                    if u == XP_[S]+O(f"kd{S}", KD_)+O(f"ke{S}", 1): items.append(itK2(S, 1))
                if u in K3P: items.append(itK3(*K3P[u]))
            if O("k3s", 1): share[("K3", 0, 2)] = ("K3", 0, 0); share[("K3", 1, 2)] = ("K3", 1, 1)
            items = [(None,) + it[1:] if it[2] in share else it for it in items]
        pos = {it[2]: k for k, it in enumerate(items)}
        fill = {}; front = {}; dead = {}
        NR = 6; PD = self.opt.get("pd", 5)
        def addf(idx, L): fill.setdefault(idx, []).extend(L)
        def mark(name, idx): dead.setdefault(idx, []).append(name); return [("mark", name)]
        def zc(S):
            d = BT3 if KB else ACC+16+8*min(S, 1)
            z = ZS[S]
            return [f"v_cvt_pk_bf16_f32 v{z}, v{d+3}, v{d+2}", f"v_cvt_pk_bf16_f32 v{z+1}, v{d+1}, v{d}",
                    f"v_cvt_pk_bf16_f32 v{z+2}, v{d+7}, v{d+6}", f"v_cvt_pk_bf16_f32 v{z+3}, v{d+5}, v{d+4}"]
        def norm(k, vm): return [("lds", f"m{k}", nrd(k))] + ([f"s_waitcnt vmcnt({vm})"] if vm is not None else []) + nunp(k) + [("need", f"m{k}")] + nmath(0) + [("lds", None, l) for l in nwr(k)]
        addf(0, norm(1, 2) + [("rawlds", self.arr(C_KD, vW4, vONE))])
        addf(pos[("B",-5)], zc(0) + zc(1) + mark("z1", pos[("B",0)]))
        addf(pos[("B",0)], norm(2, 0) + ([("raw", self.refresh())] if RF == 4 else []))
        front[pos[("B",11)]] = zc(2) + mark("z2", pos[("X",3,0)])
        front[pos[("B",14)]] = zc(3) + mark("z3", pos[("B",16)])
        YF = [C_Y0, C_Y1, C_Y2, C_Y3]
        def ywrite(k):
            return [("lds", None, f"ds_write_b128 v{vYW}, {Q(acc[nt])} offset:{1024*nt}") for nt in (2*k, 2*k+1)] + [("rawlds", self.arr(YF[k], vW4, vONE))]
        def yread(k, tag):
            return [("lds", tag, f"ds_read_b64 {P(ACC+8*k+2*c)}, v{vYR} offset:{c*8192+2048*k}") for c in range(4)]
        def eaddr(k, e):
            fl = 12 + k//2; sh = 24 - 8*(2*(k%2)+e)
            if sh: return [f"v_lshlrev_b32 v{14+e}, {sh}, v{fl}", f"v_and_or_b32 v{14+e}, v{14+e}, s68, v{vXO}"]
            return [f"v_and_or_b32 v{14+e}, v{fl}, s68, v{vXO}"]
        def emath(k):
            Y = ACC+8*k; L = []
            if self.opt.get("ed"):
                for e in range(2):
                    for c in range(4): L.append(f"v_dot2_f32_bf16 v{UN+4*e+c}, v{RAW+4*k+2*e+c//2}, s{15 if c%2 else 36}, v{Y+2*c+e}")
                for e in range(2):
                    L.append(f"v_cvt_pk_bf16_f32 v{Y+2*e}, v{UN+4*e}, v{UN+4*e+1}")
                    L.append(f"v_cvt_pk_bf16_f32 v{Y+2*e+1}, v{UN+4*e+2}, v{UN+4*e+3}")
                return L
            for e in range(2):
                L += self.unp(UN+4*e, UN+4*e+1, RAW+4*k+2*e) + self.unp(UN+4*e+2, UN+4*e+3, RAW+4*k+2*e+1)
            for e in range(2):
                for c in range(4): L.append(f"v_add_f32 v{UN+4*e+c}, v{Y+2*c+e}, v{UN+4*e+c}")
            for e in range(2):
                L.append(f"v_cvt_pk_bf16_f32 v{Y+2*e}, v{UN+4*e}, v{UN+4*e+1}")
                L.append(f"v_cvt_pk_bf16_f32 v{Y+2*e+1}, v{UN+4*e+2}, v{UN+4*e+3}")
            return L
        def est(k, e):
            if self.opt.get("nost"): return []
            return [f"buffer_store_dwordx2 {P(ACC+8*k+2*e)}, v{14+e}, {SQ(rOUT)}, s{sO+k} offen offset:{2048*e} {'sc1' if (k >= DQ and self.opt.get('dsc')) else ''}"]
        DQ = self.opt.get("dq", 3)
        def yst(k):
            if k >= DQ: return eaddr(k, 0) + eaddr(k, 1) + est(k, 0) + est(k, 1)
            if self.opt.get("noy") and k < 3: return [f"L_EB{k}:", "s_add_u32 s13, s13, 0x1000"]
            return ["s_cmp_lg_u32 s14, 2", f"s_cbranch_scc1 L_ES{k}", f"buffer_store_dwordx4 {Q(ACC+8*k)}, v{vKW}, {SQ(rWS)}, s13 offen", f"L_EB{k}:", "s_add_u32 s13, s13, 0x1000"]
        YFM = self.opt.get("yfm", 1); CT = self.opt.get("ct")
        def yfl(k):
            if k >= DQ: return []
            if YFM: return ["s_waitcnt vmcnt(1)", "s_mov_b64 exec, 1", f"buffer_store_dword v{vTG}, off, {SQ(rWS)}, s12 offset:{512*k}", "s_mov_b64 exec, -1"]
            if self.opt.get("nyw") and k < 2: return ["s_mov_b64 exec, 1", f"buffer_store_dword v{vTG}, off, {SQ(rWS)}, s12 offset:{512*k}", "s_mov_b64 exec, -1"]
            return ["s_waitcnt vmcnt(0)", "s_mov_b64 exec, 1", f"buffer_store_dword v{vTG}, off, {SQ(rWS)}, s12 offset:{512*k}", "s_mov_b64 exec, -1"]
        def check(n, regs):
            L = []
            if len(regs) == 2: L.append(f"v_min_u32 v{regs[0]}, v{regs[0]}, v{regs[1]}")
            L += [f"v_cmp_eq_u32 vcc, 0, v{regs[0]}", f"s_cbranch_vccnz L_SLOW{n}", f"L_BACK{n}:"]
            return [("raw", L)]
        front[pos[("B", 9)]-PD-3] = [("lds", "n1", f"ds_read_b32 v11, v{vL4} offset:{C_KD}")]
        front[pos[("B", 9)]-PD-1] = [("need", "n1")] + check(3, [11]) + mark("n1", pos[("B", 9)]-PD)
        for k in range(3):
            p = pos[("B", 16*k+8)]
            d = (1, 3, 4, 6, 8, 14) if k < 2 else (1, 4, 6, 9, 12, 17)
            addf(p+d[0], ywrite(k))
            fr = [("lds", f"f{k}", f"ds_read_b32 v11, v{vL4} offset:{YF[k]}")]
            KS = min(DQ, 2)
            if k == KS: fr.append(("lds", f"f{k}", f"ds_read_b32 v15, v{vL4} offset:{C_SEL}"))
            addf(p+d[1], fr)
            addf(p+d[2], [("need", f"f{k}")] + check(k, [11, 15] if k == KS else [11]) + (mark(f"c{k}", pos[("B", 16*k+25)]-PD) if k < 2 else []) + ([("lds", f"y{k}", f"ds_read_b64 v[12:13], v{vT8} offset:{SELF}")] if k == KS else []) + yread(k, f"y{k}"))
            addf(p+d[3], [("need", f"y{k}")] + emath(k) + [("raw", yst(k))])
            if k == 0: addf(p+d[3], norm(3, None))
            if k < 2 and RF >> k & 1: addf(p+d[3], [("raw", self.refresh())])
            if CT == 2:
                TD = 204; vTA = 212; vOA = 213; vFA = 214; vF = 215; SF = 216; vSA = 217; OA = 218; t0 = 16
                fl = f"buffer_load_dword v{vF}, v{vFA}, {SQ(rWS)}, s34 offen sc1"
                if k == 1:
                    addf(p+d[3], f"""v_bfe_u32 v{t0}, v0, 4, 1
                    v_lshrrev_b32 v{t0+1}, 5, v0
                    v_and_b32 v{t0+2}, 15, v0
                    v_lshl_add_u32 v{vSA}, v{t0}, 3, s36
                    v_lshl_add_u32 v{vTA}, v{t0+2}, 1, v{t0+1}
                    v_lshlrev_b32 v{vTA}, 14, v{vTA}
                    v_lshl_add_u32 v{vTA}, v{t0}, 4, v{vTA}
                    v_lshl_add_u32 v{vOA}, v{t0}, 1, v{t0+1}
                    v_lshlrev_b32 v{vOA}, 11, v{vOA}
                    v_lshl_add_u32 v{vOA}, v{t0+2}, 4, v{vOA}
                    v_add_u32 v{vOA}, s35, v{vOA}
                    v_and_b32 v{vFA}, 31, v0
                    v_lshlrev_b32 v{vFA}, 2, v{vFA}
                    v_lshlrev_b32 v{t0+1}, 3, v{t0+1}""".split("\n"))
                    addf(pos[("B", self.opt.get("fa", 39))], [("raw", ["s_waitcnt vmcnt(0)"] + yfl(0)[1:])])
                if k == 2:
                    addf(p+d[2], [("lds", "y2", f"ds_read_b32 v{SF}, v{vSA} offset:{SELF}")])
                    fill[p+d[3]].insert(self.opt.get("fb", 1), fl)
            elif CT:
                if k == 2: addf(p+self.opt.get("fa", 2), [("raw", ["s_waitcnt vmcnt(0)"] + yfl(0)[1:])])
            elif YFM:
                if k: addf(p+d[3], [("raw", yfl(k-1))])
            elif k < 2: addf(p+d[5]+self.opt.get("yfd", 10), [("raw", yfl(k))])
        if self.opt.get("sch", 1):
            self.conv2(locals()); xfail()
            a("L_XSLOW:")
            for i in range(8): a(f"buffer_load_dwordx2 {P(RAW+2*i)}, v{vXO}, {SQ(rX)}, s{sO+i//2} offen offset:{2048*(i%2)}")
            a("s_waitcnt vmcnt(0)\ns_branch L_XBACK")
            return
        issued = []; done = [0]
        def lds(tag, text): a(text); issued.append(tag)
        def need(tag):
            last = max(i for i, t in enumerate(issued) if t == tag)
            if last >= done[0]:
                n = min(len(issued) - 1 - last, 15)
                a(f"s_waitcnt lgkmcnt({n})"); done[0] = len(issued) - n
        slot = lambda k: RB + 4*(k % NR)
        a(f"L_XRW:\nds_read_b32 v15, v{vL4} offset:{C_XR}")
        for k in range(PD):
            for l in items[k][0](slot(k)): lds(("it", k), l)
        a(f"s_waitcnt lgkmcnt({PD})\nv_cmp_eq_u32 vcc, 0, v15\ns_cbranch_vccnz L_XRW")
        a("v_cmp_ne_u32 vcc, 2, v15\ns_cmp_eq_u32 vcc_lo, 0\ns_cselect_b32 s14, 2, 1")
        self.stamp(6)
        if "cp0" not in self.opt: self.cst(14)
        queue = []; passed = set()
        def drain(n):
            while queue and n > 0:
                e = queue.pop(0)
                if isinstance(e, str): a(e); n -= 1
                elif e[0] == "need": need(e[1])
                elif e[0] == "mark": passed.add(e[1])
                elif e[0] == "lds": lds(e[1], e[2]); n -= 1
                elif e[0] == "raw":
                    for l in e[1]: a(l)
                    n -= 2
                elif e[0] == "rawlds":
                    for l in e[1]: a(l)
                    issued.append(None); n -= 2
        for k, it in enumerate(items):
            for nm in dead.get(k, []):
                while nm not in passed:
                    if queue[0][0] != "mark": print("; deadline drain", nm, queue[0], file=sys.stderr)
                    drain(1)
            if "cp0" in self.opt:
                st_ = self.opt.get("cps", 3)
                if (k - self.opt["cp0"]) % st_ == 0 and 0 <= (k - self.opt["cp0"])//st_ < 6: self.cst(10 + (k - self.opt["cp0"])//st_)
            else:
              for u_, i_ in ((0, 10), (16, 11), (32, 12), (44, 13)):
                if it[2] == ("B", u_): self.cst(i_)
            queue += fill.get(k, [])
            queue[0:0] = front.get(k, [])
            need(("it", k))
            ms = it[1](slot(k))
            for j, m in enumerate(ms):
                a(m)
                if j == 0 and k+PD < len(items):
                    for l in items[k+PD][0](slot(k+PD)): lds(("it", k+PD), l)
                    if len(ms) == 1 or k > pos[("B", 40)]: drain(1)
                else: drain(2 if k > pos[("B", 40)] or k < pos[("B", 0)] else 1 + (len(queue) > 8))
            if it[2] == ("B", 49): lds(None, f"ds_write_b128 v{vYW}, {Q(acc[6])} offset:{1024*6}")
        drain(1000)
        if "cp0" not in self.opt or self.opt["cp0"] + 5*self.opt.get("cps", 3) >= len(items): self.cst(15)
        self.stamp(7)
        a(f"ds_write_b128 v{vYW}, {Q(acc[7])} offset:{1024*7}")
        self.arrive(C_Y3, vW4, vONE)
        if not YFM:
            for l in yfl(2): a(l)
        em = emath(3)
        if CT == 2:
            tl = lambda k: f"buffer_load_dwordx4 {Q(TD+4*k)}, v{vTA}, {SQ(rWS)}, s{32+k} offen sc1"
            ts = lambda k: f"v_permlane32_swap_b32 v{TD+4*k}, v{TD+4*k+2}\nv_permlane32_swap_b32 v{TD+4*k+1}, v{TD+4*k+3}\nbuffer_store_dwordx4 {Q(TD+4*k)}, v{OA+k}, {SQ(rOUT)}, s{sO+k} offen {'sc1' if self.opt.get('osc', 1) else ''}"
            a(f"""s_waitcnt vmcnt(2)
            v_cmp_ne_u32 s[20:21], v{vTG}, v{vF}
            v_lshrrev_b32 v{SF}, v{t0+1}, v{SF}
            s_cmp_lg_u32 s20, 0
            s_cbranch_scc1 L_TN
            {tl(0)}
            {tl(1)}
            L_TN:
            v_lshlrev_b32 v{OA}, 24, v{SF}
            v_lshlrev_b32 v{OA+1}, 8, v{SF}
            v_and_or_b32 v{OA}, v{OA}, s68, v{vOA}
            v_and_or_b32 v{OA+1}, v{OA+1}, s68, v{vOA}""")
        for l in em[:8]: a(l)
        self.wait_flag(C_Y3, vL4, 11)
        for e in yread(3, None): a(e[2])
        a("s_waitcnt lgkmcnt(0)")
        for l in em[8:] + yst(3): a(l)
        self.stamp(8)
        if CT == 2:
            a(f"""
            s_cmp_lg_u32 s14, 2
            s_cbranch_scc1 L_FIN
            s_mov_b32 s21, 0
            s_cmp_eq_u32 s20, 0
            s_cbranch_scc1 L_TC
            L_TP:
            {fl}
            s_add_u32 s21, s21, 1
            s_waitcnt vmcnt(0)
            v_cmp_ne_u32 vcc, v{vTG}, v{vF}
            s_cbranch_vccz L_TALL
            s_sleep {self.opt.get("tsl", 1)}
            s_cmp_lt_u32 s21, 0x4000
            s_cbranch_scc1 L_TP
            L_TALL:
            {tl(0)}
            {tl(1)}
            s_waitcnt vmcnt(0)
            L_TC:
            s_waitcnt vmcnt(2)
            """)
            self.stamp(11)
            a(f"{ts(0)}\n{ts(1)}")
            if self.stamps: a("s_waitcnt vmcnt(0)")
            self.stamp(12)
        elif CT == 3:
            a("s_cmp_lg_u32 s14, 2\ns_cbranch_scc1 L_CNL")
            self.tsetup(2, K0, KREG, 64, 16)
            a("s_waitcnt vmcnt(0)")
            for l in yfl(1)[1:]: a(l)
            self.stamp(9)
            self.tpoll(64, 16, f"v{vTG}", self.opt.get("tsl", 1))
            self.tload(64, 16, 48)
            self.arrive(C_TL, vW4, vONE)
            if not self.opt.get("cst"): self.stamp(11)
            self.tstore(64, 16, 48)
            if self.stamps: a("s_waitcnt vmcnt(0)")
            self.stamp(12)
            a("s_branch L_FIN\nL_CNL:")
            self.arrive(C_TL, vW4, vONE)
        elif CT:
            TD = 48; vTA = 64; vOA = 65; vFA = 66; vF = 67; SF = 68; OA = 70; t0 = 74
            a(f"""
            s_cmp_lg_u32 s14, 2
            s_cbranch_scc1 L_FIN
            s_lshr_b32 s6, s2, 3
            s_and_b32 s5, s2, 7
            s_lshl_b32 s7, s6, 2
            s_add_u32 s7, s7, s58
            v_bfe_u32 v{t0}, v0, 4, 1
            v_lshrrev_b32 v{t0+1}, 5, v0
            v_and_b32 v{t0+2}, 15, v0
            s_lshl_b32 s8, s7, 4
            v_lshl_add_u32 v{t0+3}, v{t0}, 3, s8
            ds_read_b64 {P(SF)}, v{t0+3} offset:{SELF}
            v_lshl_add_u32 v{vTA}, v{t0+2}, 1, v{t0+1}
            v_lshlrev_b32 v{vTA}, 14, v{vTA}
            v_lshl_add_u32 v{vTA}, v{t0}, 4, v{vTA}
            v_lshl_add_u32 v{vOA}, v{t0}, 1, v{t0+1}
            v_lshlrev_b32 v{vOA}, 11, v{vOA}
            v_lshl_add_u32 v{vOA}, v{t0+2}, 4, v{vOA}
            s_lshl_b32 s8, s7, 13
            s_lshl_b32 s9, s5, 8
            s_add_u32 s8, s8, s9
            v_add_u32 v{vOA}, s8, v{vOA}
            v_and_b32 v{vFA}, 31, v0
            v_lshlrev_b32 v{vFA}, 2, v{vFA}
            v_lshl_add_u32 v{vFA}, v{t0+1}, 9, v{vFA}
            s_lshl_b32 s16, s5, 19
            s_lshl_b32 s8, s7, 5
            s_add_u32 s16, s16, s8
            s_add_u32 s16, s16, {WS_XT}
            s_add_u32 s17, s16, 0x1000
            s_add_u32 s18, s16, 0x2000
            s_add_u32 s19, s16, 0x3000
            s_lshl_b32 s20, s5, 12
            s_lshr_b32 s8, s6, 3
            s_lshl_b32 s8, s8, 7
            s_add_u32 s20, s20, s8
            s_add_u32 s20, s20, {WS_FL3}
            v_lshlrev_b32 v{t0+1}, 3, v{t0+1}
            s_mov_b32 s21, 0
            s_mov_b32 s22, 0
            s_waitcnt lgkmcnt(0)
            v_lshrrev_b32 v{SF}, v{t0+1}, v{SF}
            v_lshrrev_b32 v{SF+1}, v{t0+1}, v{SF+1}
            """)
            for k in range(4): a(f"v_lshlrev_b32 v{OA+k}, {24 if k % 2 == 0 else 8}, v{SF+k//2}")
            for k in range(4): a(f"v_and_or_b32 v{OA+k}, v{OA+k}, s68, v{vOA}")
            a("s_waitcnt vmcnt(0)")
            for l in yfl(1)[1:]: a(l)
            self.stamp(9)
            tl = lambda k: f"buffer_load_dwordx4 {Q(TD+4*k)}, v{vTA}, {SQ(rWS)}, s{16+k} offen sc1"
            ts = lambda k: f"v_permlane32_swap_b32 v{TD+4*k}, v{TD+4*k+2}\nv_permlane32_swap_b32 v{TD+4*k+1}, v{TD+4*k+3}\nbuffer_store_dwordx4 {Q(TD+4*k)}, v{OA+k}, {SQ(rOUT)}, s{sO+k} offen {'sc1' if self.opt.get('osc', 1) else ''}"
            a(f"""
            L_TP:
            buffer_load_dword v{vF}, v{vFA}, {SQ(rWS)}, s20 offen sc1
            s_add_u32 s21, s21, 1
            s_waitcnt vmcnt(0)
            v_cmp_ne_u32 vcc, v{vTG}, v{vF}
            s_cmp_eq_u32 vcc_hi, 0
            s_cbranch_scc1 L_TALL
            s_or_b32 s8, vcc_lo, s22
            s_cbranch_scc1 L_TSL
            s_bcnt1_i32_b32 s8, vcc_hi
            s_cmp_lt_u32 s8, {self.opt.get("tth", 0)}
            s_cbranch_scc1 L_TSL
            {tl(0)}
            {tl(1)}
            s_mov_b32 s22, 1
            s_waitcnt vmcnt(1)
            {ts(0)}
            s_waitcnt vmcnt(1)
            {ts(1)}
            L_TSL:
            s_sleep {self.opt.get("tsl", 1)}
            s_cmp_lt_u32 s21, 0x4000
            s_cbranch_scc1 L_TP
            L_TALL:
            {tl(2)}
            {tl(3)}
            """)
            self.stamp(11)
            a(f"""
            s_cmp_lg_u32 s22, 0
            s_cbranch_scc1 L_TB
            {tl(0)}
            {tl(1)}
            s_waitcnt vmcnt(0)
            {ts(0)}
            {ts(1)}
            s_branch L_TC
            L_TB:
            s_waitcnt vmcnt(0)
            L_TC:
            {ts(2)}
            {ts(3)}
            """)
            if self.stamps: a("s_waitcnt vmcnt(0)")
            self.stamp(12)
        else:
            if YFM:
                for l in yfl(2): a(l)
            for l in yfl(3): a(l)
            if self.stamps or self.opt.get("gamp") == 9:
                a("s_waitcnt vmcnt(0)")
                self.stamp(9)
        a("s_branch L_FIN")
        for n in range(3):
            a(f"L_SLOW{n}:")
            self.wait_flag(YF[n], vL4, 11)
            if n == KS: self.wait_flag(C_SEL, vL4, 11)
            a(f"s_branch L_BACK{n}")
        a("L_SLOW3:")
        self.wait_flag(C_KD, vL4, 11)
        a("s_branch L_BACK3")
        for k in range(DQ):
            a(f"L_ES{k}:")
            if k < KS:
                self.wait_flag(C_SEL, vL4, 11)
                a(f"ds_read_b64 v[12:13], v{vT8} offset:{SELF}\ns_waitcnt lgkmcnt(0)")
            for l in eaddr(k, 0) + eaddr(k, 1) + est(k, 0) + est(k, 1): a(l)
            a(f"s_branch L_EB{k}")
        xfail()
        a("L_XSLOW:")
        for i in range(8): a(f"buffer_load_dwordx2 {P(RAW+2*i)}, v{vXO}, {SQ(rX)}, s{sO+i//2} offen offset:{2048*(i%2)}")
        a("s_waitcnt vmcnt(0)\ns_branch L_XBACK")

    def conv2(self, E):
        a = self.a; O = self.opt.get; SB = self.SB
        items, pos, acc, started = E["items"], E["pos"], E["acc"], E["started"]
        AR, RB, ACC, UN, RAW = E["AR"], E["RB"], E["ACC"], E["UN"], E["RAW"]
        vW4, vONE, vL4, vYW, vYR, vT8, vKW, vTG = (E[k] for k in "vW4 vONE vL4 vYW vYR vT8 vKW vTG".split())
        nrd, nunp, nmath, nwr, zc, emath, yread, eaddr, est, YF = (E[k] for k in "nrd nunp nmath nwr zc emath yread eaddr est YF".split())
        LAT = O("lat", 6); DMIN = O("dmin", 18); DMAX = O("dmax", 24); WB = O("wb", 4); FD = O("fd", 4); NX = O("nx", 1); BUD = O("bud", 2); TH = O("th", 1)
        cnt = [len(it[1](0)) for it in items]; started.clear()
        g0 = [sum(cnt[:k]) for k in range(len(items)+1)]; NM = g0[-1]
        G = lambda key: g0[pos[key]]
        op = lambda t, c=1, lds=(), name=None, at=0, aft={}, need=None, src=None: dict(t=[t] if isinstance(t, str) else t, c=c, lds=list(lds), name=name, at=at, aft=dict(aft), need=need, src=src)
        mline = {}
        V = lambda L, **k: [op(l, 2 if l.startswith("v_rcp") else 1, **(k if i == 0 else {})) for i, l in enumerate(L)]
        def flag(off, name, **k):
            if NX: return op(f"ds_write_b32 v{vW4}, v{vONE} offset:{off}", 1, [None], name, **k)
            return op(self.arr(off, vW4, vONE), 3, [None], name, **k)
        def norm(k, vm, **kw):
            return [op(nrd(k), 1, [f"m{k}"], f"m{k}", **kw)] + ([op(f"s_waitcnt vmcnt({vm})", name=f"vm{k}")] if vm is not None else []) + V(nunp(k)) + [op([], 0, need=f"m{k}", aft={f"m{k}": LAT})] + V(nmath(0)) + [op(l, 2, [None], f"n{k}w" if i else None) for i, l in enumerate(nwr(k))]
        def check(off, n, name, **kw):
            return [op(f"ds_read_b32 v11, v{vL4} offset:{off}", 1, [name+"r"], name+"r", **kw), op([], 0, need=name+"r", aft={name+"r": LAT}), op("v_cmp_eq_u32 vcc, 0, v11", name=name+"c"),
                    op([f"s_cbranch_vccnz L_SLOW{n}", f"L_BACK{n}:"], 1, name=name, aft={name+"c": 1})]
        yw = lambda nt, **kw: op(f"ds_write_b128 v{vYW}, {Q(acc[nt])} offset:{1024*nt}", WB, [None], f"W{nt}", src=G(("B", 8*nt)), **kw)
        st = lambda k: f"buffer_store_dwordx4 {Q(ACC+8*k)}, v{vKW}, {SQ(rWS)}, s{32+k} offen {'sc1' if O('ysc', 0) >> k & 1 else ''}"
        U = norm(1, 2) + [flag(C_KD, "kd")] + norm(2, 0 if O("sg0") != 0 else None)
        if O("n3e"): U += norm(3, None)
        S = [yw(0)] + check(C_KD, 3, "n1", aft={"kd": O("kdd", 8)})
        for k in range(3):
            em = emath(k)
            NU = 0 if O("ed") else 8
            U += V(em[:NU]) + [op([], 0, need=f"y{k}", aft={f"y{k}": LAT})] + V(em[NU:]) + [op(st(k), 2, name=f"st{k}")]
            if k == 0 and not O("n3e"): U += norm(3, None)
            if k: S += [yw(2*k)]
            S += [yw(2*k+1), flag(YF[k], f"f{k}", aft={f"n{k+2}w": 0} if k < 2 else {})] + check(YF[k], k, f"c{k}", aft={f"f{k}": FD}) + [op(e[2], 1, [f"y{k}"], f"y{k}" if i == 3 else None) for i, e in enumerate(yread(k, None))]
            if k == 1 and TH: S += check(C_SEL, 4, "sel")
        S += [yw(6)]
        TV = 172 if TH else 64; T = []
        if TH:
            k0_ = len(a.lines); self.tsetup(2, K0, KREG, TV, 16); TL_ = [l.strip() for l in a.lines[k0_:] if l.strip()]; del a.lines[k0_:]
            if E["KB"]: TV = self.TVM; TL_ = self.TLate
            for l in TL_:
                if l.startswith("ds_"): T.append(op(l, 1, ["ts"], "ts", aft={"sel": 0}))
                elif l.startswith("s_waitcnt"): T.append(op([], 0, need="ts", aft={"ts": LAT}))
                else: T.append(op(l))
            T[0]["at"] = g0[pos[("B", 25)]+1] + 1
        KB = E["KB"]; BT = E["BT"]; share = E.get("share", {})
        def z2(S, h):
            d = BT+8*h
            return V([f"v_cvt_pk_bf16_f32 v{d+2}, v{d+3}, v{d+2}", f"v_cvt_pk_bf16_f32 v{d+3}, v{d+1}, v{d}"], src=G(("X", S, h))) + V([f"v_cvt_pk_bf16_f32 v{d+5}, v{d+5}, v{d+4}", f"v_cvt_pk_bf16_f32 v{d+4}, v{d+7}, v{d+6}"], src=G(("X", S, h))+1) + [op([], 0, name=f"y{S}{h}z")]
        if KB:
            Z = []
            for i in range(6):
                Z += z2(i, 0) + (V(zc(i)[:2], src=G(("X", i, 0))+2) if i < 4 else []) + z2(i, 1) + (V(zc(i)[2:], src=G(("X", i, 1))+2) + [op([], 0, name=f"z{i}")] if i < 4 else [])
            if TH: T[0]["at"] = 0; T[0]["aft"]["z3"] = 0
        else: Z = sum([V(zc(i), src=G(("X", i, 0))) + [op([], 0, name=f"z{i}")] for i in range(4)], [])
        fl = lambda k: ["s_mov_b64 exec, 1", f"buffer_store_dword v{vTG}, off, {SQ(rWS)}, s12 offset:{512*k}", "s_mov_b64 exec, -1"]
        A = [op("s_waitcnt vmcnt(0)", at=O("fag", 203), aft={"st1": 1}), op(fl(0), 3, name="fa")]
        SEN = O("sen", 1); SR = acc[5]; N_ = []
        fld = lambda o: ["s_mov_b32 exec_hi, 0", f"buffer_load_dword v{TV+5}, v{TV+7}, {SQ(rWS)}, s{SB+6} offen sc1", "s_mov_b32 exec_hi, -1"]
        if SEN:
            assert TH
            SG = O("sg0", 173)
            if 0 < SG < 60: Z[10:10] = V([f"v_mov_b32 v{SR+i}, -1" for i in range(4)], at=SG) + [op(f"buffer_store_dwordx4 {Q(SR)}, v{vKW}, {SQ(rWS)}, s{34+i} offen", 2, name="sen", aft={"vm2": 0}) for i in range(2)]
            elif SG:
                SR = ACC+4
                A[0]["aft"]["sen"] = 1
                (N_ if KB else Z).extend(V([f"v_mov_b32 v{SR+i}, -1" for i in range(4)], aft={"st0": 0}, at=O("sgm", 0)) + [op(f"buffer_store_dwordx4 {Q(SR)}, v{vKW}, {SQ(rWS)}, s{34+i} offen", 2, name="sen" if i else None, at=SG+O("sgd", 0)*i) for i in range(2)])
            T += ([] if KB else [op("s_sub_u32 s22, s20, 512")]) + [op(f"v_mov_b32 v{TV+5}, v{vTG}", name="tsd")]
            A += [op(fld(0), 3, name="fl", at=O("flg", 222), aft={"tsd": 1})]
        chains = [S, Z, N_, T, A, U] if KB else [S, Z, A, U, T]
        zdead = {G(("B", 8))+2: "sen" if SEN and 0 < SG < 60 else "z0", G(("B", 0))+4: "z0", G(("X", 2, 0)): "z1", G(("X", 3, 0)): "z2", G(("B", 16))+4: "z3"}
        if KB:
            zdead = {G(("K2", i, h)): f"y{i}{h}z" for i in range(6) for h in range(2)}
            for i in range(1, 4): zdead[G(("X", i, 0))+2] = f"z{i-1}"
            for i in range(1, 6):
                for h in range(2): assert pos[("K2", i-1, h)] < pos[("X", i, h)] and pos[("K2", i, 1)] < pos[("B", 8*i+16)]
            zdead[G(("K3", 0, 0))] = "z1"; zdead[G(("K3", 0, 2))] = "z3"
        def req(k):
            key = items[k][2]
            u = key[1] if key[0] == "B" else 8*key[1] if key[0] == "X" else 0
            return [None, "n1", "c0", "c1"][max(0, (32*u+255)//512)]
        issued = []; itime = []; done = [0]; when = {}; cur = [-1]
        def emit(t, tags):
            for l in t: a(l)
            for tg in tags: issued.append(tg); itime.append(cur[0])
        def need(tag, dry=False):
            last = max(i for i, t in enumerate(issued) if t == tag)
            if last < done[0]: return 0
            if not dry:
                last = max([last] + [i for i, t in enumerate(itime) if t <= cur[0] - LAT])
                n = min(len(issued) - 1 - last, 15)
                a(f"s_waitcnt lgkmcnt({n})"); done[0] = len(issued) - n
            return 1
        free = [(RB+4*i, -1) for i in range(6)]; reg = {}; nxt = [0]
        if KB:
            free.append((E["BT3"], g0[pos[("K2", 3, 1)]+1]+4))
            for r_, key in ((AR+68, ("B", 24)), (E["KB2"]+16, ("K2", 3, 0)), (E["KB2"]+20, ("K2", 3, 1)), (E["KB2"]+8, ("K2", 4, 0)), (E["KB2"]+12, ("K2", 4, 1)), (E["BX3"], ("X", 5, 1)), (E["BX5"], ("X", 5, 1)),
                            (E["KB2"], ("K2", 5, 0)), (E["KB2"]+4, ("K2", 5, 1)), (BT, ("K2", 5, 1)), (BT+4, ("K2", 5, 1)), (BT+8, ("K2", 5, 1)), (BT+12, ("K2", 5, 1))): free.append((r_, g0[pos[key]+1]))
            zdead[g0[pos[("K2", 3, 1)]+1]+4] = "z3"
        for d in range(16 if KB else 30 if TH else 32, 8, -1): free.append((AR+4*d, g0[pos[("B", 56-d)]+1]))
        def can_read():
            while nxt[0] < len(items) and items[nxt[0]][0] is None: reg[nxt[0]] = reg.get(pos.get(share.get(items[nxt[0]][2]))); nxt[0] += 1
            k = nxt[0]
            if k >= len(items): return False
            r = req(k)
            return (r is None or r in when) and any(t <= cur[0] for _, t in free)
        def read():
            k = nxt[0]; nxt[0] += 1
            i = [j for j, (_, t) in enumerate(free) if t <= cur[0]][0]
            reg[k] = free.pop(i)[0]; free.append((reg[k], g0[max([k] + [pos[x] for x, y in share.items() if y == items[k][2]])+1]))
            L = items[k][0](reg[k]); emit(L, [("it", k)]*len(L)); return len(L)
        nins = lambda i: sum(1 for l in a.lines[i:] if l.strip() and not l.strip().endswith(":"))
        def ready(o): return cur[0] >= o["at"] and (o["src"] is None or (o["src"] in mline and nins(mline[o["src"]]) >= 8)) and all(n in when and cur[0] >= when[n] + d for n, d in o["aft"].items())
        def run(ch):
            o = ch.pop(0); c = o["c"]
            if o["need"]: c = need(o["need"])
            emit(o["t"], o["lds"])
            if o["name"]: when[o["name"]] = cur[0]
            return c
        a(f"L_XRW:\nds_read_b32 v15, v{vL4} offset:{C_XR}")
        for k in range(6): can_read(); read()
        a(f"s_waitcnt lgkmcnt(6)\nv_cmp_eq_u32 vcc, 0, v15\ns_cbranch_vccnz L_XRW")
        a("v_cmp_ne_u32 vcc, 2, v15\ns_cmp_eq_u32 vcc_lo, 0\ns_cselect_b32 s14, 2, 1")
        self.stamp(6)
        if "cp0" not in self.opt: self.cst(14)
        over = 0
        for k, it in enumerate(items):
            if "cp0" in self.opt:
                st_ = O("cps", 3)
                if (k - O("cp0")) % st_ == 0 and 0 <= (k - O("cp0"))//st_ < 6: self.cst(10 + (k - O("cp0"))//st_)
            else:
                for u_, i_ in ((0, 10), (16, 11), (32, 12), (44, 13)):
                    if it[2] == ("B", u_): self.cst(i_)
            can_read()
            assert nxt[0] > k, ("item not read", it[2])
            if it[0]:
                if cur[0] - itime[max(i for i, t in enumerate(issued) if t == ("it", k))] < LAT and k > 5: print("; late read", it[2], cur[0], file=sys.stderr)
                need(("it", k))
            for j, m in enumerate(it[1](reg[k])):
                cur[0] += 1
                if cur[0] in zdead: assert zdead[cur[0]] in when, zdead[cur[0]]
                a(m); mline[cur[0]] = len(a.lines)
                bud = BUD + (1 if O('b0', 0) <= cur[0] < O('b1', 0) and cur[0] % O('bm', 2) == 0 else 0)
                if j == cnt[k]-1 and k+1 < len(items) and nxt[0] > k+1 and items[k+1][0]: bud -= need(("it", k+1), True)
                full = bud
                def pick(cs):
                    ch = [c for c in cs if c and ready(c[0]) and ((need(c[0]["need"], True) if c[0]["need"] else c[0]["c"]) <= bud or (bud == full and bud > 0))]
                    return ch[0] if ch else None
                ZU = [Z, U] if not KB else [Z, N_, T, U] if cur[0] >= O("tq", O("tp", 150)) else [Z, N_, U] if cur[0] >= O("tp", 150) else [Z, U, N_]
                rd = lambda D: can_read() and bud > 0 and g0[nxt[0]] - cur[0] <= D
                while True:
                    if rd(LAT+2): bud -= read()
                    elif pick([S, A]): bud -= run(pick([S, A]))
                    elif rd(DMIN): bud -= read()
                    elif pick(ZU): bud -= run(pick(ZU))
                    elif rd(DMAX if cur[0] < O("tg0", 150) else 99): bud -= read()
                    elif pick([T]): bud -= run(T)
                    else: break
                over += max(0, -bud)
        print("; sched over", over, {k: v for k, v in when.items() if k[0] in "cfsWz" or k in ("kd", "n1")}, [len(c) for c in chains], file=sys.stderr)
        cur[0] = 999
        for ch in chains:
            while ch: run(ch)
        em = emath(3)
        for l in em[:NU]: a(l)
        a(f"ds_write_b128 v{vYW}, {Q(acc[7])} offset:{1024*7}")
        if "cp0" not in self.opt or O("cp0") + 5*O("cps", 3) >= len(items): self.cst(15)
        self.stamp(7)
        if NX: a(f"ds_write_b32 v{vW4}, v{vONE} offset:{C_Y3}")
        else: self.arrive(C_Y3, vW4, vONE)
        if TH: a(f"L_Y3W:\nds_read_b32 v14, v{vL4} offset:{C_Y3}")
        else: a(f"L_Y3W:\nds_read2_b32 v[14:15], v{vL4} offset0:{C_Y3//4} offset1:{C_SEL//4}")
        for e in yread(3, None): a(e[2])
        a(f"s_waitcnt lgkmcnt(4)\n{'' if TH else 'v_min_u32 v14, v14, v15'}\nv_cmp_eq_u32 vcc, 0, v14\ns_cbranch_vccnz L_Y3W\ns_waitcnt lgkmcnt(0)")
        for l in em[NU:] + [st(3)]: a(l)
        self.stamp(8)
        a("s_cmp_lg_u32 s14, 2\ns_cbranch_scc1 L_CNL")
        if SEN:
            nv = sum(1 for k in ("st2",) if when[k] > when["fl"]) + 1
            D = 48; tl = lambda i: f"buffer_load_dwordx4 {Q(D+4*i)}, v{TV}, {SQ(rWS)}, s{SB+i} offen sc1"
            a(f"""s_waitcnt vmcnt({nv})
            v_cmp_ne_u32 vcc, v{vTG}, v{TV+5}
            s_cbranch_vccnz L_FAW
            L_FAK:
            {tl(0)}
            {tl(1)}
            s_waitcnt vmcnt(2)""")
            for l in fl(1): a(l)
            self.stamp(9)
            if O("tle", 0) == 1: self.arrive(C_TL, vW4, vONE)
            a(f"""s_waitcnt vmcnt(1)
            L_DP:
            v_max3_u32 v{D+8}, v{D}, v{D+1}, v{D+2}
            v_max3_u32 v{D+9}, v{D+4}, v{D+5}, v{D+6}
            v_max_u32 v{D+8}, v{D+8}, v{D+3}
            v_max_u32 v{D+9}, v{D+9}, v{D+7}
            v_cmp_eq_u32 s[8:9], -1, v{D+8}
            v_cmp_eq_u32 s[10:11], -1, v{D+9}
            s_or_b64 vcc, s[8:9], s[10:11]
            {"s_branch L_DF" if O("forcen") else "s_cbranch_vccnz L_DR"}
            L_DOK:""")
            if not O("tle", 0): self.arrive(C_TL, vW4, vONE)
            if not O("cst"): self.stamp(11)
        else:
            if not TH: self.tsetup(2, K0, KREG, TV, 16)
            a("s_waitcnt vmcnt(0)")
            for l in fl(1): a(l)
            self.stamp(9)
            self.tpoll(TV, SB, f"v{vTG}", O("tsl", 1))
            self.tload(TV, SB, 48)
            self.arrive(C_TL, vW4, vONE)
            if not O("cst"): self.stamp(11)
        self.tstore(TV, SB, 48, mod=O('oc'), novm=SEN)
        if O("tle", 0) >= 2:
            if O("tle") > 2: a(f"s_waitcnt vmcnt({4-O('tle')})")
            self.arrive(C_TL, vW4, vONE)
        if "ag" in self.opt:
            a("v_mov_b32 v11, 2\ns_waitcnt vmcnt(0)"); self.arrive(C_TL, vW4, 11)
        if self.stamps: a("s_waitcnt vmcnt(0)")
        self.stamp(12)
        if SEN:
            a(f"""s_branch L_FIN
            L_DR:
            s_add_u32 s{SB+5}, s{SB+5}, 1
            s_cmp_ge_u32 s{SB+5}, {O("dlim", 48)}
            s_cbranch_scc1 L_DF
            {"s_sleep %d" % O("dsl") if O("dsl", 0) else ""}
            s_cmp_eq_u64 s[8:9], 0
            s_cbranch_scc1 L_DS0
            {tl(0)}
            L_DS0:
            s_cmp_eq_u64 s[10:11], 0
            s_cbranch_scc1 L_DS1
            {tl(1)}
            L_DS1:
            s_waitcnt vmcnt(0)
            s_branch L_DP
            L_DF:
            s_mov_b32 s{SB+5}, 0""")
            self.tpoll(TV, SB, f"v{vTG}", O("tsl", 1))
            self.tload(TV, SB, 48)
            a(f"s_waitcnt vmcnt(0)\ns_branch L_DOK\nL_FAW:\ns_mov_b32 s{SB+7}, 0")
            self.tpoll(TV, SB+2, f"v{vTG}", O("tsl", 1))
            a("s_branch L_FAK")
        a("s_branch L_FIN\nL_CNL:")
        if "ag" in self.opt: a(f"v_mov_b32 v{vONE}, 2")
        self.arrive(C_TL, vW4, vONE)
        a(f"ds_read_b64 v[12:13], v{vT8} offset:{SELF}\ns_waitcnt lgkmcnt(0)")
        for k in range(4):
            for l in eaddr(k, 0) + eaddr(k, 1) + est(k, 0) + est(k, 1): a(l)
        a("s_branch L_FIN")
        for n, off in enumerate(YF[:3] + [C_KD] + ([C_SEL] if TH else [])):
            a(f"L_SLOW{n}:")
            self.wait_flag(off, vL4, 11)
            a(f"s_branch L_BACK{n}")

    def fmain(self):
        a = self.a
        GUR = 112; GUF = 48
        WDR = 176; WDF = 112
        XS = 208
        ACC = 16
        vL4 = 1; vW4 = 2; vPW = 3; vPR = 4; vONE = 5; vRS = 6; vE = 7; vNM = 8; vXO = 9
        PRM = 224; TCH = 216
        sSG = 59; sK = 68
        X0 = 16; W0 = 32; S = 48
        a(f"""
        L_F0:
        s_setprio 2
        s_mov_b32 s{sO+1}, {WS_STAT}
        s_lshl_b32 s7, s2, 2
        s_add_u32 s7, s7, s{sW}
        s_lshl_b32 s13, s2, {7 if self.opt.get("ss") else 6}
        s_add_u32 s13, s13, {WS_STAT}
        s_lshl_b32 s8, s7, 12
        v_and_b32 v10, 31, v0
        v_lshlrev_b32 v10, 4, v10
        v_lshrrev_b32 v11, 5, v0
        v_lshl_add_u32 v11, v11, 11, v10
        v_add_u32 v11, s8, v11
        s_cmp_lt_u32 s6, 28
        s_cselect_b32 s{sROLE}, 1, 0
        s_lshr_b32 s8, s6, 2
        s_add_u32 s9, s5, 3
        s_and_b32 s9, s9, 7
        s_min_u32 s9, s9, 6
        s_cmp_lt_u32 s6, 28
        s_cselect_b32 s8, s8, s9
        s_mul_i32 s{sSG}, s5, 7
        s_add_u32 s{sSG}, s{sSG}, s8
        s_and_b32 s{sK}, s6, 3
        s_lshl_b32 s8, s{sK}, 2
        s_add_u32 s8, s8, s{sW}
        s_lshl_b32 s8, s8, 6
        s_xor_b32 s9, s{sROLE}, 1
        s_lshl_b32 s9, s9, 5
        s_add_u32 s8, s8, s9
        v_lshrrev_b32 v12, 4, v0
        v_lshl_add_u32 v12, v12, 3, s8
        v_lshlrev_b32 v{vXO}, 1, v12
        s_movk_i32 s10, 7168
        v_mul_u32_u24 v14, s10, v12
        v_and_b32 v12, 7, v0
        v_lshl_add_u32 v14, v12, 4, v14
        s_lshl_b32 s8, s{sSG}, 7
        v_add_u32 v14, s8, v14
        v_and_b32 v12, 8, v0
        v_cmp_ne_u32 vcc, 0, v12
        """)
        self.est(6)
        a("s_waitcnt lgkmcnt(0)")
        self.est(7)
        for i in range(4): a(f"global_load_dwordx4 {Q(X0+4*i)}, v11, {SP(sX)} offset:{512*i} {'nt' if self.opt.get('xnt') else ''}")
        self.wsb()
        a(f"s_load_dword s{sTAG}, {SP(sWS)}, 0")
        for i in range(4): a(f"global_load_dwordx4 {Q(W0+4*i)}, v10, {SP(sWR)} offset:{512*i}")
        a(f"""
        v_mov_b32 v12, s{sWGT}
        v_mov_b32 v13, s{sWGT+1}
        v_mov_b32 v10, s{sWU}
        v_mov_b32 v11, s{sWU+1}
        v_cndmask_b32 v12, v12, v10, vcc
        v_cndmask_b32 v13, v13, v11, vcc
        v_add_co_u32 v220, vcc, v12, v14
        s_movk_i32 s20, 7168
        s_mov_b32 s21, 0
        v_addc_co_u32 v221, vcc, 0, v13, vcc
        """)
        self.est(8)
        a("s_barrier")
        self.est(9)
        NE = self.opt.get("ne", 8)
        GA = "v[220:221]"; S1, S2 = "s[20:21]", "s[22:23]"
        gl = []
        for s in range(2):
            for j in range(8):
                gl.append([f"global_load_dwordx4 {Q(GUR+32*s+4*j)}, {GA}, off {'nt' if self.opt.get('gnt') else ''}"] + ([f"v_lshl_add_u64 {GA}, {S1 if j < 7 else S2}, 0, {GA}"] if (s, j) != (1, 7) else []))
        if self.opt.get("nog"): gl = [[x[0].replace("global_load_dwordx4", "global_load_dword").replace(Q(GUR+4*i), f"v{GUR+4*i}")] for i, x in enumerate(gl)]
        TL = 64; TT = 80; RAW = 64; sLOC = 60
        if True:
            self.srd(rX, sX, 0x400000); self.srd(rOUT, sOUT, 0x400000)
            a(f"""
            s_lshl_b32 s8, s6, 17
            s_lshl_b32 s9, s{sW}, 15
            s_add_u32 s8, s8, s9
            s_lshl_b32 s9, s5, 8
            s_add_u32 s8, s8, s9
            s_add_u32 s9, s8, 4096
            v_lshrrev_b32 v10, 4, v0
            v_and_b32 v11, 15, v0
            v_lshlrev_b32 v11, 4, v11
            v_lshl_add_u32 v14, v10, 13, v11
            """)
            for i in range(4): a(f"buffer_load_dwordx4 {Q(TL+4*i)}, v14, {SQ(rX)}, s{8+i//2} offen offset:{2048*(i%2)}")
            GE = self.opt.get("ge", 0); GP_ = self.opt.get("gp", 0)
            def gearly(p):
                if GP_ == p:
                    for i in range(GE): a("\n".join(gl[i]))
            gearly(0)
            a(f"""
            s_mul_i32 s8, s{sW}, {XSTR}
            s_add_u32 s8, s8, {XR0}
            s_movk_i32 s9, 1088
            v_mad_u32_u24 v96, v10, s9, v11
            v_add_u32 v96, s8, v96
            v_and_b32 v10, 7, v0
            v_lshrrev_b32 v11, 3, v0
            s_movk_i32 s9, 544
            v_lshl_add_u32 v97, v11, 3, s8
            v_mad_u32_u24 v97, v10, s9, v97
            v_lshlrev_b32 v98, 4, v10
            v_lshl_add_u32 v98, v11, 14, v98
            s_lshl_b32 s18, s5, 19
            s_lshl_b32 s9, s6, 9
            s_add_u32 s18, s18, s9
            s_lshl_b32 s9, s{sW}, 7
            s_add_u32 s18, s18, s9
            s_add_u32 s18, s18, {WS_XT}
            s_getreg_b32 s19, hwreg(HW_REG_XCC_ID, 0, 4)
            s_mov_b32 s22, {25*7168}
            s_cmp_eq_u32 s{sROLE}, 1
            s_cselect_b32 s22, s22, {(-39*7168)&0xffffffff:#x}
            s_cselect_b32 s23, 0, -1
            s_lshl_b32 s62, s5, 2
            s_bfe_u32 s9, s6, 0x20001
            s_add_u32 s62, s62, s9
            s_lshl_b32 s62, s62, 12
            s_lshr_b32 s9, s6, 3
            s_lshl_b32 s9, s9, 1
            s_add_u32 s62, s62, s9
            s_and_b32 s9, s6, 1
            s_add_u32 s62, s62, s9
            s_lshl_b32 s62, s62, 2
            s_add_u32 s62, s62, {WS_FL2}
            s_lshl_b32 s19, s19, 1
            s_lshl_b32 s9, s5, 2
            s_lshl_b32 s40, 15, s9
            s_mov_b32 s41, s40
            """)
            self.srd(rWS, sWS, WS_SIZE); self.srd(rD, sWD, 3584*2048)
        SS = self.opt.get('ss', 0); T = 224; TP = 16; E = T+8; KP = 32; CR = T+24; XT = 64
        def kpl():
            for i, so in enumerate((sO+1, 5, 6, 7)): a(f"buffer_load_dwordx4 {Q(KP+4*i)}, v{T+2}, {SQ(rWS)}, s{so} offen sc1")
        a(f"""
        s_lshl_b32 s7, s{sW}, 2
        v_mov_b32 v{vW4}, s7
        v_and_b32 v11, 3, v0
        v_lshlrev_b32 v{vL4}, 2, v11
        v_mov_b32 v{vONE}, 1
        s_lshl_b32 s8, s{sW}, 6
        v_add_u32 v14, s8, v0
        v_lshlrev_b32 v{T+2}, 4, v14
        {"v_and_b32 v10, -4, v14" if SS else ""}
        {"v_lshl_add_u32 v%d, v10, 4, v%d" % (T+2, T+2) if SS else ""}
        v_lshlrev_b32 v105, 4, v11
        v_lshrrev_b32 v63, 2, v0
        v_lshl_add_u32 v63, v63, 14, v105
        s_lshl_b32 s4, s5, 14
        v_add_u32 v223, {"s4" if self.opt.get("sm", 2) == 1 else 0}, v{T+2}
        s_mov_b32 s5, {WS_STAT+(0x1000<<SS)}
        s_mov_b32 s6, {WS_STAT+(0x2000<<SS)}
        s_mov_b32 s7, {WS_STAT+(0x3000<<SS)}
        """)
        vWD = 222
        a(f"""
        s_cmp_lg_u32 s{sW}, 0
        s_cbranch_scc1 L_NOZ
        v_lshlrev_b32 v{T}, 4, v0
        v_mov_b32 v{T+4}, 0
        v_mov_b32 v{T+5}, 0
        v_mov_b32 v{T+6}, 0
        v_mov_b32 v{T+7}, 0
        ds_write_b128 v{T}, {Q(T+4)} offset:{UPD}
        ds_write_b128 v{T}, {Q(T+4)} offset:{UPD+1024}
        ds_write_b128 v{T}, {Q(T+4)} offset:{UPD+2048}
        L_NOZ:
        s_lshl_b32 s4, s{sW}, 6
        v_add_u32 v14, s4, v0
        v_lshlrev_b32 v15, 4, v14
        s_mov_b32 s64, 0x05040100
        s_mov_b32 s65, 0x07060302
        v_lshlrev_b32 v{T}, 4, v0
        v_and_b32 v10, 15, v0
        v_lshlrev_b32 v10, 2, v10
        v_and_b32 v11, 48, v0
        s_movk_i32 s4, 0xfff
        v_lshlrev_b32 v{CR}, 1, v14
        v_sub_u32 v{CR}, s4, v{CR}
        v_subrev_u32 v{CR+1}, 1, v{CR}
        v_subrev_u32 v{CR+2}, 512, v{CR}
        v_subrev_u32 v{CR+3}, 513, v{CR}
        v_subrev_u32 v{CR+4}, 1024, v{CR}
        v_subrev_u32 v{CR+5}, 1025, v{CR}
        v_subrev_u32 v{CR+6}, 1536, v{CR}
        v_subrev_u32 v{CR+7}, 1537, v{CR}
        v_lshlrev_b32 v{T+3}, 3, v14
        v_lshrrev_b32 v{T+1}, 4, v14
        v_lshlrev_b32 v{T+1}, 2, v{T+1}
        v_lshlrev_b32 v14, 2, v14
        s_mov_b32 s16, 0
        s_mov_b32 s17, 0xffff0000
        v_lshlrev_b32 v{vPW}, 3, v11
        s_lshl_b32 s8, s{sW}, 12
        s_add_u32 s8, s8, {PRE}
        v_add_u32 v{vPW}, s8, v{vPW}
        v_lshrrev_b32 v12, 5, v0
        v_lshlrev_b32 v{vPR}, 7, v12
        v_bfe_u32 v12, v0, 4, 1
        v_lshl_add_u32 v{vPR}, v12, 3, v{vPR}
        v_bfe_u32 v12, v0, 3, 1
        v_lshl_add_u32 v{vPR}, v12, 9, v{vPR}
        v_and_b32 v12, 7, v0
        v_lshl_add_u32 v{vPR}, v12, 4, v{vPR}
        s_lshl_b32 s8, s{sW}, 10
        s_add_u32 s8, s8, {PRE}
        v_add_u32 v{vPR}, s8, v{vPR}
        v_bfe_u32 v12, v0, 4, 1
        v_lshlrev_b32 v12, 16, v12
        v_lshrrev_b32 v13, 5, v0
        v_lshl_add_u32 v12, v13, 12, v12
        v_lshl_add_u32 v{vWD}, v10, 1, v12
        s_lshl_b32 s10, s{sSG}, 17
        s_lshl_b32 s11, s{sK}, 9
        s_add_u32 s10, s10, s11
        s_lshl_b32 s11, s{sW}, 7
        s_add_u32 s10, s10, s11
        """)
        PZ = self.opt.get("pz", 0); PE = 2 if PZ == 3 else 0
        pzl = [f"buffer_store_dwordx4 v[216:219], v{T}, {SQ(rWS)}, s33 offen offset:{1024*r} {MOD[self.opt.get('pzm', 2)]}" for r in range(2)]
        if PZ >= 3:
            a(f"""s_and_b32 s9, s2, 7
            s_add_u32 s9, s9, 56
            s_cmp_eq_u32 s{sROLE}, 1
            s_cselect_b32 s33, s{sSG}, s9
            s_lshl_b32 s33, s33, 2
            s_add_u32 s33, s33, s{sK}
            s_lshl_b32 s33, s33, 2
            s_add_u32 s33, s33, s{sW}
            s_lshl_b32 s33, s33, 11
            s_add_u32 s33, s33, {WS_PART}
            v_mov_b32 v218, 0""")
        if PZ == 3:
            assert GE == 0
            PW_ = self.opt.get("pzw", 0)
            if PW_:
                PE = 1; a(f"v_lshlrev_b32 v217, 7, v0\ns_mov_b64 exec, 0xffff")
                a(f"buffer_store_dword v218, v217, {SQ(rWS)}, s33 offen offset:8" if PW_ == 1 else f"buffer_load_dword v219, v217, {SQ(rWS)}, s33 offen")
            else:
                a(f"s_cmp_eq_u32 s{sROLE}, 1\ns_cselect_b64 exec, -1, 1")
                for l in pzl: a(l)
            a("s_mov_b64 exec, -1")
        a("s_mov_b32 s8, 0x3f803f80")
        self.est(10)
        if True:
            a(f"s_waitcnt vmcnt({8 + PE + (GE if GP_ == 0 else 0)})")
            self.est(11)
            gearly(1)
            for i in range(16):
                c = lambda r: "0" if i == 0 else f"v{r}"
                a(f"v_dot2_f32_bf16 v{S}, v{X0+i}, s8, {c(S)}")
                a(f"v_dot2_f32_bf16 v{S+1}, v{X0+i}, v{X0+i}, {c(S+1)}")
            a("s_waitcnt lgkmcnt(0)")
            self.mktag()
            a(f"s_or_b32 s{sTX}, s19, s{sTAG}\nv_mov_b32 v{S+11}, s{sTX}\ns_waitcnt vmcnt({4 + PE + (GE if GP_ < 2 else 0)})")
            self.stamp(1)
            gearly(2)
        for i in range(16):
            c = lambda r: "0" if i == 0 else f"v{r}"
            a(f"v_dot2_f32_bf16 v{S+2}, v{X0+i}, v{W0+i}, {c(S+2)}")
            a(f"v_dot2_f32_bf16 v{S+3}, v{W0+i}, s8, {c(S+3)}")
        a("s_nop 1")
        for sh in ("row_shr:1 row_mask:0xf","row_shr:2 row_mask:0xf","row_shr:4 row_mask:0xf","row_shr:8 row_mask:0xf","row_bcast:15 row_mask:0xa"):
            for r in range(S, S+4): a(f"v_add_f32_dpp v{r}, v{r}, v{r} {sh} bank_mask:0xf")
        a(f"""
        v_mul_f32 v{S}, 0x3a800000, v{S}
        v_mul_f32 v{S+1}, 0x3a800000, v{S+1}
        v_cvt_pk_bf16_f32 v{S+4}, v{S}, v{S}
        v_fma_f32 v{S+1}, -v{S}, v{S}, v{S+1}
        v_max_f32 v{S+1}, 0, v{S+1}
        v_and_b32 v{S+5}, 0xffff0000, v{S+4}
        """)
        self.bf16r(S+1, S+1)
        a(f"v_add_f32 v{S+1}, {f2u(1e-5):#x}, v{S+1}\nv_fma_f32 v{S+2}, -v{S+5}, v{S+3}, v{S+2}")
        self.bf16r(S+1, S+1)
        a(f"""
        v_sqrt_f32 v{S+1}, v{S+1}
        v_lshlrev_b32 v104, 2, v{vW4}
        v_mov_b32 v{S+13}, 0
        v_and_b32 v{S+14}, 62, v0
        v_mad_u32_u24 v{S+14}, v{S+14}, 3, v0
        v_lshlrev_b32 v{S+14}, 6, v{S+14}
        v_cvt_pk_bf16_f32 v{S+6}, v{S+1}, v{S+1}
        v_and_b32 v{S+1}, 0xffff0000, v{S+6}
        v_rcp_f32 v{S+1}, v{S+1}
        v_mul_f32 v{S+2}, v{S+2}, v{S+1}
        v_cvt_pk_bf16_f32 v{S+2}, v{S+2}, v{S+2}
        v_bfe_i32 v{S+3}, v{S+2}, 15, 1
        v_or_b32 v{S+3}, 0x80008000, v{S+3}
        v_xor_b32 v{S+7}, v{S+2}, v{S+3}
        s_mov_b32 s8, 0xffff
        v_mov_b32_dpp v{S+8}, v{S+4} row_bcast:31 row_mask:0x8 bank_mask:0xf
        v_mov_b32_dpp v{S+9}, v{S+6} row_bcast:31 row_mask:0x8 bank_mask:0xf
        v_mov_b32_dpp v{S+10}, v{S+7} row_bcast:31 row_mask:0x8 bank_mask:0xf
        v_bfi_b32 v{S+8}, s8, v{S+8}, v{S+4}
        v_bfi_b32 v{S+9}, s8, v{S+9}, v{S+6}
        v_bfi_b32 v{S+10}, s8, v{S+10}, v{S+7}
        s_brev_b64 exec, 1
        ds_write_b128 v104, {Q(S+8)} offset:{STG}
        """)
        self.stamp(2)
        SM = self.opt.get("sm", 2); NCB = self.opt.get("ncb", 4); NCP = [1, 8, 1 << NCB][SM]
        a(f"""
        ds_add_rtn_u32 v{S+12}, v{S+13}, v{vONE} offset:{CNTR}
        s_mov_b64 exec, -1
        s_waitcnt lgkmcnt(0)
        v_readlane_b32 s8, v{S+12}, 63
        s_cmp_lg_u32 s8, 3
        s_cbranch_scc1 L_NOPUB
        s_bfm_b64 exec, {4*NCP & 63}, 0
        {"s_mov_b64 exec, -1" if NCP == 16 else ""}
        ds_read_b128 {Q(S+4)}, v105 offset:{STG}
        s_waitcnt lgkmcnt(0)
        buffer_store_dwordx4 {Q(S+4)}, v63, {SQ(rWS)}, s13 offen sc1
        ds_write_b32 v{S+13}, v{vONE} offset:{CNT2}
        s_mov_b64 exec, -1
        s_waitcnt vmcnt({1+GE+PE})
        s_branch L_PUB2
        L_NOPUB:
        """)
        vq = []; vdone = [0]
        def vis(tag, text, ld=1): a(text); vq.append((tag, ld))
        def vw(n):
            if len(vq) - n > vdone[0]: a(f"s_waitcnt vmcnt({n})"); vdone[0] = len(vq) - n
        def vfor(tag): vw(len(vq) - 1 - max(i for i, t in enumerate(vq) if t[0] == tag))
        def vwin(W):
            idx = [i for i, t in enumerate(vq) if t[1]]
            if len(idx) >= W: vw(len(vq) - 1 - idx[-W])
        gi = [0]
        def G(W=None):
            if W: vwin(W)
            vis(f"g{gi[0]}", "\n".join(gl[gi[0]])); gi[0] += 1
        di = [0]; vWD = 222
        def D(n=1):
            for _ in range(n):
                if di[0] >= 16: return
                ks, j = di[0]//8, di[0]%8
                vis(f"d{di[0]}", f"s_add_u32 s11, s10, {(16*(j>>2) + 8*(j&1) + 4*ks + ((j>>1)&1))*2048}\nbuffer_load_dwordx2 {P(WDR+16*ks+2*j)}, v{vWD}, {SQ(rD)}, s11 offen"); di[0] += 1
        N0 = self.opt.get("n0", 0); WN = self.opt.get("wn", 4); NP = self.opt.get("np", 12); XF = self.opt.get("xf", N0+WN); GA_ = self.opt.get("ga", 4)
        a(f"s_waitcnt vmcnt({GE+PE})\nL_PUB2:")
        for i in range(GE): vq.append((f"g{i}", 1))
        gi[0] = GE; XF += GE; NP += GE
        for i in range(N0): G()
        for i in range(4): a(f"ds_write_b128 v96, {Q(TL+4*i)} offset:{272*i}")
        for j in range(4): a(f"ds_read_b64 {P(TT+4*j)}, v97 offset:{64*j}\nds_read_b64 {P(TT+4*j+2)}, v97 offset:{64*j+272}")
        for j in range(4): vis("xt", f"s_waitcnt lgkmcnt({6-2*j})\nbuffer_store_dwordx4 {Q(TT+4*j)}, v98, {SQ(rWS)}, s18 offen {MOD[self.opt.get('xso',0)]}\ns_add_u32 s18, s18, 0x20000", 0)
        self.arrive(C_XS, vW4, S+11)
        if self.opt.get("wpub", 1): self.wait_flag(CNT2, S+13, S+12)
        self.stamp(4)
        def xflag():
            vfor("xt")
            a(f"""
            s_mov_b64 exec, 1
            ds_add_rtn_u32 v{S+12}, v{S+13}, v{vONE} offset:{CNT3}
            s_waitcnt lgkmcnt(0)
            v_readfirstlane_b32 s8, v{S+12}
            s_cmp_lg_u32 s8, 3
            s_mov_b64 exec, -1
            s_cbranch_scc1 L_NOXF
            """)
            for i in range(self.opt.get("nst", 3)): a(f"buffer_store_dword v{S+11}, v{S+14}, {SQ(rWS)}, s62 offen offset:{128*i}")
            a(f"""
            L_NOXF:
            """)
            self.stamp(5)
            if PZ == 4:
                for l in pzl: vis("pz", l, 0)
        PF = self.opt.get("pf", 0)
        def kcheck():
            a(f"""
            v_xor_b32 v{TP}, s{sTX}, v{KP+3}
            v_xor_b32 v{TP+1}, s{sTX}, v{KP+7}
            v_xor_b32 v{TP+2}, s{sTX}, v{KP+11}
            v_xor_b32 v{TP+3}, s{sTX}, v{KP+15}
            v_cmp_lt_u32 s[30:31], 31, v{TP}
            v_cmp_lt_u32 s[8:9], 31, v{TP+1}
            v_cmp_lt_u32 s[14:15], 31, v{TP+2}
            v_cmp_lt_u32 s[28:29], 31, v{TP+3}
            v_or3_b32 v{TP}, v{TP}, v{TP+1}, v{TP+2}
            s_or_b64 vcc, s[30:31], s[8:9]
            s_or_b64 s[66:67], s[14:15], s[28:29]
            s_or_b64 vcc, vcc, s[66:67]""")
        def kp4():
            for i, so in enumerate((sO+1, 5, 6, 7)): vis("kp", f"buffer_load_dwordx4 {Q(KP+4*i)}, v223, {SQ(rWS)}, s{so} offen sc1")
        while gi[0] < min(WN+GE, NP):
            if gi[0] == XF:
                xflag()
            if PF and gi[0] == PF-1+GE: kp4()
            G()
        if PF:
            vfor("kp"); kcheck()
            a("s_cbranch_vccnz L_KF")
            k0 = len(a.lines); g0 = gi[0]; n0 = len(vq); d0 = vdone[0]
            while gi[0] < NP: G()
            a("s_branch L_KPOK\nL_KF:")
            gi[0] = g0; del vq[n0:]
            while gi[0] < NP: G(WN)
            if self.opt.get("pw", 1): vwin(self.opt.get("pw2", 2))
            vdone[0] = d0
            a("s_branch L_KQ2")
        def perms(raw, out, nd, nj):
            L = []
            for d in range(nd):
                for jj in range(nj):
                    A = raw+nd*(2*jj)+d; B = raw+nd*(2*jj+1)+d
                    L.append(f"v_perm_b32 v{out+nj*(2*d)+jj}, v{B}, v{A}, s64")
                    L.append(f"v_perm_b32 v{out+nj*(2*d+1)+jj}, v{B}, v{A}, s65")
            return L
        if self.opt.get("ht") in (1, 2):
            a(f"s_lshl_b32 s4, s{sSG}, 14\ns_lshl_b32 s8, s{sW}, 12\ns_add_u32 s4, s4, s8\ns_lshl_b32 s8, s{sK}, 10\ns_add_u32 s4, s4, s8\ns_add_u32 s4, s4, {WS_H1}")
            if self.opt["ht"] == 1: vis("ht", f"buffer_load_dwordx4 v[216:219], v{T}, {SQ(rWS)}, s4 offen")
            else: vis("ht", f"s_cmp_lg_u32 s{sROLE}, 1\ns_cbranch_scc1 L_NHT\nv_mov_b32 v218, 0\nbuffer_store_dwordx4 v[216:219], v{T}, {SQ(rWS)}, s4 offen\nL_NHT:", 0); vq.pop()
        while gi[0] < NP:
            if gi[0] == XF: xflag()
            G(WN)
        if XF >= NP: xflag()
        def slot(): a(f"s_memrealtime s[66:67]\ns_waitcnt lgkmcnt(0)\ns_bfe_u32 s4, s66, {self.opt.get('tsb', 4) | NCB << 16:#x}\ns_lshl_b32 s4, s4, 14\nv_add_u32 v223, s4, v{T+2}")
        for i, so in enumerate((sO+1, 5, 6, 7)):
            if PF: break
            if self.opt.get("pw", 1): vwin(WN)
            if SM == 2 and (i == 0 or self.opt.get("se", 0)): slot()
            vis("kp", f"buffer_load_dwordx4 {Q(KP+4*i)}, v223, {SQ(rWS)}, s{so} offen {'' if SM == 2 else 'sc1'}")
        p0 = [0]
        def perm0():
            if p0[0] == 0 and gi[0] >= 8:
                vfor("g7"); p0[0] = 1
                for l in perms(GUR, GUF, 4, 4): a(l)
        if self.opt.get("pe", 0): perm0()
        for i in range(GA_):
            if gi[0] < 16: G(WN + self.opt.get("wx", 0))
            else: vwin(WN); D(2)
        vfor("kp")
        KM = (30, 8, 14, 28)
        a(f"s_branch L_KPW\nL_KP:\ns_sleep {self.opt.get('ksl', 1)}\nL_KQ2:")
        if SM == 2:
            a(f"s_cmp_ge_u32 s16, {self.opt.get('npl', 10)}\ns_cbranch_scc1 L_KQ")
            slot()
            for i, so in enumerate((sO+1, 5, 6, 7)):
                a(f"s_mov_b64 exec, {SP(KM[i])}\ns_cbranch_execz L_KT{i}\nbuffer_load_dwordx4 {Q(KP+4*i)}, v223, {SQ(rWS)}, s{so} offen\nL_KT{i}:")
            a("s_branch L_KS3\nL_KQ:")
        for i, so in enumerate((sO+1, 5, 6, 7)):
            a(f"s_mov_b64 exec, {SP(KM[i])}\ns_cbranch_execz L_KS{i}\nbuffer_load_dwordx4 {Q(KP+4*i)}, v223, {SQ(rWS)}, s{so} offen sc1\nL_KS{i}:")
        a(f"""
        s_mov_b64 exec, -1
        s_waitcnt vmcnt(0)
        L_KPW:
        s_add_u32 s16, s16, 1
        v_xor_b32 v{TP}, s{sTX}, v{KP+3}
        v_xor_b32 v{TP+1}, s{sTX}, v{KP+7}
        v_xor_b32 v{TP+2}, s{sTX}, v{KP+11}
        v_xor_b32 v{TP+3}, s{sTX}, v{KP+15}
        v_cmp_lt_u32 s[30:31], 31, v{TP}
        v_cmp_lt_u32 s[8:9], 31, v{TP+1}
        v_cmp_lt_u32 s[14:15], 31, v{TP+2}
        v_cmp_lt_u32 s[28:29], 31, v{TP+3}
        v_or3_b32 v{TP}, v{TP}, v{TP+1}, v{TP+2}
        s_or_b64 vcc, s[30:31], s[8:9]
        s_or_b64 s[66:67], s[14:15], s[28:29]
        s_or_b64 vcc, vcc, s[66:67]
        s_cbranch_vccz L_KPOK
        s_cmp_lt_u32 s16, 0x4000
        s_cbranch_scc1 L_KP
        L_KPOK:
        v_or_b32 v{TP}, v{TP}, v{TP+3}
        v_cmp_ne_u32 vcc, 0, v{TP}
        s_and_b64 vcc, vcc, s[40:41]
        s_cselect_b32 s8, 1, {1 if self.opt.get("forcex") else 2}
        v_mov_b32 v{TP}, s8
        """)
        if self.opt.get("ag", 0) > 0: a(f"s_cmp_le_u32 s16, {self.opt['ag']}\ns_cselect_b32 s33, 1, 2")
        if self.opt.get("xst") == 13: a(f"s_mov_b32 s{sST+2*15+1}, s{sST+1}\ns_mul_i32 s9, s16, 100\ns_add_u32 s{sST+2*15}, s{sST}, s9")
        self.stamp(3)
        if "fp3" in self.opt: a(f"s_setprio {self.opt['fp3']}")
        def more(n):
            for _ in range(n):
                if gi[0] < 16: G()
                elif di[0] < self.opt.get("d1", 8): D(2)
        DF = self.opt.get("df", 1); vXI = TP+1
        def cap(n):
            k = len(a.lines); more(n); L = a.lines[k:]; del a.lines[k:]; return L
        if DF: a(f"ds_read_b32 v{vXI}, v{vL4} offset:{C_XI}")
        a(f"ds_write2st64_b64 v{T+3}, {P(KP)}, {P(KP+4)} offset0:{MSB//512} offset1:{MSB//512+4}\nds_write2st64_b64 v{T+3}, {P(KP+8)}, {P(KP+12)} offset0:{MSB//512+8} offset1:{MSB//512+12}")
        self.arrive(C_MS, vW4, TP)
        if not DF: more(self.opt.get("m0", 1))
        for k in range(4):
            a(f"v_lshl_or_b32 v{CR+2*k}, v{KP+4*k+2}, 16, v{CR+2*k}\nv_and_or_b32 v{CR+1+2*k}, v{KP+4*k+2}, s17, v{CR+1+2*k}")
        if DF:
            vq0 = len(vq)
            B0 = cap(self.opt.get("m0", 1)); B1 = cap(self.opt.get("m1", 2))
            a(f"s_waitcnt lgkmcnt(3)\nv_cmp_eq_u32 s[66:67], 0, v{vXI}\ns_cmp_lg_u32 s66, 0\ns_cbranch_scc1 L_NB0")
            a.lines += B0
            a("L_NB0:")
        B = T+2
        a(f"v_max_u32 v{B}, v{CR}, v{CR+1}\nv_min_u32 v{B+1}, v{CR}, v{CR+1}\nv_max_u32 v{B+2}, v{CR+4}, v{CR+5}\nv_min_u32 v{B+3}, v{CR+4}, v{CR+5}")
        for j in (2, 3):
            a(f"v_med3_u32 v{B+1}, v{B}, v{B+1}, v{CR+j}\nv_med3_u32 v{B+3}, v{B+2}, v{B+3}, v{CR+j+4}\nv_max_u32 v{B}, v{B}, v{CR+j}\nv_max_u32 v{B+2}, v{B+2}, v{CR+j+4}")
        a(f"""
        v_min_u32 v{B+4}, v{B}, v{B+2}
        v_max_u32 v{B}, v{B}, v{B+2}
        v_max3_u32 v{B+1}, v{B+1}, v{B+3}, v{B+4}
        ds_write_b32 v14, v{B} offset:{LMC}
        """)
        if DF: a(f"ds_read_b32 v{vXI}, v{vL4} offset:{C_XI}")
        mid = [f"v_add_u32 v15, {KEYS}, v15", f"ds_write2_b32 v15, v{KP+2}, v{KP+6} offset0:0 offset1:1", f"ds_write2_b32 v15, v{KP+10}, v{KP+14} offset0:2 offset1:3", "s_nop 0"]
        for i, sh in enumerate((1,2,4,8)):
            a(mid[i])
            a(f"v_max_u32_dpp v{B}, v{B}, v{B} row_shr:{sh} row_mask:0xf bank_mask:0xf\nv_max_u32_dpp v{B+1}, v{B+1}, v{B+1} row_shr:{sh} row_mask:0xf bank_mask:0xf")
        a(f"""
        s_mov_b32 exec_lo, 0x80008000
        s_mov_b32 exec_hi, 0x80008000
        ds_write2_b32 v{T+1}, v{B}, v{B+1} offset0:{GM//4} offset1:{GM//4+16}
        """)
        self.arrive(C_KEYS, vW4, TP)
        self.xst(8, 12)
        if not DF: more(self.opt.get("m1", 2))
        else:
            a(f"s_waitcnt lgkmcnt(4)\nv_cmp_eq_u32 vcc, 0, v{vXI}\ns_mov_b32 s67, vcc_lo\ns_cbranch_vccnz L_NB1\ns_cmp_eq_u32 s66, 0\ns_cbranch_scc1 L_NB2")
            a.lines += B0
            a("L_NB2:")
            a.lines += B1
            a("L_NB1:")
        self.xst(8, 13)
        self.wait_flag(C_KEYS, vL4, T+1)
        a(f"v_cmp_ne_u32 s[12:13], 2, v{T+1}")
        self.stamp(6)
        def rank16(own, four, r, c):
            a(f"v_cmp_gt_u32 vcc, v{four}, v{own}\nv_cmp_gt_u32 s[8:9], v{four+1}, v{own}\nv_cmp_gt_u32 s[14:15], v{four+2}, v{own}\nv_cmp_gt_u32 s[28:29], v{four+3}, v{own}")
            a(f"v_cndmask_b32 v{r}, 0, 1, vcc\nv_cndmask_b32 v{c}, 0, 1, s[8:9]\nv_addc_co_u32 v{r}, vcc, 0, v{r}, s[14:15]\nv_addc_co_u32 v{r}, vcc, v{c}, v{r}, s[28:29]")
            a(f"v_mov_b32 v{c}, v{r}\nv_permlane32_swap_b32 v{r}, v{c}\nv_add_u32 v{r}, v{r}, v{c}\nv_mov_b32 v{c}, v{r}\nv_permlane16_swap_b32 v{r}, v{c}\nv_add_u32 v{r}, v{r}, v{c}")
        a(f"""
        ds_read2_b32 {P(T+2)}, v10 offset0:{GM//4} offset1:{GM//4+16}
        ds_read_b128 {Q(T+4)}, v11 offset:{GM}
        ds_read_b128 {Q(E)}, v{T} offset:{LMC}
        s_waitcnt lgkmcnt(1)
        """)
        rank16(T+2, T+4, T+12, T+13)
        a(f"""
        v_cmp_eq_u32 vcc, 7, v{T+12}
        s_ff1_i32_b32 s5, vcc_lo
        v_readlane_b32 s4, v{T+2}, s5
        s_waitcnt lgkmcnt(0)
        v_cmp_le_u32 vcc, s4, v{T+3}
        {"s_branch" if self.opt.get("forceslow") else "s_cbranch_vccnz"} L_SLOWT
        L_CAND:
        v_cmp_le_u32 s[8:9], s4, v{E}
        v_cmp_le_u32 s[14:15], s4, v{E+1}
        v_cmp_le_u32 s[28:29], s4, v{E+2}
        v_cmp_le_u32 s[30:31], s4, v{E+3}
        s_bcnt1_i32_b64 s5, s[8:9]
        s_bcnt1_i32_b64 s6, s[14:15]
        s_bcnt1_i32_b64 s7, s[28:29]
        s_bcnt1_i32_b64 s16, s[30:31]
        s_add_u32 s6, s6, s5
        s_add_u32 s7, s7, s6
        s_add_u32 s16, s16, s7
        s_cmp_gt_u32 s16, 16
        s_cbranch_scc1 L_TRIM
        """)
        MK = (8, 14, 28, 30)
        for k, (mk, base) in enumerate(zip(MK, ("0", "s5", "s6", "s7"))):
            a(f"v_mbcnt_lo_u32_b32 v{T+12+k}, s{mk}, 0\nv_mbcnt_hi_u32_b32 v{T+12+k}, s{mk+1}, v{T+12+k}\nv_add_lshl_u32 v{T+12+k}, v{T+12+k}, {base}, 2")
            a(f"s_mov_b64 exec, {SP(mk)}\nds_write_b32 v{T+12+k}, v{E+k} offset:{LIST}\ns_mov_b64 exec, -1")
        self.xst(8, 14)
        XO = self.opt.get("xo", 0)
        def grest():
            if DF:
                a("s_cmp_eq_u32 s67, 0\ns_cbranch_scc1 L_NB3")
                a.lines += B0 + B1
                a("L_NB3:")
            while gi[0] < 16: G()
        if not XO: grest()
        if PZ == 5:
            for l in pzl: vis("pz", l, 0)
        self.xst(8, 15)
        a(f"""
        s_movk_i32 s4, 0x7ff
        ds_read_b32 v{TP}, v10 offset:{LIST}
        ds_read_b128 {Q(TP+4)}, v11 offset:{LIST}
        s_cmp_lg_u32 s{sROLE}, 1
        s_waitcnt lgkmcnt(1)
        v_bfi_b32 v14, v{TP}, 0, s4
        s_cbranch_scc1 L_NOXS
        v_lshl_add_u32 v15, v14, 11, v{vXO}
        """)
        vis("xs", f"buffer_load_dwordx4 {Q(XS)}, v15, {SQ(rX)}, 0 offen")
        vis("xs", f"buffer_load_dwordx4 {Q(XS+4)}, v15, {SQ(rX)}, 0 offen offset:64")
        a(f"""
        v_lshrrev_b32 v15, 1, v14
        v_lshlrev_b32 v15, 3, v15
        ds_read_b64 v[8:9], v15 offset:{MSB}
        """)
        self.stamp(7)
        PT = self.opt.get("pt", 0)
        def ptouch():
            a(f"""s_mul_i32 s8, s{sW}, 14
            v_add_lshl_u32 v223, v0, s8, 15
            s_lshl_b32 s8, s{sDG}, 7
            s_add_u32 s8, s8, {WS_PART}
            s_mov_b64 exec, 0x3fff""")
            vis("pt", f"buffer_load_dword v219, v223, {SQ(rWS)}, s8 offen {MOD[self.opt.get('ptm', 2)]}")
            a("s_mov_b64 exec, -1")
        if PT == 4: ptouch()
        D(self.opt.get("d2", 0) - di[0])
        if PT == 3: ptouch()
        a("L_NOXS:")
        if XO:
            assert gi[0] < 16 and vdone[0] <= vq0 and vq[-1][0] == "xs"
            xs_ = vq[-2:]; del vq[-2:]; vq[vq0:vq0] = xs_
            if XO == 1: grest()
        a("s_waitcnt lgkmcnt(0)")
        rank16(TP, TP+4, TP+8, TP+9)
        a(f"""
        v_cmp_gt_u32 s[30:31], 8, v{TP+8}
        v_lshlrev_b32 v15, 2, v{TP+8}
        v_and_b32 v10, 7, v0
        v_lshlrev_b32 v10, 2, v10
        v_bfe_u32 v{TP+4}, v14, 1, 8
        v_lshrrev_b32 v{TP+5}, 9, v14
        v_lshlrev_b32 v{TP+4}, 3, v{TP+4}
        v_lshl_add_u32 v{TP+4}, v{TP+5}, 1, v{TP+4}
        v_and_b32 v14, 1, v14
        v_add_u32 v{TP+4}, v{TP+4}, v14
        v_mov_b32 v{TP+6}, 0x80
        s_mov_b64 exec, s[30:31]
        ds_write_b32 v15, v{TP} offset:{IDX}
        s_cmp_lg_u32 s{sW}, 0
        s_cbranch_scc1 L_NOSEL
        ds_write_b8 v{TP+4}, v{TP+6} offset:{SELF}
        s_cmp_lg_u32 s2, 255
        s_cbranch_scc1 L_NOSEL
        s_mov_b64 exec, 1
        v_mov_b32 v{TP+6}, s{sTAG}
        buffer_store_dword v{TP+6}, v{vW4}, {SQ(rWS)}, 0 offen sc1
        L_NOSEL:
        s_mov_b64 exec, -1
        ds_read_b32 v{vE}, v10 offset:{IDX}
        """)
        self.arrive(C_SEL, vW4, vONE)
        if XO == 2: assert self.opt.get("lg"); grest()
        self.xst(11, 12)
        gX = 246; gY = 247; gL = 220; gA = 221; gO = 223; gS = 254; TV = 248; TS = 34; g = 224; EA = self.opt.get("ea", 1)
        LG = self.opt.get("lg", 0)
        def gs1():
            a(f"""
            v_lshrrev_b32 v{gA}, 3, v0
            s_lshl_b32 s8, s{sW}, 3
            v_add_lshl_u32 v{gA}, v{gA}, s8, 15
            v_and_b32 v{g+1}, 7, v0
            v_lshlrev_b32 v{g+1}, 4, v{g+1}
            v_add_u32 v{gA}, v{gA}, v{g+1}
            v_bfe_u32 v{g+2}, v0, 3, 2
            v_bfrev_b32 v{gL}, v{g+2}
            v_lshrrev_b32 v{gL}, 22, v{gL}
            v_add_u32 v{gL}, v{gL}, v{g+1}
            v_lshrrev_b32 v{gL}, 2, v{gL}
            """)
        def gs2():
            a(f"""
            v_lshlrev_b32 v{gY}, 13, v{g+2}
            v_lshl_add_u32 v{gY}, v{g}, 2, v{gY}
            v_lshrrev_b32 v{g+1}, 1, v{g}
            v_and_b32 v{g+1}, 0x30, v{g+1}
            v_xor_b32 v{gY}, v{gY}, v{g+1}
            v_add_u32 v{gY}, {YB}, v{gY}
            """)
        def gs3():
            self.wait_flag(C_SEL, vL4, g)
            self.tsetup(0, PRE, 4096, TV, TS)
            a(f"""
            v_lshrrev_b32 v{gS}, 16, v{vE}
            v_bfe_i32 v{g}, v{gS}, 15, 1
            v_not_b32 v{g}, v{g}
            v_or_b32 v{g}, 0x8000, v{g}
            v_xor_b32 v{gS}, v{gS}, v{g}
            v_lshlrev_b32 v{gS}, 16, v{gS}
            v_mul_f32 v{gS}, {LOG2E|0x80000000:#x}, v{gS}
            v_exp_f32 v{gS}, v{gS}
            v_mov_b32 v{TV+5}, s{sTX}
            v_add_f32 v{gS}, 1.0, v{gS}
            v_rcp_f32 v{gS}, v{gS}
            """)
        def glate():
            gs1(); a(f"v_lshrrev_b32 v{g}, 11, v{gO}"); gs2(); gs3()
        a("s_movk_i32 s4, 0x7ff")
        if not LG: gs1()
        else: a(f"v_bfe_u32 v{g+2}, v0, 3, 2")
        a(f"""
        s_lshl_b32 s8, s{sDG}, 3
        s_mov_b32 s32, 0
        s_waitcnt lgkmcnt(1)
        v_bfi_b32 v{g}, v{vE}, 0, s4
        v_lshlrev_b32 v{gO}, 11, v{g}
        v_lshl_add_u32 v{gO}, v{g+2}, 1, v{gO}
        v_add_u32 v{gO}, s8, v{gO}
        """)
        vis("xu", f"buffer_load_ushort v{gX}, v{gO}, {SQ(rX)}, 0 offen")
        if not LG:
            gs2(); gs3()
        a(f"""
        s_cmp_lg_u32 s{sROLE}, 1
        s_cbranch_scc1 {"L_NF" if LG else "L_GATHER"}
        v_lshl_add_u32 v{vPW}, v{TP+8}, 4, v{vPW}
        v_lshlrev_b32 v14, 4, v14
        """)
        HQ = 216; R = 224; BL = 240; BH = 242; t = 244; PQ = 48; DA = 16; HP = 144
        a(f"""
        v_lshlrev_b32 v13, 4, v0
        s_lshl_b32 s4, s{sSG}, 14
        s_add_u32 s4, s4, {WS_H1}
        s_lshl_b32 s6, s{sW}, 12
        s_add_u32 s6, s6, s4
        s_lshl_b32 s5, s{sK}, 10
        s_add_u32 s5, s5, s6
        v_mov_b32 v{HQ+2}, s{sTAG}
        """)
        NMF = 240
        a(f"""v_lshrrev_b32 v{vRS}, v14, v9
        v_lshrrev_b32 v{vNM}, v14, v8
        v_lshlrev_b32 v{vRS}, 16, v{vRS}
        v_xor_b32 v{vNM}, 0x8000, v{vNM}
        v_rcp_f32 v{vRS}, v{vRS}""")
        for i in range(4): a(f"v_perm_b32 v{NMF+i}, v{vNM}, v{vNM}, s64")
        if "fprio" in self.opt: a(f"s_setprio {self.opt['fprio']}")
        self.xst(11, 13)
        htl = f"buffer_load_dword v{HQ+3}, v13, {SQ(rWS)}, s5 offen"
        if self.opt.get("ht") == 3: vis("ht", htl)
        D(self.opt.get("da", 8))
        if self.opt.get("ht") == 4: vis("ht", htl)
        perm0()
        D(self.opt.get("db", 0))
        self.xst(11, 14)
        M0 = lambda s_: [f"{MFMA} {Q(ACC+4*c)}, {Q(GUF+32*s_+4*c)}, {Q(NMF)}, {'0' if s_==0 else Q(ACC+4*c)}" for c in range(8)]
        vfor("g15")
        self.xst(11, 15)
        pm = perms(GUR+32, GUF+32, 4, 4)
        for l in interleave(M0(0), pm, per=4): a(l)
        self.stamp(8)
        for l in M0(1): a(l)
        vfor("xs")
        self.stamp(9)
        for s_ in range(2):
            for c in range(8):
                a(f"{MFMA} {Q(ACC+4*c)}, {Q(GUF+32*s_+4*c)}, {Q(XS+4*s_)}, {Q(ACC+4*c)}")
                if di[0] < self.opt.get("d3", 16) and s_ == 0: D()
        self.xst(5, 12)
        a("s_mov_b64 exec, s[30:31]")
        for c in range(8): a(f"ds_write_b128 v{vPW}, {Q(ACC+4*c)} offset:{512*c}")
        a(f"ds_write_b32 v15, v{vRS} offset:{RSV}")
        self.arrive(C_PRE, vW4, vONE)
        a(f"ds_read_b32 v{vRS}, v10 offset:{RSV}")
        self.xst(5, 13)
        self.wait_flag(C_PRE, vL4, 11)
        self.xst(5, 14)
        for k in range(4):
            for mat in range(2): a(f"ds_read_b64 {P(R+4*k+2*mat)}, v{vPR} offset:{4096*k+256*mat}")
        a("s_waitcnt lgkmcnt(4)")
        for i in range(4): a(f"v_add_f32 v{R+i}, v{R+i}, v{R+4+i}")
        a("s_waitcnt lgkmcnt(0)")
        for i in range(4): a(f"v_add_f32 v{R+8+i}, v{R+8+i}, v{R+12+i}")
        for i in range(4): a(f"v_add_f32 v{R+i}, v{R+i}, v{R+8+i}")
        a(f"""
        s_cmp_eq_u32 s12, 0
        v_cvt_pk_bf16_f32 v{HQ}, v{R}, v{R+1}
        v_cvt_pk_bf16_f32 v{HQ+1}, v{R+2}, v{R+3}
        """)
        vis("hq", f"s_cbranch_scc0 L_HSC\nbuffer_store_dwordx4 {Q(HQ)}, v13, {SQ(rWS)}, s5 offen\nL_HSB:", 0)
        self.stamp(10)
        if PT == 2: ptouch()
        D(16)
        a(f"""
        v_bfe_u32 v10, v0, 3, 1
        v_lshrrev_b32 v11, 4, v0
        v_cmp_ne_u32 s[22:23], 0, v10
        v_lshlrev_b32 v15, 2, v10
        v_lshl_add_u32 v15, v11, 3, v15
        v_lshlrev_b32 v10, 8, v10
        v_lshl_add_u32 v10, v11, 9, v10
        v_lshlrev_b32 v9, 4, v11
        v_and_b32 v11, 7, v0
        v_lshl_add_u32 v10, v11, 4, v10
        s_movk_i32 s5, 144
        v_mad_u32_u24 v15, v11, s5, v15
        v_mad_u32_u24 v9, v11, s5, v9
        s_lshl_b32 s5, s{sW}, 5
        v_add_u32 v15, s5, v15
        s_lshl_b32 s4, s{sSG}, 15
        s_lshl_b32 s5, s{sK}, 13
        s_add_u32 s4, s4, s5
        s_lshl_b32 s5, s{sW}, 11
        s_add_u32 s4, s4, s5
        s_add_u32 s4, s4, {WS_PART}
        v_mul_f32 v12, {LOG2E|0x80000000:#x}, v{vRS}
        v_mul_f32 v14, v{vRS}, v{vRS}
        v_mov_b32 v{PQ+2}, s{sTAG}
        v_mov_b32 v{PQ+6}, s{sTAG}
        """)
        hpl = [f"buffer_load_dwordx3 v[{HP+4*k}:{HP+4*k+2}], v13, {SQ(rWS)}, s6 offen offset:{1024*k} sc1" for k in range(4)]
        a("s_mov_b32 s16, 0")
        PZ = self.opt.get("pz", 0)
        def pzs():
            a(f"v_mov_b32 v{R+2}, 0")
            for r in range(2): vis("pz", f"buffer_store_dwordx4 {Q(R)}, v10, {SQ(rWS)}, s4 offen offset:{128*r} sc1", 0)
        if PZ == 1: pzs()
        if self.opt.get("xst") == 12:
            vfor("d15"); self.xst(12, 12); a("s_waitcnt vmcnt(0)"); self.xst(12, 13)
            for l in hpl: a(l)
            a("s_waitcnt vmcnt(0)"); self.xst(12, 14)
            for l in hpl: a(l)
            a("s_waitcnt vmcnt(0)"); self.xst(12, 15)
        vfor("d7")
        self.xst(1, 12)
        for l in perms(WDR, WDF, 2, 4): a(l)
        if self.opt.get("hw0", 0): vfor("hq")
        HPP = self.opt.get("hp", 0)
        if HPP == 0:
            for l in hpl: vis("hp", l)
        if PT == 1: ptouch()
        if PZ == 2: pzs()
        if LG == 1: glate()
        vfor("d15")
        if HPP == 1:
            for l in hpl: vis("hp", l)
        self.xst(1, 13)
        for l in perms(WDR+16, WDF+16, 2, 4): a(l)
        if HPP == 2:
            for l in hpl: vis("hp", l)
        if LG == 2: glate()
        if self.opt.get("xst") == 1: a("s_waitcnt vmcnt(0)")
        self.xst(1, 14)
        if PZ == 2: a("s_waitcnt vmcnt(2)\ns_branch L_HPX")
        a("s_branch L_HPW\nL_HP:")
        a(f"s_sleep {self.opt.get('hsl', 3)}")
        for k, mk in enumerate((18, 8, 14, 28)):
            a(f"s_cmp_eq_u64 {SP(mk)}, 0\ns_cbranch_scc1 L_HS{k}\n{hpl[k]}\nL_HS{k}:")
        a(f"""
        L_HPW:
        s_add_u32 s16, s16, 1
        s_waitcnt vmcnt(0)
        {"L_HPX:" if PZ == 2 else ""}
        v_cmp_ne_u32 s[18:19], s{sTAG}, v{HP+2}
        v_cmp_ne_u32 s[8:9], s{sTAG}, v{HP+6}
        v_cmp_ne_u32 s[14:15], s{sTAG}, v{HP+10}
        v_cmp_ne_u32 s[28:29], s{sTAG}, v{HP+14}
        s_or_b64 vcc, s[18:19], s[8:9]
        s_or_b64 s[20:21], s[14:15], s[28:29]
        s_or_b64 vcc, vcc, s[20:21]
        s_cbranch_vccz L_HOK
        s_cmp_lt_u32 s16, 0x4000
        s_cbranch_scc1 L_HP
        L_HOK:
        """)
        self.stamp(11)
        eal = f"s_mov_b32 exec_hi, 0\nbuffer_load_dword v{TV+5}, v{TV+7}, {SQ(rWS)}, s{TS+4} offen sc1\ns_mov_b32 exec_hi, -1"
        SK0 = self.opt.get("sk0", 0)
        if SK0: eal = f"s_cmp_lt_u32 s{sW}, 2\ns_cbranch_scc1 L_EAS\n" + eal + "\nL_EAS:"
        if EA == 1: a(eal)
        for k in range(4): self.unpack(R+2*k, R+2*k+1, HP+4*k)
        for i in range(2): a(f"v_add_f32 v{R+i}, v{R+i}, v{R+2+i}\nv_add_f32 v{R+4+i}, v{R+4+i}, v{R+6+i}")
        for i in range(2): a(f"v_add_f32 v{R+i}, v{R+i}, v{R+4+i}")
        for i in range(2): a(f"v_mul_f32 v{t+i}, v12, v{R+i}")
        for i in range(2): a(f"v_exp_f32 v{t+i}, v{t+i}")
        for k in range(4): self.unpack(R+8+2*k, R+8+2*k+1, HP+4*k+1)
        for i in range(2): a(f"v_add_f32 v{t+i}, 1.0, v{t+i}")
        for i in range(2): a(f"v_rcp_f32 v{t+i}, v{t+i}")
        for i in range(2): a(f"v_add_f32 v{R+8+i}, v{R+8+i}, v{R+10+i}\nv_add_f32 v{R+12+i}, v{R+12+i}, v{R+14+i}")
        for i in range(2): a(f"v_mul_f32 v{R+i}, v{R+i}, v14\nv_add_f32 v{R+8+i}, v{R+8+i}, v{R+12+i}")
        for i in range(2): a(f"v_mul_f32 v{R+i}, v{R+i}, v{t+i}")
        for i in range(2): a(f"v_mul_f32 v{R+i}, v{R+i}, v{R+8+i}")
        a(f"""
        v_cvt_pk_bf16_f32 v{t}, v{R}, v{R+1}
        ds_write_b32 v15, v{t} offset:{HB}
        """)
        self.arrive(C_H, vW4, vONE)
        if EA == 2: a(eal)
        self.xst(6, 12)
        self.wait_flag(C_H, vL4, 11)
        self.xst(6, 13)
        a(f"ds_read_b128 {Q(R)}, v9 offset:{HB}\nds_read_b128 {Q(R+4)}, v9 offset:{HB+64}")
        for ks in range(2):
            a(f"s_waitcnt lgkmcnt({1-ks})")
            for c in range(4): a(f"{MFMA} {Q(DA+4*c)}, {Q(WDF+16*ks+4*c)}, {Q(R+4*ks)}, {'0' if ks == 0 else Q(DA+4*c)}")
        self.xst(6, 14)
        if EA:
            if SK0: a(f"s_cmp_lt_u32 s{sW}, 2\ns_cbranch_scc1 L_EAN")
            a(f"s_waitcnt vmcnt(0)\nv_cmp_ne_u32 vcc, s{sTX}, v{TV+5}\ns_or_b64 vcc, vcc, s[12:13]\ns_cbranch_vccnz L_EAN\ns_mov_b32 s32, 1")
            self.tload(TV, TS, 96)
            a("L_EAN:")
        for r in range(2):
            for c in range(4): a(f"v_cndmask_b32 v{DA+4*c+r}, v{DA+4*c+r}, v{DA+4*c+r+2}, s[22:23]")
            a(f"v_cvt_pk_bf16_f32 v{PQ+4*r}, v{DA+r}, v{DA+4+r}\nv_cvt_pk_bf16_f32 v{PQ+4*r+1}, v{DA+8+r}, v{DA+12+r}")
            a(f"buffer_store_dwordx4 {Q(PQ+4*r)}, v10, {SQ(rWS)}, s4 offen offset:{128*r} {MOD[self.opt.get('psm', 2)]}")
        self.stamp(12); self.xst(6, 15)
        GP = 144; U = 176; F = 80; TW = self.opt.get("tw", 2)
        NT = self.opt.get("not01", 0)
        if EA:
            a(f"s_cmp_eq_u32 s32, 0\ns_cbranch_scc1 L_GATHER")
            self.xst(10, 12); self.xst(10, 13); self.xst(10, 14)
            a(f"s_waitcnt vmcnt(2)")
            self.tstore(TV, TS, 96, mod=self.opt.get('of'), novm=1)
            a("s_branch L_AFT")
        a(f"L_GATHER:\ns_cmp_lg_u32 s12, 0\ns_cbranch_scc1 L_AFT")
        if SK0: a(f"s_cmp_lt_u32 s{sW}, 2\ns_cbranch_scc1 L_AFT")
        self.xst(10, 12)
        a(f"s_setprio {self.opt.get('tprio', 0)}")
        self.wait_flag(C_Y2, vL4, F+1, sleep=2)
        self.tpoll(TV, TS, f"s{sTX}", self.opt.get("fsl", 3))
        self.xst(10, 13)
        self.tload(TV, TS, 96)
        if self.opt.get("xst") == 10: a("s_waitcnt vmcnt(0)")
        self.xst(10, 14)
        self.tstore(TV, TS, 96, mod=self.opt.get('of'))
        a("L_AFT:\ns_setprio 0")
        self.xst(7, 12); self.xst(10, 15)
        a(f"""s_lshl_b32 s4, s{sDG}, 7
        s_add_u32 s4, s4, {WS_PART}
        s_mov_b32 s11, 0
        s_lshl_b32 s8, s{sW}, 8
        v_lshl_add_u32 v{F+5}, v0, 2, s8""")
        AG = self.opt.get("ag")
        def agw(L, thr): a(f"s_branch {L}1\n{L}0:\ns_sleep 1\n{L}1:\nds_read_b32 v{F+1}, v{vL4} offset:{C_TL}\ns_waitcnt lgkmcnt(0)\nv_cmp_gt_u32 vcc, {thr}, v{F+1}\ns_cbranch_vccnz {L}0")
        if AG: agw("L_AG", "s33")
        else: self.wait_flag([C_TL, C_Y3, C_Y2][self.opt.get("gate", 0)], vL4 if self.opt.get("tla", 1) else vW4, F+1, sleep=1)
        a("s_setprio 2\nL_GGO:")
        self.stamp(13); self.xst(3, 12)
        a(f"""
        s_mov_b64 s[8:9], -1
        s_cmp_lt_u32 s{sW}, 3
        s_cselect_b64 s[12:13], -1, 0
        s_add_u32 s5, s4, 0x100000
        v_mov_b32 v{GP+4}, 0
        v_mov_b32 v{GP+5}, 0
        v_mov_b32 v{GP+6}, s{sTAG}
        {"s_waitcnt vmcnt(0)" if self.opt.get("gw", 0) else ""}
        """)
        self.xst(3, 13)
        if self.opt.get("gd"): a(f"s_sleep {self.opt['gd']}")
        a("L_GP:")
        for k, mk in enumerate((8, 12)):
            if self.opt.get("gm", 1): a(f"s_mov_b64 exec, {SP(mk)}\ns_cbranch_execz L_GS{k}\nbuffer_load_dwordx3 v[{GP+4*k}:{GP+4*k+2}], v{gA}, {SQ(rWS)}, s{4+k} offen {MOD[self.opt.get('gpm', 2)]}\nL_GS{k}:")
            else: a(f"s_cmp_eq_u64 {SP(mk)}, 0\ns_cbranch_scc1 L_GS{k}\nbuffer_load_dwordx3 v[{GP+4*k}:{GP+4*k+2}], v{gA}, {SQ(rWS)}, s{4+k} offen {MOD[self.opt.get('gpm', 2)]}\nL_GS{k}:")
        a(f"""
        s_mov_b64 exec, -1
        s_add_u32 s11, s11, 1
        s_waitcnt vmcnt(0)
        v_cmp_ne_u32 s[8:9], s{sTAG}, v{GP+2}
        v_cmp_ne_u32 s[12:13], s{sTAG}, v{GP+6}
        s_or_b64 vcc, s[8:9], s[12:13]
        s_cbranch_vccz L_GOT
        """)
        if AG == 0: agw("L_AH", 2)
        a(f"""
        s_sleep {self.opt.get("gsl", 2)}
        s_cmp_lt_u32 s11, 0x4000
        s_cbranch_scc1 L_GP
        L_GOT:
        """)
        self.stamp(14); self.xst(2, 12)
        if self.opt.get("xst") == 3: a(f"s_mov_b32 s{sST+2*15+1}, s{sST+1}\ns_mul_i32 s8, s11, 100\ns_add_u32 s{sST+2*15}, s{sST}, s8")
        self.xst(3, 14)
        for k in range(2):
            self.unpack(U+4*k, U+4*k+1, GP+4*k); self.unpack(U+4*k+2, U+4*k+3, GP+4*k+1)
        for i in range(4): a(f"v_add_f32 v{U+i}, v{U+i}, v{U+4+i}")
        a(f"""v_permlane32_swap_b32 v{U}, v{U+1}
        v_permlane32_swap_b32 v{U+2}, v{U+3}
        v_add_f32 v{U}, v{U}, v{U+1}
        v_add_f32 v{U+2}, v{U+2}, v{U+3}
        v_permlane16_swap_b32 v{U}, v{U+2}
        v_add_f32 v{U}, v{U}, v{U+2}
        v_add_f32_dpp v{U}, v{U}, v{U} row_ror:8 row_mask:0xf bank_mask:0xf
        ds_write_b32 v{F+5}, v{U} offset:{LMC}""")
        self.arrive(C_UPD, vW4, vONE)
        self.xst(2, 13); self.xst(4, 12)
        if self.opt.get("dq", 3) < 4 and not self.opt.get("ct"): a(f"s_cmp_ge_u32 s{sW}, {self.opt.get('dq', 3)}\ns_cbranch_scc1 L_FIN")
        if not self.opt.get("ct"): a(f"s_lshl_b32 s8, s{sLOC}, 2\ns_add_u32 s8, s{sW}, s8\ns_cmp_ge_u32 s8, {8+TW}\ns_cbranch_scc1 L_TILE")
        a(f"s_cmp_lg_u32 s{sW}, 0\ns_cbranch_scc1 L_FIN")
        self.xst(4, 13)
        a(f"""
        v_lshlrev_b32 v{F}, 16, v{gX}
        L_FW:
        ds_read2_b32 {P(F+6)}, v{vL4} offset0:{C_Y3//4} offset1:{C_UPD//4}
        ds_read_b32 v{F+9}, v{gY}
        ds_read2st64_b32 {P(F+10)}, v{gL} offset0:{LMC//256} offset1:{LMC//256+1}
        ds_read2st64_b32 {P(F+12)}, v{gL} offset0:{LMC//256+2} offset1:{LMC//256+3}
        s_waitcnt lgkmcnt(3)
        v_min_u32 v{F+6}, v{F+6}, v{F+7}
        v_cmp_eq_u32 vcc, 0, v{F+6}
        s_cbranch_vccnz L_FW
        s_waitcnt lgkmcnt(1)
        v_add_f32 v{F}, v{F}, v{F+9}
        v_add_f32 v{F+10}, v{F+10}, v{F+11}
        s_waitcnt lgkmcnt(0)
        v_add_f32 v{F+12}, v{F+12}, v{F+13}
        v_add_f32 v{F+10}, v{F+10}, v{F+12}
        v_fma_f32 v{F}, v{F+10}, v{gS}, v{F}
        v_cvt_pk_bf16_f32 v{F}, v{F}, v{F}
        s_mov_b32 exec_hi, 0
        buffer_store_short v{F}, v{gO}, {SQ(rOUT)}, 0 offen
        s_mov_b64 exec, -1
        """)
        self.stamp(15)
        a("s_branch L_FIN")
        a(f"L_HSC:\nbuffer_store_dwordx4 {Q(HQ)}, v13, {SQ(rWS)}, s5 offen sc1\ns_branch L_HSB")
        if LG:
            a("L_NF:"); glate(); a("s_branch L_GATHER")
        a(f"""
        L_TRIM:
        v_subrev_u32 v{T+12}, s4, v{E}
        v_subrev_u32 v{T+13}, s4, v{E+1}
        v_subrev_u32 v{T+14}, s4, v{E+2}
        v_subrev_u32 v{T+15}, s4, v{E+3}
        v_min3_u32 v{T+12}, v{T+12}, v{T+13}, v{T+14}
        v_min_u32 v{T+12}, v{T+12}, v{T+15}
        """)
        for sh in ("row_shr:1 row_mask:0xf","row_shr:2 row_mask:0xf","row_shr:4 row_mask:0xf","row_shr:8 row_mask:0xf","row_bcast:15 row_mask:0xa","row_bcast:31 row_mask:0xc"):
            a(f"v_min_u32_dpp v{T+12}, v{T+12}, v{T+12} {sh} bank_mask:0xf")
        a(f"""
        v_readlane_b32 s5, v{T+12}, 63
        s_add_u32 s4, s4, s5
        s_add_u32 s4, s4, 1
        s_branch L_CAND
        L_SLOWT:
        v_max3_u32 v{T+4}, v{E}, v{E+1}, v{E+2}
        v_max_u32 v{T+4}, v{T+4}, v{E+3}
        s_mov_b32 s4, 0
        s_brev_b32 s5, 1
        L_BS:
        s_or_b32 s6, s4, s5
        v_cmp_le_u32 vcc, s6, v{T+4}
        s_lshr_b32 s5, s5, 1
        s_bcnt1_i32_b64 s7, vcc
        s_cmp_ge_u32 s7, 8
        s_cselect_b32 s4, s6, s4
        s_cmp_lg_u32 s7, 8
        s_cbranch_scc1 L_BS
        v_mbcnt_lo_u32_b32 v{T+5}, vcc_lo, 0
        v_mbcnt_hi_u32_b32 v{T+5}, vcc_hi, v{T+5}
        v_lshlrev_b32 v{T+5}, 2, v{T+5}
        s_mov_b64 exec, vcc
        ds_write_b32 v{T+5}, v0 offset:{LST2}
        s_mov_b64 exec, -1
        v_lshrrev_b32 v{T+6}, 3, v0
        v_lshlrev_b32 v{T+6}, 2, v{T+6}
        ds_read_b32 v{T+5}, v{T+6} offset:{LST2}
        s_waitcnt lgkmcnt(0)
        v_and_b32 v{T+6}, 7, v0
        v_lshl_add_u32 v{T+5}, v{T+5}, 3, v{T+6}
        v_lshlrev_b32 v{T+6}, 3, v{T+5}
        ds_read_b64 {P(T+2)}, v{T+6} offset:{KEYS}
        v_and_b32 v{T+6}, 1, v{T+5}
        v_and_b32 v{T+5}, -2, v{T+5}
        v_lshl_add_u32 v{T+5}, v{T+6}, 10, v{T+5}
        v_sub_u32 v{E}, 0xfff, v{T+5}
        v_sub_u32 v{E+1}, 0xffe, v{T+5}
        v_sub_u32 v{E+2}, 0xdff, v{T+5}
        v_sub_u32 v{E+3}, 0xdfe, v{T+5}
        s_mov_b32 s5, 0xffff0000
        s_waitcnt lgkmcnt(0)
        v_lshl_or_b32 v{E}, v{T+2}, 16, v{E}
        v_and_or_b32 v{E+1}, v{T+2}, s5, v{E+1}
        v_lshl_or_b32 v{E+2}, v{T+3}, 16, v{E+2}
        v_and_or_b32 v{E+3}, v{T+3}, s5, v{E+3}
        s_branch L_CAND
        """)

    def ftile(self):
        a = self.a; vL4 = 1; sLOC = 60; TW = self.opt.get("tw", 2)
        a(f"""
        s_cmp_lg_u32 s{sLOC}, 2
        s_cbranch_scc1 L_AFT
        s_cmp_ge_u32 s{sW}, {TW}
        s_cbranch_scc1 L_AFT
        """)
        TD = 16; TO = 32; A0 = 92
        a(f"""
        L_TILE:
        s_lshl_b32 s8, s{sW}, 4
        s_cmp_eq_u32 s{sW}, 0
        s_cselect_b32 s8, {C_Y0}, s8
        v_add_u32 v{A0}, s8, v{vL4}
        s_and_b32 s14, s2, 7
        s_lshr_b32 s15, s2, 3
        s_lshl_b32 s16, s14, 12
        s_lshl_b32 s8, s{sW}, 9
        s_add_u32 s16, s16, s8
        s_lshr_b32 s9, s15, 3
        s_lshl_b32 s9, s9, 7
        s_add_u32 s16, s16, s9
        s_add_u32 s16, s16, {WS_FL3}
        s_lshl_b32 s9, s15, 4
        s_add_u32 s8, s8, s9
        s_lshl_b32 s17, s14, 19
        s_lshl_b32 s9, s8, 3
        s_add_u32 s17, s17, s9
        s_add_u32 s17, s17, {WS_XT}
        s_lshl_b32 s18, s8, 11
        s_lshl_b32 s9, s14, 8
        s_add_u32 s18, s18, s9
        s_add_u32 s19, s18, 4096
        s_mul_i32 s9, s{sW}, 4352
        s_add_u32 s9, s9, {PRE}
        s_cmp_eq_u32 s{sW}, 3
        s_cselect_b32 s9, {MSB}, s9
        v_lshlrev_b32 v{A0+1}, 2, v0
        v_and_b32 v{A0+6}, 7, v0
        v_lshrrev_b32 v{A0+7}, 3, v0
        v_lshlrev_b32 v{A0+2}, 4, v{A0+6}
        v_lshl_add_u32 v{A0+2}, v{A0+7}, 14, v{A0+2}
        s_movk_i32 s8, 544
        v_lshl_add_u32 v{A0+3}, v{A0+7}, 3, s9
        v_mad_u32_u24 v{A0+3}, v{A0+6}, s8, v{A0+3}
        v_lshrrev_b32 v{A0+6}, 4, v0
        v_and_b32 v{A0+7}, 15, v0
        v_lshlrev_b32 v{A0+7}, 4, v{A0+7}
        s_movk_i32 s8, 1088
        v_mad_u32_u24 v{A0+4}, v{A0+6}, s8, v{A0+7}
        v_add_u32 v{A0+4}, s9, v{A0+4}
        v_lshl_add_u32 v{A0+5}, v{A0+6}, 13, v{A0+7}
        s_lshl_b32 s8, s15, 6
        s_lshl_b32 s9, s{sW}, 1
        s_add_u32 s8, s8, s9
        v_lshl_add_u32 v{A0+6}, v{A0+6}, 4, s8
        ds_read_u16 v{A0+8}, v{A0+6} offset:{SELF}
        ds_read_u16 v{A0+9}, v{A0+6} offset:{SELF+8}
        s_brev_b32 s8, 1
        s_mov_b32 s20, 0
        s_setprio 0
        """)
        self.wait_flag(0, A0, A0+7, sleep=2)
        a(f"""
        s_setprio 2
        v_lshlrev_b32 v{A0+10}, 24, v{A0+8}
        v_lshlrev_b32 v{A0+11}, 16, v{A0+8}
        v_lshlrev_b32 v{A0+12}, 24, v{A0+9}
        v_lshlrev_b32 v{A0+13}, 16, v{A0+9}
        """)
        for i in range(4): a(f"v_and_or_b32 v{A0+10+i}, v{A0+10+i}, s8, v{A0+5}")
        a(f"""
        s_mov_b32 exec_hi, 0
        L_TP:
        s_sleep {self.opt.get("tsl", 1)}
        buffer_load_dword v{A0+7}, v{A0+1}, {SQ(rWS)}, s16 offen sc1
        s_add_u32 s20, s20, 1
        s_waitcnt vmcnt(0)
        v_cmp_ne_u32 vcc, s{sTX}, v{A0+7}
        s_cbranch_vccz L_TOK
        s_cmp_lt_u32 s20, 0x4000
        s_cbranch_scc1 L_TP
        L_TOK:
        s_mov_b32 exec_hi, -1
        """)
        for j in range(4): a(f"buffer_load_dwordx4 {Q(TD+4*j)}, v{A0+2}, {SQ(rWS)}, s17 offen sc1\ns_add_u32 s17, s17, 0x20000")
        for j in range(4): a(f"s_waitcnt vmcnt({3-j})\nds_write_b64 v{A0+3}, {P(TD+4*j)} offset:{64*j}\nds_write_b64 v{A0+3}, {P(TD+4*j+2)} offset:{64*j+272}")
        for i in range(4): a(f"ds_read_b128 {Q(TO+4*i)}, v{A0+4} offset:{272*i}")
        for i in range(4): a(f"s_waitcnt lgkmcnt({3-i})\nbuffer_store_dwordx4 {Q(TO+4*i)}, v{A0+10+i}, {SQ(rOUT)}, s{18+i//2} offen offset:{2048*(i%2)} {'sc1' if self.opt.get('osc', 1) else ''}")
        if "wbw" in self.opt:
            a(f"s_lshl_b32 s8, s15, 2\ns_add_u32 s8, s8, s{sW}\ns_cmp_lg_u32 s8, {31*4+self.opt['wbw']}\ns_cbranch_scc1 L_NWB\nbuffer_wbl2 sc1\nL_NWB:")
        if self.stamps or self.opt.get("gamp") == 15:
            a(f"s_cmp_lt_u32 s{sW}, {TW}\ns_cbranch_scc1 L_AFT\ns_waitcnt vmcnt(0)")
            self.stamp(15)
        a(f"""
        s_cmp_ge_u32 s{sW}, {TW}
        s_cbranch_scc1 L_FIN
        """)
    def fin(self):
        a = self.a
        a("L_FIN:")
        if self.opt.get("wb"): a("s_waitcnt vmcnt(0)\nbuffer_wbl2 sc1\ns_waitcnt vmcnt(0)")
        if "gamp" in self.opt:
            k = self.opt["gamp"]; half = self.opt.get("gC", 0); mode = self.opt.get("gmode", 0)
            if "gw" in self.opt: a(f"s_cmp_eq_u32 s{sW}, {self.opt['gw']}\ns_cselect_b32 s{sST+2*k}, s{sST+2*k}, 0")
            if "grole" in self.opt: a(f"s_cmp_{'lt' if self.opt['grole'] else 'ge'}_u32 s2, 224\ns_cselect_b32 s{sST+2*k}, s{sST+2*k}, 0")
            a(f"""
            s_lshr_b32 s4, s{sW}, 2
            s_lshl_b32 s4, s4, 10
            s_lshl_b32 s5, s2, 2
            s_add_u32 s4, s4, s5
            s_and_b32 s5, s{sW}, 3
            s_add_u32 s4, s4, s5
            s_lshl_b32 s4, s4, 3
            s_add_u32 s4, s4, {WS_STAMP}
            v_mov_b32 v1, 0
            v_mov_b32 v4, s{sST}
            v_mov_b32 v5, s{sST+2*k}
            s_mov_b64 exec, 1
            buffer_store_dwordx2 v[4:5], v1, {SQ(rWS)}, s4 offen sc1
            s_mov_b64 exec, -1
            s_cmp_lg_u32 s2, 0
            s_cbranch_scc1 L_END
            s_cmp_lg_u32 s{sW}, 0
            s_cbranch_scc1 L_END
            L_GA1:
            s_memrealtime s[6:7]
            s_waitcnt lgkmcnt(0)
            s_sub_u32 s5, s6, s{sST}
            s_cmp_lt_u32 s5, 4000
            s_cbranch_scc1 L_GA1
            v_lshlrev_b32 v1, 3, v0
            s_mov_b32 s4, {WS_STAMP + half*8192}
            s_sub_u32 s8, s{sST}, 1000
            """)
            for i in range(16): a(f"buffer_load_dwordx2 {P(16+2*i)}, v1, {SQ(rWS)}, s4 offen sc1\ns_add_u32 s4, s4, 512")
            a("s_waitcnt vmcnt(0)\nv_mov_b32 v2, -1\nv_mov_b32 v3, 0\nv_mov_b32 v6, 0")
            for i in range(16):
                a(f"v_subrev_u32 v{16+2*i}, s8, v{16+2*i}\nv_min_u32 v2, v2, v{16+2*i}\nv_cmp_ne_u32 vcc, 0, v{17+2*i}\nv_subrev_u32 v{17+2*i}, s8, v{17+2*i}\nv_cndmask_b32 v{17+2*i}, 0, v{17+2*i}, vcc\nv_addc_co_u32 v6, vcc, 0, v6, vcc")
                a(f"v_max_u32 v3, v3, v{17+2*i}" if mode == 0 else f"v_add_u32 v3, v3, v{17+2*i}")
            op = "v_max_u32_dpp" if mode == 0 else "v_add_u32_dpp"
            for sh in ("row_shr:1 row_mask:0xf","row_shr:2 row_mask:0xf","row_shr:4 row_mask:0xf","row_shr:8 row_mask:0xf","row_bcast:15 row_mask:0xa","row_bcast:31 row_mask:0xc"):
                a(f"v_min_u32_dpp v2, v2, v2 {sh} bank_mask:0xf\n{op} v3, v3, v3 {sh} bank_mask:0xf\nv_add_u32_dpp v6, v6, v6 {sh} bank_mask:0xf")
            if mode == 1:
                a("v_cvt_f32_u32 v3, v3\nv_cvt_f32_u32 v6, v6\nv_rcp_f32 v6, v6\nv_mul_f32 v3, v3, v6\nv_cvt_u32_f32 v3, v3")
            a(f"""
            v_readlane_b32 s4, v3, 63
            v_readlane_b32 s5, v2, 63
            s_sub_u32 s4, s4, s5
            s_min_u32 s4, s4, 4000
            s_mul_i32 s4, s4, 10
            s_add_u32 s4, s4, 5000
            L_GA2:
            s_memrealtime s[6:7]
            s_waitcnt lgkmcnt(0)
            s_sub_u32 s5, s6, s{sST}
            s_cmp_lt_u32 s5, s4
            s_cbranch_scc1 L_GA2
            """)
        if "amp" in self.opt:
            k = self.opt["amp"]
            a(f"""
            s_cmp_lg_u32 s2, {self.opt.get('ampb', 0)}
            s_cbranch_scc1 L_END
            s_cmp_lg_u32 s{sW}, {self.opt.get('ampw', 0)}
            s_cbranch_scc1 L_END
            s_sub_u32 s4, s{sST+2*k}, s{sST}
            s_min_u32 s4, s4, 5000
            s_mul_i32 s4, s4, 10
            {"s_mov_b32 s4, %d" % self.opt["fix"] if "fix" in self.opt else ""}
            L_AMP:
            s_memrealtime s[6:7]
            s_waitcnt lgkmcnt(0)
            s_sub_u32 s5, s6, s{sST}
            s_cmp_lt_u32 s5, s4
            s_cbranch_scc1 L_AMP
            """)
        if self.stamps and (self.opt.get("kst") == 2 or self.opt.get("cst") == 2):
            a(f"s_cmp_lt_u32 s{sW}, 4\ns_cbranch_scc1 L_NKC")
            for i in (10, 11, 12, 13, 15, 14):
                a(f"s_sub_u32 s{sST+2*i}, s{sST+2*i}, s{sST+28}\ns_add_u32 s{sST+2*i}, s{sST+2*i}, s{sST}\ns_addc_u32 s{sST+2*i+1}, s{sST+1}, 0")
            a("L_NKC:")
        if self.stamps:
            a(f"s_lshl_b32 s4, s2, 3\ns_add_u32 s4, s4, s{sW}\ns_lshl_b32 s4, s4, 7\ns_add_u32 s4, s4, {WS_STAMP}\nv_mov_b32 v1, s4\ns_mov_b64 exec, 1")
            for i in range(8):
                for k in range(4): a(f"v_mov_b32 v{4+k}, s{sST+4*i+k}")
                a(f"buffer_store_dwordx4 v[4:7], v1, {SQ(rWS)}, 0 offen offset:{16*i}")
        a("L_END:\ns_endpgm")

    def build(self):
        if self.stamps:
            for i in range(2, 32, 2): self.a(f"s_mov_b64 {SP(sST+i)}, 0")
        self.prologue(); self.kgen(); self.cmain(); self.fmain(); self.fin()
        body = self.a.finalize()
        if not self.opt.get("noalign"): body = align_pass(body, KN)
        hdr = open("parallel_sum__ssm_conv_s4d__moe_arch_mod__prompt.s.ref").read().split("; Override launch")[0]
        out = hdr + f"; @launch grid=(256,1,1) block=(512,1,1) lds={LDS_END}\n"
        out += f'.amdgcn_target "amdgcn-amd-amdhsa--gfx950"\n.text\n.globl {KN}\n.p2align 8\n.type {KN},@function\n{KN}:\n'
        out += body
        out += f'''.section .rodata,"a"
.p2align 6
.amdhsa_kernel {KN}
  .amdhsa_next_free_vgpr 256
  .amdhsa_next_free_sgpr 102
  .amdhsa_accum_offset 256
  .amdhsa_group_segment_fixed_size 0
  .amdhsa_kernarg_size 120
  .amdhsa_user_sgpr_count 2
  .amdhsa_user_sgpr_kernarg_segment_ptr 1
  .amdhsa_system_sgpr_workgroup_id_x 1
  .amdhsa_float_denorm_mode_32 3
.end_amdhsa_kernel
'''
        return out

if __name__ == "__main__":
    out = sys.argv[1]
    stamps = "--stamps" in sys.argv
    opt = {}
    for x in sys.argv[2:]:
        if "=" in x:
            k, v = x.split("="); opt[k] = int(v, 0)
    open(out, "w").write(G(stamps, opt).build())
```

```python
import sys, struct
from asmlib import Asm, align_pass

KN = "parallel_sum__ssm_conv_s4d__moe_arch_mod__prompt_kernel"
def f2u(x): return struct.unpack("<I", struct.pack("<f", x))[0]
LOG2E = f2u(1.4426950408889634); INV2PI = f2u(0.15915494309189535)

LIST = 192; IDX = 256; RSV = 288; LST2 = 320; GM = 384; CNTR = 512; CNT2 = 516; CNT3 = 520; CNT4 = 524; C_MS = 528; C_XI = 544; C_TL = 560; STG = 576; HB = 4096; UPD = 1024; SELF = 1152; KEYS = 4096; LMC = 8192
TROW = 544
MSB = 9216
VT0 = MSB + 8192; VSTR = 16*TROW
K0 = VT0 + 4*VSTR
KSTR = 2368; K3O = 4*KSTR; KREG = 32*TROW
XR0 = K0 + 4*KREG; XSTR = 4608
YB = VT0; PRE = XR0 + 4*XSTR
LDS_END = PRE + 16384
UOF = 65535 - KREG - 63 & ~63
assert K0 - UOF + 3*KREG < 65536
C_XR, C_Y1, C_Y2, C_Y3, C_KEYS, C_PRE, C_UPD, C_SEL, C_XS, C_Y0, C_KD, C_H = [16*i for i in range(12)]
WS_ALIVE = 0x800
WS_STAT = 0x780000
WS_H1 = 0x10000
WS_PART = 0x100000
WS_XT = 0x300000
WS_FL3 = 0xF0000
WS_FL2 = 0x700000
WS_STAMP = 0x800000
WS_SIZE = 0x1000000

sX, sLAR, sAI, sCR, sCI, sLDT, sDSK = 16, 18, 20, 22, 24, 26, 28
sWR, sWGT, sWU, sWD = 32, 34, 36, 38
sOUT, sWS = 40, 42
rWS, rX, rOUT = 44, 48, 52
sTAG = 56; sTX = 63; sW = 3; sDG = 57; sJ = 59
sO = 60
sSH = 12
sROLE = 69
sST = 70
rG, rU, rD = 16, 20, 24

def P(r): return f"v[{r}:{r+1}]"
def Q(r): return f"v[{r}:{r+3}]"
def SP(r): return f"s[{r}:{r+1}]"
def SQ(r): return f"s[{r}:{r+3}]"
MOD = ["", "sc0", "sc1", "sc0 sc1", "nt", "sc0 nt", "sc1 nt", "sc0 sc1 nt"]
MFMA = "v_mfma_f32_16x16x32_bf16"

def interleave(main, fill, per=1, start=0):
    out = []; fill = list(fill)
    for k, m in enumerate(main):
        out.append(m)
        if k >= start:
            for _ in range(per):
                if fill: out.append(fill.pop(0))
    return out + fill

class G:
    def __init__(self, stamps=False, opt=None):
        self.a = Asm(); self.stamps = stamps; self.opt = dict(dq=4, xf=0, wn=4, np=5, ga=0, wx=1, m0=4, m1=4, sm=0, xe=6, xpr=1, ct=3, gw=0, tla=1, pw=0); self.opt.update(opt or {})
        self.tpos = [v for k, v in self.opt.items() if k in ("tg","tu","td","tga","tgb","tua","tub","tda","tdb")]
        self.NX0 = self.opt.get("nx0", 2); self.NX1 = self.opt.get("nx1", 1); self.NX2 = self.opt.get("nx2", 1)
        self.NB0 = self.opt.get('nb0', 2)
        self.NXA = self.NX0 + self.NX1 + self.NX2
    def hook(self, p):
        for name, reg, ad, base in (("tg", 18, 17, sWGT), ("tu", 19, 17, sWU), ("td", 16, 15, sWD)):
            for h, ex in (("", None), ("a", "hi"), ("b", "lo")):
                if self.opt.get(name+h, -9) == p:
                    if ex: self.a(f"s_mov_b32 exec_{ex}, 0")
                    self.a(f"global_load_dword v{reg}, v{ad}, {SP(base)}")
                    if ex: self.a(f"s_mov_b32 exec_{ex}, -1")
    def est(self, i):
        if self.opt.get("est"): self.a(f"s_memrealtime {SP(sST+2*i)}")
    def xst(self, g, i):
        if self.stamps and self.opt.get("xst") == g: self.a(f"s_memrealtime {SP(sST+2*i)}\ns_waitcnt lgkmcnt(0)")
    def stamp(self, i):
        if self.opt.get("xst") and i >= 12: return
        if self.opt.get("est") and i >= 6 and i < 14: return
        if self.stamps or self.opt.get("amp") == i or self.opt.get("gamp") == i:
            self.a(f"s_memrealtime {SP(sST+2*i)}\ns_waitcnt lgkmcnt(0)")
    def kst(self, i):
        if self.opt.get("kst"): self.a(f"{'s_memtime' if self.opt['kst'] == 2 else 's_memrealtime'} {SP(sST+2*i)}")
    def cst(self, i):
        if self.opt.get("cst"): self.a(f"{'s_memtime' if self.opt['cst'] == 2 else 's_memrealtime'} {SP(sST+2*i)}")
    def unp(self, lo, hi, src):
        return [f"v_lshlrev_b32 v{lo}, 16, v{src}", f"v_and_b32 v{hi}, 0xffff0000, v{src}"]
    def unpack(self, lo, hi, src):
        for l in self.unp(lo, hi, src): self.a(l)
    def bf16r(self, dst, src):
        self.a(f"v_cvt_pk_bf16_f32 v{dst}, v{src}, v{src}\nv_and_b32 v{dst}, 0xffff0000, v{dst}")
    def cmul2(self, d, x, y, t):
        a = self.a
        for q in (0,2): a(f"v_pk_mul_f32 {P(t+q)}, {P(x+q)}, {P(y+q)} op_sel_hi:[1,0]")
        for q in (0,2): a(f"v_pk_fma_f32 {P(d+q)}, {P(x+q)}, {P(y+q)}, {P(t+q)} op_sel:[1,1,0] op_sel_hi:[0,1,1] neg_lo:[1,0,0]")
    def arr(self, off, vw4, vone):
        return ["s_mov_b64 exec, 1", f"ds_write_b32 v{vw4}, v{vone} offset:{off}", "s_mov_b64 exec, -1"]
    def arrive(self, off, vw4, vone):
        for l in self.arr(off, vw4, vone): self.a(l)
    def wait_flag(self, off, vl4, vt, sleep=0):
        L = self.a.label("LW")
        sl = f"s_sleep {sleep}\n" if sleep else ""
        self.a(f"{L}:\n{sl}ds_read_b32 v{vt}, v{vl4} offset:{off}\ns_waitcnt lgkmcnt(0)\nv_cmp_eq_u32 vcc, 0, v{vt}\ns_cbranch_vccnz {L}")
    def srd(self, r, p, size):
        self.a(f"s_mov_b32 s{r}, s{p}\ns_and_b32 s{r+1}, s{p+1}, 0xffff\ns_mov_b32 s{r+2}, {size:#x}\ns_mov_b32 s{r+3}, 0x20000")
    def wsb(self):
        if self.opt.get("wsb"): self.a(f"s_add_u32 s{sWS}, s{sWS}, {self.opt['wsb']:#x}\ns_addc_u32 s{sWS+1}, s{sWS+1}, 0")
    def mktag(self):
        self.a(f"s_mul_i32 s{sTAG}, s{sTAG}, 0x9E3779B1\ns_add_u32 s{sTAG}, s{sTAG}, 0x7F4A7C15\ns_or_b32 s{sTAG}, s{sTAG}, 1\ns_andn2_b32 s{sTAG}, s{sTAG}, 0x1e")

    def prologue(self):
        a = self.a
        if "gamp" in self.opt: a(f"s_mov_b32 s{sST+2*self.opt['gamp']}, 0")
        if self.stamps or "amp" in self.opt or "gamp" in self.opt: a(f"s_memrealtime {SP(sST)}")
        a(f"""
        s_cmp_ge_u32 s2, 256
        s_cbranch_scc1 L_END
        s_load_dwordx16 s[16:31], s[0:1], 0
        s_load_dwordx8 s[32:39], s[0:1], 64
        s_load_dwordx2 {SP(sOUT)}, s[0:1], 96
        s_load_dwordx2 {SP(sWS)}, s[0:1], 112
        s_getpc_b64 s[14:15]
        v_lshrrev_b32 v1, 6, v0
        v_and_b32 v10, 255, v0
        v_and_b32 v0, 63, v0
        v_readfirstlane_b32 s{sW}, v1
        v_lshlrev_b32 v1, 2, v0
        v_mov_b32 v2, 0
        ds_write2st64_b32 v1, v2, v2 offset0:0 offset1:2
        s_and_b32 s5, s2, 7
        s_lshr_b32 s6, s2, 3
        s_lshl_b32 s{sDG}, s5, 5
        s_add_u32 s{sDG}, s{sDG}, s6
        s_and_b32 s58, s{sW}, 3
        {"s_xor_b32 s%d, s%d, 4" % (sW, sW) if self.opt.get("swp", 0) else ""}
        s_lshl_b32 s7, s{sDG}, 2
        s_add_u32 s7, s7, s58
        s_lshl_b32 s7, s7, 8
        v_add_u32 v15, s7, v1
        s_mov_b32 s{sO}, 0
        s_lshl_b32 s4, s{sDG}, 3
        s_cmp_lt_u32 s{sW}, 4
        s_cbranch_scc1 L_F0
        """)
        CPF = self.opt.get("cpf", 4)
        if CPF:
            a(f"""
            s_and_b32 s8, s6, {(1<<CPF)-1}
            s_lshl_b32 s8, s8, 2
            s_add_u32 s8, s8, s58
            s_lshl_b32 s8, s8, {13-CPF}
            s_mov_b32 s69, s8
            v_lshl_add_u32 v2, v0, 7, s8
            v_min_u32 v2, L_END-{KN}-128, v2
            s_mov_b64 exec, {(1<<(64>>CPF))-1:#x}
            global_load_dword v255, v2, s[14:15]
            s_mov_b64 exec, -1
            """)
        else: a(f"""
        v_lshlrev_b32 v2, 7, v10
        v_min_u32 v2, L_END-{KN}-128, v2
        global_load_dword v255, v2, s[14:15]
        """)
        a(f"""
        v_lshlrev_b32 v3, 12, v10
        v_add_u32 v3, s4, v3
        s_lshl_b32 s8, s5, 5
        s_add_u32 s8, s8, s58
        s_lshl_b32 s8, s8, 7
        s_add_u32 s8, s8, {WS_FL3}
        v_lshl_add_u32 v2, v0, 9, s8
        s_lshl_b32 s59, s5, 2
        s_add_u32 s59, s59, s58
        s_lshl_b32 s59, s59, 5
        s_add_u32 s59, s59, s6
        s_lshl_b32 s59, s59, 9
        s_add_u32 s59, s59, {WS_FL2}
        s_sub_u32 s8, s59, 512
        v_lshl_add_u32 v4, v0, 7, s8
        v_cmp_lt_u32 vcc, 3, v0
        v_cndmask_b32 v2, v2, v4, vcc
        s_lshl_b32 s8, s2, 6
        s_add_u32 s8, s8, {WS_STAT}
        {"v_writelane_b32 v2, s8, 3" if self.opt.get("sp", 1) else ""}
        s_waitcnt lgkmcnt(0)
        """)
        FP = self.opt.get("fp", (16 << self.opt.get("nst", 3)) - 1)
        fpi = f"s_cmp_ge_u32 s6, {self.opt.get('fq', 32)}\ns_cbranch_scc1 L_NFP\ns_mov_b64 exec, {FP}\nglobal_load_dword v255, v2, {SP(sWS)}\ns_mov_b64 exec, -1\nL_NFP:"
        if FP and self.opt.get("fo", 0) == 0: a(fpi)
        a(f"""
        global_load_dword v224, v15, {SP(sLAR)}
        global_load_dword v225, v15, {SP(sAI)}
        global_load_dword v226, v15, {SP(sCR)}
        global_load_dword v227, v15, {SP(sCI)}
        {fpi if FP and self.opt.get("fo", 0) == 1 else ""}
        s_add_u32 s6, s{sLDT}, s4
        s_addc_u32 s7, s{sLDT+1}, 0
        s_load_dwordx2 s[64:65], s[6:7], 0
        s_add_u32 s6, s{sDSK}, s4
        s_addc_u32 s7, s{sDSK+1}, 0
        s_load_dwordx2 s[66:67], s[6:7], 0
        s_barrier
        s_mov_b64 s[26:27], s[14:15]
        s_mov_b32 s{sO+1}, 0x100000
        s_mov_b32 s{sO+2}, 0x200000
        s_mov_b32 s{sO+3}, 0x300000
        """)
        self.wsb()
        self.srd(rWS, sWS, WS_SIZE); self.srd(rX, sX, 0x400000); self.srd(rOUT, sOUT, 0x400000)
        if True: a(f"s_setprio {self.opt.get('kprio', 2)}")
        if "probe" in self.opt:
            p = {0: sWS, 1: sOUT, 2: 30, 3: sWD}[self.opt["probe"]]
            off = self.opt.get("poff", 0x200000)
            a(f"s_cmp_lg_u32 s2, 0\ns_cbranch_scc1 L_NPR\ns_cmp_lg_u32 s{sW}, 4\ns_cbranch_scc1 L_NPR\ns_waitcnt vmcnt(0)")
            if self.opt.get("pdelay"): a(f"s_mov_b32 s4, 0\nL_PD:\ns_sleep 100\ns_add_u32 s4, s4, 1\ns_cmp_lt_u32 s4, 10\ns_cbranch_scc1 L_PD")
            a(f"v_mov_b32 v20, {off}\nglobal_load_dword v21, v20, {SP(p)}\ns_waitcnt vmcnt(0)\ns_memrealtime {SP(sST)}\ns_waitcnt lgkmcnt(0)")
            for i in range(8): a(f"v_add_u32 v20, 0x4800, v20\nglobal_load_dword v21, v20, {SP(p)}\ns_waitcnt vmcnt(0)")
            a(f"s_memrealtime {SP(sST+30)}\ns_waitcnt lgkmcnt(0)\nL_NPR:")

    def xissue(self):
        self.xn = getattr(self, "xn", 0) + 1
        if self.xn > 1: self.a(f"s_cmp_lg_u32 s30, 0\ns_cbranch_scc1 L_XI{self.xn}")
        self.a(f"ds_read_b32 v34, v6 offset:{C_XS}\ns_buffer_load_dwordx8 s[16:23], {SQ(rWS)}, s31 {'glc' if self.opt.get('g0') else ''}\nL_XI{self.xn}:")
    def xcmp(self):
        a = self.a
        for i in range(4): a(f"s_xor_b64 {SP(16+2*i)}, {SP(16+2*i)}, s[28:29]")
        a("s_or_b64 s[16:17], s[16:17], s[18:19]\ns_or_b64 s[20:21], s[20:21], s[22:23]\ns_or_b64 s[16:17], s[16:17], s[20:21]")
    def xloads(self):
        if self.opt.get("xpr"): self.a("s_setprio 3")
        self.xloads_()
        if self.opt.get("df", 1): self.arrive(C_XI, 4, 5)
        if self.opt.get("xpr"): self.a(f"s_setprio {self.opt.get('kprio', 2)}")
    def xloads_(self):
        if self.opt.get("sch", 1):
            for k in range(4): self.a(f"buffer_load_dwordx4 {Q(16+4*k)}, v33, {SQ(rWS)}, s{32+k} offen {MOD[self.opt.get('xro',2)]}")
            return
        for k in range(4): self.a(f"s_add_u32 s4, s13, {0x1000*k}\nbuffer_load_dwordx4 {Q(16+4*k)}, v33, {SQ(rWS)}, s4 offen {MOD[self.opt.get('xro',2)]}")
    def xcheck(self):
        a = self.a; n = self.xn
        if n > 1: a(f"s_cmp_lg_u32 s30, 0\ns_cbranch_scc1 L_XE{n}")
        a(f"s_waitcnt lgkmcnt(0)\nv_readfirstlane_b32 s28, v34\ns_add_u32 s31, s31, 64\ns_mov_b32 s29, s28\ns_cmp_eq_u32 s28, 0\ns_cbranch_scc1 L_XE{n}")
        self.xcmp()
        a(f"{'s_branch' if self.opt.get('forcex') else 's_cbranch_scc1'} L_XE{n}")
        self.xloads()
        a("s_mov_b32 s30, 1")
        if not self.opt.get("cst"): self.stamp(10)
        a(f"L_XE{n}:")
    def refresh(self):
        CPF = self.opt.get("cpf", 4)
        return ["v_lshl_add_u32 v35, v0, 7, s69", f"v_min_u32 v35, L_END-{KN}-128, v35", f"s_mov_b64 exec, {(1<<(64>>CPF))-1:#x}", f"global_load_dword v{35 if self.opt.get('rf') == 4 else 16}, v35, s[26:27]", "s_mov_b64 exec, -1"]
    def tsetup(self, k0, lbase, lstr, V, S):
        vLA, vW, vR, vOA, vS, t0, t1, vFA = range(V, V+8)
        self.a(f"""
        s_lshr_b32 s8, s2, 3
        s_and_b32 s9, s2, 7
        s_lshr_b32 s{S+5}, s58, 1
        s_add_u32 s{S+5}, s{S+5}, {k0}
        v_lshrrev_b32 v{t0}, 3, v0
        v_and_b32 v{t1}, 7, v0
        s_lshl_b32 s{S+4}, s8, 5
        s_add_u32 s{S+4}, s{S+4}, s{S+5}
        v_lshrrev_b32 v{vS}, 4, v0
        v_lshl_add_u32 v{vS}, v{vS}, 2, s{S+4}
        v_and_b32 v{vOA}, 1, v{t0}
        v_lshl_add_u32 v{vS}, v{vS}, 1, v{vOA}
        ds_read_u8 v{vFA}, v{vS} offset:{SELF}
        ds_read_u8 v{vS}, v{vS} offset:{SELF+32}
        s_mul_i32 s{S+4}, s58, {lstr}
        s_add_u32 s{S+4}, s{S+4}, {lbase}
        v_lshl_add_u32 v{vW}, v{t0}, 3, s{S+4}
        v_lshl_add_u32 v{vR}, v{t1}, 4, s{S+4}
        s_movk_i32 s{S+4}, 288
        v_mad_u32_u24 v{vW}, v{t1}, s{S+4}, v{vW}
        s_movk_i32 s{S+4}, 144
        v_mad_u32_u24 v{vR}, v{t0}, s{S+4}, v{vR}
        v_lshlrev_b32 v{t1}, 4, v{t1}
        v_lshl_add_u32 v{vLA}, v{t0}, 14, v{t1}
        v_lshl_add_u32 v{t0}, v{t0}, 11, v{t1}
        s_and_b32 s{S+4}, s58, 1
        s_lshl_b32 s{S+1}, s9, 1
        s_add_u32 s{S+1}, s{S+1}, s{S+4}
        s_lshl_b32 s{S+5}, s{S+5}, 5
        s_add_u32 s{S+5}, s{S+5}, s8
        s_lshl_b32 s{S}, s{S+1}, 18
        s_lshl_b32 s{S+4}, s{S+5}, 7
        s_add_u32 s{S}, s{S}, s{S+4}
        s_add_u32 s{S}, s{S}, {WS_XT}
        s_lshl_b32 s{S+2}, s{S+5}, 15
        s_lshl_b32 s{S+1}, s{S+1}, 7
        s_add_u32 s{S+2}, s{S+2}, s{S+1}
        s_add_u32 s{S+3}, s{S+2}, 0x4000
        s_add_u32 s{S+1}, s{S}, 0x20000
        s_lshl_b32 s{S+4}, s9, 5
        s_lshr_b32 s8, s8, 3
        s_add_u32 s{S+4}, s{S+4}, s8
        s_lshl_b32 s{S+4}, s{S+4}, 7
        s_add_u32 s{S+4}, s{S+4}, {WS_FL3 + 256*k0}
        s_mov_b32 s{S+5}, 0
        s_waitcnt lgkmcnt(0)
        v_lshl_or_b32 v{vOA}, v{vFA}, 24, v{t0}
        v_lshl_or_b32 v{vS}, v{vS}, 24, v{t0}
        v_lshlrev_b32 v{vFA}, 2, v0
        """)
    def tpoll(self, V, S, tag, sl):
        L = self.a.label("LT")
        self.a(f"""
        s_mov_b32 exec_hi, 0
        {L}:
        buffer_load_dword v{V+5}, v{V+7}, {SQ(rWS)}, s{S+4} offen sc1
        s_add_u32 s{S+5}, s{S+5}, 1
        s_waitcnt vmcnt(0)
        v_cmp_ne_u32 vcc, {tag}, v{V+5}
        s_cbranch_vccz {L}K
        s_sleep {sl}
        s_cmp_lt_u32 s{S+5}, 0x4000
        s_cbranch_scc1 {L}
        {L}K:
        s_mov_b32 exec_hi, -1
        """)
    def tload(self, V, S, D):
        for i in range(2): self.a(f"buffer_load_dwordx4 {Q(D+4*i)}, v{V}, {SQ(rWS)}, s{S+i} offen sc1")
    def tstore(self, V, S, D, mod=None, novm=0):
        a = self.a
        for i in range(2): a(("" if novm else f"s_waitcnt vmcnt({1-i})\n") + f"ds_write_b64 v{V+1}, {P(D+4*i)} offset:{64*i}\nds_write_b64 v{V+1}, {P(D+4*i+2)} offset:{64*i+144}")
        for i in range(2): a(f"ds_read_b128 {Q(D+8+4*i)}, v{V+2} offset:{1152*i}")
        for i in range(2): a(f"s_waitcnt lgkmcnt({1-i})\nbuffer_store_dwordx4 {Q(D+8+4*i)}, v{V+3+i}, {SQ(rOUT)}, s{S+2+i} offen {MOD[mod] if mod is not None else 'sc1' if self.opt.get('osc', 1) else ''}")
    def dt_calc(self, DT):
        self.a(f"""
        s_lshl_b32 s4, s58, 4
        s_lshr_b64 s[6:7], s[64:65], s4
        s_lshl_b32 s6, s6, 16
        v_mov_b32 v{DT}, s6
        v_mul_f32 v{DT}, {LOG2E:#x}, v{DT}
        v_exp_f32 v{DT}, v{DT}
        """)
        self.bf16r(DT, DT)
    def zcalc(self, plar, pai, DT, ER, FI, t):
        a = self.a
        self.unpack(t, t+1, plar)
        self.unpack(t+2, t+3, pai)
        a(f"v_mul_f32 v{t}, {LOG2E:#x}, v{t}\nv_mul_f32 v{t+1}, {LOG2E:#x}, v{t+1}\nv_exp_f32 v{t}, v{t}\nv_exp_f32 v{t+1}, v{t+1}")
        a(f"v_mul_f32 v{t+2}, v{t+2}, v{DT}\nv_mul_f32 v{t+3}, v{t+3}, v{DT}")
        a(f"v_mul_f32 v{FI}, {INV2PI:#x}, v{t+2}\nv_mul_f32 v{FI+1}, {INV2PI:#x}, v{t+3}")
        a(f"v_cvt_pk_bf16_f32 v{t+2}, v{t}, v{t+1}")
        self.unpack(t, t+1, t+2)
        a(f"v_mul_f32 v{t}, v{t}, v{DT}\nv_mul_f32 v{t+1}, v{t+1}, v{DT}")
        a(f"v_mul_f32 v{ER}, {LOG2E|0x80000000:#x}, v{t}\nv_mul_f32 v{ER+1}, {LOG2E|0x80000000:#x}, v{t+1}")
    def cexp(self, E, p, ER, FI, t):
        a = self.a
        if p != 1.0:
            for q in (0,1): a(f"v_mul_f32 v{t+q}, {f2u(p):#x}, v{ER+q}\nv_mul_f32 v{t+2+q}, {f2u(p):#x}, v{FI+q}")
            e, f = t, t+2
        else: e, f = ER, FI
        for q in (0,1): a(f"v_exp_f32 v{t+q}, v{e+q}\nv_fract_f32 v{t+2+q}, v{f+q}")
        for q in (0,1): a(f"v_cos_f32 v{E+2*q}, v{t+2+q}\nv_sin_f32 v{E+2*q+1}, v{t+2+q}")
        for q in (0,1): a(f"v_mul_f32 v{E+2*q}, v{E+2*q}, v{t+q}\nv_mul_f32 v{E+2*q+1}, v{E+2*q+1}, v{t+q}")

    PRM=224; VDT=228; VaW=229; VER=230; VFI=232; VCUR=236; VE8=240; VTMP=244; VPK=248
    def vprep(self):
        a = self.a
        a(f"s_mul_i32 s4, s58, {VSTR}\ns_add_u32 s4, s4, {VT0}\nv_lshl_add_u32 v{self.VaW}, v0, 3, s4")
        a(f"v_add_f32 v{self.VDT}, v{self.VDT}, v{self.VDT}")
        self.unpack(self.VCUR, self.VCUR+2, self.PRM+2)
        self.unpack(self.VCUR+1, self.VCUR+3, self.PRM+3)
        for i in range(4): a(f"v_mul_f32 v{self.VCUR+i}, v{self.VCUR+i}, v{self.VDT}")
        self.cexp(self.VE8, 8.0, self.VER, self.VFI, self.VTMP)
    def vloop(self, n=8):
        a = self.a; L = a.label("LV"); CUR = self.VCUR
        a(f"s_mov_b32 s4, 0\n{L}:")
        for j in range(4):
            r = self.VPK + 2*j
            a(f"v_cvt_pk_bf16_f32 v{r}, v{CUR}, -v{CUR+1}\nv_cvt_pk_bf16_f32 v{r+1}, v{CUR+2}, -v{CUR+3}")
            a(f"ds_write_b64 v{self.VaW}, {P(r)} offset:{j*TROW}")
            self.cmul2(CUR, CUR, self.VE8, self.VTMP)
        a(f"v_add_u32 v{self.VaW}, {4*TROW}, v{self.VaW}\ns_add_u32 s4, s4, 1\ns_cmp_lt_u32 s4, {n}\ns_cbranch_scc1 {L}")

    def kgen(self):
        a = self.a
        DT=228; ER=230; FI=232; PK=220; TMP=236
        VF=48; XF=168; YF=112; DX=[204,208]; DY=[212,216]
        aX=12; aY=13; aV=14; aG=11
        vXO=3; vW4=4; vONE=5; vL4=6; vB=7; vYW=8; vYR=9; vT8=10; vA=1; vK3=2; vKW=33; vXW=32
        zF=200; zT=201; zK=202; aE=203; aE2=46; aE3=47; aKB=35; Z=252
        aVW=180; aUW=188; BXB=244; BXA=248
        i_=16; g_=17; t7=18; t8=19; t9=20; T=22
        a(f"""
        s_mul_i32 s8, s58, {KREG}
        s_add_u32 s8, s8, {K0}
        s_mul_i32 s10, s58, {XSTR}
        s_add_u32 s10, s10, {XR0}
        s_mul_i32 s11, s58, {VSTR}
        s_add_u32 s11, s11, {VT0}
        s_movk_i32 s9, {TROW}
        s_sub_u32 m0, s8, {UOF}
        v_lshl_add_u32 v15, v0, 3, s10
        v_and_b32 v{i_}, 15, v0
        v_lshrrev_b32 v{g_}, 4, v0
        v_lshlrev_b32 v{t7}, 4, v{g_}
        v_mad_u32_u24 v{aX}, v{i_}, s9, v{t7}
        v_add_u32 v{aV}, s11, v{aX}
        v_add_u32 v{aX}, s8, v{aX}
        v_add_u32 v{aG}, s8, v{t7}
        v_cmp_gt_u32 vcc, 3, v{i_}
        v_cndmask_b32 v{t8}, 12, 4, vcc
        v_cmp_eq_u32 vcc, 3, v{i_}
        v_cndmask_b32 v{t8}, v{t8}, 28, vcc
        v_mad_u32_u24 v{aY}, v{t8}, s9, v{aX}
        v_and_b32 v{t9}, 3, v{i_}
        s_sub_u32 s11, s11, {VT0}
        s_lshl_b32 s4, s58, 2
        v_mov_b32 v{vW4}, s4
        v_mov_b32 v{vONE}, 1
        v_lshlrev_b32 v{vL4}, 2, v{t9}
        s_movk_i32 s9, {KSTR}
        v_lshrrev_b32 v{t7}, 2, v0
        v_lshl_add_u32 v{t8}, v{t9}, 3, s8
        v_mad_u32_u24 v{zF}, v{t7}, s9, v{t8}
        s_movk_i32 s4, 160
        v_mad_u32_u24 v{zK}, v{t7}, s4, v{t8}
        v_lshrrev_b32 v{t7}, 3, v0
        v_and_b32 v{t8}, 7, v0
        v_lshl_add_u32 v{t8}, v{t8}, 3, s8
        v_mad_u32_u24 v{zT}, v{t7}, s9, v{t8}
        v_lshrrev_b32 v{t7}, 5, v0
        v_lshlrev_b32 v{t7}, 8, v{t7}
        v_lshl_add_u32 v{t7}, v{i_}, 4, v{t7}
        v_add_u32 v{t7}, s8, v{t7}
        v_and_b32 v{t8}, 1, v{g_}
        v_lshl_add_u32 v{aE}, v{t8}, 3, v{t7}
        v_lshl_add_u32 v{aE2}, v{t8}, 9, v{t7}
        v_and_b32 v{t7}, 1, v{i_}
        s_movk_i32 s4, 640
        v_mul_u32_u24 v{t7}, s4, v{t7}
        v_lshl_add_u32 v{t7}, v{g_}, 5, v{t7}
        v_and_b32 v{t8}, 14, v{i_}
        v_add3_u32 v{aE3}, v{t7}, v{t8}, s8
        v_mov_b32 v{aKB}, s8
        v_mov_b32 v{Z}, 0
        v_mov_b32 v{Z+1}, 0
        """)
        a(f"""
        v_lshlrev_b32 v{vB}, 4, v{g_}
        v_lshlrev_b32 v{t7}, 5, v{i_}
        v_sub_u32 v{vB}, v{vB}, v{t7}
        s_add_u32 s4, s10, 480
        v_add_u32 v{vB}, s4, v{vB}
        s_lshl_b32 s4, s58, 13
        s_add_u32 s4, s4, {YB}
        v_lshlrev_b32 v{t7}, 6, v{i_}
        {f"v_bfe_u32 v{T}, v{i_}, 1, 2" if self.opt.get("ys", 1) else ""}
        {f"v_xor_b32 v{T}, v{T}, v{g_}" if self.opt.get("ys", 1) else ""}
        v_lshl_add_u32 v{t7}, v{T if self.opt.get("ys", 1) else g_}, 4, v{t7}
        v_add_u32 v{vYW}, s4, v{t7}
        v_sub_u32 v{T}, 20, v{i_}
        v_lshlrev_b32 v{T+1}, 3, v{g_}
        v_mov_b32 v{T+2}, 0x7f
        v_lshlrev_b32 v{T+2}, v{T}, v{T+2}
        v_subrev_u32 v{T}, 1, v{T}
        v_mov_b32 v{T+3}, 0x1ff
        v_lshlrev_b32 v{T+3}, v{T}, v{T+3}
        v_lshrrev_b32 v{T+2}, v{T+1}, v{T+2}
        v_lshrrev_b32 v{T+3}, v{T+1}, v{T+3}
        v_add_u32 v{t7}, 1, v{i_}
        v_and_b32 v{T}, 3, v{t7}
        v_and_b32 v{t7}, 28, v{t7}
        v_lshl_add_u32 v{T+4}, v{g_}, 3, v{t7}
        v_lshl_add_u32 v{T+4}, v{T+4}, 1, s8
        v_mad_u32_u24 v{vA}, v{T}, s9, v{T+4}
        v_lshlrev_b32 v{T+4}, 2, v{g_}
        v_sub_u32 v{t7}, v{t7}, v{T+4}
        v_lshl_add_u32 v{t7}, v{t7}, 1, s8
        s_movk_i32 s4, 160
        v_mad_u32_u24 v{vK3}, v{T}, s4, v{t7}
        s_mov_b32 s15, 0x3f800000
        """)
        for (dst, src) in ((BXB, T+2), (BXA, T+3)):
            for d in range(4):
                a(f"v_bfe_i32 v{T+5}, v{src}, {2*d}, 1\nv_bfe_i32 v{T+6}, v{src}, {2*d+1}, 1\nv_and_b32 v{T+5}, 0x3f80, v{T+5}\nv_bfi_b32 v{dst+d}, s15, v{T+6}, v{T+5}")
        self.csetup()
        a("s_waitcnt lgkmcnt(0)")
        self.dt_calc(DT)
        xp = f"s_mov_b32 exec_hi, 0\nbuffer_load_dword v255, v254, {SQ(rWS)}, s13 offen\ns_mov_b32 exec_hi, -1"
        XP = self.opt.get("xp", 1)
        if XP: a(f"s_lshl_b32 s4, s58, 12\nv_lshl_add_u32 v254, v0, 7, s4")
        if XP == 2: a(xp + "\ns_waitcnt vmcnt(1)")
        else: a(f"s_waitcnt vmcnt(0)")
        self.stamp(1)
        if XP == 1: a(xp)
        if self.opt.get("ft", 0): a(f"s_buffer_load_dword s30, {SQ(rWS)}, s31 glc")
        if self.opt.get("k2"): a("s_mov_b32 s24, 0\nL_K2:")
        self.zcalc(224, 225, DT, ER, FI, TMP)
        UR = lambda r: 112 + 2*r
        E1024 = 166; BV = {8: 36, 16: 38, 32: 40, 64: 42, 128: 44}
        W = lambda j: 80 + 2*j if j < 16 else 220 + 2*(j % 8)
        CA = 16; CB = 24; CP = 240
        a(f"v_add_f32 v{DT}, v{DT}, v{DT}")
        for q in (0,1): a(f"v_mul_f32 v{CB+4+q}, {f2u(32.0):#x}, v{ER+q}\nv_mul_f32 v{CB+6+q}, {f2u(32.0):#x}, v{FI+q}")
        up = self.unp(CP, CP+2, 226) + self.unp(CP+1, CP+3, 227) + [f"v_mul_f32 v{CP+i}, v{CP+i}, v{DT}" for i in range(4)]
        for q in (0,1): a(f"v_exp_f32 v{CA+4+q}, v{ER+q}\nv_fract_f32 v{CA+6+q}, v{FI+q}\nv_exp_f32 v{CB+4+q}, v{CB+4+q}\nv_fract_f32 v{CB+6+q}, v{CB+6+q}")
        tr = []
        for C_ in (CA, CB):
            for q in (0,1): tr += [f"v_cos_f32 v{C_+2*q}, v{C_+6+q}", f"v_sin_f32 v{C_+2*q+1}, v{C_+6+q}"]
        for l in interleave(tr, up): a(l)
        for C_ in (CA, CB):
            for q in (0,1): a(f"v_mul_f32 v{C_+2*q}, v{C_+2*q}, v{C_+4+q}\nv_mul_f32 v{C_+2*q+1}, v{C_+2*q+1}, v{C_+4+q}")
        cv = lambda d, s_: [f"v_cvt_pk_f16_f32 v{d}, v{s_}, v{s_+1}", f"v_cvt_pk_f16_f32 v{d+1}, v{s_+2}, v{s_+3}"]
        sqm = lambda x: [f"v_pk_mul_f32 {P(x+4+q)}, {P(x+q)}, {P(x+q)} op_sel_hi:[1,0]" for q in (0,2)]
        sqf = lambda x: [f"v_pk_fma_f32 {P(x+q)}, {P(x+q)}, {P(x+q)}, {P(x+4+q)} op_sel:[1,1,0] op_sel_hi:[0,1,1] neg_lo:[1,0,0]" for q in (0,2)]
        def pr(L):
            o = []
            for k in range(0, len(L), 2):
                B_ = L[k:k+2]
                for (d, x, y, c) in B_: o += [f"v_pk_mul_f16 v{d+q}, v{x+q}, v{y+q} op_sel_hi:[1,0]" for q in (0,1)]
                for (d, x, y, c) in B_: o += [f"v_pk_fma_f16 v{d+q}, v{x+q}, v{y+q}, v{d+q} op_sel:[1,1,0] op_sel_hi:[0,1,1] neg_{'hi' if c else 'lo'}:[1,0,0]" for q in (0,1)]
            return o
        issued = []
        def lds(tag, text): a(text); issued.append(tag)
        def need(tag):
            last = max(i for i, t in enumerate(issued) if t == tag)
            a(f"s_waitcnt lgkmcnt({min(len(issued)-1-last, 15)})")
        UP = {0:[0],1:[1],2:[2],3:[3],4:[4],5:[5],6:[6],7:[7],11:[8],12:[9],13:[10,12],14:[11,13],15:[14],16:[15],23:[31],
              8:[16],9:[17],10:[18],24:[19],17:[20],18:[21],19:[22],25:[23],20:[24],21:[25],22:[26],26:[27]}
        pend = []
        def wrow(reg, off): pend.extend([(None, f"ds_write_addtid_b32 v{reg} offset:{off}"), (None, f"ds_write_addtid_b32 v{reg+1} offset:{off+256}")])
        def wu(*rs):
            for r in rs:
                for p_ in UP[r]: wrow(UR(r), UOF + p_*TROW)
        def wv(*js):
            for j in js: wrow(W(j), VT0 + j*TROW)
        def em(L, mf=None, mper=4):
            for k, l in enumerate(L):
                if mf and k % mper == 0: a(mf.pop(0))
                a(l)
        def flush():
            while pend:
                t = pend.pop(0)
                if t[0] == "s": a(t[1])
                else: lds(*t)
        U = lambda d, x, y: (UR(d), UR(x), UR(y) if y >= 0 else E1024, 0)
        V = lambda d, x, y: (W(d), W(x), BV[y], 1)
        self.kst(14)
        em([f"v_mov_b32 v{UR(0)}, 0x3c00", f"v_mov_b32 v{UR(0)+1}, 0x3c00"] + sqm(CA) + sqm(CB) + cv(UR(1), CA) + cv(BV[32], CB) + sqf(CA) + sqf(CB))
        em(sqm(CA) + sqm(CB) + cv(UR(2), CA) + cv(BV[64], CB) + sqf(CA) + sqf(CB))
        em([f"v_cvt_pk_f16_f32 v{W(0)}, v{CP}, -v{CP+1}", f"v_cvt_pk_f16_f32 v{W(0)+1}, v{CP+2}, -v{CP+3}"] + sqm(CA) + sqm(CB) + cv(UR(4), CA) + cv(BV[128], CB) + sqf(CA) + sqf(CB))
        em(pr([U(3,2,1), U(5,4,1)]))
        em(sqm(CA) + cv(UR(8), CA) + cv(UR(11), CB) + sqf(CA))
        wu(0, 1, 2, 4, 3, 5, 8, 11); wrow(BV[128], UOF + 28*TROW); flush()
        em(pr([U(6,4,2), U(7,4,3), U(10,8,2), U(12,11,2), U(13,11,4), U(14,11,6), U(15,11,8), U(16,11,10)]))
        wu(6, 7, 10, 12, 13, 14, 15, 16); flush()
        for s_ in range(8): lds("x", f"ds_read_b128 {Q(XF+4*s_)}, v{aX} offset:{64*s_}")
        a("s_mov_b32 m0, s11")
        self.kst(10)
        BV[8] = UR(8)
        em(cv(BV[16], CA) + pr([V(1,0,8), V(4,0,32), V(2,0,16), V(3,1,16), V(5,1,32), V(8,0,64), V(6,2,32), V(7,3,32)]))
        wv(0, 1, 2, 3, 4, 5, 6, 7, 8); flush()
        em(pr([V(9,1,64), V(12,4,64), V(10,2,64), V(11,3,64), V(13,5,64), V(14,6,64), V(15,7,64), U(9,8,1)]))
        wv(9, 10, 11, 12, 13, 14, 15); flush()
        for s_ in range(8): lds(f"v{s_}", f"ds_read_b128 {Q(VF+4*s_)}, v{aV} offset:{64*s_}")
        for s_ in range(8): lds(f"g{s_}", f"ds_read_b128 {Q(VF+32+4*s_)}, v{aG} offset:{28*TROW+64*s_}")
        a(f"s_sub_u32 m0, s8, {UOF}")
        self.kst(11)
        MF = "v_mfma_f32_16x16x32_f16"
        def mm(D, A, ct, s_): return f"{MF} {Q(D[ct])}, {Q(A+4*s_)}, {Q(VF+32*ct+4*s_)}, {'0' if s_ == 0 else Q(D[ct])}"
        m0 = [mm(DX, XF, 0, s_) for s_ in range(8)]
        em(sqm(CB) + sqf(CB) + cv(UR(17), CB) + sqm(CB) + sqf(CB) + cv(E1024, CB))
        need("v7")
        XE = self.opt.get("xe", 1)
        if XE & 1: self.xissue()
        em(pr([U(20,17,11), U(18,17,4), U(19,17,8), U(23,8,-1), U(21,20,4), U(22,20,8), U(24,15,-1), U(25,19,-1), U(26,22,-1)]), m0, 4)
        if XE & 1: self.xcheck()
        wu(9, 17, 20, 18, 19, 23, 21, 22, 24, 25, 26); flush()
        for s_ in range(8): lds(f"y{s_}", f"ds_read_b128 {Q(YF+4*s_)}, v{aY} offset:{64*s_}")
        a("s_mov_b64 exec, 0xffff"); lds(None, f"ds_write_b64 v{zF}, {P(Z)}")
        a("s_mov_b32 exec_lo, -1"); lds(None, f"ds_write_b64 v{zT}, {P(Z)} offset:2080"); lds(None, f"ds_write_b64 v{zK}, {P(Z)} offset:{K3O}")
        a("s_mov_b64 exec, -1")
        self.kst(13)
        if XE & 2: self.xissue()
        TM = 220
        for s_ in range(10):
            mq = []
            if 1 <= s_ <= 8: mq.append(mm(DX, XF, 1, s_-1))
            if 2 <= s_ <= 9:
                if s_ % 2 == 0: need(f"y{s_-1}")
                mq += [mm(DY, YF, 0, s_-2), mm(DY, YF, 1, s_-2)]
            L = []
            if s_ < 8:
                L += [f"v_pk_mul_f16 v{TM+j}, v{VF+4*s_+j}, v{VF+32+4*s_+j} op_sel_hi:[1,0]" for j in range(4)]
                L += [f"v_pk_fma_f16 v{VF+32+4*s_+j}, v{VF+4*s_+j}, v{VF+32+4*s_+j}, v{TM+j} op_sel:[1,1,0] op_sel_hi:[0,1,1] neg_hi:[1,0,0]" for j in range(4)]
            for k in range(len(L)):
                if k % 3 == 2 and mq: a(mq.pop(0))
                a(L[k])
            for m in mq: a(m)
        self.kst(12)
        if XE & 2: self.xcheck()
        if XE & 4: self.xissue()
        a("s_lshl_b32 s4, s58, 4\ns_lshr_b64 s[6:7], s[66:67], s4\ns_lshl_b32 s6, s6, 16")
        for r in range(4): a(f"v_permlane32_swap_b32 v{DX[0]+r}, v{DX[1]+r}")
        a(f"v_cvt_pk_bf16_f32 v{PK}, v{DY[0]+3}, v{DY[1]+3}")
        a(f"s_mov_b64 exec, 1\nv_add_f32 v{DX[0]}, s6, v{DX[0]}\nv_add_f32 v{DX[0]}, 1.0, v{DX[0]}\ns_mov_b64 exec, -1")
        for r in range(3): a(f"v_permlane32_swap_b32 v{DY[0]+r}, v{DY[1]+r}")
        for sg in range(4):
            a(f"ds_write_b16 v{aE3}, v{PK} offset:{K3O+32+158*sg}")
            a(f"ds_write_b16_d16_hi v{aE3}, v{PK} offset:{K3O+16+32+158*sg}")
        WL = []
        def expand(X, seq, nl, addr, lag0):
            for sg in range(4):
                nd = nl//2
                base = X + sg*nd
                for d in range(nd):
                    a(f"v_cvt_pk_bf16_f32 v{base+d}, v{seq[sg+2*d]}, v{seq[sg+2*d+1]}")
                off = sg*KSTR + 2*(16+lag0)
                if nd == 2: WL.append(f"ds_write_b64 v{addr}, {P(base)} offset:{off}")
                else: WL.append(f"ds_write_b128 v{addr}, {Q(base)} offset:{off}")
        X0, X1, Y0, Y1 = DX[0], DX[1], DY[0], DY[1]
        expand(48, [X0,X0+1,X0+2,X0+3,Y0,Y0+1,Y0+2], 4, aE, 0)
        expand(56, [X1,X1,X1+1,X1+2,X1+2,X1+2,X1+3], 4, aE, 256)
        expand(64, [Y1]*3+[Y1+1]*3+[Y1+2]*5, 8, aE2, 512)
        a(f"""
        v_cvt_pk_bf16_f32 v80, v{Z}, v{X0}
        v_mov_b32 v81, v50
        v_mov_b32 v82, v79
        v_cvt_pk_bf16_f32 v83, v{Y1+2}, v{Z}
        """)
        if XE & 4: self.xcheck()
        for l in WL: a(l)
        a(f"""
        s_mov_b64 exec, 1
        ds_write_b32 v{aKB}, v80 offset:{1*KSTR+28}
        ds_write_b32 v{aKB}, v48 offset:{2*KSTR+28}
        ds_write_b64 v{aKB}, v[80:81] offset:{3*KSTR+24}
        s_brev_b64 exec, 1
        ds_write_b64 v{aKB}, v[78:79] offset:{2080}
        ds_write_b32 v{aKB}, v83 offset:{2088}
        ds_write_b64 v{aKB}, v[78:79] offset:{KSTR+2080}
        ds_write_b64 v{aKB}, v[82:83] offset:{2*KSTR+2080}
        ds_write_b32 v{aKB}, v79 offset:{3*KSTR+2080}
        s_mov_b64 exec, -1
        """)
        self.kst(15)
        if self.opt.get("k2"):
            a("s_cmp_lg_u32 s24, 0\ns_cbranch_scc1 L_K2E")
            self.stamp(11)
            a("s_mov_b32 s24, 1\ns_branch L_K2\nL_K2E:")
        self.stamp(2)

    def csetup(self):
        vYR=9; vT8=10; vKW=33; vXW=32
        self.a(f"""v_lshlrev_b32 v{vKW}, 4, v10
        v_lshlrev_b32 v{vXW}, 2, v10
        v_sub_u32 v{vXW}, {XR0+1020}, v{vXW}
        s_mov_b32 s31, s59
        s_lshl_b32 s13, s{sDG}, 14
        s_add_u32 s13, s13, {WS_XT}
        s_and_b32 s12, s2, 7
        s_lshl_b32 s12, s12, 12
        s_lshl_b32 s4, s58, 7
        s_add_u32 s12, s12, s4
        s_lshr_b32 s4, s2, 3
        s_lshl_b32 s4, s4, 2
        s_add_u32 s12, s12, s4
        s_add_u32 s12, s12, {WS_FL3}
        {f"v_and_b32 v{vYR}, 0x30, v10" if self.opt.get("ys", 1) else ""}
        v_lshlrev_b32 v{vT8}, 3, v10
        {f"v_xor_b32 v{vYR}, v{vYR}, v{vT8}" if self.opt.get("ys", 1) else ""}
        v_add_u32 v{vYR}, {YB}, v{vYR if self.opt.get("ys", 1) else vT8}
        s_mov_b32 s30, 0
        s_brev_b32 s68, 1""")
        if self.opt.get("sch", 1): self.a("s_mov_b32 s32, s13\ns_add_u32 s33, s13, 0x1000\ns_add_u32 s34, s13, 0x2000\ns_add_u32 s35, s13, 0x3000")
        if self.opt.get("ct") == 2: self.a(f"""
            s_lshr_b32 s38, s2, 3
            s_and_b32 s39, s2, 7
            s_lshl_b32 s37, s38, 2
            s_add_u32 s37, s37, s58
            s_lshl_b32 s36, s37, 4
            s_lshl_b32 s35, s37, 13
            s_lshl_b32 s4, s39, 8
            s_add_u32 s35, s35, s4
            s_lshl_b32 s32, s39, 19
            s_lshl_b32 s4, s37, 5
            s_add_u32 s32, s32, s4
            s_add_u32 s32, s32, {WS_XT}
            s_add_u32 s33, s32, 0x1000
            s_lshl_b32 s34, s39, 12
            s_lshr_b32 s4, s38, 3
            s_lshl_b32 s4, s4, 7
            s_add_u32 s34, s34, s4
            s_add_u32 s34, s34, {WS_FL3}""")
    def cmain(self):
        a = self.a
        XU = 16; AR = 48; RB = 180; ACC = 204; ZF = 236; D1 = 252
        G0 = ZF; T = 204; RAW = 180; M = 180; RS = 188; PKD = 196
        vXO=3; vW4=4; vONE=5; vL4=6; vB=7; vYW=8; vYR=9; vT8=10
        vXW=32; RAWC=28; UN=20; vKW=33; vTG=34
        vA = 1; vK3 = 2
        BXB = ZF+8; BXA = ZF+12
        RAW = 16; UN = 36; MS = 180; RS = 188; M = 196; XU = 204; PKD = 36
        XE = self.opt.get("xe", 1)
        self.wait_flag(C_XS, vL4, vTG)
        a(f"""s_cmp_lg_u32 s30, 0
        s_cbranch_scc1 L_XS1
        s_buffer_load_dwordx8 s[16:23], {SQ(rWS)}, s31 {'glc' if self.opt.get('g1') else ''}
        L_XS1:
        v_readfirstlane_b32 s28, v{vTG}
        ds_write_b64 v15, v[252:253] offset:4096
        s_mov_b32 s5, 0
        s_mov_b32 s29, s28
        """)
        al = sum([[f"ds_read_b64 {P(AR+4*d)}, v{vA} offset:{64*d}", f"ds_read_b64 {P(AR+4*d+2)}, v{vA} offset:{64*d+8}"] for d in range(33)], [])
        NA = self.opt.get("na", 40)
        for l in al[:NA]: a(l)
        a(f"""s_cmp_lg_u32 s30, 0
        s_cbranch_scc1 L_XA
        s_waitcnt lgkmcnt(0)""")
        self.xcmp()
        a(f"""{"s_branch" if self.opt.get("forcex") else "s_cbranch_scc1"} L_XF""")
        self.xloads()
        a("L_XA:")
        self.stamp(3)
        for l in al[NA:]: a(l)
        a("L_XBACK:")
        def xfail():
            a(f"L_XF:\ns_add_u32 s31, s31, 64\ns_buffer_load_dwordx8 s[16:23], {SQ(rWS)}, s31")
            for l in al[NA:]: a(l)
            a(f"""s_branch L_XC
            L_XP:
            s_sleep {self.opt.get("xsl", 2)}
            ds_read_b32 v11, v{vW4} offset:{C_MS}
            s_cmp_ge_u32 s5, {2*self.opt.get("nst", 3)-2-getattr(self, "xn", 0)}
            s_cbranch_scc1 L_XG
            s_add_u32 s31, s31, 64
            s_buffer_load_dwordx8 s[16:23], {SQ(rWS)}, s31
            s_branch L_XH
            L_XG:
            s_buffer_load_dwordx8 s[16:23], {SQ(rWS)}, s31 glc
            L_XH:
            s_add_u32 s5, s5, 1
            s_waitcnt lgkmcnt(0)
            v_cmp_eq_u32 vcc, 1, v11
            s_cbranch_vccnz L_XSLOW
            s_cmp_ge_u32 s5, 0x4000
            s_cbranch_scc1 L_XSLOW
            L_XC:
            s_waitcnt lgkmcnt(0)""")
            self.xcmp()
            a(f"""{"s_branch" if self.opt.get("forcex") else "s_cbranch_scc1"} L_XP""")
            self.xloads()
            self.stamp(3)
            a("s_branch L_XBACK")
        if self.opt.get("sg0") == 0:
            a("v_mov_b32 v204, -1\nv_mov_b32 v205, -1\nv_mov_b32 v206, -1\nv_mov_b32 v207, -1\ns_waitcnt vmcnt(0)")
            for i in range(2): a(f"buffer_store_dwordx4 v[204:207], v{vKW}, {SQ(rWS)}, s{34+i} offen")
        else: a(f"s_waitcnt vmcnt(3)")
        self.stamp(5)
        NRS = 44; NM = 46
        def nunp(k): return sum([self.unp(UN+4*e, UN+4*e+1, RAW+4*k+2*e) + self.unp(UN+4*e+2, UN+4*e+3, RAW+4*k+2*e+1) for e in range(2)], [])
        def nrd(k): return f"ds_read_b64 v[12:13], v{vT8} offset:{MSB+2048*k}"
        def nmath(pk):
            L = self.unp(NRS, NRS+1, 13) + [f"v_rcp_f32 v{NRS}, v{NRS}", f"v_rcp_f32 v{NRS+1}, v{NRS+1}"] + self.unp(NM, NM+1, 12)
            if pk:
                L += [f"v_pk_mul_f32 {P(NM)}, {P(NM)}, {P(NRS)}"]
                L += [f"v_pk_fma_f32 {P(UN+4*e+c)}, {P(UN+4*e+c)}, {P(NRS)}, {P(NM)} op_sel:[0,{e},{e}] op_sel_hi:[1,{e},{e}] neg_lo:[0,0,1] neg_hi:[0,0,1]" for c in (0, 2) for e in range(2)]
            else:
                L += [f"v_mul_f32 v{NM+e}, v{NM+e}, v{NRS+e}" for e in range(2)]
                L += [f"v_fma_f32 v{UN+4*e+c}, v{UN+4*e+c}, v{NRS+e}, -v{NM+e}" for c in range(4) for e in range(2)]
            L += [f"v_cvt_pk_bf16_f32 v{UN+c}, v{UN+4+c}, v{UN+c}" for c in range(4)]
            return L
        def nwr(k): return [f"ds_write2st64_b32 v{vXW}, v{UN+c}, v{UN+c+1} offset0:{18*c+4*(3-k)} offset1:{18*(c+1)+4*(3-k)}" for c in (0, 2)]
        for l in nunp(0): a(l)
        RF = self.opt.get("rf", 0)
        a(f"L_MSW:\nds_read_b32 v11, v{vW4} offset:{C_MS}\n{nrd(0)}\ns_waitcnt lgkmcnt(0)\nv_cmp_eq_u32 vcc, 0, v11\ns_cbranch_vccnz L_MSW")
        self.stamp(4)
        for l in nmath(1) + nwr(0): a(l)
        self.arrive(C_XR, vW4, 11)
        if self.opt.get("cprio", 2) != self.opt.get("kprio", 2): a(f"s_setprio {self.opt.get('cprio', 2)}")

        acc = {nt: ACC+4*nt for nt in range(8)}
        started = set(); ZS = [236, 240, 252, 248]
        def mf(nt, A, B):
            c = Q(acc[nt]) if nt in started else "0"
            started.add(nt)
            return f"{MFMA} {Q(acc[nt])}, {Q(A)}, {Q(B)}, {c}"
        def itB(u):
            tiles = [nt for nt in range(8) if 0 <= 8*nt-u <= 32]
            return (lambda r: [f"ds_read_b128 {Q(r)}, v{vB} offset:{64*(56-u)}"], lambda r: [mf(nt, AR+4*(8*nt-u), r) for nt in tiles], ("B", u))
        def itBox(S, ty):
            off = 64*(56-8*S) + 16*ty; d = ACC+16+8*min(S, 1)+4*ty
            return (lambda r: [f"ds_read_b128 {Q(r)}, v{vB} offset:{off}"], lambda r: [f"{MFMA} {Q(d)}, {Q(r)}, {Q(BXA if ty else BXB)}, 0"], ("X", S, ty))
        def itK3(D, pairs):
            return (lambda r: [f"ds_read_b64 {P(r)}, v{vK3} offset:{K3O+24+32*D}", f"ds_read_b64 {P(r+2)}, v{vK3} offset:{K3O+24+32*D+640}"],
                    lambda r: [mf(4+Tt, ZS[S], r) for (Tt, S) in pairs], ("K3", D, pairs[0][0]))
        items = [itB(-7), itBox(0,0), itBox(0,1), itB(-6), itBox(1,0), itBox(1,1), itB(-5), itB(-4), itB(-3), itB(-2), itB(-1)]
        for u in range(0, 57):
            items.append(itB(u))
            if u == 9: items += [itBox(2,0), itBox(2,1)]
            if u == 12: items += [itBox(3,0), itBox(3,1)]
            if u == 20: items.append(itK3(0, [(0,0),(1,1)]))
            if u == 28: items.append(itK3(1, [(1,0)]))
            if u == 42: items.append(itK3(0, [(2,2),(3,3)]))
            if u == 45: items.append(itK3(1, [(2,1),(3,2)]))
            if u == 47: items.append(itK3(2, [(2,0),(3,1)]))
            if u == 51: items.append(itK3(3, [(3,0)]))
        pos = {it[2]: k for k, it in enumerate(items)}
        fill = {}; front = {}; dead = {}
        NR = 6; PD = self.opt.get("pd", 5)
        def addf(idx, L): fill.setdefault(idx, []).extend(L)
        def mark(name, idx): dead.setdefault(idx, []).append(name); return [("mark", name)]
        def zc(S):
            d = ACC+16+8*min(S, 1)
            z = ZS[S]
            return [f"v_cvt_pk_bf16_f32 v{z}, v{d+3}, v{d+2}", f"v_cvt_pk_bf16_f32 v{z+1}, v{d+1}, v{d}",
                    f"v_cvt_pk_bf16_f32 v{z+2}, v{d+7}, v{d+6}", f"v_cvt_pk_bf16_f32 v{z+3}, v{d+5}, v{d+4}"]
        def norm(k, vm): return [("lds", f"m{k}", nrd(k))] + ([f"s_waitcnt vmcnt({vm})"] if vm is not None else []) + nunp(k) + [("need", f"m{k}")] + nmath(0) + [("lds", None, l) for l in nwr(k)]
        addf(0, norm(1, 2) + [("rawlds", self.arr(C_KD, vW4, vONE))])
        addf(pos[("B",-5)], zc(0) + zc(1) + mark("z1", pos[("B",0)]))
        addf(pos[("B",0)], norm(2, 0) + ([("raw", self.refresh())] if RF == 4 else []))
        front[pos[("B",11)]] = zc(2) + mark("z2", pos[("X",3,0)])
        front[pos[("B",14)]] = zc(3) + mark("z3", pos[("B",16)])
        YF = [C_Y0, C_Y1, C_Y2, C_Y3]
        def ywrite(k):
            return [("lds", None, f"ds_write_b128 v{vYW}, {Q(acc[nt])} offset:{1024*nt}") for nt in (2*k, 2*k+1)] + [("rawlds", self.arr(YF[k], vW4, vONE))]
        def yread(k, tag):
            return [("lds", tag, f"ds_read_b64 {P(ACC+8*k+2*c)}, v{vYR} offset:{c*8192+2048*k}") for c in range(4)]
        def eaddr(k, e):
            fl = 12 + k//2; sh = 24 - 8*(2*(k%2)+e)
            if sh: return [f"v_lshlrev_b32 v{14+e}, {sh}, v{fl}", f"v_and_or_b32 v{14+e}, v{14+e}, s68, v{vXO}"]
            return [f"v_and_or_b32 v{14+e}, v{fl}, s68, v{vXO}"]
        def emath(k):
            Y = ACC+8*k; L = []
            for e in range(2):
                L += self.unp(UN+4*e, UN+4*e+1, RAW+4*k+2*e) + self.unp(UN+4*e+2, UN+4*e+3, RAW+4*k+2*e+1)
            for e in range(2):
                for c in range(4): L.append(f"v_add_f32 v{UN+4*e+c}, v{Y+2*c+e}, v{UN+4*e+c}")
            for e in range(2):
                L.append(f"v_cvt_pk_bf16_f32 v{Y+2*e}, v{UN+4*e}, v{UN+4*e+1}")
                L.append(f"v_cvt_pk_bf16_f32 v{Y+2*e+1}, v{UN+4*e+2}, v{UN+4*e+3}")
            return L
        def est(k, e):
            if self.opt.get("nost"): return []
            return [f"buffer_store_dwordx2 {P(ACC+8*k+2*e)}, v{14+e}, {SQ(rOUT)}, s{sO+k} offen offset:{2048*e} {'sc1' if (k >= DQ and self.opt.get('dsc')) else ''}"]
        DQ = self.opt.get("dq", 3)
        def yst(k):
            if k >= DQ: return eaddr(k, 0) + eaddr(k, 1) + est(k, 0) + est(k, 1)
            if self.opt.get("noy") and k < 3: return [f"L_EB{k}:", "s_add_u32 s13, s13, 0x1000"]
            return ["s_cmp_lg_u32 s14, 2", f"s_cbranch_scc1 L_ES{k}", f"buffer_store_dwordx4 {Q(ACC+8*k)}, v{vKW}, {SQ(rWS)}, s13 offen", f"L_EB{k}:", "s_add_u32 s13, s13, 0x1000"]
        YFM = self.opt.get("yfm", 1); CT = self.opt.get("ct")
        def yfl(k):
            if k >= DQ: return []
            if YFM: return ["s_waitcnt vmcnt(1)", "s_mov_b64 exec, 1", f"buffer_store_dword v{vTG}, off, {SQ(rWS)}, s12 offset:{512*k}", "s_mov_b64 exec, -1"]
            if self.opt.get("nyw") and k < 2: return ["s_mov_b64 exec, 1", f"buffer_store_dword v{vTG}, off, {SQ(rWS)}, s12 offset:{512*k}", "s_mov_b64 exec, -1"]
            return ["s_waitcnt vmcnt(0)", "s_mov_b64 exec, 1", f"buffer_store_dword v{vTG}, off, {SQ(rWS)}, s12 offset:{512*k}", "s_mov_b64 exec, -1"]
        def check(n, regs):
            L = []
            if len(regs) == 2: L.append(f"v_min_u32 v{regs[0]}, v{regs[0]}, v{regs[1]}")
            L += [f"v_cmp_eq_u32 vcc, 0, v{regs[0]}", f"s_cbranch_vccnz L_SLOW{n}", f"L_BACK{n}:"]
            return [("raw", L)]
        front[pos[("B", 9)]-PD-3] = [("lds", "n1", f"ds_read_b32 v11, v{vL4} offset:{C_KD}")]
        front[pos[("B", 9)]-PD-1] = [("need", "n1")] + check(3, [11]) + mark("n1", pos[("B", 9)]-PD)
        for k in range(3):
            p = pos[("B", 16*k+8)]
            d = (1, 3, 4, 6, 8, 14) if k < 2 else (1, 4, 6, 9, 12, 17)
            addf(p+d[0], ywrite(k))
            fr = [("lds", f"f{k}", f"ds_read_b32 v11, v{vL4} offset:{YF[k]}")]
            KS = min(DQ, 2)
            if k == KS: fr.append(("lds", f"f{k}", f"ds_read_b32 v15, v{vL4} offset:{C_SEL}"))
            addf(p+d[1], fr)
            addf(p+d[2], [("need", f"f{k}")] + check(k, [11, 15] if k == KS else [11]) + (mark(f"c{k}", pos[("B", 16*k+25)]-PD) if k < 2 else []) + ([("lds", f"y{k}", f"ds_read_b64 v[12:13], v{vT8} offset:{SELF}")] if k == KS else []) + yread(k, f"y{k}"))
            addf(p+d[3], [("need", f"y{k}")] + emath(k) + [("raw", yst(k))])
            if k == 0: addf(p+d[3], norm(3, None))
            if k < 2 and RF >> k & 1: addf(p+d[3], [("raw", self.refresh())])
            if CT == 2:
                TD = 204; vTA = 212; vOA = 213; vFA = 214; vF = 215; SF = 216; vSA = 217; OA = 218; t0 = 16
                fl = f"buffer_load_dword v{vF}, v{vFA}, {SQ(rWS)}, s34 offen sc1"
                if k == 1:
                    addf(p+d[3], f"""v_bfe_u32 v{t0}, v0, 4, 1
                    v_lshrrev_b32 v{t0+1}, 5, v0
                    v_and_b32 v{t0+2}, 15, v0
                    v_lshl_add_u32 v{vSA}, v{t0}, 3, s36
                    v_lshl_add_u32 v{vTA}, v{t0+2}, 1, v{t0+1}
                    v_lshlrev_b32 v{vTA}, 14, v{vTA}
                    v_lshl_add_u32 v{vTA}, v{t0}, 4, v{vTA}
                    v_lshl_add_u32 v{vOA}, v{t0}, 1, v{t0+1}
                    v_lshlrev_b32 v{vOA}, 11, v{vOA}
                    v_lshl_add_u32 v{vOA}, v{t0+2}, 4, v{vOA}
                    v_add_u32 v{vOA}, s35, v{vOA}
                    v_and_b32 v{vFA}, 31, v0
                    v_lshlrev_b32 v{vFA}, 2, v{vFA}
                    v_lshlrev_b32 v{t0+1}, 3, v{t0+1}""".split("\n"))
                    addf(pos[("B", self.opt.get("fa", 39))], [("raw", ["s_waitcnt vmcnt(0)"] + yfl(0)[1:])])
                if k == 2:
                    addf(p+d[2], [("lds", "y2", f"ds_read_b32 v{SF}, v{vSA} offset:{SELF}")])
                    fill[p+d[3]].insert(self.opt.get("fb", 1), fl)
            elif CT:
                if k == 2: addf(p+self.opt.get("fa", 2), [("raw", ["s_waitcnt vmcnt(0)"] + yfl(0)[1:])])
            elif YFM:
                if k: addf(p+d[3], [("raw", yfl(k-1))])
            elif k < 2: addf(p+d[5]+self.opt.get("yfd", 10), [("raw", yfl(k))])
        if self.opt.get("sch", 1):
            self.conv2(locals()); xfail()
            a("L_XSLOW:")
            for i in range(8): a(f"buffer_load_dwordx2 {P(RAW+2*i)}, v{vXO}, {SQ(rX)}, s{sO+i//2} offen offset:{2048*(i%2)}")
            a("s_waitcnt vmcnt(0)\ns_branch L_XBACK")
            return
        issued = []; done = [0]
        def lds(tag, text): a(text); issued.append(tag)
        def need(tag):
            last = max(i for i, t in enumerate(issued) if t == tag)
            if last >= done[0]:
                n = min(len(issued) - 1 - last, 15)
                a(f"s_waitcnt lgkmcnt({n})"); done[0] = len(issued) - n
        slot = lambda k: RB + 4*(k % NR)
        a(f"L_XRW:\nds_read_b32 v15, v{vL4} offset:{C_XR}")
        for k in range(PD):
            for l in items[k][0](slot(k)): lds(("it", k), l)
        a(f"s_waitcnt lgkmcnt({PD})\nv_cmp_eq_u32 vcc, 0, v15\ns_cbranch_vccnz L_XRW")
        a("v_cmp_ne_u32 vcc, 2, v15\ns_cmp_eq_u32 vcc_lo, 0\ns_cselect_b32 s14, 2, 1")
        self.stamp(6)
        if "cp0" not in self.opt: self.cst(14)
        queue = []; passed = set()
        def drain(n):
            while queue and n > 0:
                e = queue.pop(0)
                if isinstance(e, str): a(e); n -= 1
                elif e[0] == "need": need(e[1])
                elif e[0] == "mark": passed.add(e[1])
                elif e[0] == "lds": lds(e[1], e[2]); n -= 1
                elif e[0] == "raw":
                    for l in e[1]: a(l)
                    n -= 2
                elif e[0] == "rawlds":
                    for l in e[1]: a(l)
                    issued.append(None); n -= 2
        for k, it in enumerate(items):
            for nm in dead.get(k, []):
                while nm not in passed:
                    if queue[0][0] != "mark": print("; deadline drain", nm, queue[0], file=sys.stderr)
                    drain(1)
            if "cp0" in self.opt:
                st_ = self.opt.get("cps", 3)
                if (k - self.opt["cp0"]) % st_ == 0 and 0 <= (k - self.opt["cp0"])//st_ < 6: self.cst(10 + (k - self.opt["cp0"])//st_)
            else:
              for u_, i_ in ((0, 10), (16, 11), (32, 12), (44, 13)):
                if it[2] == ("B", u_): self.cst(i_)
            queue += fill.get(k, [])
            queue[0:0] = front.get(k, [])
            need(("it", k))
            ms = it[1](slot(k))
            for j, m in enumerate(ms):
                a(m)
                if j == 0 and k+PD < len(items):
                    for l in items[k+PD][0](slot(k+PD)): lds(("it", k+PD), l)
                    if len(ms) == 1 or k > pos[("B", 40)]: drain(1)
                else: drain(2 if k > pos[("B", 40)] or k < pos[("B", 0)] else 1 + (len(queue) > 8))
            if it[2] == ("B", 49): lds(None, f"ds_write_b128 v{vYW}, {Q(acc[6])} offset:{1024*6}")
        drain(1000)
        if "cp0" not in self.opt or self.opt["cp0"] + 5*self.opt.get("cps", 3) >= len(items): self.cst(15)
        self.stamp(7)
        a(f"ds_write_b128 v{vYW}, {Q(acc[7])} offset:{1024*7}")
        self.arrive(C_Y3, vW4, vONE)
        if not YFM:
            for l in yfl(2): a(l)
        em = emath(3)
        if CT == 2:
            tl = lambda k: f"buffer_load_dwordx4 {Q(TD+4*k)}, v{vTA}, {SQ(rWS)}, s{32+k} offen sc1"
            ts = lambda k: f"v_permlane32_swap_b32 v{TD+4*k}, v{TD+4*k+2}\nv_permlane32_swap_b32 v{TD+4*k+1}, v{TD+4*k+3}\nbuffer_store_dwordx4 {Q(TD+4*k)}, v{OA+k}, {SQ(rOUT)}, s{sO+k} offen {'sc1' if self.opt.get('osc', 1) else ''}"
            a(f"""s_waitcnt vmcnt(2)
            v_cmp_ne_u32 s[20:21], v{vTG}, v{vF}
            v_lshrrev_b32 v{SF}, v{t0+1}, v{SF}
            s_cmp_lg_u32 s20, 0
            s_cbranch_scc1 L_TN
            {tl(0)}
            {tl(1)}
            L_TN:
            v_lshlrev_b32 v{OA}, 24, v{SF}
            v_lshlrev_b32 v{OA+1}, 8, v{SF}
            v_and_or_b32 v{OA}, v{OA}, s68, v{vOA}
            v_and_or_b32 v{OA+1}, v{OA+1}, s68, v{vOA}""")
        for l in em[:8]: a(l)
        self.wait_flag(C_Y3, vL4, 11)
        for e in yread(3, None): a(e[2])
        a("s_waitcnt lgkmcnt(0)")
        for l in em[8:] + yst(3): a(l)
        self.stamp(8)
        if CT == 2:
            a(f"""
            s_cmp_lg_u32 s14, 2
            s_cbranch_scc1 L_FIN
            s_mov_b32 s21, 0
            s_cmp_eq_u32 s20, 0
            s_cbranch_scc1 L_TC
            L_TP:
            {fl}
            s_add_u32 s21, s21, 1
            s_waitcnt vmcnt(0)
            v_cmp_ne_u32 vcc, v{vTG}, v{vF}
            s_cbranch_vccz L_TALL
            s_sleep {self.opt.get("tsl", 1)}
            s_cmp_lt_u32 s21, 0x4000
            s_cbranch_scc1 L_TP
            L_TALL:
            {tl(0)}
            {tl(1)}
            s_waitcnt vmcnt(0)
            L_TC:
            s_waitcnt vmcnt(2)
            """)
            self.stamp(11)
            a(f"{ts(0)}\n{ts(1)}")
            if self.stamps: a("s_waitcnt vmcnt(0)")
            self.stamp(12)
        elif CT == 3:
            a("s_cmp_lg_u32 s14, 2\ns_cbranch_scc1 L_CNL")
            self.tsetup(2, K0, KREG, 64, 16)
            a("s_waitcnt vmcnt(0)")
            for l in yfl(1)[1:]: a(l)
            self.stamp(9)
            self.tpoll(64, 16, f"v{vTG}", self.opt.get("tsl", 1))
            self.tload(64, 16, 48)
            self.arrive(C_TL, vW4, vONE)
            if not self.opt.get("cst"): self.stamp(11)
            self.tstore(64, 16, 48)
            if self.stamps: a("s_waitcnt vmcnt(0)")
            self.stamp(12)
            a("s_branch L_FIN\nL_CNL:")
            self.arrive(C_TL, vW4, vONE)
        elif CT:
            TD = 48; vTA = 64; vOA = 65; vFA = 66; vF = 67; SF = 68; OA = 70; t0 = 74
            a(f"""
            s_cmp_lg_u32 s14, 2
            s_cbranch_scc1 L_FIN
            s_lshr_b32 s6, s2, 3
            s_and_b32 s5, s2, 7
            s_lshl_b32 s7, s6, 2
            s_add_u32 s7, s7, s58
            v_bfe_u32 v{t0}, v0, 4, 1
            v_lshrrev_b32 v{t0+1}, 5, v0
            v_and_b32 v{t0+2}, 15, v0
            s_lshl_b32 s8, s7, 4
            v_lshl_add_u32 v{t0+3}, v{t0}, 3, s8
            ds_read_b64 {P(SF)}, v{t0+3} offset:{SELF}
            v_lshl_add_u32 v{vTA}, v{t0+2}, 1, v{t0+1}
            v_lshlrev_b32 v{vTA}, 14, v{vTA}
            v_lshl_add_u32 v{vTA}, v{t0}, 4, v{vTA}
            v_lshl_add_u32 v{vOA}, v{t0}, 1, v{t0+1}
            v_lshlrev_b32 v{vOA}, 11, v{vOA}
            v_lshl_add_u32 v{vOA}, v{t0+2}, 4, v{vOA}
            s_lshl_b32 s8, s7, 13
            s_lshl_b32 s9, s5, 8
            s_add_u32 s8, s8, s9
            v_add_u32 v{vOA}, s8, v{vOA}
            v_and_b32 v{vFA}, 31, v0
            v_lshlrev_b32 v{vFA}, 2, v{vFA}
            v_lshl_add_u32 v{vFA}, v{t0+1}, 9, v{vFA}
            s_lshl_b32 s16, s5, 19
            s_lshl_b32 s8, s7, 5
            s_add_u32 s16, s16, s8
            s_add_u32 s16, s16, {WS_XT}
            s_add_u32 s17, s16, 0x1000
            s_add_u32 s18, s16, 0x2000
            s_add_u32 s19, s16, 0x3000
            s_lshl_b32 s20, s5, 12
            s_lshr_b32 s8, s6, 3
            s_lshl_b32 s8, s8, 7
            s_add_u32 s20, s20, s8
            s_add_u32 s20, s20, {WS_FL3}
            v_lshlrev_b32 v{t0+1}, 3, v{t0+1}
            s_mov_b32 s21, 0
            s_mov_b32 s22, 0
            s_waitcnt lgkmcnt(0)
            v_lshrrev_b32 v{SF}, v{t0+1}, v{SF}
            v_lshrrev_b32 v{SF+1}, v{t0+1}, v{SF+1}
            """)
            for k in range(4): a(f"v_lshlrev_b32 v{OA+k}, {24 if k % 2 == 0 else 8}, v{SF+k//2}")
            for k in range(4): a(f"v_and_or_b32 v{OA+k}, v{OA+k}, s68, v{vOA}")
            a("s_waitcnt vmcnt(0)")
            for l in yfl(1)[1:]: a(l)
            self.stamp(9)
            tl = lambda k: f"buffer_load_dwordx4 {Q(TD+4*k)}, v{vTA}, {SQ(rWS)}, s{16+k} offen sc1"
            ts = lambda k: f"v_permlane32_swap_b32 v{TD+4*k}, v{TD+4*k+2}\nv_permlane32_swap_b32 v{TD+4*k+1}, v{TD+4*k+3}\nbuffer_store_dwordx4 {Q(TD+4*k)}, v{OA+k}, {SQ(rOUT)}, s{sO+k} offen {'sc1' if self.opt.get('osc', 1) else ''}"
            a(f"""
            L_TP:
            buffer_load_dword v{vF}, v{vFA}, {SQ(rWS)}, s20 offen sc1
            s_add_u32 s21, s21, 1
            s_waitcnt vmcnt(0)
            v_cmp_ne_u32 vcc, v{vTG}, v{vF}
            s_cmp_eq_u32 vcc_hi, 0
            s_cbranch_scc1 L_TALL
            s_or_b32 s8, vcc_lo, s22
            s_cbranch_scc1 L_TSL
            s_bcnt1_i32_b32 s8, vcc_hi
            s_cmp_lt_u32 s8, {self.opt.get("tth", 0)}
            s_cbranch_scc1 L_TSL
            {tl(0)}
            {tl(1)}
            s_mov_b32 s22, 1
            s_waitcnt vmcnt(1)
            {ts(0)}
            s_waitcnt vmcnt(1)
            {ts(1)}
            L_TSL:
            s_sleep {self.opt.get("tsl", 1)}
            s_cmp_lt_u32 s21, 0x4000
            s_cbranch_scc1 L_TP
            L_TALL:
            {tl(2)}
            {tl(3)}
            """)
            self.stamp(11)
            a(f"""
            s_cmp_lg_u32 s22, 0
            s_cbranch_scc1 L_TB
            {tl(0)}
            {tl(1)}
            s_waitcnt vmcnt(0)
            {ts(0)}
            {ts(1)}
            s_branch L_TC
            L_TB:
            s_waitcnt vmcnt(0)
            L_TC:
            {ts(2)}
            {ts(3)}
            """)
            if self.stamps: a("s_waitcnt vmcnt(0)")
            self.stamp(12)
        else:
            if YFM:
                for l in yfl(2): a(l)
            for l in yfl(3): a(l)
            if self.stamps or self.opt.get("gamp") == 9:
                a("s_waitcnt vmcnt(0)")
                self.stamp(9)
        a("s_branch L_FIN")
        for n in range(3):
            a(f"L_SLOW{n}:")
            self.wait_flag(YF[n], vL4, 11)
            if n == KS: self.wait_flag(C_SEL, vL4, 11)
            a(f"s_branch L_BACK{n}")
        a("L_SLOW3:")
        self.wait_flag(C_KD, vL4, 11)
        a("s_branch L_BACK3")
        for k in range(DQ):
            a(f"L_ES{k}:")
            if k < KS:
                self.wait_flag(C_SEL, vL4, 11)
                a(f"ds_read_b64 v[12:13], v{vT8} offset:{SELF}\ns_waitcnt lgkmcnt(0)")
            for l in eaddr(k, 0) + eaddr(k, 1) + est(k, 0) + est(k, 1): a(l)
            a(f"s_branch L_EB{k}")
        xfail()
        a("L_XSLOW:")
        for i in range(8): a(f"buffer_load_dwordx2 {P(RAW+2*i)}, v{vXO}, {SQ(rX)}, s{sO+i//2} offen offset:{2048*(i%2)}")
        a("s_waitcnt vmcnt(0)\ns_branch L_XBACK")

    def conv2(self, E):
        a = self.a; O = self.opt.get
        items, pos, acc, started = E["items"], E["pos"], E["acc"], E["started"]
        AR, RB, ACC, UN, RAW = E["AR"], E["RB"], E["ACC"], E["UN"], E["RAW"]
        vW4, vONE, vL4, vYW, vYR, vT8, vKW, vTG = (E[k] for k in "vW4 vONE vL4 vYW vYR vT8 vKW vTG".split())
        nrd, nunp, nmath, nwr, zc, emath, yread, eaddr, est, YF = (E[k] for k in "nrd nunp nmath nwr zc emath yread eaddr est YF".split())
        LAT = O("lat", 6); DMIN = O("dmin", 18); DMAX = O("dmax", 24); WB = O("wb", 4); FD = O("fd", 4); NX = O("nx", 1); BUD = O("bud", 2); TH = O("th", 1)
        cnt = [len(it[1](0)) for it in items]; started.clear()
        g0 = [sum(cnt[:k]) for k in range(len(items)+1)]; NM = g0[-1]
        G = lambda key: g0[pos[key]]
        op = lambda t, c=1, lds=(), name=None, at=0, aft={}, need=None, src=None: dict(t=[t] if isinstance(t, str) else t, c=c, lds=list(lds), name=name, at=at, aft=dict(aft), need=need, src=src)
        mline = {}
        V = lambda L, **k: [op(l, 2 if l.startswith("v_rcp") else 1, **(k if i == 0 else {})) for i, l in enumerate(L)]
        def flag(off, name, **k):
            if NX: return op(f"ds_write_b32 v{vW4}, v{vONE} offset:{off}", 1, [None], name, **k)
            return op(self.arr(off, vW4, vONE), 3, [None], name, **k)
        def norm(k, vm, **kw):
            return [op(nrd(k), 1, [f"m{k}"], f"m{k}", **kw)] + ([op(f"s_waitcnt vmcnt({vm})", name=f"vm{k}")] if vm is not None else []) + V(nunp(k)) + [op([], 0, need=f"m{k}", aft={f"m{k}": LAT})] + V(nmath(0)) + [op(l, 2, [None], f"n{k}w" if i else None) for i, l in enumerate(nwr(k))]
        def check(off, n, name, **kw):
            return [op(f"ds_read_b32 v11, v{vL4} offset:{off}", 1, [name+"r"], name+"r", **kw), op([], 0, need=name+"r", aft={name+"r": LAT}), op("v_cmp_eq_u32 vcc, 0, v11", name=name+"c"),
                    op([f"s_cbranch_vccnz L_SLOW{n}", f"L_BACK{n}:"], 1, name=name, aft={name+"c": 1})]
        yw = lambda nt, **kw: op(f"ds_write_b128 v{vYW}, {Q(acc[nt])} offset:{1024*nt}", WB, [None], f"W{nt}", src=G(("B", 8*nt)), **kw)
        st = lambda k: f"buffer_store_dwordx4 {Q(ACC+8*k)}, v{vKW}, {SQ(rWS)}, s{32+k} offen {'sc1' if O('ysc', 0) >> k & 1 else ''}"
        U = norm(1, 2) + [flag(C_KD, "kd")] + norm(2, 0 if O("sg0") != 0 else None)
        S = [yw(0)] + check(C_KD, 3, "n1", aft={"kd": O("kdd", 8)})
        for k in range(3):
            em = emath(k)
            U += V(em[:8]) + [op([], 0, need=f"y{k}", aft={f"y{k}": LAT})] + V(em[8:]) + [op(st(k), 2, name=f"st{k}")]
            if k == 0: U += norm(3, None)
            if k: S += [yw(2*k)]
            S += [yw(2*k+1), flag(YF[k], f"f{k}", aft={f"n{k+2}w": 0} if k < 2 else {})] + check(YF[k], k, f"c{k}", aft={f"f{k}": FD}) + [op(e[2], 1, [f"y{k}"], f"y{k}" if i == 3 else None) for i, e in enumerate(yread(k, None))]
            if k == 1 and TH: S += check(C_SEL, 4, "sel")
        S += [yw(6)]
        TV = 172 if TH else 64; T = []
        if TH:
            k0_ = len(a.lines); self.tsetup(2, K0, KREG, TV, 16); TL_ = [l.strip() for l in a.lines[k0_:] if l.strip()]; del a.lines[k0_:]
            for l in TL_:
                if l.startswith("ds_"): T.append(op(l, 1, ["ts"], "ts", aft={"sel": 0}))
                elif l.startswith("s_waitcnt"): T.append(op([], 0, need="ts", aft={"ts": LAT}))
                else: T.append(op(l))
            T[0]["at"] = g0[pos[("B", 25)]+1] + 1
        Z = sum([V(zc(i), src=G(("X", i, 0))) + [op([], 0, name=f"z{i}")] for i in range(4)], [])
        fl = lambda k: ["s_mov_b64 exec, 1", f"buffer_store_dword v{vTG}, off, {SQ(rWS)}, s12 offset:{512*k}", "s_mov_b64 exec, -1"]
        A = [op("s_waitcnt vmcnt(0)", at=O("fag", 203), aft={"st1": 1}), op(fl(0), 3, name="fa")]
        SEN = O("sen", 1); SR = acc[5]
        fld = lambda o: ["s_mov_b32 exec_hi, 0", f"buffer_load_dword v{TV+5}, v{TV+7}, {SQ(rWS)}, s22 offen sc1", "s_mov_b32 exec_hi, -1"]
        if SEN:
            assert TH
            SG = O("sg0", 173)
            if 0 < SG < 60: Z[10:10] = V([f"v_mov_b32 v{SR+i}, -1" for i in range(4)], at=SG) + [op(f"buffer_store_dwordx4 {Q(SR)}, v{vKW}, {SQ(rWS)}, s{34+i} offen", 2, name="sen", aft={"vm2": 0}) for i in range(2)]
            elif SG:
                SR = ACC+4
                A[0]["aft"]["sen"] = 1
                Z += V([f"v_mov_b32 v{SR+i}, -1" for i in range(4)], aft={"st0": 0}) + [op(f"buffer_store_dwordx4 {Q(SR)}, v{vKW}, {SQ(rWS)}, s{34+i} offen", 2, name="sen" if i else None, at=SG+O("sgd", 0)*i) for i in range(2)]
            T += [op("s_sub_u32 s22, s20, 512"), op(f"v_mov_b32 v{TV+5}, v{vTG}", name="tsd")]
            A += [op(fld(0), 3, name="fl", at=O("flg", 222), aft={"tsd": 1})]
        chains = [S, Z, A, U, T]
        zdead = {G(("B", 8))+2: "sen" if SEN and 0 < SG < 60 else "z0", G(("B", 0))+4: "z0", G(("X", 2, 0)): "z1", G(("X", 3, 0)): "z2", G(("B", 16))+4: "z3"}
        def req(k):
            key = items[k][2]
            u = key[1] if key[0] == "B" else 8*key[1] if key[0] == "X" else 0
            return [None, "n1", "c0", "c1"][max(0, (32*u+255)//512)]
        issued = []; itime = []; done = [0]; when = {}; cur = [-1]
        def emit(t, tags):
            for l in t: a(l)
            for tg in tags: issued.append(tg); itime.append(cur[0])
        def need(tag, dry=False):
            last = max(i for i, t in enumerate(issued) if t == tag)
            if last < done[0]: return 0
            if not dry:
                last = max([last] + [i for i, t in enumerate(itime) if t <= cur[0] - LAT])
                n = min(len(issued) - 1 - last, 15)
                a(f"s_waitcnt lgkmcnt({n})"); done[0] = len(issued) - n
            return 1
        free = [(RB+4*i, -1) for i in range(6)]; reg = {}; nxt = [0]
        for d in range(30 if TH else 32, 8, -1): free.append((AR+4*d, g0[pos[("B", 56-d)]+1]))
        def can_read():
            k = nxt[0]
            if k >= len(items): return False
            r = req(k)
            return (r is None or r in when) and any(t <= cur[0] for _, t in free)
        def read():
            k = nxt[0]; nxt[0] += 1
            i = [j for j, (_, t) in enumerate(free) if t <= cur[0]][0]
            reg[k] = free.pop(i)[0]; free.append((reg[k], g0[k+1]))
            L = items[k][0](reg[k]); emit(L, [("it", k)]*len(L)); return len(L)
        nins = lambda i: sum(1 for l in a.lines[i:] if l.strip() and not l.strip().endswith(":"))
        def ready(o): return cur[0] >= o["at"] and (o["src"] is None or (o["src"] in mline and nins(mline[o["src"]]) >= 8)) and all(n in when and cur[0] >= when[n] + d for n, d in o["aft"].items())
        def run(ch):
            o = ch.pop(0); c = o["c"]
            if o["need"]: c = need(o["need"])
            emit(o["t"], o["lds"])
            if o["name"]: when[o["name"]] = cur[0]
            return c
        a(f"L_XRW:\nds_read_b32 v15, v{vL4} offset:{C_XR}")
        for k in range(6): read()
        a(f"s_waitcnt lgkmcnt(6)\nv_cmp_eq_u32 vcc, 0, v15\ns_cbranch_vccnz L_XRW")
        a("v_cmp_ne_u32 vcc, 2, v15\ns_cmp_eq_u32 vcc_lo, 0\ns_cselect_b32 s14, 2, 1")
        self.stamp(6)
        if "cp0" not in self.opt: self.cst(14)
        over = 0
        for k, it in enumerate(items):
            if "cp0" in self.opt:
                st_ = O("cps", 3)
                if (k - O("cp0")) % st_ == 0 and 0 <= (k - O("cp0"))//st_ < 6: self.cst(10 + (k - O("cp0"))//st_)
            else:
                for u_, i_ in ((0, 10), (16, 11), (32, 12), (44, 13)):
                    if it[2] == ("B", u_): self.cst(i_)
            assert nxt[0] > k, ("item not read", it[2])
            if cur[0] - itime[max(i for i, t in enumerate(issued) if t == ("it", k))] < LAT and k > 5: print("; late read", it[2], cur[0], file=sys.stderr)
            need(("it", k))
            for j, m in enumerate(it[1](reg[k])):
                cur[0] += 1
                if cur[0] in zdead: assert zdead[cur[0]] in when, zdead[cur[0]]
                a(m); mline[cur[0]] = len(a.lines)
                bud = BUD
                if j == cnt[k]-1 and k+1 < len(items) and nxt[0] > k+1: bud -= need(("it", k+1), True)
                full = bud
                def pick(cs):
                    ch = [c for c in cs if c and ready(c[0]) and ((need(c[0]["need"], True) if c[0]["need"] else c[0]["c"]) <= bud or (bud == full and bud > 0))]
                    return ch[0] if ch else None
                rd = lambda D: can_read() and bud > 0 and g0[nxt[0]] - cur[0] <= D
                while True:
                    if rd(LAT+2): bud -= read()
                    elif pick([S, A]): bud -= run(pick([S, A]))
                    elif rd(DMIN): bud -= read()
                    elif pick([Z, U]): bud -= run(pick([Z, U]))
                    elif rd(DMAX if cur[0] < O("tg0", 150) else 99): bud -= read()
                    elif pick([T]): bud -= run(T)
                    else: break
                over += max(0, -bud)
        print("; sched over", over, {k: v for k, v in when.items() if k[0] in "cfsWz" or k in ("kd", "n1")}, [len(c) for c in chains], file=sys.stderr)
        cur[0] = 999
        for ch in chains:
            while ch: run(ch)
        em = emath(3)
        for l in em[:8]: a(l)
        a(f"ds_write_b128 v{vYW}, {Q(acc[7])} offset:{1024*7}")
        if "cp0" not in self.opt or O("cp0") + 5*O("cps", 3) >= len(items): self.cst(15)
        self.stamp(7)
        if NX: a(f"ds_write_b32 v{vW4}, v{vONE} offset:{C_Y3}")
        else: self.arrive(C_Y3, vW4, vONE)
        if TH: a(f"L_Y3W:\nds_read_b32 v14, v{vL4} offset:{C_Y3}")
        else: a(f"L_Y3W:\nds_read2_b32 v[14:15], v{vL4} offset0:{C_Y3//4} offset1:{C_SEL//4}")
        for e in yread(3, None): a(e[2])
        a(f"s_waitcnt lgkmcnt(4)\n{'' if TH else 'v_min_u32 v14, v14, v15'}\nv_cmp_eq_u32 vcc, 0, v14\ns_cbranch_vccnz L_Y3W\ns_waitcnt lgkmcnt(0)")
        for l in em[8:] + [st(3)]: a(l)
        self.stamp(8)
        a("s_cmp_lg_u32 s14, 2\ns_cbranch_scc1 L_CNL")
        if SEN:
            nv = sum(1 for k in ("st2",) if when[k] > when["fl"]) + 1
            D = 48; tl = lambda i: f"buffer_load_dwordx4 {Q(D+4*i)}, v{TV}, {SQ(rWS)}, s{16+i} offen sc1"
            a(f"""s_waitcnt vmcnt({nv})
            v_cmp_ne_u32 vcc, v{vTG}, v{TV+5}
            s_cbranch_vccnz L_FAW
            L_FAK:
            {tl(0)}
            {tl(1)}
            s_waitcnt vmcnt(2)""")
            for l in fl(1): a(l)
            self.stamp(9)
            if O("tle", 0): self.arrive(C_TL, vW4, vONE)
            a(f"""s_waitcnt vmcnt(1)
            L_DP:
            v_max3_u32 v{D+8}, v{D}, v{D+1}, v{D+2}
            v_max3_u32 v{D+9}, v{D+4}, v{D+5}, v{D+6}
            v_max_u32 v{D+8}, v{D+8}, v{D+3}
            v_max_u32 v{D+9}, v{D+9}, v{D+7}
            v_cmp_eq_u32 s[8:9], -1, v{D+8}
            v_cmp_eq_u32 s[10:11], -1, v{D+9}
            s_or_b64 vcc, s[8:9], s[10:11]
            {"s_branch L_DF" if O("forcen") else "s_cbranch_vccnz L_DR"}
            L_DOK:""")
            if not O("tle", 0): self.arrive(C_TL, vW4, vONE)
            if not O("cst"): self.stamp(11)
        else:
            if not TH: self.tsetup(2, K0, KREG, TV, 16)
            a("s_waitcnt vmcnt(0)")
            for l in fl(1): a(l)
            self.stamp(9)
            self.tpoll(TV, 16, f"v{vTG}", O("tsl", 1))
            self.tload(TV, 16, 48)
            self.arrive(C_TL, vW4, vONE)
            if not O("cst"): self.stamp(11)
        self.tstore(TV, 16, 48, novm=SEN)
        if self.stamps: a("s_waitcnt vmcnt(0)")
        self.stamp(12)
        if SEN:
            a(f"""s_branch L_FIN
            L_DR:
            s_add_u32 s21, s21, 1
            s_cmp_ge_u32 s21, {O("dlim", 48)}
            s_cbranch_scc1 L_DF
            {"s_sleep %d" % O("dsl") if O("dsl", 0) else ""}
            s_cmp_eq_u64 s[8:9], 0
            s_cbranch_scc1 L_DS0
            {tl(0)}
            L_DS0:
            s_cmp_eq_u64 s[10:11], 0
            s_cbranch_scc1 L_DS1
            {tl(1)}
            L_DS1:
            s_waitcnt vmcnt(0)
            s_branch L_DP
            L_DF:
            s_mov_b32 s21, 0""")
            self.tpoll(TV, 16, f"v{vTG}", O("tsl", 1))
            self.tload(TV, 16, 48)
            a("s_waitcnt vmcnt(0)\ns_branch L_DOK\nL_FAW:\ns_mov_b32 s23, 0")
            self.tpoll(TV, 18, f"v{vTG}", O("tsl", 1))
            a("s_branch L_FAK")
        a("s_branch L_FIN\nL_CNL:")
        self.arrive(C_TL, vW4, vONE)
        a(f"ds_read_b64 v[12:13], v{vT8} offset:{SELF}\ns_waitcnt lgkmcnt(0)")
        for k in range(4):
            for l in eaddr(k, 0) + eaddr(k, 1) + est(k, 0) + est(k, 1): a(l)
        a("s_branch L_FIN")
        for n, off in enumerate(YF[:3] + [C_KD] + ([C_SEL] if TH else [])):
            a(f"L_SLOW{n}:")
            self.wait_flag(off, vL4, 11)
            a(f"s_branch L_BACK{n}")

    def fmain(self):
        a = self.a
        GUR = 112; GUF = 48
        WDR = 176; WDF = 112
        XS = 208
        ACC = 16
        vL4 = 1; vW4 = 2; vPW = 3; vPR = 4; vONE = 5; vRS = 6; vE = 7; vNM = 8; vXO = 9
        PRM = 224; TCH = 216
        sSG = 59; sK = 68
        X0 = 16; W0 = 32; S = 48
        a(f"""
        L_F0:
        s_setprio 2
        s_mov_b32 s{sO+1}, {WS_STAT}
        s_lshl_b32 s7, s2, 2
        s_add_u32 s7, s7, s{sW}
        s_lshl_b32 s13, s2, {7 if self.opt.get("ss") else 6}
        s_add_u32 s13, s13, {WS_STAT}
        s_lshl_b32 s8, s7, 12
        v_and_b32 v10, 31, v0
        v_lshlrev_b32 v10, 4, v10
        v_lshrrev_b32 v11, 5, v0
        v_lshl_add_u32 v11, v11, 11, v10
        v_add_u32 v11, s8, v11
        s_cmp_lt_u32 s6, 28
        s_cselect_b32 s{sROLE}, 1, 0
        s_lshr_b32 s8, s6, 2
        s_add_u32 s9, s5, 3
        s_and_b32 s9, s9, 7
        s_min_u32 s9, s9, 6
        s_cmp_lt_u32 s6, 28
        s_cselect_b32 s8, s8, s9
        s_mul_i32 s{sSG}, s5, 7
        s_add_u32 s{sSG}, s{sSG}, s8
        s_and_b32 s{sK}, s6, 3
        s_lshl_b32 s8, s{sK}, 2
        s_add_u32 s8, s8, s{sW}
        s_lshl_b32 s8, s8, 6
        s_xor_b32 s9, s{sROLE}, 1
        s_lshl_b32 s9, s9, 5
        s_add_u32 s8, s8, s9
        v_lshrrev_b32 v12, 4, v0
        v_lshl_add_u32 v12, v12, 3, s8
        v_lshlrev_b32 v{vXO}, 1, v12
        s_movk_i32 s10, 7168
        v_mul_u32_u24 v14, s10, v12
        v_and_b32 v12, 7, v0
        v_lshl_add_u32 v14, v12, 4, v14
        s_lshl_b32 s8, s{sSG}, 7
        v_add_u32 v14, s8, v14
        v_and_b32 v12, 8, v0
        v_cmp_ne_u32 vcc, 0, v12
        """)
        self.est(6)
        a("s_waitcnt lgkmcnt(0)")
        self.est(7)
        for i in range(4): a(f"global_load_dwordx4 {Q(X0+4*i)}, v11, {SP(sX)} offset:{512*i} {'nt' if self.opt.get('xnt') else ''}")
        self.wsb()
        a(f"s_load_dword s{sTAG}, {SP(sWS)}, 0")
        for i in range(4): a(f"global_load_dwordx4 {Q(W0+4*i)}, v10, {SP(sWR)} offset:{512*i}")
        a(f"""
        v_mov_b32 v12, s{sWGT}
        v_mov_b32 v13, s{sWGT+1}
        v_mov_b32 v10, s{sWU}
        v_mov_b32 v11, s{sWU+1}
        v_cndmask_b32 v12, v12, v10, vcc
        v_cndmask_b32 v13, v13, v11, vcc
        v_add_co_u32 v220, vcc, v12, v14
        s_movk_i32 s20, 7168
        s_mov_b32 s21, 0
        v_addc_co_u32 v221, vcc, 0, v13, vcc
        """)
        self.est(8)
        a("s_barrier")
        self.est(9)
        NE = self.opt.get("ne", 8)
        GA = "v[220:221]"; S1, S2 = "s[20:21]", "s[22:23]"
        gl = []
        for s in range(2):
            for j in range(8):
                gl.append([f"global_load_dwordx4 {Q(GUR+32*s+4*j)}, {GA}, off {'nt' if self.opt.get('gnt') else ''}"] + ([f"v_lshl_add_u64 {GA}, {S1 if j < 7 else S2}, 0, {GA}"] if (s, j) != (1, 7) else []))
        if self.opt.get("nog"): gl = [[x[0].replace("global_load_dwordx4", "global_load_dword").replace(Q(GUR+4*i), f"v{GUR+4*i}")] for i, x in enumerate(gl)]
        TL = 64; TT = 80; RAW = 64; sLOC = 60
        if True:
            self.srd(rX, sX, 0x400000); self.srd(rOUT, sOUT, 0x400000)
            a(f"""
            s_lshl_b32 s8, s6, 17
            s_lshl_b32 s9, s{sW}, 15
            s_add_u32 s8, s8, s9
            s_lshl_b32 s9, s5, 8
            s_add_u32 s8, s8, s9
            s_add_u32 s9, s8, 4096
            v_lshrrev_b32 v10, 4, v0
            v_and_b32 v11, 15, v0
            v_lshlrev_b32 v11, 4, v11
            v_lshl_add_u32 v14, v10, 13, v11
            """)
            for i in range(4): a(f"buffer_load_dwordx4 {Q(TL+4*i)}, v14, {SQ(rX)}, s{8+i//2} offen offset:{2048*(i%2)}")
            GE = self.opt.get("ge", 0); GP_ = self.opt.get("gp", 0)
            def gearly(p):
                if GP_ == p:
                    for i in range(GE): a("\n".join(gl[i]))
            gearly(0)
            a(f"""
            s_mul_i32 s8, s{sW}, {XSTR}
            s_add_u32 s8, s8, {XR0}
            s_movk_i32 s9, 1088
            v_mad_u32_u24 v96, v10, s9, v11
            v_add_u32 v96, s8, v96
            v_and_b32 v10, 7, v0
            v_lshrrev_b32 v11, 3, v0
            s_movk_i32 s9, 544
            v_lshl_add_u32 v97, v11, 3, s8
            v_mad_u32_u24 v97, v10, s9, v97
            v_lshlrev_b32 v98, 4, v10
            v_lshl_add_u32 v98, v11, 14, v98
            s_lshl_b32 s18, s5, 19
            s_lshl_b32 s9, s6, 9
            s_add_u32 s18, s18, s9
            s_lshl_b32 s9, s{sW}, 7
            s_add_u32 s18, s18, s9
            s_add_u32 s18, s18, {WS_XT}
            s_getreg_b32 s19, hwreg(HW_REG_XCC_ID, 0, 4)
            s_mov_b32 s22, {25*7168}
            s_cmp_eq_u32 s{sROLE}, 1
            s_cselect_b32 s22, s22, {(-39*7168)&0xffffffff:#x}
            s_cselect_b32 s23, 0, -1
            s_lshl_b32 s62, s5, 2
            s_bfe_u32 s9, s6, 0x20001
            s_add_u32 s62, s62, s9
            s_lshl_b32 s62, s62, 12
            s_lshr_b32 s9, s6, 3
            s_lshl_b32 s9, s9, 1
            s_add_u32 s62, s62, s9
            s_and_b32 s9, s6, 1
            s_add_u32 s62, s62, s9
            s_lshl_b32 s62, s62, 2
            s_add_u32 s62, s62, {WS_FL2}
            s_lshl_b32 s19, s19, 1
            s_lshl_b32 s9, s5, 2
            s_lshl_b32 s40, 15, s9
            s_mov_b32 s41, s40
            """)
            self.srd(rWS, sWS, WS_SIZE); self.srd(rD, sWD, 3584*2048)
        SS = self.opt.get('ss', 0); T = 224; TP = 16; E = T+8; KP = 32; CR = T+24; XT = 64
        def kpl():
            for i, so in enumerate((sO+1, 5, 6, 7)): a(f"buffer_load_dwordx4 {Q(KP+4*i)}, v{T+2}, {SQ(rWS)}, s{so} offen sc1")
        a(f"""
        s_lshl_b32 s7, s{sW}, 2
        v_mov_b32 v{vW4}, s7
        v_and_b32 v11, 3, v0
        v_lshlrev_b32 v{vL4}, 2, v11
        v_mov_b32 v{vONE}, 1
        s_lshl_b32 s8, s{sW}, 6
        v_add_u32 v14, s8, v0
        v_lshlrev_b32 v{T+2}, 4, v14
        {"v_and_b32 v10, -4, v14" if SS else ""}
        {"v_lshl_add_u32 v%d, v10, 4, v%d" % (T+2, T+2) if SS else ""}
        v_lshlrev_b32 v105, 4, v11
        v_lshrrev_b32 v63, 2, v0
        v_lshl_add_u32 v63, v63, 14, v105
        s_lshl_b32 s4, s5, 14
        v_add_u32 v223, {"s4" if self.opt.get("sm", 2) == 1 else 0}, v{T+2}
        s_mov_b32 s5, {WS_STAT+(0x1000<<SS)}
        s_mov_b32 s6, {WS_STAT+(0x2000<<SS)}
        s_mov_b32 s7, {WS_STAT+(0x3000<<SS)}
        """)
        vWD = 222
        a(f"""
        s_cmp_lg_u32 s{sW}, 0
        s_cbranch_scc1 L_NOZ
        v_lshlrev_b32 v{T}, 4, v0
        v_mov_b32 v{T+4}, 0
        v_mov_b32 v{T+5}, 0
        v_mov_b32 v{T+6}, 0
        v_mov_b32 v{T+7}, 0
        ds_write_b128 v{T}, {Q(T+4)} offset:{UPD}
        ds_write_b128 v{T}, {Q(T+4)} offset:{UPD+1024}
        ds_write_b128 v{T}, {Q(T+4)} offset:{UPD+2048}
        L_NOZ:
        s_lshl_b32 s4, s{sW}, 6
        v_add_u32 v14, s4, v0
        v_lshlrev_b32 v15, 4, v14
        s_mov_b32 s64, 0x05040100
        s_mov_b32 s65, 0x07060302
        v_lshlrev_b32 v{T}, 4, v0
        v_and_b32 v10, 15, v0
        v_lshlrev_b32 v10, 2, v10
        v_and_b32 v11, 48, v0
        s_movk_i32 s4, 0xfff
        v_lshlrev_b32 v{CR}, 1, v14
        v_sub_u32 v{CR}, s4, v{CR}
        v_subrev_u32 v{CR+1}, 1, v{CR}
        v_subrev_u32 v{CR+2}, 512, v{CR}
        v_subrev_u32 v{CR+3}, 513, v{CR}
        v_subrev_u32 v{CR+4}, 1024, v{CR}
        v_subrev_u32 v{CR+5}, 1025, v{CR}
        v_subrev_u32 v{CR+6}, 1536, v{CR}
        v_subrev_u32 v{CR+7}, 1537, v{CR}
        v_lshlrev_b32 v{T+3}, 3, v14
        v_lshrrev_b32 v{T+1}, 4, v14
        v_lshlrev_b32 v{T+1}, 2, v{T+1}
        v_lshlrev_b32 v14, 2, v14
        s_mov_b32 s16, 0
        s_mov_b32 s17, 0xffff0000
        v_lshlrev_b32 v{vPW}, 3, v11
        s_lshl_b32 s8, s{sW}, 12
        s_add_u32 s8, s8, {PRE}
        v_add_u32 v{vPW}, s8, v{vPW}
        v_lshrrev_b32 v12, 5, v0
        v_lshlrev_b32 v{vPR}, 7, v12
        v_bfe_u32 v12, v0, 4, 1
        v_lshl_add_u32 v{vPR}, v12, 3, v{vPR}
        v_bfe_u32 v12, v0, 3, 1
        v_lshl_add_u32 v{vPR}, v12, 9, v{vPR}
        v_and_b32 v12, 7, v0
        v_lshl_add_u32 v{vPR}, v12, 4, v{vPR}
        s_lshl_b32 s8, s{sW}, 10
        s_add_u32 s8, s8, {PRE}
        v_add_u32 v{vPR}, s8, v{vPR}
        v_bfe_u32 v12, v0, 4, 1
        v_lshlrev_b32 v12, 16, v12
        v_lshrrev_b32 v13, 5, v0
        v_lshl_add_u32 v12, v13, 12, v12
        v_lshl_add_u32 v{vWD}, v10, 1, v12
        s_lshl_b32 s10, s{sSG}, 17
        s_lshl_b32 s11, s{sK}, 9
        s_add_u32 s10, s10, s11
        s_lshl_b32 s11, s{sW}, 7
        s_add_u32 s10, s10, s11
        """)
        a("s_mov_b32 s8, 0x3f803f80")
        self.est(10)
        if True:
            a(f"s_waitcnt vmcnt({8 + (GE if GP_ == 0 else 0)})")
            self.est(11)
            gearly(1)
            for i in range(16):
                c = lambda r: "0" if i == 0 else f"v{r}"
                a(f"v_dot2_f32_bf16 v{S}, v{X0+i}, s8, {c(S)}")
                a(f"v_dot2_f32_bf16 v{S+1}, v{X0+i}, v{X0+i}, {c(S+1)}")
            a("s_waitcnt lgkmcnt(0)")
            self.mktag()
            a(f"s_or_b32 s{sTX}, s19, s{sTAG}\nv_mov_b32 v{S+11}, s{sTX}\ns_waitcnt vmcnt({4 + (GE if GP_ < 2 else 0)})")
            self.stamp(1)
            gearly(2)
        for i in range(16):
            c = lambda r: "0" if i == 0 else f"v{r}"
            a(f"v_dot2_f32_bf16 v{S+2}, v{X0+i}, v{W0+i}, {c(S+2)}")
            a(f"v_dot2_f32_bf16 v{S+3}, v{W0+i}, s8, {c(S+3)}")
        a("s_nop 1")
        for sh in ("row_shr:1 row_mask:0xf","row_shr:2 row_mask:0xf","row_shr:4 row_mask:0xf","row_shr:8 row_mask:0xf","row_bcast:15 row_mask:0xa"):
            for r in range(S, S+4): a(f"v_add_f32_dpp v{r}, v{r}, v{r} {sh} bank_mask:0xf")
        a(f"""
        v_mul_f32 v{S}, 0x3a800000, v{S}
        v_mul_f32 v{S+1}, 0x3a800000, v{S+1}
        v_cvt_pk_bf16_f32 v{S+4}, v{S}, v{S}
        v_fma_f32 v{S+1}, -v{S}, v{S}, v{S+1}
        v_max_f32 v{S+1}, 0, v{S+1}
        v_and_b32 v{S+5}, 0xffff0000, v{S+4}
        """)
        self.bf16r(S+1, S+1)
        a(f"v_add_f32 v{S+1}, {f2u(1e-5):#x}, v{S+1}\nv_fma_f32 v{S+2}, -v{S+5}, v{S+3}, v{S+2}")
        self.bf16r(S+1, S+1)
        a(f"""
        v_sqrt_f32 v{S+1}, v{S+1}
        v_lshlrev_b32 v104, 2, v{vW4}
        v_mov_b32 v{S+13}, 0
        v_and_b32 v{S+14}, 62, v0
        v_mad_u32_u24 v{S+14}, v{S+14}, 3, v0
        v_lshlrev_b32 v{S+14}, 6, v{S+14}
        v_cvt_pk_bf16_f32 v{S+6}, v{S+1}, v{S+1}
        v_and_b32 v{S+1}, 0xffff0000, v{S+6}
        v_rcp_f32 v{S+1}, v{S+1}
        v_mul_f32 v{S+2}, v{S+2}, v{S+1}
        v_cvt_pk_bf16_f32 v{S+2}, v{S+2}, v{S+2}
        v_bfe_i32 v{S+3}, v{S+2}, 15, 1
        v_or_b32 v{S+3}, 0x80008000, v{S+3}
        v_xor_b32 v{S+7}, v{S+2}, v{S+3}
        s_mov_b32 s8, 0xffff
        v_mov_b32_dpp v{S+8}, v{S+4} row_bcast:31 row_mask:0x8 bank_mask:0xf
        v_mov_b32_dpp v{S+9}, v{S+6} row_bcast:31 row_mask:0x8 bank_mask:0xf
        v_mov_b32_dpp v{S+10}, v{S+7} row_bcast:31 row_mask:0x8 bank_mask:0xf
        v_bfi_b32 v{S+8}, s8, v{S+8}, v{S+4}
        v_bfi_b32 v{S+9}, s8, v{S+9}, v{S+6}
        v_bfi_b32 v{S+10}, s8, v{S+10}, v{S+7}
        s_brev_b64 exec, 1
        ds_write_b128 v104, {Q(S+8)} offset:{STG}
        """)
        self.stamp(2)
        SM = self.opt.get("sm", 2); NCB = self.opt.get("ncb", 4); NCP = [1, 8, 1 << NCB][SM]
        a(f"""
        ds_add_rtn_u32 v{S+12}, v{S+13}, v{vONE} offset:{CNTR}
        s_mov_b64 exec, -1
        s_waitcnt lgkmcnt(0)
        v_readlane_b32 s8, v{S+12}, 63
        s_cmp_lg_u32 s8, 3
        s_cbranch_scc1 L_NOPUB
        s_bfm_b64 exec, {4*NCP & 63}, 0
        {"s_mov_b64 exec, -1" if NCP == 16 else ""}
        ds_read_b128 {Q(S+4)}, v105 offset:{STG}
        s_waitcnt lgkmcnt(0)
        buffer_store_dwordx4 {Q(S+4)}, v63, {SQ(rWS)}, s13 offen sc1
        ds_write_b32 v{S+13}, v{vONE} offset:{CNT2}
        s_mov_b64 exec, -1
        s_waitcnt vmcnt({1+GE})
        s_branch L_PUB2
        L_NOPUB:
        """)
        vq = []; vdone = [0]
        def vis(tag, text, ld=1): a(text); vq.append((tag, ld))
        def vw(n):
            if len(vq) - n > vdone[0]: a(f"s_waitcnt vmcnt({n})"); vdone[0] = len(vq) - n
        def vfor(tag): vw(len(vq) - 1 - max(i for i, t in enumerate(vq) if t[0] == tag))
        def vwin(W):
            idx = [i for i, t in enumerate(vq) if t[1]]
            if len(idx) >= W: vw(len(vq) - 1 - idx[-W])
        gi = [0]
        def G(W=None):
            if W: vwin(W)
            vis(f"g{gi[0]}", "\n".join(gl[gi[0]])); gi[0] += 1
        di = [0]; vWD = 222
        def D(n=1):
            for _ in range(n):
                if di[0] >= 16: return
                ks, j = di[0]//8, di[0]%8
                vis(f"d{di[0]}", f"s_add_u32 s11, s10, {(16*(j>>2) + 8*(j&1) + 4*ks + ((j>>1)&1))*2048}\nbuffer_load_dwordx2 {P(WDR+16*ks+2*j)}, v{vWD}, {SQ(rD)}, s11 offen"); di[0] += 1
        N0 = self.opt.get("n0", 0); WN = self.opt.get("wn", 4); NP = self.opt.get("np", 12); XF = self.opt.get("xf", N0+WN); GA_ = self.opt.get("ga", 4)
        a(f"s_waitcnt vmcnt({GE})\nL_PUB2:")
        for i in range(GE): vq.append((f"g{i}", 1))
        gi[0] = GE; XF += GE; NP += GE
        for i in range(N0): G()
        for i in range(4): a(f"ds_write_b128 v96, {Q(TL+4*i)} offset:{272*i}")
        for j in range(4): a(f"ds_read_b64 {P(TT+4*j)}, v97 offset:{64*j}\nds_read_b64 {P(TT+4*j+2)}, v97 offset:{64*j+272}")
        for j in range(4): vis("xt", f"s_waitcnt lgkmcnt({6-2*j})\nbuffer_store_dwordx4 {Q(TT+4*j)}, v98, {SQ(rWS)}, s18 offen {MOD[self.opt.get('xso',0)]}\ns_add_u32 s18, s18, 0x20000", 0)
        self.arrive(C_XS, vW4, S+11)
        if self.opt.get("wpub", 1): self.wait_flag(CNT2, S+13, S+12)
        self.stamp(4)
        def xflag():
            vfor("xt")
            a(f"""
            s_mov_b64 exec, 1
            ds_add_rtn_u32 v{S+12}, v{S+13}, v{vONE} offset:{CNT3}
            s_waitcnt lgkmcnt(0)
            v_readfirstlane_b32 s8, v{S+12}
            s_cmp_lg_u32 s8, 3
            s_mov_b64 exec, -1
            s_cbranch_scc1 L_NOXF
            """)
            for i in range(self.opt.get("nst", 3)): a(f"buffer_store_dword v{S+11}, v{S+14}, {SQ(rWS)}, s62 offen offset:{128*i}")
            a(f"""
            L_NOXF:
            """)
            self.stamp(5)
        PF = self.opt.get("pf", 0)
        def kcheck():
            a(f"""
            v_xor_b32 v{TP}, s{sTX}, v{KP+3}
            v_xor_b32 v{TP+1}, s{sTX}, v{KP+7}
            v_xor_b32 v{TP+2}, s{sTX}, v{KP+11}
            v_xor_b32 v{TP+3}, s{sTX}, v{KP+15}
            v_cmp_lt_u32 s[30:31], 31, v{TP}
            v_cmp_lt_u32 s[8:9], 31, v{TP+1}
            v_cmp_lt_u32 s[14:15], 31, v{TP+2}
            v_cmp_lt_u32 s[28:29], 31, v{TP+3}
            v_or3_b32 v{TP}, v{TP}, v{TP+1}, v{TP+2}
            s_or_b64 vcc, s[30:31], s[8:9]
            s_or_b64 s[66:67], s[14:15], s[28:29]
            s_or_b64 vcc, vcc, s[66:67]""")
        def kp4():
            for i, so in enumerate((sO+1, 5, 6, 7)): vis("kp", f"buffer_load_dwordx4 {Q(KP+4*i)}, v223, {SQ(rWS)}, s{so} offen sc1")
        while gi[0] < min(WN+GE, NP):
            if gi[0] == XF:
                xflag()
            if PF and gi[0] == PF-1+GE: kp4()
            G()
        if PF:
            vfor("kp"); kcheck()
            a("s_cbranch_vccnz L_KF")
            k0 = len(a.lines); g0 = gi[0]; n0 = len(vq); d0 = vdone[0]
            while gi[0] < NP: G()
            a("s_branch L_KPOK\nL_KF:")
            gi[0] = g0; del vq[n0:]
            while gi[0] < NP: G(WN)
            if self.opt.get("pw", 1): vwin(self.opt.get("pw2", 2))
            vdone[0] = d0
            a("s_branch L_KQ2")
        def perms(raw, out, nd, nj):
            L = []
            for d in range(nd):
                for jj in range(nj):
                    A = raw+nd*(2*jj)+d; B = raw+nd*(2*jj+1)+d
                    L.append(f"v_perm_b32 v{out+nj*(2*d)+jj}, v{B}, v{A}, s64")
                    L.append(f"v_perm_b32 v{out+nj*(2*d+1)+jj}, v{B}, v{A}, s65")
            return L
        if self.opt.get("ht"):
            a(f"s_lshl_b32 s4, s{sSG}, 14\ns_lshl_b32 s8, s{sW}, 12\ns_add_u32 s4, s4, s8\ns_lshl_b32 s8, s{sK}, 10\ns_add_u32 s4, s4, s8\ns_add_u32 s4, s4, {WS_H1}")
            if self.opt["ht"] == 1: vis("ht", f"buffer_load_dwordx4 v[216:219], v{T}, {SQ(rWS)}, s4 offen")
            else: vis("ht", f"s_cmp_lg_u32 s{sROLE}, 1\ns_cbranch_scc1 L_NHT\nv_mov_b32 v218, 0\nbuffer_store_dwordx4 v[216:219], v{T}, {SQ(rWS)}, s4 offen\nL_NHT:", 0); vq.pop()
        while gi[0] < NP:
            if gi[0] == XF: xflag()
            G(WN)
        if XF >= NP: xflag()
        def slot(): a(f"s_memrealtime s[66:67]\ns_waitcnt lgkmcnt(0)\ns_bfe_u32 s4, s66, {self.opt.get('tsb', 4) | NCB << 16:#x}\ns_lshl_b32 s4, s4, 14\nv_add_u32 v223, s4, v{T+2}")
        for i, so in enumerate((sO+1, 5, 6, 7)):
            if PF: break
            if self.opt.get("pw", 1): vwin(WN)
            if SM == 2 and (i == 0 or self.opt.get("se", 0)): slot()
            vis("kp", f"buffer_load_dwordx4 {Q(KP+4*i)}, v223, {SQ(rWS)}, s{so} offen {'' if SM == 2 else 'sc1'}")
        p0 = [0]
        def perm0():
            if p0[0] == 0 and gi[0] >= 8:
                vfor("g7"); p0[0] = 1
                for l in perms(GUR, GUF, 4, 4): a(l)
        if self.opt.get("pe", 0): perm0()
        for i in range(GA_):
            if gi[0] < 16: G(WN + self.opt.get("wx", 0))
            else: vwin(WN); D(2)
        vfor("kp")
        KM = (30, 8, 14, 28)
        a(f"s_branch L_KPW\nL_KP:\ns_sleep {self.opt.get('ksl', 1)}\nL_KQ2:")
        if SM == 2:
            a(f"s_cmp_ge_u32 s16, {self.opt.get('npl', 10)}\ns_cbranch_scc1 L_KQ")
            slot()
            for i, so in enumerate((sO+1, 5, 6, 7)):
                a(f"s_mov_b64 exec, {SP(KM[i])}\ns_cbranch_execz L_KT{i}\nbuffer_load_dwordx4 {Q(KP+4*i)}, v223, {SQ(rWS)}, s{so} offen\nL_KT{i}:")
            a("s_branch L_KS3\nL_KQ:")
        for i, so in enumerate((sO+1, 5, 6, 7)):
            a(f"s_mov_b64 exec, {SP(KM[i])}\ns_cbranch_execz L_KS{i}\nbuffer_load_dwordx4 {Q(KP+4*i)}, v223, {SQ(rWS)}, s{so} offen sc1\nL_KS{i}:")
        a(f"""
        s_mov_b64 exec, -1
        s_waitcnt vmcnt(0)
        L_KPW:
        s_add_u32 s16, s16, 1
        v_xor_b32 v{TP}, s{sTX}, v{KP+3}
        v_xor_b32 v{TP+1}, s{sTX}, v{KP+7}
        v_xor_b32 v{TP+2}, s{sTX}, v{KP+11}
        v_xor_b32 v{TP+3}, s{sTX}, v{KP+15}
        v_cmp_lt_u32 s[30:31], 31, v{TP}
        v_cmp_lt_u32 s[8:9], 31, v{TP+1}
        v_cmp_lt_u32 s[14:15], 31, v{TP+2}
        v_cmp_lt_u32 s[28:29], 31, v{TP+3}
        v_or3_b32 v{TP}, v{TP}, v{TP+1}, v{TP+2}
        s_or_b64 vcc, s[30:31], s[8:9]
        s_or_b64 s[66:67], s[14:15], s[28:29]
        s_or_b64 vcc, vcc, s[66:67]
        s_cbranch_vccz L_KPOK
        s_cmp_lt_u32 s16, 0x4000
        s_cbranch_scc1 L_KP
        L_KPOK:
        v_or_b32 v{TP}, v{TP}, v{TP+3}
        v_cmp_ne_u32 vcc, 0, v{TP}
        s_and_b64 vcc, vcc, s[40:41]
        s_cselect_b32 s8, 1, {1 if self.opt.get("forcex") else 2}
        v_mov_b32 v{TP}, s8
        """)
        self.stamp(3)
        if "fp3" in self.opt: a(f"s_setprio {self.opt['fp3']}")
        def more(n):
            for _ in range(n):
                if gi[0] < 16: G()
                elif di[0] < self.opt.get("d1", 8): D(2)
        DF = self.opt.get("df", 1); vXI = TP+1
        def cap(n):
            k = len(a.lines); more(n); L = a.lines[k:]; del a.lines[k:]; return L
        if DF: a(f"ds_read_b32 v{vXI}, v{vL4} offset:{C_XI}")
        a(f"ds_write2st64_b64 v{T+3}, {P(KP)}, {P(KP+4)} offset0:{MSB//512} offset1:{MSB//512+4}\nds_write2st64_b64 v{T+3}, {P(KP+8)}, {P(KP+12)} offset0:{MSB//512+8} offset1:{MSB//512+12}")
        self.arrive(C_MS, vW4, TP)
        if not DF: more(self.opt.get("m0", 1))
        for k in range(4):
            a(f"v_lshl_or_b32 v{CR+2*k}, v{KP+4*k+2}, 16, v{CR+2*k}\nv_and_or_b32 v{CR+1+2*k}, v{KP+4*k+2}, s17, v{CR+1+2*k}")
        if DF:
            B0 = cap(self.opt.get("m0", 1)); B1 = cap(self.opt.get("m1", 2))
            a(f"s_waitcnt lgkmcnt(3)\nv_cmp_eq_u32 s[66:67], 0, v{vXI}\ns_cmp_lg_u32 s66, 0\ns_cbranch_scc1 L_NB0")
            a.lines += B0
            a("L_NB0:")
        B = T+2
        a(f"v_max_u32 v{B}, v{CR}, v{CR+1}\nv_min_u32 v{B+1}, v{CR}, v{CR+1}\nv_max_u32 v{B+2}, v{CR+4}, v{CR+5}\nv_min_u32 v{B+3}, v{CR+4}, v{CR+5}")
        for j in (2, 3):
            a(f"v_med3_u32 v{B+1}, v{B}, v{B+1}, v{CR+j}\nv_med3_u32 v{B+3}, v{B+2}, v{B+3}, v{CR+j+4}\nv_max_u32 v{B}, v{B}, v{CR+j}\nv_max_u32 v{B+2}, v{B+2}, v{CR+j+4}")
        a(f"""
        v_min_u32 v{B+4}, v{B}, v{B+2}
        v_max_u32 v{B}, v{B}, v{B+2}
        v_max3_u32 v{B+1}, v{B+1}, v{B+3}, v{B+4}
        ds_write_b32 v14, v{B} offset:{LMC}
        """)
        if DF: a(f"ds_read_b32 v{vXI}, v{vL4} offset:{C_XI}")
        mid = [f"v_add_u32 v15, {KEYS}, v15", f"ds_write2_b32 v15, v{KP+2}, v{KP+6} offset0:0 offset1:1", f"ds_write2_b32 v15, v{KP+10}, v{KP+14} offset0:2 offset1:3", "s_nop 0"]
        for i, sh in enumerate((1,2,4,8)):
            a(mid[i])
            a(f"v_max_u32_dpp v{B}, v{B}, v{B} row_shr:{sh} row_mask:0xf bank_mask:0xf\nv_max_u32_dpp v{B+1}, v{B+1}, v{B+1} row_shr:{sh} row_mask:0xf bank_mask:0xf")
        a(f"""
        s_mov_b32 exec_lo, 0x80008000
        s_mov_b32 exec_hi, 0x80008000
        ds_write2_b32 v{T+1}, v{B}, v{B+1} offset0:{GM//4} offset1:{GM//4+16}
        """)
        self.arrive(C_KEYS, vW4, TP)
        self.xst(8, 12)
        if not DF: more(self.opt.get("m1", 2))
        else:
            a(f"s_waitcnt lgkmcnt(4)\nv_cmp_eq_u32 vcc, 0, v{vXI}\ns_mov_b32 s67, vcc_lo\ns_cbranch_vccnz L_NB1\ns_cmp_eq_u32 s66, 0\ns_cbranch_scc1 L_NB2")
            a.lines += B0
            a("L_NB2:")
            a.lines += B1
            a("L_NB1:")
        self.xst(8, 13)
        self.wait_flag(C_KEYS, vL4, T+1)
        a(f"v_cmp_ne_u32 s[12:13], 2, v{T+1}")
        self.stamp(6)
        def rank16(own, four, r, c):
            a(f"v_cmp_gt_u32 vcc, v{four}, v{own}\nv_cmp_gt_u32 s[8:9], v{four+1}, v{own}\nv_cmp_gt_u32 s[14:15], v{four+2}, v{own}\nv_cmp_gt_u32 s[28:29], v{four+3}, v{own}")
            a(f"v_cndmask_b32 v{r}, 0, 1, vcc\nv_cndmask_b32 v{c}, 0, 1, s[8:9]\nv_addc_co_u32 v{r}, vcc, 0, v{r}, s[14:15]\nv_addc_co_u32 v{r}, vcc, v{c}, v{r}, s[28:29]")
            a(f"v_mov_b32 v{c}, v{r}\nv_permlane32_swap_b32 v{r}, v{c}\nv_add_u32 v{r}, v{r}, v{c}\nv_mov_b32 v{c}, v{r}\nv_permlane16_swap_b32 v{r}, v{c}\nv_add_u32 v{r}, v{r}, v{c}")
        a(f"""
        ds_read2_b32 {P(T+2)}, v10 offset0:{GM//4} offset1:{GM//4+16}
        ds_read_b128 {Q(T+4)}, v11 offset:{GM}
        ds_read_b128 {Q(E)}, v{T} offset:{LMC}
        s_waitcnt lgkmcnt(1)
        """)
        rank16(T+2, T+4, T+12, T+13)
        a(f"""
        v_cmp_eq_u32 vcc, 7, v{T+12}
        s_ff1_i32_b32 s5, vcc_lo
        v_readlane_b32 s4, v{T+2}, s5
        s_waitcnt lgkmcnt(0)
        v_cmp_le_u32 vcc, s4, v{T+3}
        {"s_branch" if self.opt.get("forceslow") else "s_cbranch_vccnz"} L_SLOWT
        L_CAND:
        v_cmp_le_u32 s[8:9], s4, v{E}
        v_cmp_le_u32 s[14:15], s4, v{E+1}
        v_cmp_le_u32 s[28:29], s4, v{E+2}
        v_cmp_le_u32 s[30:31], s4, v{E+3}
        s_bcnt1_i32_b64 s5, s[8:9]
        s_bcnt1_i32_b64 s6, s[14:15]
        s_bcnt1_i32_b64 s7, s[28:29]
        s_bcnt1_i32_b64 s16, s[30:31]
        s_add_u32 s6, s6, s5
        s_add_u32 s7, s7, s6
        s_add_u32 s16, s16, s7
        s_cmp_gt_u32 s16, 16
        s_cbranch_scc1 L_TRIM
        """)
        MK = (8, 14, 28, 30)
        for k, (mk, base) in enumerate(zip(MK, ("0", "s5", "s6", "s7"))):
            a(f"v_mbcnt_lo_u32_b32 v{T+12+k}, s{mk}, 0\nv_mbcnt_hi_u32_b32 v{T+12+k}, s{mk+1}, v{T+12+k}\nv_add_lshl_u32 v{T+12+k}, v{T+12+k}, {base}, 2")
            a(f"s_mov_b64 exec, {SP(mk)}\nds_write_b32 v{T+12+k}, v{E+k} offset:{LIST}\ns_mov_b64 exec, -1")
        self.xst(8, 14)
        if DF:
            a("s_cmp_eq_u32 s67, 0\ns_cbranch_scc1 L_NB3")
            a.lines += B0 + B1
            a("L_NB3:")
        while gi[0] < 16: G()
        self.xst(8, 15)
        a(f"""
        s_movk_i32 s4, 0x7ff
        ds_read_b32 v{TP}, v10 offset:{LIST}
        ds_read_b128 {Q(TP+4)}, v11 offset:{LIST}
        s_cmp_lg_u32 s{sROLE}, 1
        s_waitcnt lgkmcnt(1)
        v_bfi_b32 v14, v{TP}, 0, s4
        s_cbranch_scc1 L_NOXS
        v_lshl_add_u32 v15, v14, 11, v{vXO}
        """)
        vis("xs", f"buffer_load_dwordx4 {Q(XS)}, v15, {SQ(rX)}, 0 offen")
        vis("xs", f"buffer_load_dwordx4 {Q(XS+4)}, v15, {SQ(rX)}, 0 offen offset:64")
        a(f"""
        v_lshrrev_b32 v15, 1, v14
        v_lshlrev_b32 v15, 3, v15
        ds_read_b64 v[8:9], v15 offset:{MSB}
        """)
        self.stamp(7)
        PT = self.opt.get("pt", 0)
        def ptouch():
            a(f"""s_mul_i32 s8, s{sW}, 14
            v_add_lshl_u32 v223, v0, s8, 15
            s_lshl_b32 s8, s{sDG}, 7
            s_add_u32 s8, s8, {WS_PART}
            s_mov_b64 exec, 0x3fff""")
            vis("pt", f"buffer_load_dword v219, v223, {SQ(rWS)}, s8 offen {MOD[self.opt.get('ptm', 2)]}")
            a("s_mov_b64 exec, -1")
        if PT == 4: ptouch()
        D(self.opt.get("d2", 0) - di[0])
        if PT == 3: ptouch()
        a("L_NOXS:\ns_waitcnt lgkmcnt(0)")
        rank16(TP, TP+4, TP+8, TP+9)
        a(f"""
        v_cmp_gt_u32 s[30:31], 8, v{TP+8}
        v_lshlrev_b32 v15, 2, v{TP+8}
        v_and_b32 v10, 7, v0
        v_lshlrev_b32 v10, 2, v10
        v_bfe_u32 v{TP+4}, v14, 1, 8
        v_lshrrev_b32 v{TP+5}, 9, v14
        v_lshlrev_b32 v{TP+4}, 3, v{TP+4}
        v_lshl_add_u32 v{TP+4}, v{TP+5}, 1, v{TP+4}
        v_and_b32 v14, 1, v14
        v_add_u32 v{TP+4}, v{TP+4}, v14
        v_mov_b32 v{TP+6}, 0x80
        s_mov_b64 exec, s[30:31]
        ds_write_b32 v15, v{TP} offset:{IDX}
        s_cmp_lg_u32 s{sW}, 0
        s_cbranch_scc1 L_NOSEL
        ds_write_b8 v{TP+4}, v{TP+6} offset:{SELF}
        s_cmp_lg_u32 s2, 255
        s_cbranch_scc1 L_NOSEL
        s_mov_b64 exec, 1
        v_mov_b32 v{TP+6}, s{sTAG}
        buffer_store_dword v{TP+6}, v{vW4}, {SQ(rWS)}, 0 offen sc1
        L_NOSEL:
        s_mov_b64 exec, -1
        ds_read_b32 v{vE}, v10 offset:{IDX}
        """)
        self.arrive(C_SEL, vW4, vONE)
        self.xst(11, 12)
        gX = 246; gY = 247; gL = 220; gA = 221; gO = 223; gS = 254; TV = 248; TS = 34; g = 224; EA = self.opt.get("ea", 1)
        a(f"""
        s_movk_i32 s4, 0x7ff
        v_lshrrev_b32 v{gA}, 3, v0
        s_lshl_b32 s8, s{sW}, 3
        v_add_lshl_u32 v{gA}, v{gA}, s8, 15
        v_and_b32 v{g+1}, 7, v0
        v_lshlrev_b32 v{g+1}, 4, v{g+1}
        v_add_u32 v{gA}, v{gA}, v{g+1}
        v_bfe_u32 v{g+2}, v0, 3, 2
        v_bfrev_b32 v{gL}, v{g+2}
        v_lshrrev_b32 v{gL}, 22, v{gL}
        v_add_u32 v{gL}, v{gL}, v{g+1}
        v_lshrrev_b32 v{gL}, 2, v{gL}
        s_lshl_b32 s8, s{sDG}, 3
        s_mov_b32 s32, 0
        s_waitcnt lgkmcnt(1)
        v_bfi_b32 v{g}, v{vE}, 0, s4
        v_lshlrev_b32 v{gO}, 11, v{g}
        v_lshl_add_u32 v{gO}, v{g+2}, 1, v{gO}
        v_add_u32 v{gO}, s8, v{gO}
        """)
        vis("xu", f"buffer_load_ushort v{gX}, v{gO}, {SQ(rX)}, 0 offen")
        a(f"""
        v_lshlrev_b32 v{gY}, 13, v{g+2}
        v_lshl_add_u32 v{gY}, v{g}, 2, v{gY}
        v_lshrrev_b32 v{g+1}, 1, v{g}
        v_and_b32 v{g+1}, 0x30, v{g+1}
        v_xor_b32 v{gY}, v{gY}, v{g+1}
        v_add_u32 v{gY}, {YB}, v{gY}
        """)
        self.wait_flag(C_SEL, vL4, g)
        self.tsetup(0, PRE, 4096, TV, TS)
        a(f"""
        v_lshrrev_b32 v{gS}, 16, v{vE}
        v_bfe_i32 v{g}, v{gS}, 15, 1
        v_not_b32 v{g}, v{g}
        v_or_b32 v{g}, 0x8000, v{g}
        v_xor_b32 v{gS}, v{gS}, v{g}
        v_lshlrev_b32 v{gS}, 16, v{gS}
        v_mul_f32 v{gS}, {LOG2E|0x80000000:#x}, v{gS}
        v_exp_f32 v{gS}, v{gS}
        v_mov_b32 v{TV+5}, s{sTX}
        v_add_f32 v{gS}, 1.0, v{gS}
        v_rcp_f32 v{gS}, v{gS}
        s_cmp_lg_u32 s{sROLE}, 1
        s_cbranch_scc1 L_GATHER
        v_lshl_add_u32 v{vPW}, v{TP+8}, 4, v{vPW}
        v_lshlrev_b32 v14, 4, v14
        """)
        HQ = 216; R = 224; BL = 240; BH = 242; t = 244; PQ = 48; DA = 16; HP = 144
        a(f"""
        v_lshlrev_b32 v13, 4, v0
        s_lshl_b32 s4, s{sSG}, 14
        s_add_u32 s4, s4, {WS_H1}
        s_lshl_b32 s6, s{sW}, 12
        s_add_u32 s6, s6, s4
        s_lshl_b32 s5, s{sK}, 10
        s_add_u32 s5, s5, s6
        v_mov_b32 v{HQ+2}, s{sTAG}
        """)
        NMF = 240
        a(f"""v_lshrrev_b32 v{vRS}, v14, v9
        v_lshrrev_b32 v{vNM}, v14, v8
        v_lshlrev_b32 v{vRS}, 16, v{vRS}
        v_xor_b32 v{vNM}, 0x8000, v{vNM}
        v_rcp_f32 v{vRS}, v{vRS}""")
        for i in range(4): a(f"v_perm_b32 v{NMF+i}, v{vNM}, v{vNM}, s64")
        if "fprio" in self.opt: a(f"s_setprio {self.opt['fprio']}")
        self.xst(11, 13)
        D(self.opt.get("da", 8))
        perm0()
        D(self.opt.get("db", 0))
        self.xst(11, 14)
        M0 = lambda s_: [f"{MFMA} {Q(ACC+4*c)}, {Q(GUF+32*s_+4*c)}, {Q(NMF)}, {'0' if s_==0 else Q(ACC+4*c)}" for c in range(8)]
        vfor("g15")
        self.xst(11, 15)
        pm = perms(GUR+32, GUF+32, 4, 4)
        for l in interleave(M0(0), pm, per=4): a(l)
        self.stamp(8)
        for l in M0(1): a(l)
        vfor("xs")
        self.stamp(9)
        for s_ in range(2):
            for c in range(8):
                a(f"{MFMA} {Q(ACC+4*c)}, {Q(GUF+32*s_+4*c)}, {Q(XS+4*s_)}, {Q(ACC+4*c)}")
                if di[0] < self.opt.get("d3", 16) and s_ == 0: D()
        self.xst(5, 12)
        a("s_mov_b64 exec, s[30:31]")
        for c in range(8): a(f"ds_write_b128 v{vPW}, {Q(ACC+4*c)} offset:{512*c}")
        a(f"ds_write_b32 v15, v{vRS} offset:{RSV}")
        self.arrive(C_PRE, vW4, vONE)
        a(f"ds_read_b32 v{vRS}, v10 offset:{RSV}")
        self.xst(5, 13)
        self.wait_flag(C_PRE, vL4, 11)
        self.xst(5, 14)
        for k in range(4):
            for mat in range(2): a(f"ds_read_b64 {P(R+4*k+2*mat)}, v{vPR} offset:{4096*k+256*mat}")
        a("s_waitcnt lgkmcnt(4)")
        for i in range(4): a(f"v_add_f32 v{R+i}, v{R+i}, v{R+4+i}")
        a("s_waitcnt lgkmcnt(0)")
        for i in range(4): a(f"v_add_f32 v{R+8+i}, v{R+8+i}, v{R+12+i}")
        for i in range(4): a(f"v_add_f32 v{R+i}, v{R+i}, v{R+8+i}")
        a(f"""
        s_cmp_eq_u32 s12, 0
        v_cvt_pk_bf16_f32 v{HQ}, v{R}, v{R+1}
        v_cvt_pk_bf16_f32 v{HQ+1}, v{R+2}, v{R+3}
        """)
        vis("hq", f"s_cbranch_scc0 L_HSC\nbuffer_store_dwordx4 {Q(HQ)}, v13, {SQ(rWS)}, s5 offen\nL_HSB:", 0)
        self.stamp(10)
        if PT == 2: ptouch()
        D(16)
        a(f"""
        v_bfe_u32 v10, v0, 3, 1
        v_lshrrev_b32 v11, 4, v0
        v_cmp_ne_u32 s[22:23], 0, v10
        v_lshlrev_b32 v15, 2, v10
        v_lshl_add_u32 v15, v11, 3, v15
        v_lshlrev_b32 v10, 8, v10
        v_lshl_add_u32 v10, v11, 9, v10
        v_lshlrev_b32 v9, 4, v11
        v_and_b32 v11, 7, v0
        v_lshl_add_u32 v10, v11, 4, v10
        s_movk_i32 s5, 144
        v_mad_u32_u24 v15, v11, s5, v15
        v_mad_u32_u24 v9, v11, s5, v9
        s_lshl_b32 s5, s{sW}, 5
        v_add_u32 v15, s5, v15
        s_lshl_b32 s4, s{sSG}, 15
        s_lshl_b32 s5, s{sK}, 13
        s_add_u32 s4, s4, s5
        s_lshl_b32 s5, s{sW}, 11
        s_add_u32 s4, s4, s5
        s_add_u32 s4, s4, {WS_PART}
        v_mul_f32 v12, {LOG2E|0x80000000:#x}, v{vRS}
        v_mul_f32 v14, v{vRS}, v{vRS}
        v_mov_b32 v{PQ+2}, s{sTAG}
        v_mov_b32 v{PQ+6}, s{sTAG}
        """)
        hpl = [f"buffer_load_dwordx3 v[{HP+4*k}:{HP+4*k+2}], v13, {SQ(rWS)}, s6 offen offset:{1024*k} sc1" for k in range(4)]
        a("s_mov_b32 s16, 0")
        vfor("d7")
        self.xst(1, 12)
        for l in perms(WDR, WDF, 2, 4): a(l)
        if self.opt.get("hw0", 0): vfor("hq")
        for l in hpl: vis("hp", l)
        if PT == 1: ptouch()
        vfor("d15")
        self.xst(1, 13)
        for l in perms(WDR+16, WDF+16, 2, 4): a(l)
        if self.opt.get("xst") == 1: a("s_waitcnt vmcnt(0)")
        self.xst(1, 14)
        a("s_branch L_HPW\nL_HP:")
        a(f"s_sleep {self.opt.get('hsl', 3)}")
        for k, mk in enumerate((18, 8, 14, 28)):
            a(f"s_cmp_eq_u64 {SP(mk)}, 0\ns_cbranch_scc1 L_HS{k}\n{hpl[k]}\nL_HS{k}:")
        a(f"""
        L_HPW:
        s_add_u32 s16, s16, 1
        s_waitcnt vmcnt(0)
        v_cmp_ne_u32 s[18:19], s{sTAG}, v{HP+2}
        v_cmp_ne_u32 s[8:9], s{sTAG}, v{HP+6}
        v_cmp_ne_u32 s[14:15], s{sTAG}, v{HP+10}
        v_cmp_ne_u32 s[28:29], s{sTAG}, v{HP+14}
        s_or_b64 vcc, s[18:19], s[8:9]
        s_or_b64 s[20:21], s[14:15], s[28:29]
        s_or_b64 vcc, vcc, s[20:21]
        s_cbranch_vccz L_HOK
        s_cmp_lt_u32 s16, 0x4000
        s_cbranch_scc1 L_HP
        L_HOK:
        """)
        self.stamp(11)
        eal = f"s_mov_b32 exec_hi, 0\nbuffer_load_dword v{TV+5}, v{TV+7}, {SQ(rWS)}, s{TS+4} offen sc1\ns_mov_b32 exec_hi, -1"
        if EA == 1: a(eal)
        for k in range(4): self.unpack(R+2*k, R+2*k+1, HP+4*k)
        for i in range(2): a(f"v_add_f32 v{R+i}, v{R+i}, v{R+2+i}\nv_add_f32 v{R+4+i}, v{R+4+i}, v{R+6+i}")
        for i in range(2): a(f"v_add_f32 v{R+i}, v{R+i}, v{R+4+i}")
        for i in range(2): a(f"v_mul_f32 v{t+i}, v12, v{R+i}")
        for i in range(2): a(f"v_exp_f32 v{t+i}, v{t+i}")
        for k in range(4): self.unpack(R+8+2*k, R+8+2*k+1, HP+4*k+1)
        for i in range(2): a(f"v_add_f32 v{t+i}, 1.0, v{t+i}")
        for i in range(2): a(f"v_rcp_f32 v{t+i}, v{t+i}")
        for i in range(2): a(f"v_add_f32 v{R+8+i}, v{R+8+i}, v{R+10+i}\nv_add_f32 v{R+12+i}, v{R+12+i}, v{R+14+i}")
        for i in range(2): a(f"v_mul_f32 v{R+i}, v{R+i}, v14\nv_add_f32 v{R+8+i}, v{R+8+i}, v{R+12+i}")
        for i in range(2): a(f"v_mul_f32 v{R+i}, v{R+i}, v{t+i}")
        for i in range(2): a(f"v_mul_f32 v{R+i}, v{R+i}, v{R+8+i}")
        a(f"""
        v_cvt_pk_bf16_f32 v{t}, v{R}, v{R+1}
        ds_write_b32 v15, v{t} offset:{HB}
        """)
        self.arrive(C_H, vW4, vONE)
        if EA == 2: a(eal)
        self.xst(6, 12)
        self.wait_flag(C_H, vL4, 11)
        self.xst(6, 13)
        a(f"ds_read_b128 {Q(R)}, v9 offset:{HB}\nds_read_b128 {Q(R+4)}, v9 offset:{HB+64}")
        for ks in range(2):
            a(f"s_waitcnt lgkmcnt({1-ks})")
            for c in range(4): a(f"{MFMA} {Q(DA+4*c)}, {Q(WDF+16*ks+4*c)}, {Q(R+4*ks)}, {'0' if ks == 0 else Q(DA+4*c)}")
        self.xst(6, 14)
        if EA:
            a(f"s_waitcnt vmcnt(0)\nv_cmp_ne_u32 vcc, s{sTX}, v{TV+5}\ns_or_b64 vcc, vcc, s[12:13]\ns_cbranch_vccnz L_EAN\ns_mov_b32 s32, 1")
            self.tload(TV, TS, 96)
            a("L_EAN:")
        for r in range(2):
            for c in range(4): a(f"v_cndmask_b32 v{DA+4*c+r}, v{DA+4*c+r}, v{DA+4*c+r+2}, s[22:23]")
            a(f"v_cvt_pk_bf16_f32 v{PQ+4*r}, v{DA+r}, v{DA+4+r}\nv_cvt_pk_bf16_f32 v{PQ+4*r+1}, v{DA+8+r}, v{DA+12+r}")
            a(f"buffer_store_dwordx4 {Q(PQ+4*r)}, v10, {SQ(rWS)}, s4 offen offset:{128*r} {MOD[self.opt.get('psm', 2)]}")
        self.stamp(12); self.xst(6, 15)
        GP = 144; U = 176; F = 80; TW = self.opt.get("tw", 2)
        NT = self.opt.get("not01", 0)
        if EA:
            a(f"s_cmp_eq_u32 s32, 0\ns_cbranch_scc1 L_GATHER")
            self.xst(10, 12); self.xst(10, 13); self.xst(10, 14)
            a(f"s_waitcnt vmcnt(2)")
            self.tstore(TV, TS, 96, novm=1)
            a("s_branch L_AFT")
        a(f"L_GATHER:\ns_cmp_lg_u32 s12, 0\ns_cbranch_scc1 L_AFT")
        self.xst(10, 12)
        a(f"s_setprio {self.opt.get('tprio', 0)}")
        self.wait_flag(C_Y2, vL4, F+1, sleep=2)
        self.tpoll(TV, TS, f"s{sTX}", self.opt.get("fsl", 3))
        self.xst(10, 13)
        self.tload(TV, TS, 96)
        if self.opt.get("xst") == 10: a("s_waitcnt vmcnt(0)")
        self.xst(10, 14)
        self.tstore(TV, TS, 96)
        a("L_AFT:\ns_setprio 0")
        self.xst(7, 12); self.xst(10, 15)
        a(f"""s_lshl_b32 s4, s{sDG}, 7
        s_add_u32 s4, s4, {WS_PART}
        s_mov_b32 s11, 0
        s_lshl_b32 s8, s{sW}, 8
        v_lshl_add_u32 v{F+5}, v0, 2, s8""")
        self.wait_flag([C_TL, C_Y3, C_Y2][self.opt.get("gate", 0)], vL4 if self.opt.get("tla", 1) else vW4, F+1, sleep=1)
        a("s_setprio 2\nL_GGO:")
        self.stamp(13); self.xst(3, 12)
        a(f"""
        s_mov_b64 s[8:9], -1
        s_cmp_lt_u32 s{sW}, 3
        s_cselect_b64 s[12:13], -1, 0
        s_add_u32 s5, s4, 0x100000
        v_mov_b32 v{GP+4}, 0
        v_mov_b32 v{GP+5}, 0
        v_mov_b32 v{GP+6}, s{sTAG}
        {"s_waitcnt vmcnt(0)" if self.opt.get("gw", 0) else ""}
        """)
        self.xst(3, 13)
        if self.opt.get("gd"): a(f"s_sleep {self.opt['gd']}")
        a("L_GP:")
        for k, mk in enumerate((8, 12)):
            if self.opt.get("gm", 1): a(f"s_mov_b64 exec, {SP(mk)}\ns_cbranch_execz L_GS{k}\nbuffer_load_dwordx3 v[{GP+4*k}:{GP+4*k+2}], v{gA}, {SQ(rWS)}, s{4+k} offen {MOD[self.opt.get('gpm', 2)]}\nL_GS{k}:")
            else: a(f"s_cmp_eq_u64 {SP(mk)}, 0\ns_cbranch_scc1 L_GS{k}\nbuffer_load_dwordx3 v[{GP+4*k}:{GP+4*k+2}], v{gA}, {SQ(rWS)}, s{4+k} offen {MOD[self.opt.get('gpm', 2)]}\nL_GS{k}:")
        a(f"""
        s_mov_b64 exec, -1
        s_add_u32 s11, s11, 1
        s_waitcnt vmcnt(0)
        v_cmp_ne_u32 s[8:9], s{sTAG}, v{GP+2}
        v_cmp_ne_u32 s[12:13], s{sTAG}, v{GP+6}
        s_or_b64 vcc, s[8:9], s[12:13]
        s_cbranch_vccz L_GOT
        s_sleep {self.opt.get("gsl", 2)}
        s_cmp_lt_u32 s11, 0x4000
        s_cbranch_scc1 L_GP
        L_GOT:
        """)
        self.stamp(14); self.xst(2, 12)
        if self.opt.get("xst") == 3: a(f"s_mov_b32 s{sST+2*15+1}, s{sST+1}\ns_mul_i32 s8, s11, 100\ns_add_u32 s{sST+2*15}, s{sST}, s8")
        self.xst(3, 14)
        for k in range(2):
            self.unpack(U+4*k, U+4*k+1, GP+4*k); self.unpack(U+4*k+2, U+4*k+3, GP+4*k+1)
        for i in range(4): a(f"v_add_f32 v{U+i}, v{U+i}, v{U+4+i}")
        a(f"""v_permlane32_swap_b32 v{U}, v{U+1}
        v_permlane32_swap_b32 v{U+2}, v{U+3}
        v_add_f32 v{U}, v{U}, v{U+1}
        v_add_f32 v{U+2}, v{U+2}, v{U+3}
        v_permlane16_swap_b32 v{U}, v{U+2}
        v_add_f32 v{U}, v{U}, v{U+2}
        v_add_f32_dpp v{U}, v{U}, v{U} row_ror:8 row_mask:0xf bank_mask:0xf
        ds_write_b32 v{F+5}, v{U} offset:{LMC}""")
        self.arrive(C_UPD, vW4, vONE)
        self.xst(2, 13); self.xst(4, 12)
        if self.opt.get("dq", 3) < 4 and not self.opt.get("ct"): a(f"s_cmp_ge_u32 s{sW}, {self.opt.get('dq', 3)}\ns_cbranch_scc1 L_FIN")
        if not self.opt.get("ct"): a(f"s_lshl_b32 s8, s{sLOC}, 2\ns_add_u32 s8, s{sW}, s8\ns_cmp_ge_u32 s8, {8+TW}\ns_cbranch_scc1 L_TILE")
        a(f"s_cmp_lg_u32 s{sW}, 0\ns_cbranch_scc1 L_FIN")
        self.xst(4, 13)
        a(f"""
        v_lshlrev_b32 v{F}, 16, v{gX}
        L_FW:
        ds_read2_b32 {P(F+6)}, v{vL4} offset0:{C_Y3//4} offset1:{C_UPD//4}
        ds_read_b32 v{F+9}, v{gY}
        ds_read2st64_b32 {P(F+10)}, v{gL} offset0:{LMC//256} offset1:{LMC//256+1}
        ds_read2st64_b32 {P(F+12)}, v{gL} offset0:{LMC//256+2} offset1:{LMC//256+3}
        s_waitcnt lgkmcnt(3)
        v_min_u32 v{F+6}, v{F+6}, v{F+7}
        v_cmp_eq_u32 vcc, 0, v{F+6}
        s_cbranch_vccnz L_FW
        s_waitcnt lgkmcnt(1)
        v_add_f32 v{F}, v{F}, v{F+9}
        v_add_f32 v{F+10}, v{F+10}, v{F+11}
        s_waitcnt lgkmcnt(0)
        v_add_f32 v{F+12}, v{F+12}, v{F+13}
        v_add_f32 v{F+10}, v{F+10}, v{F+12}
        v_fma_f32 v{F}, v{F+10}, v{gS}, v{F}
        v_cvt_pk_bf16_f32 v{F}, v{F}, v{F}
        s_mov_b32 exec_hi, 0
        buffer_store_short v{F}, v{gO}, {SQ(rOUT)}, 0 offen
        s_mov_b64 exec, -1
        """)
        self.stamp(15)
        a("s_branch L_FIN")
        a(f"L_HSC:\nbuffer_store_dwordx4 {Q(HQ)}, v13, {SQ(rWS)}, s5 offen sc1\ns_branch L_HSB")
        a(f"""
        L_TRIM:
        v_subrev_u32 v{T+12}, s4, v{E}
        v_subrev_u32 v{T+13}, s4, v{E+1}
        v_subrev_u32 v{T+14}, s4, v{E+2}
        v_subrev_u32 v{T+15}, s4, v{E+3}
        v_min3_u32 v{T+12}, v{T+12}, v{T+13}, v{T+14}
        v_min_u32 v{T+12}, v{T+12}, v{T+15}
        """)
        for sh in ("row_shr:1 row_mask:0xf","row_shr:2 row_mask:0xf","row_shr:4 row_mask:0xf","row_shr:8 row_mask:0xf","row_bcast:15 row_mask:0xa","row_bcast:31 row_mask:0xc"):
            a(f"v_min_u32_dpp v{T+12}, v{T+12}, v{T+12} {sh} bank_mask:0xf")
        a(f"""
        v_readlane_b32 s5, v{T+12}, 63
        s_add_u32 s4, s4, s5
        s_add_u32 s4, s4, 1
        s_branch L_CAND
        L_SLOWT:
        v_max3_u32 v{T+4}, v{E}, v{E+1}, v{E+2}
        v_max_u32 v{T+4}, v{T+4}, v{E+3}
        s_mov_b32 s4, 0
        s_brev_b32 s5, 1
        L_BS:
        s_or_b32 s6, s4, s5
        v_cmp_le_u32 vcc, s6, v{T+4}
        s_lshr_b32 s5, s5, 1
        s_bcnt1_i32_b64 s7, vcc
        s_cmp_ge_u32 s7, 8
        s_cselect_b32 s4, s6, s4
        s_cmp_lg_u32 s7, 8
        s_cbranch_scc1 L_BS
        v_mbcnt_lo_u32_b32 v{T+5}, vcc_lo, 0
        v_mbcnt_hi_u32_b32 v{T+5}, vcc_hi, v{T+5}
        v_lshlrev_b32 v{T+5}, 2, v{T+5}
        s_mov_b64 exec, vcc
        ds_write_b32 v{T+5}, v0 offset:{LST2}
        s_mov_b64 exec, -1
        v_lshrrev_b32 v{T+6}, 3, v0
        v_lshlrev_b32 v{T+6}, 2, v{T+6}
        ds_read_b32 v{T+5}, v{T+6} offset:{LST2}
        s_waitcnt lgkmcnt(0)
        v_and_b32 v{T+6}, 7, v0
        v_lshl_add_u32 v{T+5}, v{T+5}, 3, v{T+6}
        v_lshlrev_b32 v{T+6}, 3, v{T+5}
        ds_read_b64 {P(T+2)}, v{T+6} offset:{KEYS}
        v_and_b32 v{T+6}, 1, v{T+5}
        v_and_b32 v{T+5}, -2, v{T+5}
        v_lshl_add_u32 v{T+5}, v{T+6}, 10, v{T+5}
        v_sub_u32 v{E}, 0xfff, v{T+5}
        v_sub_u32 v{E+1}, 0xffe, v{T+5}
        v_sub_u32 v{E+2}, 0xdff, v{T+5}
        v_sub_u32 v{E+3}, 0xdfe, v{T+5}
        s_mov_b32 s5, 0xffff0000
        s_waitcnt lgkmcnt(0)
        v_lshl_or_b32 v{E}, v{T+2}, 16, v{E}
        v_and_or_b32 v{E+1}, v{T+2}, s5, v{E+1}
        v_lshl_or_b32 v{E+2}, v{T+3}, 16, v{E+2}
        v_and_or_b32 v{E+3}, v{T+3}, s5, v{E+3}
        s_branch L_CAND
        """)

    def ftile(self):
        a = self.a; vL4 = 1; sLOC = 60; TW = self.opt.get("tw", 2)
        a(f"""
        s_cmp_lg_u32 s{sLOC}, 2
        s_cbranch_scc1 L_AFT
        s_cmp_ge_u32 s{sW}, {TW}
        s_cbranch_scc1 L_AFT
        """)
        TD = 16; TO = 32; A0 = 92
        a(f"""
        L_TILE:
        s_lshl_b32 s8, s{sW}, 4
        s_cmp_eq_u32 s{sW}, 0
        s_cselect_b32 s8, {C_Y0}, s8
        v_add_u32 v{A0}, s8, v{vL4}
        s_and_b32 s14, s2, 7
        s_lshr_b32 s15, s2, 3
        s_lshl_b32 s16, s14, 12
        s_lshl_b32 s8, s{sW}, 9
        s_add_u32 s16, s16, s8
        s_lshr_b32 s9, s15, 3
        s_lshl_b32 s9, s9, 7
        s_add_u32 s16, s16, s9
        s_add_u32 s16, s16, {WS_FL3}
        s_lshl_b32 s9, s15, 4
        s_add_u32 s8, s8, s9
        s_lshl_b32 s17, s14, 19
        s_lshl_b32 s9, s8, 3
        s_add_u32 s17, s17, s9
        s_add_u32 s17, s17, {WS_XT}
        s_lshl_b32 s18, s8, 11
        s_lshl_b32 s9, s14, 8
        s_add_u32 s18, s18, s9
        s_add_u32 s19, s18, 4096
        s_mul_i32 s9, s{sW}, 4352
        s_add_u32 s9, s9, {PRE}
        s_cmp_eq_u32 s{sW}, 3
        s_cselect_b32 s9, {MSB}, s9
        v_lshlrev_b32 v{A0+1}, 2, v0
        v_and_b32 v{A0+6}, 7, v0
        v_lshrrev_b32 v{A0+7}, 3, v0
        v_lshlrev_b32 v{A0+2}, 4, v{A0+6}
        v_lshl_add_u32 v{A0+2}, v{A0+7}, 14, v{A0+2}
        s_movk_i32 s8, 544
        v_lshl_add_u32 v{A0+3}, v{A0+7}, 3, s9
        v_mad_u32_u24 v{A0+3}, v{A0+6}, s8, v{A0+3}
        v_lshrrev_b32 v{A0+6}, 4, v0
        v_and_b32 v{A0+7}, 15, v0
        v_lshlrev_b32 v{A0+7}, 4, v{A0+7}
        s_movk_i32 s8, 1088
        v_mad_u32_u24 v{A0+4}, v{A0+6}, s8, v{A0+7}
        v_add_u32 v{A0+4}, s9, v{A0+4}
        v_lshl_add_u32 v{A0+5}, v{A0+6}, 13, v{A0+7}
        s_lshl_b32 s8, s15, 6
        s_lshl_b32 s9, s{sW}, 1
        s_add_u32 s8, s8, s9
        v_lshl_add_u32 v{A0+6}, v{A0+6}, 4, s8
        ds_read_u16 v{A0+8}, v{A0+6} offset:{SELF}
        ds_read_u16 v{A0+9}, v{A0+6} offset:{SELF+8}
        s_brev_b32 s8, 1
        s_mov_b32 s20, 0
        s_setprio 0
        """)
        self.wait_flag(0, A0, A0+7, sleep=2)
        a(f"""
        s_setprio 2
        v_lshlrev_b32 v{A0+10}, 24, v{A0+8}
        v_lshlrev_b32 v{A0+11}, 16, v{A0+8}
        v_lshlrev_b32 v{A0+12}, 24, v{A0+9}
        v_lshlrev_b32 v{A0+13}, 16, v{A0+9}
        """)
        for i in range(4): a(f"v_and_or_b32 v{A0+10+i}, v{A0+10+i}, s8, v{A0+5}")
        a(f"""
        s_mov_b32 exec_hi, 0
        L_TP:
        s_sleep {self.opt.get("tsl", 1)}
        buffer_load_dword v{A0+7}, v{A0+1}, {SQ(rWS)}, s16 offen sc1
        s_add_u32 s20, s20, 1
        s_waitcnt vmcnt(0)
        v_cmp_ne_u32 vcc, s{sTX}, v{A0+7}
        s_cbranch_vccz L_TOK
        s_cmp_lt_u32 s20, 0x4000
        s_cbranch_scc1 L_TP
        L_TOK:
        s_mov_b32 exec_hi, -1
        """)
        for j in range(4): a(f"buffer_load_dwordx4 {Q(TD+4*j)}, v{A0+2}, {SQ(rWS)}, s17 offen sc1\ns_add_u32 s17, s17, 0x20000")
        for j in range(4): a(f"s_waitcnt vmcnt({3-j})\nds_write_b64 v{A0+3}, {P(TD+4*j)} offset:{64*j}\nds_write_b64 v{A0+3}, {P(TD+4*j+2)} offset:{64*j+272}")
        for i in range(4): a(f"ds_read_b128 {Q(TO+4*i)}, v{A0+4} offset:{272*i}")
        for i in range(4): a(f"s_waitcnt lgkmcnt({3-i})\nbuffer_store_dwordx4 {Q(TO+4*i)}, v{A0+10+i}, {SQ(rOUT)}, s{18+i//2} offen offset:{2048*(i%2)} {'sc1' if self.opt.get('osc', 1) else ''}")
        if "wbw" in self.opt:
            a(f"s_lshl_b32 s8, s15, 2\ns_add_u32 s8, s8, s{sW}\ns_cmp_lg_u32 s8, {31*4+self.opt['wbw']}\ns_cbranch_scc1 L_NWB\nbuffer_wbl2 sc1\nL_NWB:")
        if self.stamps or self.opt.get("gamp") == 15:
            a(f"s_cmp_lt_u32 s{sW}, {TW}\ns_cbranch_scc1 L_AFT\ns_waitcnt vmcnt(0)")
            self.stamp(15)
        a(f"""
        s_cmp_ge_u32 s{sW}, {TW}
        s_cbranch_scc1 L_FIN
        """)
    def fin(self):
        a = self.a
        a("L_FIN:")
        if self.opt.get("wb"): a("s_waitcnt vmcnt(0)\nbuffer_wbl2 sc1\ns_waitcnt vmcnt(0)")
        if "gamp" in self.opt:
            k = self.opt["gamp"]; half = self.opt.get("gC", 0); mode = self.opt.get("gmode", 0)
            if "gw" in self.opt: a(f"s_cmp_eq_u32 s{sW}, {self.opt['gw']}\ns_cselect_b32 s{sST+2*k}, s{sST+2*k}, 0")
            if "grole" in self.opt: a(f"s_cmp_{'lt' if self.opt['grole'] else 'ge'}_u32 s2, 224\ns_cselect_b32 s{sST+2*k}, s{sST+2*k}, 0")
            a(f"""
            s_lshr_b32 s4, s{sW}, 2
            s_lshl_b32 s4, s4, 10
            s_lshl_b32 s5, s2, 2
            s_add_u32 s4, s4, s5
            s_and_b32 s5, s{sW}, 3
            s_add_u32 s4, s4, s5
            s_lshl_b32 s4, s4, 3
            s_add_u32 s4, s4, {WS_STAMP}
            v_mov_b32 v1, 0
            v_mov_b32 v4, s{sST}
            v_mov_b32 v5, s{sST+2*k}
            s_mov_b64 exec, 1
            buffer_store_dwordx2 v[4:5], v1, {SQ(rWS)}, s4 offen sc1
            s_mov_b64 exec, -1
            s_cmp_lg_u32 s2, 0
            s_cbranch_scc1 L_END
            s_cmp_lg_u32 s{sW}, 0
            s_cbranch_scc1 L_END
            L_GA1:
            s_memrealtime s[6:7]
            s_waitcnt lgkmcnt(0)
            s_sub_u32 s5, s6, s{sST}
            s_cmp_lt_u32 s5, 4000
            s_cbranch_scc1 L_GA1
            v_lshlrev_b32 v1, 3, v0
            s_mov_b32 s4, {WS_STAMP + half*8192}
            s_sub_u32 s8, s{sST}, 1000
            """)
            for i in range(16): a(f"buffer_load_dwordx2 {P(16+2*i)}, v1, {SQ(rWS)}, s4 offen sc1\ns_add_u32 s4, s4, 512")
            a("s_waitcnt vmcnt(0)\nv_mov_b32 v2, -1\nv_mov_b32 v3, 0\nv_mov_b32 v6, 0")
            for i in range(16):
                a(f"v_subrev_u32 v{16+2*i}, s8, v{16+2*i}\nv_min_u32 v2, v2, v{16+2*i}\nv_cmp_ne_u32 vcc, 0, v{17+2*i}\nv_subrev_u32 v{17+2*i}, s8, v{17+2*i}\nv_cndmask_b32 v{17+2*i}, 0, v{17+2*i}, vcc\nv_addc_co_u32 v6, vcc, 0, v6, vcc")
                a(f"v_max_u32 v3, v3, v{17+2*i}" if mode == 0 else f"v_add_u32 v3, v3, v{17+2*i}")
            op = "v_max_u32_dpp" if mode == 0 else "v_add_u32_dpp"
            for sh in ("row_shr:1 row_mask:0xf","row_shr:2 row_mask:0xf","row_shr:4 row_mask:0xf","row_shr:8 row_mask:0xf","row_bcast:15 row_mask:0xa","row_bcast:31 row_mask:0xc"):
                a(f"v_min_u32_dpp v2, v2, v2 {sh} bank_mask:0xf\n{op} v3, v3, v3 {sh} bank_mask:0xf\nv_add_u32_dpp v6, v6, v6 {sh} bank_mask:0xf")
            if mode == 1:
                a("v_cvt_f32_u32 v3, v3\nv_cvt_f32_u32 v6, v6\nv_rcp_f32 v6, v6\nv_mul_f32 v3, v3, v6\nv_cvt_u32_f32 v3, v3")
            a(f"""
            v_readlane_b32 s4, v3, 63
            v_readlane_b32 s5, v2, 63
            s_sub_u32 s4, s4, s5
            s_min_u32 s4, s4, 4000
            s_mul_i32 s4, s4, 10
            s_add_u32 s4, s4, 5000
            L_GA2:
            s_memrealtime s[6:7]
            s_waitcnt lgkmcnt(0)
            s_sub_u32 s5, s6, s{sST}
            s_cmp_lt_u32 s5, s4
            s_cbranch_scc1 L_GA2
            """)
        if "amp" in self.opt:
            k = self.opt["amp"]
            a(f"""
            s_cmp_lg_u32 s2, {self.opt.get('ampb', 0)}
            s_cbranch_scc1 L_END
            s_cmp_lg_u32 s{sW}, {self.opt.get('ampw', 0)}
            s_cbranch_scc1 L_END
            s_sub_u32 s4, s{sST+2*k}, s{sST}
            s_min_u32 s4, s4, 5000
            s_mul_i32 s4, s4, 10
            {"s_mov_b32 s4, %d" % self.opt["fix"] if "fix" in self.opt else ""}
            L_AMP:
            s_memrealtime s[6:7]
            s_waitcnt lgkmcnt(0)
            s_sub_u32 s5, s6, s{sST}
            s_cmp_lt_u32 s5, s4
            s_cbranch_scc1 L_AMP
            """)
        if self.stamps and (self.opt.get("kst") == 2 or self.opt.get("cst") == 2):
            a(f"s_cmp_lt_u32 s{sW}, 4\ns_cbranch_scc1 L_NKC")
            for i in (10, 11, 12, 13, 15, 14):
                a(f"s_sub_u32 s{sST+2*i}, s{sST+2*i}, s{sST+28}\ns_add_u32 s{sST+2*i}, s{sST+2*i}, s{sST}\ns_addc_u32 s{sST+2*i+1}, s{sST+1}, 0")
            a("L_NKC:")
        if self.stamps:
            a(f"s_lshl_b32 s4, s2, 3\ns_add_u32 s4, s4, s{sW}\ns_lshl_b32 s4, s4, 7\ns_add_u32 s4, s4, {WS_STAMP}\nv_mov_b32 v1, s4\ns_mov_b64 exec, 1")
            for i in range(8):
                for k in range(4): a(f"v_mov_b32 v{4+k}, s{sST+4*i+k}")
                a(f"buffer_store_dwordx4 v[4:7], v1, {SQ(rWS)}, 0 offen offset:{16*i}")
        a("L_END:\ns_endpgm")

    def build(self):
        if self.stamps:
            for i in range(2, 32, 2): self.a(f"s_mov_b64 {SP(sST+i)}, 0")
        self.prologue(); self.kgen(); self.cmain(); self.fmain(); self.fin()
        body = self.a.finalize()
        if not self.opt.get("noalign"): body = align_pass(body, KN)
        hdr = open("parallel_sum__ssm_conv_s4d__moe_arch_mod__prompt.s.ref").read().split("; Override launch")[0]
        out = hdr + f"; @launch grid=(256,1,1) block=(512,1,1) lds={LDS_END}\n"
        out += f'.amdgcn_target "amdgcn-amd-amdhsa--gfx950"\n.text\n.globl {KN}\n.p2align 8\n.type {KN},@function\n{KN}:\n'
        out += body
        out += f'''.section .rodata,"a"
.p2align 6
.amdhsa_kernel {KN}
  .amdhsa_next_free_vgpr 256
  .amdhsa_next_free_sgpr 102
  .amdhsa_accum_offset 256
  .amdhsa_group_segment_fixed_size 0
  .amdhsa_kernarg_size 120
  .amdhsa_user_sgpr_count 2
  .amdhsa_user_sgpr_kernarg_segment_ptr 1
  .amdhsa_system_sgpr_workgroup_id_x 1
  .amdhsa_float_denorm_mode_32 3
.end_amdhsa_kernel
'''
        return out

if __name__ == "__main__":
    out = sys.argv[1]
    stamps = "--stamps" in sys.argv
    opt = {}
    for x in sys.argv[2:]:
        if "=" in x:
            k, v = x.split("="); opt[k] = int(v, 0)
    open(out, "w").write(G(stamps, opt).build())
```

```python
import sys, struct
from asmlib import Asm, align_pass

KN = "parallel_sum__ssm_conv_s4d__moe_arch_mod__prompt_kernel"
def f2u(x): return struct.unpack("<I", struct.pack("<f", x))[0]
LOG2E = f2u(1.4426950408889634); INV2PI = f2u(0.15915494309189535)

LIST = 192; IDX = 256; RSV = 288; LST2 = 320; GM = 384; CNTR = 512; CNT2 = 516; CNT3 = 520; CNT4 = 524; C_MS = 528; C_XI = 544; C_TL = 560; STG = 576; HB = 4096; UPD = 1024; SELF = 1152; KEYS = 4096; LMC = 8192
TROW = 544
MSB = 9216
VT0 = MSB + 8192; VSTR = 16*TROW
K0 = VT0 + 4*VSTR
KSTR = 2368; K3O = 4*KSTR; K2O = K3O + 1280; KREG = 32*TROW
XR0 = K0 + 4*KREG; XSTR = 4608
YB = VT0; PRE = XR0 + 4*XSTR
LDS_END = PRE + 16384
UOF = 65535 - KREG - 63 & ~63
assert K0 - UOF + 3*KREG < 65536
C_XR, C_Y1, C_Y2, C_Y3, C_KEYS, C_PRE, C_UPD, C_SEL, C_XS, C_Y0, C_KD, C_H = [16*i for i in range(12)]
WS_ALIVE = 0x800
WS_STAT = 0x780000
WS_H1 = 0x10000
WS_PART = 0x100000
WS_XT = 0x300000
WS_FL3 = 0xF0000
WS_FL2 = 0x700000
WS_STAMP = 0x800000
WS_SIZE = 0x1000000

sX, sLAR, sAI, sCR, sCI, sLDT, sDSK = 16, 18, 20, 22, 24, 26, 28
sWR, sWGT, sWU, sWD = 32, 34, 36, 38
sOUT, sWS = 40, 42
rWS, rX, rOUT = 44, 48, 52
sTAG = 56; sTX = 63; sW = 3; sDG = 57; sJ = 59
sO = 60
sSH = 12
sROLE = 69
sST = 70
rG, rU, rD = 16, 20, 24

def P(r): return f"v[{r}:{r+1}]"
def Q(r): return f"v[{r}:{r+3}]"
def SP(r): return f"s[{r}:{r+1}]"
def SQ(r): return f"s[{r}:{r+3}]"
MOD = ["", "sc0", "sc1", "sc0 sc1", "nt", "sc0 nt", "sc1 nt", "sc0 sc1 nt"]
MFMA = "v_mfma_f32_16x16x32_bf16"

def interleave(main, fill, per=1, start=0):
    out = []; fill = list(fill)
    for k, m in enumerate(main):
        out.append(m)
        if k >= start:
            for _ in range(per):
                if fill: out.append(fill.pop(0))
    return out + fill

class RM(int):
    def __new__(c, L): o = int.__new__(c, L[0]); o.L = L; return o
    def __add__(o, i): return o.L[i]
class G:
    def __init__(self, stamps=False, opt=None):
        self.a = Asm(); self.stamps = stamps; self.opt = dict(dq=4, xf=0, wn=4, np=5, ga=0, wx=1, m0=4, m1=4, sm=0, xe=6, xpr=1, ct=3, gw=0, tla=1, pw=0)
        if (opt or {}).get('v13', 1): self.opt.update(kb=1, k3a=26, k3b=33, x0=0, x1=8, x2=16, x3=24, kd0=4, kd1=5, kd2=5, kd3=5, lat=6, fd=4, kdd=5, n3e=1, b0=2, b1=130, bm=8, tq=165, x4=37, kd4=9, x5=48, kd5=6, ke5=1, tg0=150, dmin=16, tp=130, sg0=130, flg=197, fag=182, pz=3, pzm=0, ag=0)
        self.opt.update(opt or {})
        self.tpos = [v for k, v in self.opt.items() if k in ("tg","tu","td","tga","tgb","tua","tub","tda","tdb")]
        self.NX0 = self.opt.get("nx0", 2); self.NX1 = self.opt.get("nx1", 1); self.NX2 = self.opt.get("nx2", 1)
        self.NB0 = self.opt.get('nb0', 2)
        self.GARB = 229 if self.opt.get('kb') else 255
        self.TVM = RM([35, 236, 237, 238, 239, 172, 173, 174]); self.SB = 36 if self.opt.get('kb') else 16
        self.NXA = self.NX0 + self.NX1 + self.NX2
    def hook(self, p):
        for name, reg, ad, base in (("tg", 18, 17, sWGT), ("tu", 19, 17, sWU), ("td", 16, 15, sWD)):
            for h, ex in (("", None), ("a", "hi"), ("b", "lo")):
                if self.opt.get(name+h, -9) == p:
                    if ex: self.a(f"s_mov_b32 exec_{ex}, 0")
                    self.a(f"global_load_dword v{reg}, v{ad}, {SP(base)}")
                    if ex: self.a(f"s_mov_b32 exec_{ex}, -1")
    def est(self, i):
        if self.opt.get("est"): self.a(f"s_memrealtime {SP(sST+2*i)}")
    def xst(self, g, i):
        if self.stamps and self.opt.get("xst") == g: self.a(f"s_memrealtime {SP(sST+2*i)}\ns_waitcnt lgkmcnt(0)")
    def stamp(self, i):
        if self.opt.get("xst") and i >= 12: return
        if self.opt.get("est") and i >= 6 and i < 14: return
        if self.stamps or self.opt.get("amp") == i or self.opt.get("gamp") == i:
            self.a(f"s_memrealtime {SP(sST+2*i)}\ns_waitcnt lgkmcnt(0)")
    def kst(self, i):
        if self.opt.get("kst"): self.a(f"{'s_memtime' if self.opt['kst'] == 2 else 's_memrealtime'} {SP(sST+2*i)}")
    def cst(self, i):
        if self.opt.get("cst"): self.a(f"{'s_memtime' if self.opt['cst'] == 2 else 's_memrealtime'} {SP(sST+2*i)}")
    def unp(self, lo, hi, src):
        return [f"v_lshlrev_b32 v{lo}, 16, v{src}", f"v_and_b32 v{hi}, 0xffff0000, v{src}"]
    def unpack(self, lo, hi, src):
        for l in self.unp(lo, hi, src): self.a(l)
    def bf16r(self, dst, src):
        self.a(f"v_cvt_pk_bf16_f32 v{dst}, v{src}, v{src}\nv_and_b32 v{dst}, 0xffff0000, v{dst}")
    def cmul2(self, d, x, y, t):
        a = self.a
        for q in (0,2): a(f"v_pk_mul_f32 {P(t+q)}, {P(x+q)}, {P(y+q)} op_sel_hi:[1,0]")
        for q in (0,2): a(f"v_pk_fma_f32 {P(d+q)}, {P(x+q)}, {P(y+q)}, {P(t+q)} op_sel:[1,1,0] op_sel_hi:[0,1,1] neg_lo:[1,0,0]")
    def arr(self, off, vw4, vone):
        return ["s_mov_b64 exec, 1", f"ds_write_b32 v{vw4}, v{vone} offset:{off}", "s_mov_b64 exec, -1"]
    def arrive(self, off, vw4, vone):
        for l in self.arr(off, vw4, vone): self.a(l)
    def wait_flag(self, off, vl4, vt, sleep=0):
        L = self.a.label("LW")
        sl = f"s_sleep {sleep}\n" if sleep else ""
        self.a(f"{L}:\n{sl}ds_read_b32 v{vt}, v{vl4} offset:{off}\ns_waitcnt lgkmcnt(0)\nv_cmp_eq_u32 vcc, 0, v{vt}\ns_cbranch_vccnz {L}")
    def srd(self, r, p, size):
        self.a(f"s_mov_b32 s{r}, s{p}\ns_and_b32 s{r+1}, s{p+1}, 0xffff\ns_mov_b32 s{r+2}, {size:#x}\ns_mov_b32 s{r+3}, 0x20000")
    def wsb(self):
        if self.opt.get("wsb"): self.a(f"s_add_u32 s{sWS}, s{sWS}, {self.opt['wsb']:#x}\ns_addc_u32 s{sWS+1}, s{sWS+1}, 0")
    def mktag(self):
        self.a(f"s_mul_i32 s{sTAG}, s{sTAG}, 0x9E3779B1\ns_add_u32 s{sTAG}, s{sTAG}, 0x7F4A7C15\ns_or_b32 s{sTAG}, s{sTAG}, 1\ns_andn2_b32 s{sTAG}, s{sTAG}, 0x1e")

    def prologue(self):
        a = self.a
        if "gamp" in self.opt: a(f"s_mov_b32 s{sST+2*self.opt['gamp']}, 0")
        if self.stamps or "amp" in self.opt or "gamp" in self.opt: a(f"s_memrealtime {SP(sST)}")
        a(f"""
        s_cmp_ge_u32 s2, 256
        s_cbranch_scc1 L_END
        s_load_dwordx16 s[16:31], s[0:1], 0
        s_load_dwordx8 s[32:39], s[0:1], 64
        s_load_dwordx2 {SP(sOUT)}, s[0:1], 96
        s_load_dwordx2 {SP(sWS)}, s[0:1], 112
        s_getpc_b64 s[14:15]
        v_lshrrev_b32 v1, 6, v0
        v_and_b32 v10, 255, v0
        v_and_b32 v0, 63, v0
        v_readfirstlane_b32 s{sW}, v1
        v_lshlrev_b32 v1, 2, v0
        v_mov_b32 v2, 0
        ds_write2st64_b32 v1, v2, v2 offset0:0 offset1:2
        s_and_b32 s5, s2, 7
        s_lshr_b32 s6, s2, 3
        s_lshl_b32 s{sDG}, s5, 5
        s_add_u32 s{sDG}, s{sDG}, s6
        s_and_b32 s58, s{sW}, 3
        {"s_xor_b32 s%d, s%d, 4" % (sW, sW) if self.opt.get("swp", 0) else ""}
        s_lshl_b32 s7, s{sDG}, 2
        s_add_u32 s7, s7, s58
        s_lshl_b32 s7, s7, 8
        v_add_u32 v15, s7, v1
        s_mov_b32 s{sO}, 0
        s_lshl_b32 s4, s{sDG}, 3
        s_cmp_lt_u32 s{sW}, 4
        s_cbranch_scc1 L_F0
        """)
        CPF = self.opt.get("cpf", 4)
        if CPF:
            a(f"""
            s_and_b32 s8, s6, {(1<<CPF)-1}
            s_lshl_b32 s8, s8, 2
            s_add_u32 s8, s8, s58
            s_lshl_b32 s8, s8, {13-CPF}
            s_mov_b32 s69, s8
            v_lshl_add_u32 v2, v0, 7, s8
            v_min_u32 v2, L_END-{KN}-128, v2
            s_mov_b64 exec, {(1<<(64>>CPF))-1:#x}
            global_load_dword v{self.GARB}, v2, s[14:15]
            s_mov_b64 exec, -1
            """)
        else: a(f"""
        v_lshlrev_b32 v2, 7, v10
        v_min_u32 v2, L_END-{KN}-128, v2
        global_load_dword v{self.GARB}, v2, s[14:15]
        """)
        a(f"""
        v_lshlrev_b32 v3, 12, v10
        v_add_u32 v3, s4, v3
        s_lshl_b32 s8, s5, 5
        s_add_u32 s8, s8, s58
        s_lshl_b32 s8, s8, 7
        s_add_u32 s8, s8, {WS_FL3}
        v_lshl_add_u32 v2, v0, 9, s8
        s_lshl_b32 s59, s5, 2
        s_add_u32 s59, s59, s58
        s_lshl_b32 s59, s59, 5
        s_add_u32 s59, s59, s6
        s_lshl_b32 s59, s59, 9
        s_add_u32 s59, s59, {WS_FL2}
        s_sub_u32 s8, s59, 512
        v_lshl_add_u32 v4, v0, 7, s8
        v_cmp_lt_u32 vcc, 3, v0
        v_cndmask_b32 v2, v2, v4, vcc
        s_lshl_b32 s8, s2, 6
        s_add_u32 s8, s8, {WS_STAT}
        {"v_writelane_b32 v2, s8, 3" if self.opt.get("sp", 1) else ""}
        s_waitcnt lgkmcnt(0)
        """)
        FP = self.opt.get("fp", (16 << self.opt.get("nst", 3)) - 1)
        fpi = f"s_cmp_ge_u32 s6, {self.opt.get('fq', 32)}\ns_cbranch_scc1 L_NFP\ns_mov_b64 exec, {FP}\nglobal_load_dword v{self.GARB}, v2, {SP(sWS)}\ns_mov_b64 exec, -1\nL_NFP:"
        if FP and self.opt.get("fo", 0) == 0: a(fpi)
        a(f"""
        global_load_dword v224, v15, {SP(sLAR)}
        global_load_dword v225, v15, {SP(sAI)}
        global_load_dword v226, v15, {SP(sCR)}
        global_load_dword v227, v15, {SP(sCI)}
        {fpi if FP and self.opt.get("fo", 0) == 1 else ""}
        s_add_u32 s6, s{sLDT}, s4
        s_addc_u32 s7, s{sLDT+1}, 0
        s_load_dwordx2 s[64:65], s[6:7], 0
        s_add_u32 s6, s{sDSK}, s4
        s_addc_u32 s7, s{sDSK+1}, 0
        s_load_dwordx2 s[66:67], s[6:7], 0
        s_barrier
        s_mov_b64 s[26:27], s[14:15]
        s_mov_b32 s{sO+1}, 0x100000
        s_mov_b32 s{sO+2}, 0x200000
        s_mov_b32 s{sO+3}, 0x300000
        """)
        self.wsb()
        self.srd(rWS, sWS, WS_SIZE); self.srd(rX, sX, 0x400000); self.srd(rOUT, sOUT, 0x400000)
        if True: a(f"s_setprio {self.opt.get('kprio', 2)}")
        if "probe" in self.opt:
            p = {0: sWS, 1: sOUT, 2: 30, 3: sWD}[self.opt["probe"]]
            off = self.opt.get("poff", 0x200000)
            a(f"s_cmp_lg_u32 s2, 0\ns_cbranch_scc1 L_NPR\ns_cmp_lg_u32 s{sW}, 4\ns_cbranch_scc1 L_NPR\ns_waitcnt vmcnt(0)")
            if self.opt.get("pdelay"): a(f"s_mov_b32 s4, 0\nL_PD:\ns_sleep 100\ns_add_u32 s4, s4, 1\ns_cmp_lt_u32 s4, 10\ns_cbranch_scc1 L_PD")
            a(f"v_mov_b32 v20, {off}\nglobal_load_dword v21, v20, {SP(p)}\ns_waitcnt vmcnt(0)\ns_memrealtime {SP(sST)}\ns_waitcnt lgkmcnt(0)")
            for i in range(8): a(f"v_add_u32 v20, 0x4800, v20\nglobal_load_dword v21, v20, {SP(p)}\ns_waitcnt vmcnt(0)")
            a(f"s_memrealtime {SP(sST+30)}\ns_waitcnt lgkmcnt(0)\nL_NPR:")

    def xissue(self):
        self.xn = getattr(self, "xn", 0) + 1
        if self.xn > 1: self.a(f"s_cmp_lg_u32 s30, 0\ns_cbranch_scc1 L_XI{self.xn}")
        self.a(f"ds_read_b32 v34, v6 offset:{C_XS}\ns_buffer_load_dwordx8 s[16:23], {SQ(rWS)}, s31 {'glc' if self.opt.get('g0') else ''}\nL_XI{self.xn}:")
    def xcmp(self):
        a = self.a
        for i in range(4): a(f"s_xor_b64 {SP(16+2*i)}, {SP(16+2*i)}, s[28:29]")
        a("s_or_b64 s[16:17], s[16:17], s[18:19]\ns_or_b64 s[20:21], s[20:21], s[22:23]\ns_or_b64 s[16:17], s[16:17], s[20:21]")
    def xloads(self):
        if self.opt.get("xpr"): self.a("s_setprio 3")
        self.xloads_()
        if self.opt.get("df", 1): self.arrive(C_XI, 4, 5)
        if self.opt.get("xpr"): self.a(f"s_setprio {self.opt.get('kprio', 2)}")
    def xloads_(self):
        if self.opt.get("sch", 1):
            for k in range(4): self.a(f"buffer_load_dwordx4 {Q(16+4*k)}, v33, {SQ(rWS)}, s{32+k} offen {MOD[self.opt.get('xro',2)]}")
            return
        for k in range(4): self.a(f"s_add_u32 s4, s13, {0x1000*k}\nbuffer_load_dwordx4 {Q(16+4*k)}, v33, {SQ(rWS)}, s4 offen {MOD[self.opt.get('xro',2)]}")
    def xcheck(self):
        a = self.a; n = self.xn
        if n > 1: a(f"s_cmp_lg_u32 s30, 0\ns_cbranch_scc1 L_XE{n}")
        a(f"s_waitcnt lgkmcnt(0)\nv_readfirstlane_b32 s28, v34\ns_add_u32 s31, s31, 64\ns_mov_b32 s29, s28\ns_cmp_eq_u32 s28, 0\ns_cbranch_scc1 L_XE{n}")
        self.xcmp()
        a(f"{'s_branch' if self.opt.get('forcex') else 's_cbranch_scc1'} L_XE{n}")
        self.xloads()
        a("s_mov_b32 s30, 1")
        if not self.opt.get("cst"): self.stamp(10)
        a(f"L_XE{n}:")
    def refresh(self):
        CPF = self.opt.get("cpf", 4)
        return ["v_lshl_add_u32 v35, v0, 7, s69", f"v_min_u32 v35, L_END-{KN}-128, v35", f"s_mov_b64 exec, {(1<<(64>>CPF))-1:#x}", f"global_load_dword v{35 if self.opt.get('rf') == 4 else 16}, v35, s[26:27]", "s_mov_b64 exec, -1"]
    def tsetup(self, k0, lbase, lstr, V, S):
        vLA, vW, vR, vOA, vS, t0, t1, vFA = [V+i for i in range(8)]
        self.a(f"""
        s_lshr_b32 s8, s2, 3
        s_and_b32 s9, s2, 7
        s_lshr_b32 s{S+5}, s58, 1
        s_add_u32 s{S+5}, s{S+5}, {k0}
        v_lshrrev_b32 v{t0}, 3, v0
        v_and_b32 v{t1}, 7, v0
        s_lshl_b32 s{S+4}, s8, 5
        s_add_u32 s{S+4}, s{S+4}, s{S+5}
        v_lshrrev_b32 v{vS}, 4, v0
        v_lshl_add_u32 v{vS}, v{vS}, 2, s{S+4}
        v_and_b32 v{vOA}, 1, v{t0}
        v_lshl_add_u32 v{vS}, v{vS}, 1, v{vOA}
        ds_read_u8 v{vFA}, v{vS} offset:{SELF}
        ds_read_u8 v{vS}, v{vS} offset:{SELF+32}
        s_mul_i32 s{S+4}, s58, {lstr}
        s_add_u32 s{S+4}, s{S+4}, {lbase}
        v_lshl_add_u32 v{vW}, v{t0}, 3, s{S+4}
        v_lshl_add_u32 v{vR}, v{t1}, 4, s{S+4}
        s_movk_i32 s{S+4}, 288
        v_mad_u32_u24 v{vW}, v{t1}, s{S+4}, v{vW}
        s_movk_i32 s{S+4}, 144
        v_mad_u32_u24 v{vR}, v{t0}, s{S+4}, v{vR}
        v_lshlrev_b32 v{t1}, 4, v{t1}
        v_lshl_add_u32 v{vLA}, v{t0}, 14, v{t1}
        v_lshl_add_u32 v{t0}, v{t0}, 11, v{t1}
        s_and_b32 s{S+4}, s58, 1
        s_lshl_b32 s{S+1}, s9, 1
        s_add_u32 s{S+1}, s{S+1}, s{S+4}
        s_lshl_b32 s{S+5}, s{S+5}, 5
        s_add_u32 s{S+5}, s{S+5}, s8
        s_lshl_b32 s{S}, s{S+1}, 18
        s_lshl_b32 s{S+4}, s{S+5}, 7
        s_add_u32 s{S}, s{S}, s{S+4}
        s_add_u32 s{S}, s{S}, {WS_XT}
        s_lshl_b32 s{S+2}, s{S+5}, 15
        s_lshl_b32 s{S+1}, s{S+1}, 7
        s_add_u32 s{S+2}, s{S+2}, s{S+1}
        s_add_u32 s{S+3}, s{S+2}, 0x4000
        s_add_u32 s{S+1}, s{S}, 0x20000
        s_lshl_b32 s{S+4}, s9, 5
        s_lshr_b32 s8, s8, 3
        s_add_u32 s{S+4}, s{S+4}, s8
        s_lshl_b32 s{S+4}, s{S+4}, 7
        s_add_u32 s{S+4}, s{S+4}, {WS_FL3 + 256*k0}
        s_mov_b32 s{S+5}, 0
        s_waitcnt lgkmcnt(0)
        v_lshl_or_b32 v{vOA}, v{vFA}, 24, v{t0}
        v_lshl_or_b32 v{vS}, v{vS}, 24, v{t0}
        v_lshlrev_b32 v{vFA}, 2, v0
        """)
    def tpoll(self, V, S, tag, sl):
        L = self.a.label("LT")
        self.a(f"""
        s_mov_b32 exec_hi, 0
        {L}:
        buffer_load_dword v{V+5}, v{V+7}, {SQ(rWS)}, s{S+4} offen sc1
        s_add_u32 s{S+5}, s{S+5}, 1
        s_waitcnt vmcnt(0)
        v_cmp_ne_u32 vcc, {tag}, v{V+5}
        s_cbranch_vccz {L}K
        s_sleep {sl}
        s_cmp_lt_u32 s{S+5}, 0x4000
        s_cbranch_scc1 {L}
        {L}K:
        s_mov_b32 exec_hi, -1
        """)
    def tload(self, V, S, D):
        for i in range(2): self.a(f"buffer_load_dwordx4 {Q(D+4*i)}, v{V}, {SQ(rWS)}, s{S+i} offen sc1")
    def tstore(self, V, S, D, mod=None, novm=0):
        a = self.a
        for i in range(2): a(("" if novm else f"s_waitcnt vmcnt({1-i})\n") + f"ds_write_b64 v{V+1}, {P(D+4*i)} offset:{64*i}\nds_write_b64 v{V+1}, {P(D+4*i+2)} offset:{64*i+144}")
        for i in range(2): a(f"ds_read_b128 {Q(D+8+4*i)}, v{V+2} offset:{1152*i}")
        for i in range(2): a(f"s_waitcnt lgkmcnt({1-i})\nbuffer_store_dwordx4 {Q(D+8+4*i)}, v{V+(3+i)}, {SQ(rOUT)}, s{S+2+i} offen {MOD[mod] if mod is not None else 'sc1' if self.opt.get('osc', 1) else ''}")
    def dt_calc(self, DT):
        self.a(f"""
        s_lshl_b32 s4, s58, 4
        s_lshr_b64 s[6:7], s[64:65], s4
        s_lshl_b32 s6, s6, 16
        v_mov_b32 v{DT}, s6
        v_mul_f32 v{DT}, {LOG2E:#x}, v{DT}
        v_exp_f32 v{DT}, v{DT}
        """)
        self.bf16r(DT, DT)
    def zcalc(self, plar, pai, DT, ER, FI, t):
        a = self.a
        self.unpack(t, t+1, plar)
        self.unpack(t+2, t+3, pai)
        a(f"v_mul_f32 v{t}, {LOG2E:#x}, v{t}\nv_mul_f32 v{t+1}, {LOG2E:#x}, v{t+1}\nv_exp_f32 v{t}, v{t}\nv_exp_f32 v{t+1}, v{t+1}")
        a(f"v_mul_f32 v{t+2}, v{t+2}, v{DT}\nv_mul_f32 v{t+3}, v{t+3}, v{DT}")
        a(f"v_mul_f32 v{FI}, {INV2PI:#x}, v{t+2}\nv_mul_f32 v{FI+1}, {INV2PI:#x}, v{t+3}")
        a(f"v_cvt_pk_bf16_f32 v{t+2}, v{t}, v{t+1}")
        self.unpack(t, t+1, t+2)
        a(f"v_mul_f32 v{t}, v{t}, v{DT}\nv_mul_f32 v{t+1}, v{t+1}, v{DT}")
        a(f"v_mul_f32 v{ER}, {LOG2E|0x80000000:#x}, v{t}\nv_mul_f32 v{ER+1}, {LOG2E|0x80000000:#x}, v{t+1}")
    def cexp(self, E, p, ER, FI, t):
        a = self.a
        if p != 1.0:
            for q in (0,1): a(f"v_mul_f32 v{t+q}, {f2u(p):#x}, v{ER+q}\nv_mul_f32 v{t+2+q}, {f2u(p):#x}, v{FI+q}")
            e, f = t, t+2
        else: e, f = ER, FI
        for q in (0,1): a(f"v_exp_f32 v{t+q}, v{e+q}\nv_fract_f32 v{t+2+q}, v{f+q}")
        for q in (0,1): a(f"v_cos_f32 v{E+2*q}, v{t+2+q}\nv_sin_f32 v{E+2*q+1}, v{t+2+q}")
        for q in (0,1): a(f"v_mul_f32 v{E+2*q}, v{E+2*q}, v{t+q}\nv_mul_f32 v{E+2*q+1}, v{E+2*q+1}, v{t+q}")

    PRM=224; VDT=228; VaW=229; VER=230; VFI=232; VCUR=236; VE8=240; VTMP=244; VPK=248
    def vprep(self):
        a = self.a
        a(f"s_mul_i32 s4, s58, {VSTR}\ns_add_u32 s4, s4, {VT0}\nv_lshl_add_u32 v{self.VaW}, v0, 3, s4")
        a(f"v_add_f32 v{self.VDT}, v{self.VDT}, v{self.VDT}")
        self.unpack(self.VCUR, self.VCUR+2, self.PRM+2)
        self.unpack(self.VCUR+1, self.VCUR+3, self.PRM+3)
        for i in range(4): a(f"v_mul_f32 v{self.VCUR+i}, v{self.VCUR+i}, v{self.VDT}")
        self.cexp(self.VE8, 8.0, self.VER, self.VFI, self.VTMP)
    def vloop(self, n=8):
        a = self.a; L = a.label("LV"); CUR = self.VCUR
        a(f"s_mov_b32 s4, 0\n{L}:")
        for j in range(4):
            r = self.VPK + 2*j
            a(f"v_cvt_pk_bf16_f32 v{r}, v{CUR}, -v{CUR+1}\nv_cvt_pk_bf16_f32 v{r+1}, v{CUR+2}, -v{CUR+3}")
            a(f"ds_write_b64 v{self.VaW}, {P(r)} offset:{j*TROW}")
            self.cmul2(CUR, CUR, self.VE8, self.VTMP)
        a(f"v_add_u32 v{self.VaW}, {4*TROW}, v{self.VaW}\ns_add_u32 s4, s4, 1\ns_cmp_lt_u32 s4, {n}\ns_cbranch_scc1 {L}")

    def kgen(self):
        a = self.a
        DT=228; ER=230; FI=232; PK=220; TMP=236
        VF=48; XF=168; YF=112; DX=[204,208]; DY=[212,216]
        aX=12; aY=13; aV=14; aG=11
        vXO=3; vW4=4; vONE=5; vL4=6; vB=7; vYW=8; vYR=9; vT8=10; vA=1; vK3=2; vKW=33; vXW=32
        zF=200; zT=201; zK=202; aE=203; aE2=46; aE3=47; aKB=35; Z=252
        aVW=180; aUW=188; BXB=244; BXA=248
        i_=16; g_=17; t7=18; t8=19; t9=20; T=22; KB = self.opt.get("kb", 0); XPA = 254
        if KB:
            TMP = 48; Z = 234; aKB = 71; XPA = 18; TVM = self.TVM; SB = self.SB
            k0_ = len(a.lines); self.tsetup(2, K0, KREG, TVM, SB); TL_ = [l.strip() for l in a.lines[k0_:] if l.strip()]; del a.lines[k0_:]
            for l in TL_[:-4]:
                if not l.startswith("ds_"): a(l.replace(f"v_lshl_add_u32 v{TVM+5}, v{TVM+5}, 11", f"v_lshl_add_u32 v{TVM+3}, v{TVM+5}, 11"))
            a(f"s_sub_u32 s{SB+6}, s{SB+4}, 512")
            self.TLate = [l for l in TL_ if l.startswith("ds_")] + ["s_waitcnt", f"v_lshl_or_b32 v{TVM+4}, v{TVM+4}, 24, v{TVM+3}", f"v_lshl_or_b32 v{TVM+3}, v{TVM+7}, 24, v{TVM+3}", TL_[-1]]
        a(f"""
        s_mul_i32 s8, s58, {KREG}
        s_add_u32 s8, s8, {K0}
        s_mul_i32 s10, s58, {XSTR}
        s_add_u32 s10, s10, {XR0}
        s_mul_i32 s11, s58, {VSTR}
        s_add_u32 s11, s11, {VT0}
        s_movk_i32 s9, {TROW}
        s_sub_u32 m0, s8, {UOF}
        v_lshl_add_u32 v15, v0, 3, s10
        v_and_b32 v{i_}, 15, v0
        v_lshrrev_b32 v{g_}, 4, v0
        v_lshlrev_b32 v{t7}, 4, v{g_}
        v_mad_u32_u24 v{aX}, v{i_}, s9, v{t7}
        v_add_u32 v{aV}, s11, v{aX}
        v_add_u32 v{aX}, s8, v{aX}
        v_add_u32 v{aG}, s8, v{t7}
        v_cmp_gt_u32 vcc, 3, v{i_}
        v_cndmask_b32 v{t8}, 12, 4, vcc
        v_cmp_eq_u32 vcc, 3, v{i_}
        v_cndmask_b32 v{t8}, v{t8}, 28, vcc
        v_mad_u32_u24 v{aY}, v{t8}, s9, v{aX}
        v_and_b32 v{t9}, 3, v{i_}
        s_sub_u32 s11, s11, {VT0}
        s_lshl_b32 s4, s58, 2
        v_mov_b32 v{vW4}, s4
        v_mov_b32 v{vONE}, 1
        v_lshlrev_b32 v{vL4}, 2, v{t9}
        s_movk_i32 s9, {KSTR}
        v_lshrrev_b32 v{t7}, 2, v0
        v_lshl_add_u32 v{t8}, v{t9}, 3, s8
        v_mad_u32_u24 v{zF}, v{t7}, s9, v{t8}
        s_movk_i32 s4, 160
        v_mad_u32_u24 v{zK}, v{t7}, s4, v{t8}
        v_lshrrev_b32 v{t7}, 3, v0
        v_and_b32 v{t8}, 7, v0
        v_lshl_add_u32 v{t8}, v{t8}, 3, s8
        v_mad_u32_u24 v{zT}, v{t7}, s9, v{t8}
        v_lshrrev_b32 v{t7}, 5, v0
        v_lshlrev_b32 v{t7}, 8, v{t7}
        v_lshl_add_u32 v{t7}, v{i_}, 4, v{t7}
        v_add_u32 v{t7}, s8, v{t7}
        v_and_b32 v{t8}, 1, v{g_}
        v_lshl_add_u32 v{aE}, v{t8}, 3, v{t7}
        {f"v_lshl_add_u32 v{aE2}, v{t8}, 9, v{t7}" if not KB else f"v_lshlrev_b32 v{aE2}, 5, v{t8}"}
        v_and_b32 v{t7}, 1, v{i_}
        s_movk_i32 s4, 640
        v_mul_u32_u24 v{t7}, s4, v{t7}
        {f"v_lshl_add_u32 v{aE2}, v{t7}, 1, v{aE2}" if KB else ""}
        v_lshl_add_u32 v{t7}, v{g_}, 5, v{t7}
        v_and_b32 v{t8}, 14, v{i_}
        v_add3_u32 v{aE3}, v{t7}, v{t8}, s8
        {f"v_add3_u32 v{aE2}, v{aE2}, v{t8}, s8" if KB else ""}
        {f"v_lshrrev_b32 v{t7}, 5, v0" if KB else ""}
        {f"v_lshl_add_u32 v{aE2}, v{t7}, 4, v{aE2}" if KB else ""}
        {"" if KB else f"v_mov_b32 v{aKB}, s8"}
        v_mov_b32 v{Z}, 0
        v_mov_b32 v{Z+1}, 0
        """)
        a(f"""
        v_lshlrev_b32 v{vB}, 4, v{g_}
        v_lshlrev_b32 v{t7}, 5, v{i_}
        v_sub_u32 v{vB}, v{vB}, v{t7}
        s_add_u32 s4, s10, 480
        v_add_u32 v{vB}, s4, v{vB}
        s_lshl_b32 s4, s58, 13
        s_add_u32 s4, s4, {YB}
        v_lshlrev_b32 v{t7}, 6, v{i_}
        {f"v_bfe_u32 v{T}, v{i_}, 1, 2" if self.opt.get("ys", 1) else ""}
        {f"v_xor_b32 v{T}, v{T}, v{g_}" if self.opt.get("ys", 1) else ""}
        v_lshl_add_u32 v{t7}, v{T if self.opt.get("ys", 1) else g_}, 4, v{t7}
        v_add_u32 v{vYW}, s4, v{t7}
        v_sub_u32 v{T}, 20, v{i_}
        v_lshlrev_b32 v{T+1}, 3, v{g_}
        v_mov_b32 v{T+2}, 0x7f
        v_lshlrev_b32 v{T+2}, v{T}, v{T+2}
        v_subrev_u32 v{T}, 1, v{T}
        v_mov_b32 v{T+3}, 0x1ff
        v_lshlrev_b32 v{T+3}, v{T}, v{T+3}
        v_lshrrev_b32 v{T+2}, v{T+1}, v{T+2}
        v_lshrrev_b32 v{T+3}, v{T+1}, v{T+3}
        v_add_u32 v{t7}, 1, v{i_}
        v_and_b32 v{T}, 3, v{t7}
        v_and_b32 v{t7}, 28, v{t7}
        v_lshl_add_u32 v{T+4}, v{g_}, 3, v{t7}
        v_lshl_add_u32 v{T+4}, v{T+4}, 1, s8
        v_mad_u32_u24 v{vA}, v{T}, s9, v{T+4}
        v_lshlrev_b32 v{T+4}, 2, v{g_}
        v_sub_u32 v{t7}, v{t7}, v{T+4}
        v_lshl_add_u32 v{t7}, v{t7}, 1, s8
        s_movk_i32 s4, 160
        v_mad_u32_u24 v{vK3}, v{T}, s4, v{t7}
        s_mov_b32 s15, 0x3f800000
        """)
        if KB:
            a(f"""v_sub_u32 v{T}, 18, v{i_}
            v_lshlrev_b32 v{T+4}, v{T}, 7
            v_add_u32 v{T}, 3, v{T}
            v_lshlrev_b32 v{T+5}, v{T}, 31
            v_and_b32 v{T+2}, 0xff, v{T+2}
            v_and_b32 v{T+3}, 0xff, v{T+3}
            v_bfe_u32 v{T+4}, v{T+4}, v{T+1}, 8
            v_bfe_u32 v{T+5}, v{T+5}, v{T+1}, 8""")
            for j in range(4): a(f"v_lshl_or_b32 v{T+2+j}, v{T+2+j}, 15, v{T+2+j}")
            for d in range(4):
                for j, bx in enumerate((BXB, BXA, 240, 252)): a(f"v_and_b32 v{bx+d}, {0x10001 << 2*d:#x}, v{T+2+j}")
                for j, bx in enumerate((BXB, BXA, 240, 252)): a(f"v_mul_u32_u24 v{bx+d}, {0x3f80 >> 2*d:#x}, v{bx+d}")
        for (dst, src) in ((BXB, T+2), (BXA, T+3)):
            for d in range(0 if KB else 4):
                a(f"v_bfe_i32 v{T+5}, v{src}, {2*d}, 1\nv_bfe_i32 v{T+6}, v{src}, {2*d+1}, 1\nv_and_b32 v{T+5}, 0x3f80, v{T+5}\nv_bfi_b32 v{dst+d}, s15, v{T+6}, v{T+5}")
        self.csetup()
        a("s_waitcnt lgkmcnt(0)")
        self.dt_calc(DT)
        xp = f"s_mov_b32 exec_hi, 0\nbuffer_load_dword v{self.GARB}, v{XPA}, {SQ(rWS)}, s13 offen\ns_mov_b32 exec_hi, -1"
        XP = self.opt.get("xp", 1)
        if XP: a(f"s_lshl_b32 s4, s58, 12\nv_lshl_add_u32 v{XPA}, v0, 7, s4")
        if XP == 2: a(xp + "\ns_waitcnt vmcnt(1)")
        else: a(f"s_waitcnt vmcnt(0)")
        self.stamp(1)
        if XP == 1: a(xp)
        TT_ = self.opt.get("tt", 0)
        if TT_:
            a(f"""s_cmp_gt_u32 s58, 1
            s_cbranch_scc1 L_NTT
            {"s_cmp_lt_u32 s2, %d" % self.opt.get("tq0", 248) if TT_ == 2 else ""}
            {"s_cbranch_scc1 L_NTT" if TT_ == 2 else ""}
            s_and_b32 s4, s2, 7
            s_mul_i32 s4, s4, {7 << 15}
            s_lshl_b32 s5, s{sDG}, 7
            s_cmp_eq_u32 s58, 0
            s_cselect_b32 s4, s5, s4
            s_cselect_b32 s5, 15, 12
            s_add_u32 s4, s4, {WS_PART}
            v_lshlrev_b32 v{XPA}, s5, v0
            s_mov_b32 exec_hi, 0xffffff
            buffer_load_dword v{self.GARB}, v{XPA}, {SQ(rWS)}, s4 offen {MOD[self.opt.get("ttm", 2)]}
            s_mov_b32 exec_hi, -1
            L_NTT:""")
        if self.opt.get("ft", 0): a(f"s_buffer_load_dword s30, {SQ(rWS)}, s31 glc")
        if self.opt.get("k2"): a("s_mov_b32 s24, 0\nL_K2:")
        self.zcalc(224, 225, DT, ER, FI, TMP)
        UR = lambda r: 112 + 2*r
        E1024 = 166; BV = {8: 36, 16: 38, 32: 40, 64: 42, 128: 44}
        W = lambda j: 80 + 2*j if j < 16 else 220 + 2*(j % 8)
        CA = 16; CB = 24; CP = 204 if KB else 240
        a(f"v_add_f32 v{DT}, v{DT}, v{DT}")
        for q in (0,1): a(f"v_mul_f32 v{CB+4+q}, {f2u(32.0):#x}, v{ER+q}\nv_mul_f32 v{CB+6+q}, {f2u(32.0):#x}, v{FI+q}")
        up = self.unp(CP, CP+2, 226) + self.unp(CP+1, CP+3, 227) + [f"v_mul_f32 v{CP+i}, v{CP+i}, v{DT}" for i in range(4)]
        for q in (0,1): a(f"v_exp_f32 v{CA+4+q}, v{ER+q}\nv_fract_f32 v{CA+6+q}, v{FI+q}\nv_exp_f32 v{CB+4+q}, v{CB+4+q}\nv_fract_f32 v{CB+6+q}, v{CB+6+q}")
        tr = []
        for C_ in (CA, CB):
            for q in (0,1): tr += [f"v_cos_f32 v{C_+2*q}, v{C_+6+q}", f"v_sin_f32 v{C_+2*q+1}, v{C_+6+q}"]
        for l in interleave(tr, up): a(l)
        for C_ in (CA, CB):
            for q in (0,1): a(f"v_mul_f32 v{C_+2*q}, v{C_+2*q}, v{C_+4+q}\nv_mul_f32 v{C_+2*q+1}, v{C_+2*q+1}, v{C_+4+q}")
        cv = lambda d, s_: [f"v_cvt_pk_f16_f32 v{d}, v{s_}, v{s_+1}", f"v_cvt_pk_f16_f32 v{d+1}, v{s_+2}, v{s_+3}"]
        sqm = lambda x: [f"v_pk_mul_f32 {P(x+4+q)}, {P(x+q)}, {P(x+q)} op_sel_hi:[1,0]" for q in (0,2)]
        sqf = lambda x: [f"v_pk_fma_f32 {P(x+q)}, {P(x+q)}, {P(x+q)}, {P(x+4+q)} op_sel:[1,1,0] op_sel_hi:[0,1,1] neg_lo:[1,0,0]" for q in (0,2)]
        def pr(L):
            o = []
            for k in range(0, len(L), 2):
                B_ = L[k:k+2]
                for (d, x, y, c) in B_: o += [f"v_pk_mul_f16 v{d+q}, v{x+q}, v{y+q} op_sel_hi:[1,0]" for q in (0,1)]
                for (d, x, y, c) in B_: o += [f"v_pk_fma_f16 v{d+q}, v{x+q}, v{y+q}, v{d+q} op_sel:[1,1,0] op_sel_hi:[0,1,1] neg_{'hi' if c else 'lo'}:[1,0,0]" for q in (0,1)]
            return o
        issued = []
        def lds(tag, text): a(text); issued.append(tag)
        def need(tag):
            last = max(i for i, t in enumerate(issued) if t == tag)
            a(f"s_waitcnt lgkmcnt({min(len(issued)-1-last, 15)})")
        UP = {0:[0],1:[1],2:[2],3:[3],4:[4],5:[5],6:[6],7:[7],11:[8],12:[9],13:[10,12],14:[11,13],15:[14],16:[15],23:[31],
              8:[16],9:[17],10:[18],24:[19],17:[20],18:[21],19:[22],25:[23],20:[24],21:[25],22:[26],26:[27]}
        pend = []
        def wrow(reg, off): pend.extend([(None, f"ds_write_addtid_b32 v{reg} offset:{off}"), (None, f"ds_write_addtid_b32 v{reg+1} offset:{off+256}")])
        def wu(*rs):
            for r in rs:
                for p_ in UP[r]: wrow(UR(r), UOF + p_*TROW)
        def wv(*js):
            for j in js: wrow(W(j), VT0 + j*TROW)
        def em(L, mf=None, mper=4):
            for k, l in enumerate(L):
                if mf and k % mper == 0: a(mf.pop(0))
                a(l)
        def flush():
            while pend:
                t = pend.pop(0)
                if t[0] == "s": a(t[1])
                else: lds(*t)
        U = lambda d, x, y: (UR(d), UR(x), UR(y) if y >= 0 else E1024, 0)
        V = lambda d, x, y: (W(d), W(x), BV[y], 1)
        self.kst(14)
        em([f"v_mov_b32 v{UR(0)}, 0x3c00", f"v_mov_b32 v{UR(0)+1}, 0x3c00"] + sqm(CA) + sqm(CB) + cv(UR(1), CA) + cv(BV[32], CB) + sqf(CA) + sqf(CB))
        em(sqm(CA) + sqm(CB) + cv(UR(2), CA) + cv(BV[64], CB) + sqf(CA) + sqf(CB))
        em([f"v_cvt_pk_f16_f32 v{W(0)}, v{CP}, -v{CP+1}", f"v_cvt_pk_f16_f32 v{W(0)+1}, v{CP+2}, -v{CP+3}"] + sqm(CA) + sqm(CB) + cv(UR(4), CA) + cv(BV[128], CB) + sqf(CA) + sqf(CB))
        em(pr([U(3,2,1), U(5,4,1)]))
        em(sqm(CA) + cv(UR(8), CA) + cv(UR(11), CB) + sqf(CA))
        wu(0, 1, 2, 4, 3, 5, 8, 11); wrow(BV[128], UOF + 28*TROW); flush()
        em(pr([U(6,4,2), U(7,4,3), U(10,8,2), U(12,11,2), U(13,11,4), U(14,11,6), U(15,11,8), U(16,11,10)]))
        wu(6, 7, 10, 12, 13, 14, 15, 16); flush()
        for s_ in range(8): lds("x", f"ds_read_b128 {Q(XF+4*s_)}, v{aX} offset:{64*s_}")
        a("s_mov_b32 m0, s11")
        self.kst(10)
        BV[8] = UR(8)
        em(cv(BV[16], CA) + pr([V(1,0,8), V(4,0,32), V(2,0,16), V(3,1,16), V(5,1,32), V(8,0,64), V(6,2,32), V(7,3,32)]))
        wv(0, 1, 2, 3, 4, 5, 6, 7, 8); flush()
        em(pr([V(9,1,64), V(12,4,64), V(10,2,64), V(11,3,64), V(13,5,64), V(14,6,64), V(15,7,64), U(9,8,1)]))
        wv(9, 10, 11, 12, 13, 14, 15); flush()
        for s_ in range(8): lds(f"v{s_}", f"ds_read_b128 {Q(VF+4*s_)}, v{aV} offset:{64*s_}")
        for s_ in range(8): lds(f"g{s_}", f"ds_read_b128 {Q(VF+32+4*s_)}, v{aG} offset:{28*TROW+64*s_}")
        a(f"s_sub_u32 m0, s8, {UOF}")
        self.kst(11)
        MF = "v_mfma_f32_16x16x32_f16"
        def mm(D, A, ct, s_): return f"{MF} {Q(D[ct])}, {Q(A+4*s_)}, {Q(VF+32*ct+4*s_)}, {'0' if s_ == 0 else Q(D[ct])}"
        m0 = [mm(DX, XF, 0, s_) for s_ in range(8)]
        em(sqm(CB) + sqf(CB) + cv(UR(17), CB) + sqm(CB) + sqf(CB) + cv(E1024, CB))
        need("v7")
        XE = self.opt.get("xe", 1)
        if XE & 1: self.xissue()
        em(pr([U(20,17,11), U(18,17,4), U(19,17,8), U(23,8,-1), U(21,20,4), U(22,20,8), U(24,15,-1), U(25,19,-1), U(26,22,-1)]), m0, 4)
        if XE & 1: self.xcheck()
        wu(9, 17, 20, 18, 19, 23, 21, 22, 24, 25, 26); flush()
        for s_ in range(8): lds(f"y{s_}", f"ds_read_b128 {Q(YF+4*s_)}, v{aY} offset:{64*s_}")
        a("s_mov_b64 exec, 0xffff"); lds(None, f"ds_write_b64 v{zF}, {P(Z)}")
        a("s_mov_b32 exec_lo, -1"); lds(None, f"ds_write2_b64 v{zT}, {P(Z)}, {P(Z)} offset0:132 offset1:140" if KB else f"ds_write_b64 v{zT}, {P(Z)} offset:2080"); lds(None, f"ds_write_b64 v{zK}, {P(Z)} offset:{K3O}")
        a("s_mov_b64 exec, -1")
        if KB:
            for o in (0, 64, 96): lds(None, f"ds_write_b64 v{zK}, {P(Z)} offset:{K2O+o}")
        self.kst(13)
        if XE & 2: self.xissue()
        TM = 220
        for s_ in range(10):
            mq = []
            if 1 <= s_ <= 8: mq.append(mm(DX, XF, 1, s_-1))
            if 2 <= s_ <= 9:
                if s_ % 2 == 0: need(f"y{s_-1}")
                mq += [mm(DY, YF, 0, s_-2), mm(DY, YF, 1, s_-2)]
            L = []
            if s_ < 8:
                L += [f"v_pk_mul_f16 v{TM+j}, v{VF+4*s_+j}, v{VF+32+4*s_+j} op_sel_hi:[1,0]" for j in range(4)]
                L += [f"v_pk_fma_f16 v{VF+32+4*s_+j}, v{VF+4*s_+j}, v{VF+32+4*s_+j}, v{TM+j} op_sel:[1,1,0] op_sel_hi:[0,1,1] neg_hi:[1,0,0]" for j in range(4)]
            for k in range(len(L)):
                if k % 3 == 2 and mq: a(mq.pop(0))
                a(L[k])
            for m in mq: a(m)
        self.kst(12)
        if XE & 2: self.xcheck()
        if XE & 4: self.xissue()
        a("s_lshl_b32 s4, s58, 4\ns_lshr_b64 s[6:7], s[66:67], s4\ns_lshl_b32 s6, s6, 16")
        for r in range(4): a(f"v_permlane32_swap_b32 v{DX[0]+r}, v{DX[1]+r}")
        a(f"v_cvt_pk_bf16_f32 v{PK}, v{DY[0]+3}, v{DY[1]+3}")
        a(f"s_mov_b64 exec, 1\nv_add_f32 v{DX[0]}, s6, v{DX[0]}\nv_add_f32 v{DX[0]}, 1.0, v{DX[0]}\ns_mov_b64 exec, -1")
        for r in range(3): a(f"v_permlane32_swap_b32 v{DY[0]+r}, v{DY[1]+r}")
        for sg in range(4):
            a(f"ds_write_b16 v{aE3}, v{PK} offset:{K3O+32+158*sg}")
            a(f"ds_write_b16_d16_hi v{aE3}, v{PK} offset:{K3O+16+32+158*sg}")
        WL = []
        def expand(X, seq, nl, addr, lag0):
            for sg in range(4):
                nd = nl//2
                base = X + sg*nd
                for d in range(nd):
                    a(f"v_cvt_pk_bf16_f32 v{base+d}, v{seq[sg+2*d]}, v{seq[sg+2*d+1]}")
                off = sg*KSTR + 2*(16+lag0)
                if nd == 2: WL.append(f"ds_write_b64 v{addr}, {P(base)} offset:{off}")
                else: WL.append(f"ds_write_b128 v{addr}, {Q(base)} offset:{off}")
        X0, X1, Y0, Y1 = DX[0], DX[1], DY[0], DY[1]
        expand(48, [X0,X0+1,X0+2,X0+3,Y0,Y0+1,Y0+2], 4, aE, 0)
        expand(56, [X1,X1,X1+1,X1+2,X1+2,X1+2,X1+3], 4, aE, 256)
        if KB:
            a(f"""
            v_cvt_pk_bf16_f32 v64, v{Y1+1}, v{Y1+2}
            v_mov_b32 v{aKB}, s8
            v_cvt_pk_bf16_f32 v80, v{Z}, v{X0}
            v_mov_b32 v81, v50
            v_cvt_pk_bf16_f32 v66, v{Y1}, v{Y1}
            v_cvt_pk_bf16_f32 v67, v{Y1}, v{Z}
            v_cvt_pk_bf16_f32 v68, v{Z}, v{Y1+2}
            v_cvt_pk_bf16_f32 v69, v{Y1+2}, v{Z}
            v_cvt_pk_bf16_f32 v70, v{Y1+2}, v{Y1+2}
            """)
            if XE & 4: self.xcheck()
            for l in WL: a(l)
            for sg in range(4):
                a(f"ds_write_b16 v{aE2}, v64 offset:{K2O+32+158*sg}")
                a(f"ds_write_b16_d16_hi v{aE2}, v64 offset:{K2O+640+32+158*sg}")
            a(f"""
            s_mov_b64 exec, 1
            ds_write_b32 v{aKB}, v80 offset:{1*KSTR+28}
            ds_write_b32 v{aKB}, v48 offset:{2*KSTR+28}
            ds_write_b64 v{aKB}, v[80:81] offset:{3*KSTR+24}
            ds_write_b64 v{aKB}, v[66:67] offset:1056
            ds_write_b32 v{aKB}, v66 offset:{KSTR+1056}
            ds_write_b16 v{aKB}, v66 offset:{2*KSTR+1056}
            ds_write_b16 v{aKB}, v66 offset:{3*KSTR+1054}
            ds_write_b16 v{aKB}, v56 offset:{2*KSTR+542}
            ds_write_b16 v{aKB}, v56 offset:{3*KSTR+540}
            s_brev_b64 exec, 1
            ds_write_b32 v{aKB}, v68 offset:1124
            ds_write_b32 v{aKB}, v69 offset:1128
            ds_write_b32 v{aKB}, v70 offset:{KSTR+1124}
            ds_write_b64 v{aKB}, v[68:69] offset:{2*KSTR+1120}
            ds_write_b32 v{aKB}, v70 offset:{3*KSTR+1120}
            s_mov_b64 exec, -1
            """)
        else:
            expand(64, [Y1]*3+[Y1+1]*3+[Y1+2]*5, 8, aE2, 512)
            a(f"""
            v_cvt_pk_bf16_f32 v80, v{Z}, v{X0}
            v_mov_b32 v81, v50
            v_mov_b32 v82, v79
            v_cvt_pk_bf16_f32 v83, v{Y1+2}, v{Z}
            """)
            if XE & 4: self.xcheck()
            for l in WL: a(l)
            a(f"""
            s_mov_b64 exec, 1
            ds_write_b32 v{aKB}, v80 offset:{1*KSTR+28}
            ds_write_b32 v{aKB}, v48 offset:{2*KSTR+28}
            ds_write_b64 v{aKB}, v[80:81] offset:{3*KSTR+24}
            s_brev_b64 exec, 1
            ds_write_b64 v{aKB}, v[78:79] offset:{2080}
            ds_write_b32 v{aKB}, v83 offset:{2088}
            ds_write_b64 v{aKB}, v[78:79] offset:{KSTR+2080}
            ds_write_b64 v{aKB}, v[82:83] offset:{2*KSTR+2080}
            ds_write_b32 v{aKB}, v79 offset:{3*KSTR+2080}
            s_mov_b64 exec, -1
            """)
        self.kst(15)
        if self.opt.get("k2"):
            a("s_cmp_lg_u32 s24, 0\ns_cbranch_scc1 L_K2E")
            self.stamp(11)
            a("s_mov_b32 s24, 1\ns_branch L_K2\nL_K2E:")
        self.stamp(2)

    def csetup(self):
        vYR=9; vT8=10; vKW=33; vXW=32
        self.a(f"""v_lshlrev_b32 v{vKW}, 4, v10
        v_lshlrev_b32 v{vXW}, 2, v10
        v_sub_u32 v{vXW}, {XR0+1020}, v{vXW}
        s_mov_b32 s31, s59
        s_lshl_b32 s13, s{sDG}, 14
        s_add_u32 s13, s13, {WS_XT}
        s_and_b32 s12, s2, 7
        s_lshl_b32 s12, s12, 12
        s_lshl_b32 s4, s58, 7
        s_add_u32 s12, s12, s4
        s_lshr_b32 s4, s2, 3
        s_lshl_b32 s4, s4, 2
        s_add_u32 s12, s12, s4
        s_add_u32 s12, s12, {WS_FL3}
        {f"v_and_b32 v{vYR}, 0x30, v10" if self.opt.get("ys", 1) else ""}
        v_lshlrev_b32 v{vT8}, 3, v10
        {f"v_xor_b32 v{vYR}, v{vYR}, v{vT8}" if self.opt.get("ys", 1) else ""}
        v_add_u32 v{vYR}, {YB}, v{vYR if self.opt.get("ys", 1) else vT8}
        s_mov_b32 s30, 0
        s_brev_b32 s68, 1""")
        if self.opt.get("sch", 1): self.a("s_mov_b32 s32, s13\ns_add_u32 s33, s13, 0x1000\ns_add_u32 s34, s13, 0x2000\ns_add_u32 s35, s13, 0x3000")
        if self.opt.get("ct") == 2: self.a(f"""
            s_lshr_b32 s38, s2, 3
            s_and_b32 s39, s2, 7
            s_lshl_b32 s37, s38, 2
            s_add_u32 s37, s37, s58
            s_lshl_b32 s36, s37, 4
            s_lshl_b32 s35, s37, 13
            s_lshl_b32 s4, s39, 8
            s_add_u32 s35, s35, s4
            s_lshl_b32 s32, s39, 19
            s_lshl_b32 s4, s37, 5
            s_add_u32 s32, s32, s4
            s_add_u32 s32, s32, {WS_XT}
            s_add_u32 s33, s32, 0x1000
            s_lshl_b32 s34, s39, 12
            s_lshr_b32 s4, s38, 3
            s_lshl_b32 s4, s4, 7
            s_add_u32 s34, s34, s4
            s_add_u32 s34, s34, {WS_FL3}""")
    def cmain(self):
        a = self.a
        XU = 16; AR = 48; RB = 180; ACC = 204; ZF = 236; D1 = 252
        G0 = ZF; T = 204; RAW = 180; M = 180; RS = 188; PKD = 196
        vXO=3; vW4=4; vONE=5; vL4=6; vB=7; vYW=8; vYR=9; vT8=10
        vXW=32; RAWC=28; UN=20; vKW=33; vTG=34
        vA = 1; vK3 = 2
        BXB = ZF+8; BXA = ZF+12
        RAW = 16; UN = 36; MS = 180; RS = 188; M = 196; XU = 204; PKD = 36
        XE = self.opt.get("xe", 1)
        self.wait_flag(C_XS, vL4, vTG)
        a(f"""s_cmp_lg_u32 s30, 0
        s_cbranch_scc1 L_XS1
        s_buffer_load_dwordx8 s[16:23], {SQ(rWS)}, s31 {'glc' if self.opt.get('g1') else ''}
        L_XS1:
        v_readfirstlane_b32 s28, v{vTG}
        ds_write_b64 v15, {P(234 if self.opt.get('kb') else 252)} offset:4096
        s_mov_b32 s5, 0
        s_mov_b32 s29, s28
        """)
        al = sum([[f"ds_read_b64 {P(AR+4*d)}, v{vA} offset:{64*d}", f"ds_read_b64 {P(AR+4*d+2)}, v{vA} offset:{64*d+8}"] for d in range(33)], [])
        KB = self.opt.get("kb", 0); KB2 = 120; BX3 = 240; BX5 = 252; BT = 152; BT3 = 168
        if KB: al = al[:36] + sum([[f"ds_read_b64 {P(KB2+8*D+4*h)}, v{vK3} offset:{K2O+1280*h+24+32*D}", f"ds_read_b64 {P(KB2+8*D+4*h+2)}, v{vK3} offset:{K2O+1280*h+24+32*D+640}"] for D in range(3) for h in range(2)], [])
        NA = self.opt.get("na", 30 if KB else 40)
        for l in al[:NA]: a(l)
        a(f"""s_cmp_lg_u32 s30, 0
        s_cbranch_scc1 L_XA
        s_waitcnt lgkmcnt(0)""")
        self.xcmp()
        a(f"""{"s_branch" if self.opt.get("forcex") else "s_cbranch_scc1"} L_XF""")
        self.xloads()
        a("L_XA:")
        self.stamp(3)
        for l in al[NA:]: a(l)
        a("L_XBACK:")
        if self.opt.get("ed"): a("s_movk_i32 s36, 0x3f80\ns_mov_b32 s15, 0x3f800000")
        def xfail():
            a(f"L_XF:\ns_add_u32 s31, s31, 64\ns_buffer_load_dwordx8 s[16:23], {SQ(rWS)}, s31")
            for l in al[NA:]: a(l)
            a(f"""s_branch L_XC
            L_XP:
            s_sleep {self.opt.get("xsl", 2)}
            ds_read_b32 v11, v{vW4} offset:{C_MS}
            s_cmp_ge_u32 s5, {2*self.opt.get("nst", 3)-2-getattr(self, "xn", 0)}
            s_cbranch_scc1 L_XG
            s_add_u32 s31, s31, 64
            s_buffer_load_dwordx8 s[16:23], {SQ(rWS)}, s31
            s_branch L_XH
            L_XG:
            s_buffer_load_dwordx8 s[16:23], {SQ(rWS)}, s31 glc
            L_XH:
            s_add_u32 s5, s5, 1
            s_waitcnt lgkmcnt(0)
            v_cmp_eq_u32 vcc, 1, v11
            s_cbranch_vccnz L_XSLOW
            s_cmp_ge_u32 s5, 0x4000
            s_cbranch_scc1 L_XSLOW
            L_XC:
            s_waitcnt lgkmcnt(0)""")
            self.xcmp()
            a(f"""{"s_branch" if self.opt.get("forcex") else "s_cbranch_scc1"} L_XP""")
            self.xloads()
            self.stamp(3)
            a("s_branch L_XBACK")
        if self.opt.get("sg0") == 0:
            a("v_mov_b32 v204, -1\nv_mov_b32 v205, -1\nv_mov_b32 v206, -1\nv_mov_b32 v207, -1\ns_waitcnt vmcnt(0)")
            for i in range(2): a(f"buffer_store_dwordx4 v[204:207], v{vKW}, {SQ(rWS)}, s{34+i} offen")
        else: a(f"s_waitcnt vmcnt(3)")
        self.stamp(5)
        NRS = 44; NM = 46
        def nunp(k): return sum([self.unp(UN+4*e, UN+4*e+1, RAW+4*k+2*e) + self.unp(UN+4*e+2, UN+4*e+3, RAW+4*k+2*e+1) for e in range(2)], [])
        def nrd(k): return f"ds_read_b64 v[12:13], v{vT8} offset:{MSB+2048*k}"
        def nmath(pk):
            L = self.unp(NRS, NRS+1, 13) + [f"v_rcp_f32 v{NRS}, v{NRS}", f"v_rcp_f32 v{NRS+1}, v{NRS+1}"] + self.unp(NM, NM+1, 12)
            if pk:
                L += [f"v_pk_mul_f32 {P(NM)}, {P(NM)}, {P(NRS)}"]
                L += [f"v_pk_fma_f32 {P(UN+4*e+c)}, {P(UN+4*e+c)}, {P(NRS)}, {P(NM)} op_sel:[0,{e},{e}] op_sel_hi:[1,{e},{e}] neg_lo:[0,0,1] neg_hi:[0,0,1]" for c in (0, 2) for e in range(2)]
            else:
                L += [f"v_mul_f32 v{NM+e}, v{NM+e}, v{NRS+e}" for e in range(2)]
                L += [f"v_fma_f32 v{UN+4*e+c}, v{UN+4*e+c}, v{NRS+e}, -v{NM+e}" for c in range(4) for e in range(2)]
            L += [f"v_cvt_pk_bf16_f32 v{UN+c}, v{UN+4+c}, v{UN+c}" for c in range(4)]
            return L
        def nwr(k): return [f"ds_write2st64_b32 v{vXW}, v{UN+c}, v{UN+c+1} offset0:{18*c+4*(3-k)} offset1:{18*(c+1)+4*(3-k)}" for c in (0, 2)]
        for l in nunp(0): a(l)
        RF = self.opt.get("rf", 0)
        a(f"L_MSW:\nds_read_b32 v11, v{vW4} offset:{C_MS}\n{nrd(0)}\ns_waitcnt lgkmcnt(0)\nv_cmp_eq_u32 vcc, 0, v11\ns_cbranch_vccnz L_MSW")
        self.stamp(4)
        for l in nmath(1) + nwr(0): a(l)
        self.arrive(C_XR, vW4, 11)
        if self.opt.get("cprio", 2) != self.opt.get("kprio", 2): a(f"s_setprio {self.opt.get('cprio', 2)}")

        acc = {nt: ACC+4*nt for nt in range(8)}
        started = set(); ZS = [176, 144, 148, 244] if KB else [236, 240, 252, 248]
        def mf(nt, A, B):
            c = Q(acc[nt]) if nt in started else "0"
            started.add(nt)
            return f"{MFMA} {Q(acc[nt])}, {Q(A)}, {Q(B)}, {c}"
        def itB(u):
            tiles = [nt for nt in range(8) if 0 <= 8*nt-u <= 32]
            return (lambda r: [f"ds_read_b128 {Q(r)}, v{vB} offset:{64*(56-u)}"], lambda r: [mf(nt, AR+4*(8*nt-u), r) for nt in tiles], ("B", u))
        def itBox(S, ty):
            off = 64*(56-8*S) + 16*ty; d = ACC+16+8*min(S, 1)+4*ty
            return (lambda r: [f"ds_read_b128 {Q(r)}, v{vB} offset:{off}"], lambda r: [f"{MFMA} {Q(d)}, {Q(r)}, {Q(BXA if ty else BXB)}, 0"], ("X", S, ty))
        def itK3(D, pairs):
            return (lambda r: [f"ds_read_b64 {P(r)}, v{vK3} offset:{K3O+24+32*D}", f"ds_read_b64 {P(r+2)}, v{vK3} offset:{K3O+24+32*D+640}"],
                    lambda r: [mf(4+Tt, ZS[S], r) for (Tt, S) in pairs], ("K3", D, pairs[0][0]))
        items = [itB(-7), itBox(0,0), itBox(0,1), itB(-6), itBox(1,0), itBox(1,1), itB(-5), itB(-4), itB(-3), itB(-2), itB(-1)]
        for u in range(0, 57):
            items.append(itB(u))
            if u == 9: items += [itBox(2,0), itBox(2,1)]
            if u == 12: items += [itBox(3,0), itBox(3,1)]
            if u == 20: items.append(itK3(0, [(0,0),(1,1)]))
            if u == 28: items.append(itK3(1, [(1,0)]))
            if u == 42: items.append(itK3(0, [(2,2),(3,3)]))
            if u == 45: items.append(itK3(1, [(2,1),(3,2)]))
            if u == 47: items.append(itK3(2, [(2,0),(3,1)]))
            if u == 51: items.append(itK3(3, [(3,0)]))
        if KB:
            O = self.opt.get
            def bxm(S, ty, r): return [f"{MFMA} {Q(BT+8*ty)}, {Q(r)}, {Q(BX3)}, 0", f"{MFMA} {Q(BT+8*ty+4)}, {Q(r)}, {Q(BX5)}, 0"] + ([f"{MFMA} {Q(BT3+4*ty)}, {Q(r)}, {Q(BXA if ty else BXB)}, 0"] if S < 4 else [])
            def itB(u):
                tiles = [nt for nt in range(8) if 0 <= 8*nt-u <= 16 or 8*nt-u == 32]
                return (lambda r: [f"ds_read_b128 {Q(r)}, v{vB} offset:{64*(56-u)}"], lambda r: [mf(nt, AR+4*min(8*nt-u, 17), r) for nt in tiles], ("B", u))
            def itBox(S, ty): return (lambda r: [f"ds_read_b128 {Q(r)}, v{vB} offset:{64*(56-8*S) + 16*ty}"], lambda r: bxm(S, ty, r), ("X", S, ty))
            def itK2(S, h): return (None, lambda r: [mf(S+2+D, BT+8*h+2, KB2+8*D+4*h) for D in range(3) if S+2+D < 8], ("K2", S, h))
            XP_ = [O("x0", -7), O("x1", -1), O("x2", 10), O("x3", 17), O("x4", 26), O("x5", 36)]; KD_ = O("k2d", 3)
            K3P = {O("k3a", 22): (0, [(0,0),(1,1)]), O("k3b", 31): (1, [(1,0)]), 42: (0, [(2,2),(3,3)]), 45: (1, [(2,1),(3,2)]), 47: (2, [(2,0),(3,1)]), 51: (3, [(3,0)])}
            items = []; share = {}
            for u in range(-7, 57):
                items.append(itB(u))
                for S in range(6):
                    if u == XP_[S]:
                        items.append(itBox(S, 0))
                        if u == 8*S: share[("X", S, 0)] = ("B", u)
                    if u == XP_[S]+1: items.append(itBox(S, 1))
                    if u == XP_[S]+O(f"kd{S}", KD_): items.append(itK2(S, 0))
                    if u == XP_[S]+O(f"kd{S}", KD_)+O(f"ke{S}", 1): items.append(itK2(S, 1))
                if u in K3P: items.append(itK3(*K3P[u]))
            if O("k3s", 1): share[("K3", 0, 2)] = ("K3", 0, 0); share[("K3", 1, 2)] = ("K3", 1, 1)
            items = [(None,) + it[1:] if it[2] in share else it for it in items]
        pos = {it[2]: k for k, it in enumerate(items)}
        fill = {}; front = {}; dead = {}
        NR = 6; PD = self.opt.get("pd", 5)
        def addf(idx, L): fill.setdefault(idx, []).extend(L)
        def mark(name, idx): dead.setdefault(idx, []).append(name); return [("mark", name)]
        def zc(S):
            d = BT3 if KB else ACC+16+8*min(S, 1)
            z = ZS[S]
            return [f"v_cvt_pk_bf16_f32 v{z}, v{d+3}, v{d+2}", f"v_cvt_pk_bf16_f32 v{z+1}, v{d+1}, v{d}",
                    f"v_cvt_pk_bf16_f32 v{z+2}, v{d+7}, v{d+6}", f"v_cvt_pk_bf16_f32 v{z+3}, v{d+5}, v{d+4}"]
        def norm(k, vm): return [("lds", f"m{k}", nrd(k))] + ([f"s_waitcnt vmcnt({vm})"] if vm is not None else []) + nunp(k) + [("need", f"m{k}")] + nmath(0) + [("lds", None, l) for l in nwr(k)]
        addf(0, norm(1, 2) + [("rawlds", self.arr(C_KD, vW4, vONE))])
        addf(pos[("B",-5)], zc(0) + zc(1) + mark("z1", pos[("B",0)]))
        addf(pos[("B",0)], norm(2, 0) + ([("raw", self.refresh())] if RF == 4 else []))
        front[pos[("B",11)]] = zc(2) + mark("z2", pos[("X",3,0)])
        front[pos[("B",14)]] = zc(3) + mark("z3", pos[("B",16)])
        YF = [C_Y0, C_Y1, C_Y2, C_Y3]
        def ywrite(k):
            return [("lds", None, f"ds_write_b128 v{vYW}, {Q(acc[nt])} offset:{1024*nt}") for nt in (2*k, 2*k+1)] + [("rawlds", self.arr(YF[k], vW4, vONE))]
        def yread(k, tag):
            return [("lds", tag, f"ds_read_b64 {P(ACC+8*k+2*c)}, v{vYR} offset:{c*8192+2048*k}") for c in range(4)]
        def eaddr(k, e):
            fl = 12 + k//2; sh = 24 - 8*(2*(k%2)+e)
            if sh: return [f"v_lshlrev_b32 v{14+e}, {sh}, v{fl}", f"v_and_or_b32 v{14+e}, v{14+e}, s68, v{vXO}"]
            return [f"v_and_or_b32 v{14+e}, v{fl}, s68, v{vXO}"]
        def emath(k):
            Y = ACC+8*k; L = []
            if self.opt.get("ed"):
                for e in range(2):
                    for c in range(4): L.append(f"v_dot2_f32_bf16 v{UN+4*e+c}, v{RAW+4*k+2*e+c//2}, s{15 if c%2 else 36}, v{Y+2*c+e}")
                for e in range(2):
                    L.append(f"v_cvt_pk_bf16_f32 v{Y+2*e}, v{UN+4*e}, v{UN+4*e+1}")
                    L.append(f"v_cvt_pk_bf16_f32 v{Y+2*e+1}, v{UN+4*e+2}, v{UN+4*e+3}")
                return L
            for e in range(2):
                L += self.unp(UN+4*e, UN+4*e+1, RAW+4*k+2*e) + self.unp(UN+4*e+2, UN+4*e+3, RAW+4*k+2*e+1)
            for e in range(2):
                for c in range(4): L.append(f"v_add_f32 v{UN+4*e+c}, v{Y+2*c+e}, v{UN+4*e+c}")
            for e in range(2):
                L.append(f"v_cvt_pk_bf16_f32 v{Y+2*e}, v{UN+4*e}, v{UN+4*e+1}")
                L.append(f"v_cvt_pk_bf16_f32 v{Y+2*e+1}, v{UN+4*e+2}, v{UN+4*e+3}")
            return L
        def est(k, e):
            if self.opt.get("nost"): return []
            return [f"buffer_store_dwordx2 {P(ACC+8*k+2*e)}, v{14+e}, {SQ(rOUT)}, s{sO+k} offen offset:{2048*e} {'sc1' if (k >= DQ and self.opt.get('dsc')) else ''}"]
        DQ = self.opt.get("dq", 3)
        def yst(k):
            if k >= DQ: return eaddr(k, 0) + eaddr(k, 1) + est(k, 0) + est(k, 1)
            if self.opt.get("noy") and k < 3: return [f"L_EB{k}:", "s_add_u32 s13, s13, 0x1000"]
            return ["s_cmp_lg_u32 s14, 2", f"s_cbranch_scc1 L_ES{k}", f"buffer_store_dwordx4 {Q(ACC+8*k)}, v{vKW}, {SQ(rWS)}, s13 offen", f"L_EB{k}:", "s_add_u32 s13, s13, 0x1000"]
        YFM = self.opt.get("yfm", 1); CT = self.opt.get("ct")
        def yfl(k):
            if k >= DQ: return []
            if YFM: return ["s_waitcnt vmcnt(1)", "s_mov_b64 exec, 1", f"buffer_store_dword v{vTG}, off, {SQ(rWS)}, s12 offset:{512*k}", "s_mov_b64 exec, -1"]
            if self.opt.get("nyw") and k < 2: return ["s_mov_b64 exec, 1", f"buffer_store_dword v{vTG}, off, {SQ(rWS)}, s12 offset:{512*k}", "s_mov_b64 exec, -1"]
            return ["s_waitcnt vmcnt(0)", "s_mov_b64 exec, 1", f"buffer_store_dword v{vTG}, off, {SQ(rWS)}, s12 offset:{512*k}", "s_mov_b64 exec, -1"]
        def check(n, regs):
            L = []
            if len(regs) == 2: L.append(f"v_min_u32 v{regs[0]}, v{regs[0]}, v{regs[1]}")
            L += [f"v_cmp_eq_u32 vcc, 0, v{regs[0]}", f"s_cbranch_vccnz L_SLOW{n}", f"L_BACK{n}:"]
            return [("raw", L)]
        front[pos[("B", 9)]-PD-3] = [("lds", "n1", f"ds_read_b32 v11, v{vL4} offset:{C_KD}")]
        front[pos[("B", 9)]-PD-1] = [("need", "n1")] + check(3, [11]) + mark("n1", pos[("B", 9)]-PD)
        for k in range(3):
            p = pos[("B", 16*k+8)]
            d = (1, 3, 4, 6, 8, 14) if k < 2 else (1, 4, 6, 9, 12, 17)
            addf(p+d[0], ywrite(k))
            fr = [("lds", f"f{k}", f"ds_read_b32 v11, v{vL4} offset:{YF[k]}")]
            KS = min(DQ, 2)
            if k == KS: fr.append(("lds", f"f{k}", f"ds_read_b32 v15, v{vL4} offset:{C_SEL}"))
            addf(p+d[1], fr)
            addf(p+d[2], [("need", f"f{k}")] + check(k, [11, 15] if k == KS else [11]) + (mark(f"c{k}", pos[("B", 16*k+25)]-PD) if k < 2 else []) + ([("lds", f"y{k}", f"ds_read_b64 v[12:13], v{vT8} offset:{SELF}")] if k == KS else []) + yread(k, f"y{k}"))
            addf(p+d[3], [("need", f"y{k}")] + emath(k) + [("raw", yst(k))])
            if k == 0: addf(p+d[3], norm(3, None))
            if k < 2 and RF >> k & 1: addf(p+d[3], [("raw", self.refresh())])
            if CT == 2:
                TD = 204; vTA = 212; vOA = 213; vFA = 214; vF = 215; SF = 216; vSA = 217; OA = 218; t0 = 16
                fl = f"buffer_load_dword v{vF}, v{vFA}, {SQ(rWS)}, s34 offen sc1"
                if k == 1:
                    addf(p+d[3], f"""v_bfe_u32 v{t0}, v0, 4, 1
                    v_lshrrev_b32 v{t0+1}, 5, v0
                    v_and_b32 v{t0+2}, 15, v0
                    v_lshl_add_u32 v{vSA}, v{t0}, 3, s36
                    v_lshl_add_u32 v{vTA}, v{t0+2}, 1, v{t0+1}
                    v_lshlrev_b32 v{vTA}, 14, v{vTA}
                    v_lshl_add_u32 v{vTA}, v{t0}, 4, v{vTA}
                    v_lshl_add_u32 v{vOA}, v{t0}, 1, v{t0+1}
                    v_lshlrev_b32 v{vOA}, 11, v{vOA}
                    v_lshl_add_u32 v{vOA}, v{t0+2}, 4, v{vOA}
                    v_add_u32 v{vOA}, s35, v{vOA}
                    v_and_b32 v{vFA}, 31, v0
                    v_lshlrev_b32 v{vFA}, 2, v{vFA}
                    v_lshlrev_b32 v{t0+1}, 3, v{t0+1}""".split("\n"))
                    addf(pos[("B", self.opt.get("fa", 39))], [("raw", ["s_waitcnt vmcnt(0)"] + yfl(0)[1:])])
                if k == 2:
                    addf(p+d[2], [("lds", "y2", f"ds_read_b32 v{SF}, v{vSA} offset:{SELF}")])
                    fill[p+d[3]].insert(self.opt.get("fb", 1), fl)
            elif CT:
                if k == 2: addf(p+self.opt.get("fa", 2), [("raw", ["s_waitcnt vmcnt(0)"] + yfl(0)[1:])])
            elif YFM:
                if k: addf(p+d[3], [("raw", yfl(k-1))])
            elif k < 2: addf(p+d[5]+self.opt.get("yfd", 10), [("raw", yfl(k))])
        if self.opt.get("sch", 1):
            self.conv2(locals()); xfail()
            a("L_XSLOW:")
            for i in range(8): a(f"buffer_load_dwordx2 {P(RAW+2*i)}, v{vXO}, {SQ(rX)}, s{sO+i//2} offen offset:{2048*(i%2)}")
            a("s_waitcnt vmcnt(0)\ns_branch L_XBACK")
            return
        issued = []; done = [0]
        def lds(tag, text): a(text); issued.append(tag)
        def need(tag):
            last = max(i for i, t in enumerate(issued) if t == tag)
            if last >= done[0]:
                n = min(len(issued) - 1 - last, 15)
                a(f"s_waitcnt lgkmcnt({n})"); done[0] = len(issued) - n
        slot = lambda k: RB + 4*(k % NR)
        a(f"L_XRW:\nds_read_b32 v15, v{vL4} offset:{C_XR}")
        for k in range(PD):
            for l in items[k][0](slot(k)): lds(("it", k), l)
        a(f"s_waitcnt lgkmcnt({PD})\nv_cmp_eq_u32 vcc, 0, v15\ns_cbranch_vccnz L_XRW")
        a("v_cmp_ne_u32 vcc, 2, v15\ns_cmp_eq_u32 vcc_lo, 0\ns_cselect_b32 s14, 2, 1")
        self.stamp(6)
        if "cp0" not in self.opt: self.cst(14)
        queue = []; passed = set()
        def drain(n):
            while queue and n > 0:
                e = queue.pop(0)
                if isinstance(e, str): a(e); n -= 1
                elif e[0] == "need": need(e[1])
                elif e[0] == "mark": passed.add(e[1])
                elif e[0] == "lds": lds(e[1], e[2]); n -= 1
                elif e[0] == "raw":
                    for l in e[1]: a(l)
                    n -= 2
                elif e[0] == "rawlds":
                    for l in e[1]: a(l)
                    issued.append(None); n -= 2
        for k, it in enumerate(items):
            for nm in dead.get(k, []):
                while nm not in passed:
                    if queue[0][0] != "mark": print("; deadline drain", nm, queue[0], file=sys.stderr)
                    drain(1)
            if "cp0" in self.opt:
                st_ = self.opt.get("cps", 3)
                if (k - self.opt["cp0"]) % st_ == 0 and 0 <= (k - self.opt["cp0"])//st_ < 6: self.cst(10 + (k - self.opt["cp0"])//st_)
            else:
              for u_, i_ in ((0, 10), (16, 11), (32, 12), (44, 13)):
                if it[2] == ("B", u_): self.cst(i_)
            queue += fill.get(k, [])
            queue[0:0] = front.get(k, [])
            need(("it", k))
            ms = it[1](slot(k))
            for j, m in enumerate(ms):
                a(m)
                if j == 0 and k+PD < len(items):
                    for l in items[k+PD][0](slot(k+PD)): lds(("it", k+PD), l)
                    if len(ms) == 1 or k > pos[("B", 40)]: drain(1)
                else: drain(2 if k > pos[("B", 40)] or k < pos[("B", 0)] else 1 + (len(queue) > 8))
            if it[2] == ("B", 49): lds(None, f"ds_write_b128 v{vYW}, {Q(acc[6])} offset:{1024*6}")
        drain(1000)
        if "cp0" not in self.opt or self.opt["cp0"] + 5*self.opt.get("cps", 3) >= len(items): self.cst(15)
        self.stamp(7)
        a(f"ds_write_b128 v{vYW}, {Q(acc[7])} offset:{1024*7}")
        self.arrive(C_Y3, vW4, vONE)
        if not YFM:
            for l in yfl(2): a(l)
        em = emath(3)
        if CT == 2:
            tl = lambda k: f"buffer_load_dwordx4 {Q(TD+4*k)}, v{vTA}, {SQ(rWS)}, s{32+k} offen sc1"
            ts = lambda k: f"v_permlane32_swap_b32 v{TD+4*k}, v{TD+4*k+2}\nv_permlane32_swap_b32 v{TD+4*k+1}, v{TD+4*k+3}\nbuffer_store_dwordx4 {Q(TD+4*k)}, v{OA+k}, {SQ(rOUT)}, s{sO+k} offen {'sc1' if self.opt.get('osc', 1) else ''}"
            a(f"""s_waitcnt vmcnt(2)
            v_cmp_ne_u32 s[20:21], v{vTG}, v{vF}
            v_lshrrev_b32 v{SF}, v{t0+1}, v{SF}
            s_cmp_lg_u32 s20, 0
            s_cbranch_scc1 L_TN
            {tl(0)}
            {tl(1)}
            L_TN:
            v_lshlrev_b32 v{OA}, 24, v{SF}
            v_lshlrev_b32 v{OA+1}, 8, v{SF}
            v_and_or_b32 v{OA}, v{OA}, s68, v{vOA}
            v_and_or_b32 v{OA+1}, v{OA+1}, s68, v{vOA}""")
        for l in em[:8]: a(l)
        self.wait_flag(C_Y3, vL4, 11)
        for e in yread(3, None): a(e[2])
        a("s_waitcnt lgkmcnt(0)")
        for l in em[8:] + yst(3): a(l)
        self.stamp(8)
        if CT == 2:
            a(f"""
            s_cmp_lg_u32 s14, 2
            s_cbranch_scc1 L_FIN
            s_mov_b32 s21, 0
            s_cmp_eq_u32 s20, 0
            s_cbranch_scc1 L_TC
            L_TP:
            {fl}
            s_add_u32 s21, s21, 1
            s_waitcnt vmcnt(0)
            v_cmp_ne_u32 vcc, v{vTG}, v{vF}
            s_cbranch_vccz L_TALL
            s_sleep {self.opt.get("tsl", 1)}
            s_cmp_lt_u32 s21, 0x4000
            s_cbranch_scc1 L_TP
            L_TALL:
            {tl(0)}
            {tl(1)}
            s_waitcnt vmcnt(0)
            L_TC:
            s_waitcnt vmcnt(2)
            """)
            self.stamp(11)
            a(f"{ts(0)}\n{ts(1)}")
            if self.stamps: a("s_waitcnt vmcnt(0)")
            self.stamp(12)
        elif CT == 3:
            a("s_cmp_lg_u32 s14, 2\ns_cbranch_scc1 L_CNL")
            self.tsetup(2, K0, KREG, 64, 16)
            a("s_waitcnt vmcnt(0)")
            for l in yfl(1)[1:]: a(l)
            self.stamp(9)
            self.tpoll(64, 16, f"v{vTG}", self.opt.get("tsl", 1))
            self.tload(64, 16, 48)
            self.arrive(C_TL, vW4, vONE)
            if not self.opt.get("cst"): self.stamp(11)
            self.tstore(64, 16, 48)
            if self.stamps: a("s_waitcnt vmcnt(0)")
            self.stamp(12)
            a("s_branch L_FIN\nL_CNL:")
            self.arrive(C_TL, vW4, vONE)
        elif CT:
            TD = 48; vTA = 64; vOA = 65; vFA = 66; vF = 67; SF = 68; OA = 70; t0 = 74
            a(f"""
            s_cmp_lg_u32 s14, 2
            s_cbranch_scc1 L_FIN
            s_lshr_b32 s6, s2, 3
            s_and_b32 s5, s2, 7
            s_lshl_b32 s7, s6, 2
            s_add_u32 s7, s7, s58
            v_bfe_u32 v{t0}, v0, 4, 1
            v_lshrrev_b32 v{t0+1}, 5, v0
            v_and_b32 v{t0+2}, 15, v0
            s_lshl_b32 s8, s7, 4
            v_lshl_add_u32 v{t0+3}, v{t0}, 3, s8
            ds_read_b64 {P(SF)}, v{t0+3} offset:{SELF}
            v_lshl_add_u32 v{vTA}, v{t0+2}, 1, v{t0+1}
            v_lshlrev_b32 v{vTA}, 14, v{vTA}
            v_lshl_add_u32 v{vTA}, v{t0}, 4, v{vTA}
            v_lshl_add_u32 v{vOA}, v{t0}, 1, v{t0+1}
            v_lshlrev_b32 v{vOA}, 11, v{vOA}
            v_lshl_add_u32 v{vOA}, v{t0+2}, 4, v{vOA}
            s_lshl_b32 s8, s7, 13
            s_lshl_b32 s9, s5, 8
            s_add_u32 s8, s8, s9
            v_add_u32 v{vOA}, s8, v{vOA}
            v_and_b32 v{vFA}, 31, v0
            v_lshlrev_b32 v{vFA}, 2, v{vFA}
            v_lshl_add_u32 v{vFA}, v{t0+1}, 9, v{vFA}
            s_lshl_b32 s16, s5, 19
            s_lshl_b32 s8, s7, 5
            s_add_u32 s16, s16, s8
            s_add_u32 s16, s16, {WS_XT}
            s_add_u32 s17, s16, 0x1000
            s_add_u32 s18, s16, 0x2000
            s_add_u32 s19, s16, 0x3000
            s_lshl_b32 s20, s5, 12
            s_lshr_b32 s8, s6, 3
            s_lshl_b32 s8, s8, 7
            s_add_u32 s20, s20, s8
            s_add_u32 s20, s20, {WS_FL3}
            v_lshlrev_b32 v{t0+1}, 3, v{t0+1}
            s_mov_b32 s21, 0
            s_mov_b32 s22, 0
            s_waitcnt lgkmcnt(0)
            v_lshrrev_b32 v{SF}, v{t0+1}, v{SF}
            v_lshrrev_b32 v{SF+1}, v{t0+1}, v{SF+1}
            """)
            for k in range(4): a(f"v_lshlrev_b32 v{OA+k}, {24 if k % 2 == 0 else 8}, v{SF+k//2}")
            for k in range(4): a(f"v_and_or_b32 v{OA+k}, v{OA+k}, s68, v{vOA}")
            a("s_waitcnt vmcnt(0)")
            for l in yfl(1)[1:]: a(l)
            self.stamp(9)
            tl = lambda k: f"buffer_load_dwordx4 {Q(TD+4*k)}, v{vTA}, {SQ(rWS)}, s{16+k} offen sc1"
            ts = lambda k: f"v_permlane32_swap_b32 v{TD+4*k}, v{TD+4*k+2}\nv_permlane32_swap_b32 v{TD+4*k+1}, v{TD+4*k+3}\nbuffer_store_dwordx4 {Q(TD+4*k)}, v{OA+k}, {SQ(rOUT)}, s{sO+k} offen {'sc1' if self.opt.get('osc', 1) else ''}"
            a(f"""
            L_TP:
            buffer_load_dword v{vF}, v{vFA}, {SQ(rWS)}, s20 offen sc1
            s_add_u32 s21, s21, 1
            s_waitcnt vmcnt(0)
            v_cmp_ne_u32 vcc, v{vTG}, v{vF}
            s_cmp_eq_u32 vcc_hi, 0
            s_cbranch_scc1 L_TALL
            s_or_b32 s8, vcc_lo, s22
            s_cbranch_scc1 L_TSL
            s_bcnt1_i32_b32 s8, vcc_hi
            s_cmp_lt_u32 s8, {self.opt.get("tth", 0)}
            s_cbranch_scc1 L_TSL
            {tl(0)}
            {tl(1)}
            s_mov_b32 s22, 1
            s_waitcnt vmcnt(1)
            {ts(0)}
            s_waitcnt vmcnt(1)
            {ts(1)}
            L_TSL:
            s_sleep {self.opt.get("tsl", 1)}
            s_cmp_lt_u32 s21, 0x4000
            s_cbranch_scc1 L_TP
            L_TALL:
            {tl(2)}
            {tl(3)}
            """)
            self.stamp(11)
            a(f"""
            s_cmp_lg_u32 s22, 0
            s_cbranch_scc1 L_TB
            {tl(0)}
            {tl(1)}
            s_waitcnt vmcnt(0)
            {ts(0)}
            {ts(1)}
            s_branch L_TC
            L_TB:
            s_waitcnt vmcnt(0)
            L_TC:
            {ts(2)}
            {ts(3)}
            """)
            if self.stamps: a("s_waitcnt vmcnt(0)")
            self.stamp(12)
        else:
            if YFM:
                for l in yfl(2): a(l)
            for l in yfl(3): a(l)
            if self.stamps or self.opt.get("gamp") == 9:
                a("s_waitcnt vmcnt(0)")
                self.stamp(9)
        a("s_branch L_FIN")
        for n in range(3):
            a(f"L_SLOW{n}:")
            self.wait_flag(YF[n], vL4, 11)
            if n == KS: self.wait_flag(C_SEL, vL4, 11)
            a(f"s_branch L_BACK{n}")
        a("L_SLOW3:")
        self.wait_flag(C_KD, vL4, 11)
        a("s_branch L_BACK3")
        for k in range(DQ):
            a(f"L_ES{k}:")
            if k < KS:
                self.wait_flag(C_SEL, vL4, 11)
                a(f"ds_read_b64 v[12:13], v{vT8} offset:{SELF}\ns_waitcnt lgkmcnt(0)")
            for l in eaddr(k, 0) + eaddr(k, 1) + est(k, 0) + est(k, 1): a(l)
            a(f"s_branch L_EB{k}")
        xfail()
        a("L_XSLOW:")
        for i in range(8): a(f"buffer_load_dwordx2 {P(RAW+2*i)}, v{vXO}, {SQ(rX)}, s{sO+i//2} offen offset:{2048*(i%2)}")
        a("s_waitcnt vmcnt(0)\ns_branch L_XBACK")

    def conv2(self, E):
        a = self.a; O = self.opt.get; SB = self.SB
        items, pos, acc, started = E["items"], E["pos"], E["acc"], E["started"]
        AR, RB, ACC, UN, RAW = E["AR"], E["RB"], E["ACC"], E["UN"], E["RAW"]
        vW4, vONE, vL4, vYW, vYR, vT8, vKW, vTG = (E[k] for k in "vW4 vONE vL4 vYW vYR vT8 vKW vTG".split())
        nrd, nunp, nmath, nwr, zc, emath, yread, eaddr, est, YF = (E[k] for k in "nrd nunp nmath nwr zc emath yread eaddr est YF".split())
        LAT = O("lat", 6); DMIN = O("dmin", 18); DMAX = O("dmax", 24); WB = O("wb", 4); FD = O("fd", 4); NX = O("nx", 1); BUD = O("bud", 2); TH = O("th", 1)
        cnt = [len(it[1](0)) for it in items]; started.clear()
        g0 = [sum(cnt[:k]) for k in range(len(items)+1)]; NM = g0[-1]
        G = lambda key: g0[pos[key]]
        op = lambda t, c=1, lds=(), name=None, at=0, aft={}, need=None, src=None: dict(t=[t] if isinstance(t, str) else t, c=c, lds=list(lds), name=name, at=at, aft=dict(aft), need=need, src=src)
        mline = {}
        V = lambda L, **k: [op(l, 2 if l.startswith("v_rcp") else 1, **(k if i == 0 else {})) for i, l in enumerate(L)]
        def flag(off, name, **k):
            if NX: return op(f"ds_write_b32 v{vW4}, v{vONE} offset:{off}", 1, [None], name, **k)
            return op(self.arr(off, vW4, vONE), 3, [None], name, **k)
        def norm(k, vm, **kw):
            return [op(nrd(k), 1, [f"m{k}"], f"m{k}", **kw)] + ([op(f"s_waitcnt vmcnt({vm})", name=f"vm{k}")] if vm is not None else []) + V(nunp(k)) + [op([], 0, need=f"m{k}", aft={f"m{k}": LAT})] + V(nmath(0)) + [op(l, 2, [None], f"n{k}w" if i else None) for i, l in enumerate(nwr(k))]
        def check(off, n, name, **kw):
            return [op(f"ds_read_b32 v11, v{vL4} offset:{off}", 1, [name+"r"], name+"r", **kw), op([], 0, need=name+"r", aft={name+"r": LAT}), op("v_cmp_eq_u32 vcc, 0, v11", name=name+"c"),
                    op([f"s_cbranch_vccnz L_SLOW{n}", f"L_BACK{n}:"], 1, name=name, aft={name+"c": 1})]
        yw = lambda nt, **kw: op(f"ds_write_b128 v{vYW}, {Q(acc[nt])} offset:{1024*nt}", WB, [None], f"W{nt}", src=G(("B", 8*nt)), **kw)
        st = lambda k: f"buffer_store_dwordx4 {Q(ACC+8*k)}, v{vKW}, {SQ(rWS)}, s{32+k} offen {'sc1' if O('ysc', 0) >> k & 1 else ''}"
        U = norm(1, 2) + [flag(C_KD, "kd")] + norm(2, 0 if O("sg0") != 0 else None)
        if O("n3e"): U += norm(3, None)
        S = [yw(0)] + check(C_KD, 3, "n1", aft={"kd": O("kdd", 8)})
        for k in range(3):
            em = emath(k)
            NU = 0 if O("ed") else 8
            U += V(em[:NU]) + [op([], 0, need=f"y{k}", aft={f"y{k}": LAT})] + V(em[NU:]) + [op(st(k), 2, name=f"st{k}")]
            if k == 0 and not O("n3e"): U += norm(3, None)
            if k: S += [yw(2*k)]
            S += [yw(2*k+1), flag(YF[k], f"f{k}", aft={f"n{k+2}w": 0} if k < 2 else {})] + check(YF[k], k, f"c{k}", aft={f"f{k}": FD}) + [op(e[2], 1, [f"y{k}"], f"y{k}" if i == 3 else None) for i, e in enumerate(yread(k, None))]
            if k == 1 and TH: S += check(C_SEL, 4, "sel")
        S += [yw(6)]
        TV = 172 if TH else 64; T = []
        if TH:
            k0_ = len(a.lines); self.tsetup(2, K0, KREG, TV, 16); TL_ = [l.strip() for l in a.lines[k0_:] if l.strip()]; del a.lines[k0_:]
            if E["KB"]: TV = self.TVM; TL_ = self.TLate
            for l in TL_:
                if l.startswith("ds_"): T.append(op(l, 1, ["ts"], "ts", aft={"sel": 0}))
                elif l.startswith("s_waitcnt"): T.append(op([], 0, need="ts", aft={"ts": LAT}))
                else: T.append(op(l))
            T[0]["at"] = g0[pos[("B", 25)]+1] + 1
        KB = E["KB"]; BT = E["BT"]; share = E.get("share", {})
        def z2(S, h):
            d = BT+8*h
            return V([f"v_cvt_pk_bf16_f32 v{d+2}, v{d+3}, v{d+2}", f"v_cvt_pk_bf16_f32 v{d+3}, v{d+1}, v{d}"], src=G(("X", S, h))) + V([f"v_cvt_pk_bf16_f32 v{d+5}, v{d+5}, v{d+4}", f"v_cvt_pk_bf16_f32 v{d+4}, v{d+7}, v{d+6}"], src=G(("X", S, h))+1) + [op([], 0, name=f"y{S}{h}z")]
        if KB:
            Z = []
            for i in range(6):
                Z += z2(i, 0) + (V(zc(i)[:2], src=G(("X", i, 0))+2) if i < 4 else []) + z2(i, 1) + (V(zc(i)[2:], src=G(("X", i, 1))+2) + [op([], 0, name=f"z{i}")] if i < 4 else [])
            if TH: T[0]["at"] = 0; T[0]["aft"]["z3"] = 0
        else: Z = sum([V(zc(i), src=G(("X", i, 0))) + [op([], 0, name=f"z{i}")] for i in range(4)], [])
        fl = lambda k: ["s_mov_b64 exec, 1", f"buffer_store_dword v{vTG}, off, {SQ(rWS)}, s12 offset:{512*k}", "s_mov_b64 exec, -1"]
        A = [op("s_waitcnt vmcnt(0)", at=O("fag", 203), aft={"st1": 1}), op(fl(0), 3, name="fa")]
        SEN = O("sen", 1); SR = acc[5]; N_ = []
        fld = lambda o: ["s_mov_b32 exec_hi, 0", f"buffer_load_dword v{TV+5}, v{TV+7}, {SQ(rWS)}, s{SB+6} offen sc1", "s_mov_b32 exec_hi, -1"]
        if SEN:
            assert TH
            SG = O("sg0", 173)
            if 0 < SG < 60: Z[10:10] = V([f"v_mov_b32 v{SR+i}, -1" for i in range(4)], at=SG) + [op(f"buffer_store_dwordx4 {Q(SR)}, v{vKW}, {SQ(rWS)}, s{34+i} offen", 2, name="sen", aft={"vm2": 0}) for i in range(2)]
            elif SG:
                SR = ACC+4
                A[0]["aft"]["sen"] = 1
                (N_ if KB else Z).extend(V([f"v_mov_b32 v{SR+i}, -1" for i in range(4)], aft={"st0": 0}, at=O("sgm", 0)) + [op(f"buffer_store_dwordx4 {Q(SR)}, v{vKW}, {SQ(rWS)}, s{34+i} offen", 2, name="sen" if i else None, at=SG+O("sgd", 0)*i) for i in range(2)])
            T += ([] if KB else [op("s_sub_u32 s22, s20, 512")]) + [op(f"v_mov_b32 v{TV+5}, v{vTG}", name="tsd")]
            A += [op(fld(0), 3, name="fl", at=O("flg", 222), aft={"tsd": 1})]
        chains = [S, Z, N_, T, A, U] if KB else [S, Z, A, U, T]
        zdead = {G(("B", 8))+2: "sen" if SEN and 0 < SG < 60 else "z0", G(("B", 0))+4: "z0", G(("X", 2, 0)): "z1", G(("X", 3, 0)): "z2", G(("B", 16))+4: "z3"}
        if KB:
            zdead = {G(("K2", i, h)): f"y{i}{h}z" for i in range(6) for h in range(2)}
            for i in range(1, 4): zdead[G(("X", i, 0))+2] = f"z{i-1}"
            for i in range(1, 6):
                for h in range(2): assert pos[("K2", i-1, h)] < pos[("X", i, h)] and pos[("K2", i, 1)] < pos[("B", 8*i+16)]
            zdead[G(("K3", 0, 0))] = "z1"; zdead[G(("K3", 0, 2))] = "z3"
        def req(k):
            key = items[k][2]
            u = key[1] if key[0] == "B" else 8*key[1] if key[0] == "X" else 0
            return [None, "n1", "c0", "c1"][max(0, (32*u+255)//512)]
        issued = []; itime = []; done = [0]; when = {}; cur = [-1]
        def emit(t, tags):
            for l in t: a(l)
            for tg in tags: issued.append(tg); itime.append(cur[0])
        def need(tag, dry=False):
            last = max(i for i, t in enumerate(issued) if t == tag)
            if last < done[0]: return 0
            if not dry:
                last = max([last] + [i for i, t in enumerate(itime) if t <= cur[0] - LAT])
                n = min(len(issued) - 1 - last, 15)
                a(f"s_waitcnt lgkmcnt({n})"); done[0] = len(issued) - n
            return 1
        free = [(RB+4*i, -1) for i in range(6)]; reg = {}; nxt = [0]
        if KB:
            free.append((E["BT3"], g0[pos[("K2", 3, 1)]+1]+4))
            for r_, key in ((AR+68, ("B", 24)), (E["KB2"]+16, ("K2", 3, 0)), (E["KB2"]+20, ("K2", 3, 1)), (E["KB2"]+8, ("K2", 4, 0)), (E["KB2"]+12, ("K2", 4, 1)), (E["BX3"], ("X", 5, 1)), (E["BX5"], ("X", 5, 1)),
                            (E["KB2"], ("K2", 5, 0)), (E["KB2"]+4, ("K2", 5, 1)), (BT, ("K2", 5, 1)), (BT+4, ("K2", 5, 1)), (BT+8, ("K2", 5, 1)), (BT+12, ("K2", 5, 1))): free.append((r_, g0[pos[key]+1]))
            zdead[g0[pos[("K2", 3, 1)]+1]+4] = "z3"
        for d in range(16 if KB else 30 if TH else 32, 8, -1): free.append((AR+4*d, g0[pos[("B", 56-d)]+1]))
        def can_read():
            while nxt[0] < len(items) and items[nxt[0]][0] is None: reg[nxt[0]] = reg.get(pos.get(share.get(items[nxt[0]][2]))); nxt[0] += 1
            k = nxt[0]
            if k >= len(items): return False
            r = req(k)
            return (r is None or r in when) and any(t <= cur[0] for _, t in free)
        def read():
            k = nxt[0]; nxt[0] += 1
            i = [j for j, (_, t) in enumerate(free) if t <= cur[0]][0]
            reg[k] = free.pop(i)[0]; free.append((reg[k], g0[max([k] + [pos[x] for x, y in share.items() if y == items[k][2]])+1]))
            L = items[k][0](reg[k]); emit(L, [("it", k)]*len(L)); return len(L)
        nins = lambda i: sum(1 for l in a.lines[i:] if l.strip() and not l.strip().endswith(":"))
        def ready(o): return cur[0] >= o["at"] and (o["src"] is None or (o["src"] in mline and nins(mline[o["src"]]) >= 8)) and all(n in when and cur[0] >= when[n] + d for n, d in o["aft"].items())
        def run(ch):
            o = ch.pop(0); c = o["c"]
            if o["need"]: c = need(o["need"])
            emit(o["t"], o["lds"])
            if o["name"]: when[o["name"]] = cur[0]
            return c
        a(f"L_XRW:\nds_read_b32 v15, v{vL4} offset:{C_XR}")
        for k in range(6): can_read(); read()
        a(f"s_waitcnt lgkmcnt(6)\nv_cmp_eq_u32 vcc, 0, v15\ns_cbranch_vccnz L_XRW")
        a("v_cmp_ne_u32 vcc, 2, v15\ns_cmp_eq_u32 vcc_lo, 0\ns_cselect_b32 s14, 2, 1")
        self.stamp(6)
        if "cp0" not in self.opt: self.cst(14)
        over = 0
        for k, it in enumerate(items):
            if "cp0" in self.opt:
                st_ = O("cps", 3)
                if (k - O("cp0")) % st_ == 0 and 0 <= (k - O("cp0"))//st_ < 6: self.cst(10 + (k - O("cp0"))//st_)
            else:
                for u_, i_ in ((0, 10), (16, 11), (32, 12), (44, 13)):
                    if it[2] == ("B", u_): self.cst(i_)
            can_read()
            assert nxt[0] > k, ("item not read", it[2])
            if it[0]:
                if cur[0] - itime[max(i for i, t in enumerate(issued) if t == ("it", k))] < LAT and k > 5: print("; late read", it[2], cur[0], file=sys.stderr)
                need(("it", k))
            for j, m in enumerate(it[1](reg[k])):
                cur[0] += 1
                if cur[0] in zdead: assert zdead[cur[0]] in when, zdead[cur[0]]
                a(m); mline[cur[0]] = len(a.lines)
                bud = BUD + (1 if O('b0', 0) <= cur[0] < O('b1', 0) and cur[0] % O('bm', 2) == 0 else 0)
                if j == cnt[k]-1 and k+1 < len(items) and nxt[0] > k+1 and items[k+1][0]: bud -= need(("it", k+1), True)
                full = bud
                def pick(cs):
                    ch = [c for c in cs if c and ready(c[0]) and ((need(c[0]["need"], True) if c[0]["need"] else c[0]["c"]) <= bud or (bud == full and bud > 0))]
                    return ch[0] if ch else None
                ZU = [Z, U] if not KB else [Z, N_, T, U] if cur[0] >= O("tq", O("tp", 150)) else [Z, N_, U] if cur[0] >= O("tp", 150) else [Z, U, N_]
                rd = lambda D: can_read() and bud > 0 and g0[nxt[0]] - cur[0] <= D
                while True:
                    if rd(LAT+2): bud -= read()
                    elif pick([S, A]): bud -= run(pick([S, A]))
                    elif rd(DMIN): bud -= read()
                    elif pick(ZU): bud -= run(pick(ZU))
                    elif rd(DMAX if cur[0] < O("tg0", 150) else 99): bud -= read()
                    elif pick([T]): bud -= run(T)
                    else: break
                over += max(0, -bud)
        print("; sched over", over, {k: v for k, v in when.items() if k[0] in "cfsWz" or k in ("kd", "n1")}, [len(c) for c in chains], file=sys.stderr)
        cur[0] = 999
        for ch in chains:
            while ch: run(ch)
        em = emath(3)
        for l in em[:NU]: a(l)
        a(f"ds_write_b128 v{vYW}, {Q(acc[7])} offset:{1024*7}")
        if "cp0" not in self.opt or O("cp0") + 5*O("cps", 3) >= len(items): self.cst(15)
        self.stamp(7)
        if NX: a(f"ds_write_b32 v{vW4}, v{vONE} offset:{C_Y3}")
        else: self.arrive(C_Y3, vW4, vONE)
        if TH: a(f"L_Y3W:\nds_read_b32 v14, v{vL4} offset:{C_Y3}")
        else: a(f"L_Y3W:\nds_read2_b32 v[14:15], v{vL4} offset0:{C_Y3//4} offset1:{C_SEL//4}")
        for e in yread(3, None): a(e[2])
        a(f"s_waitcnt lgkmcnt(4)\n{'' if TH else 'v_min_u32 v14, v14, v15'}\nv_cmp_eq_u32 vcc, 0, v14\ns_cbranch_vccnz L_Y3W\ns_waitcnt lgkmcnt(0)")
        for l in em[NU:] + [st(3)]: a(l)
        self.stamp(8)
        a("s_cmp_lg_u32 s14, 2\ns_cbranch_scc1 L_CNL")
        if SEN:
            nv = sum(1 for k in ("st2",) if when[k] > when["fl"]) + 1
            D = 48; tl = lambda i: f"buffer_load_dwordx4 {Q(D+4*i)}, v{TV}, {SQ(rWS)}, s{SB+i} offen sc1"
            a(f"""s_waitcnt vmcnt({nv})
            v_cmp_ne_u32 vcc, v{vTG}, v{TV+5}
            s_cbranch_vccnz L_FAW
            L_FAK:
            {tl(0)}
            {tl(1)}
            s_waitcnt vmcnt(2)""")
            for l in fl(1): a(l)
            self.stamp(9)
            if O("tle", 0) == 1: self.arrive(C_TL, vW4, vONE)
            a(f"""s_waitcnt vmcnt(1)
            L_DP:
            v_max3_u32 v{D+8}, v{D}, v{D+1}, v{D+2}
            v_max3_u32 v{D+9}, v{D+4}, v{D+5}, v{D+6}
            v_max_u32 v{D+8}, v{D+8}, v{D+3}
            v_max_u32 v{D+9}, v{D+9}, v{D+7}
            v_cmp_eq_u32 s[8:9], -1, v{D+8}
            v_cmp_eq_u32 s[10:11], -1, v{D+9}
            s_or_b64 vcc, s[8:9], s[10:11]
            {"s_branch L_DF" if O("forcen") else "s_cbranch_vccnz L_DR"}
            L_DOK:""")
            if not O("tle", 0): self.arrive(C_TL, vW4, vONE)
            if not O("cst"): self.stamp(11)
        else:
            if not TH: self.tsetup(2, K0, KREG, TV, 16)
            a("s_waitcnt vmcnt(0)")
            for l in fl(1): a(l)
            self.stamp(9)
            self.tpoll(TV, SB, f"v{vTG}", O("tsl", 1))
            self.tload(TV, SB, 48)
            self.arrive(C_TL, vW4, vONE)
            if not O("cst"): self.stamp(11)
        self.tstore(TV, SB, 48, mod=O('oc'), novm=SEN)
        if O("tle", 0) >= 2:
            if O("tle") > 2: a(f"s_waitcnt vmcnt({4-O('tle')})")
            self.arrive(C_TL, vW4, vONE)
        if "ag" in self.opt:
            a("v_mov_b32 v11, 2\ns_waitcnt vmcnt(0)"); self.arrive(C_TL, vW4, 11)
        if self.stamps: a("s_waitcnt vmcnt(0)")
        self.stamp(12)
        if SEN:
            a(f"""s_branch L_FIN
            L_DR:
            s_add_u32 s{SB+5}, s{SB+5}, 1
            s_cmp_ge_u32 s{SB+5}, {O("dlim", 48)}
            s_cbranch_scc1 L_DF
            {"s_sleep %d" % O("dsl") if O("dsl", 0) else ""}
            s_cmp_eq_u64 s[8:9], 0
            s_cbranch_scc1 L_DS0
            {tl(0)}
            L_DS0:
            s_cmp_eq_u64 s[10:11], 0
            s_cbranch_scc1 L_DS1
            {tl(1)}
            L_DS1:
            s_waitcnt vmcnt(0)
            s_branch L_DP
            L_DF:
            s_mov_b32 s{SB+5}, 0""")
            self.tpoll(TV, SB, f"v{vTG}", O("tsl", 1))
            self.tload(TV, SB, 48)
            a(f"s_waitcnt vmcnt(0)\ns_branch L_DOK\nL_FAW:\ns_mov_b32 s{SB+7}, 0")
            self.tpoll(TV, SB+2, f"v{vTG}", O("tsl", 1))
            a("s_branch L_FAK")
        a("s_branch L_FIN\nL_CNL:")
        if "ag" in self.opt: a(f"v_mov_b32 v{vONE}, 2")
        self.arrive(C_TL, vW4, vONE)
        a(f"ds_read_b64 v[12:13], v{vT8} offset:{SELF}\ns_waitcnt lgkmcnt(0)")
        for k in range(4):
            for l in eaddr(k, 0) + eaddr(k, 1) + est(k, 0) + est(k, 1): a(l)
        a("s_branch L_FIN")
        for n, off in enumerate(YF[:3] + [C_KD] + ([C_SEL] if TH else [])):
            a(f"L_SLOW{n}:")
            self.wait_flag(off, vL4, 11)
            a(f"s_branch L_BACK{n}")

    def fmain(self):
        a = self.a
        GUR = 112; GUF = 48
        WDR = 176; WDF = 112
        XS = 208
        ACC = 16
        vL4 = 1; vW4 = 2; vPW = 3; vPR = 4; vONE = 5; vRS = 6; vE = 7; vNM = 8; vXO = 9
        PRM = 224; TCH = 216
        sSG = 59; sK = 68
        X0 = 16; W0 = 32; S = 48
        a(f"""
        L_F0:
        s_setprio 2
        s_mov_b32 s{sO+1}, {WS_STAT}
        s_lshl_b32 s7, s2, 2
        s_add_u32 s7, s7, s{sW}
        s_lshl_b32 s13, s2, {7 if self.opt.get("ss") else 6}
        s_add_u32 s13, s13, {WS_STAT}
        s_lshl_b32 s8, s7, 12
        v_and_b32 v10, 31, v0
        v_lshlrev_b32 v10, 4, v10
        v_lshrrev_b32 v11, 5, v0
        v_lshl_add_u32 v11, v11, 11, v10
        v_add_u32 v11, s8, v11
        s_cmp_lt_u32 s6, 28
        s_cselect_b32 s{sROLE}, 1, 0
        s_lshr_b32 s8, s6, 2
        s_add_u32 s9, s5, 3
        s_and_b32 s9, s9, 7
        s_min_u32 s9, s9, 6
        s_cmp_lt_u32 s6, 28
        s_cselect_b32 s8, s8, s9
        s_mul_i32 s{sSG}, s5, 7
        s_add_u32 s{sSG}, s{sSG}, s8
        s_and_b32 s{sK}, s6, 3
        s_lshl_b32 s8, s{sK}, 2
        s_add_u32 s8, s8, s{sW}
        s_lshl_b32 s8, s8, 6
        s_xor_b32 s9, s{sROLE}, 1
        s_lshl_b32 s9, s9, 5
        s_add_u32 s8, s8, s9
        v_lshrrev_b32 v12, 4, v0
        v_lshl_add_u32 v12, v12, 3, s8
        v_lshlrev_b32 v{vXO}, 1, v12
        s_movk_i32 s10, 7168
        v_mul_u32_u24 v14, s10, v12
        v_and_b32 v12, 7, v0
        v_lshl_add_u32 v14, v12, 4, v14
        s_lshl_b32 s8, s{sSG}, 7
        v_add_u32 v14, s8, v14
        v_and_b32 v12, 8, v0
        v_cmp_ne_u32 vcc, 0, v12
        """)
        self.est(6)
        a("s_waitcnt lgkmcnt(0)")
        self.est(7)
        for i in range(4): a(f"global_load_dwordx4 {Q(X0+4*i)}, v11, {SP(sX)} offset:{512*i} {'nt' if self.opt.get('xnt') else ''}")
        self.wsb()
        a(f"s_load_dword s{sTAG}, {SP(sWS)}, 0")
        for i in range(4): a(f"global_load_dwordx4 {Q(W0+4*i)}, v10, {SP(sWR)} offset:{512*i}")
        a(f"""
        v_mov_b32 v12, s{sWGT}
        v_mov_b32 v13, s{sWGT+1}
        v_mov_b32 v10, s{sWU}
        v_mov_b32 v11, s{sWU+1}
        v_cndmask_b32 v12, v12, v10, vcc
        v_cndmask_b32 v13, v13, v11, vcc
        v_add_co_u32 v220, vcc, v12, v14
        s_movk_i32 s20, 7168
        s_mov_b32 s21, 0
        v_addc_co_u32 v221, vcc, 0, v13, vcc
        """)
        self.est(8)
        a("s_barrier")
        self.est(9)
        NE = self.opt.get("ne", 8)
        GA = "v[220:221]"; S1, S2 = "s[20:21]", "s[22:23]"
        gl = []
        for s in range(2):
            for j in range(8):
                gl.append([f"global_load_dwordx4 {Q(GUR+32*s+4*j)}, {GA}, off {'nt' if self.opt.get('gnt') else ''}"] + ([f"v_lshl_add_u64 {GA}, {S1 if j < 7 else S2}, 0, {GA}"] if (s, j) != (1, 7) else []))
        if self.opt.get("nog"): gl = [[x[0].replace("global_load_dwordx4", "global_load_dword").replace(Q(GUR+4*i), f"v{GUR+4*i}")] for i, x in enumerate(gl)]
        TL = 64; TT = 80; RAW = 64; sLOC = 60
        if True:
            self.srd(rX, sX, 0x400000); self.srd(rOUT, sOUT, 0x400000)
            a(f"""
            s_lshl_b32 s8, s6, 17
            s_lshl_b32 s9, s{sW}, 15
            s_add_u32 s8, s8, s9
            s_lshl_b32 s9, s5, 8
            s_add_u32 s8, s8, s9
            s_add_u32 s9, s8, 4096
            v_lshrrev_b32 v10, 4, v0
            v_and_b32 v11, 15, v0
            v_lshlrev_b32 v11, 4, v11
            v_lshl_add_u32 v14, v10, 13, v11
            """)
            for i in range(4): a(f"buffer_load_dwordx4 {Q(TL+4*i)}, v14, {SQ(rX)}, s{8+i//2} offen offset:{2048*(i%2)}")
            GE = self.opt.get("ge", 0); GP_ = self.opt.get("gp", 0)
            def gearly(p):
                if GP_ == p:
                    for i in range(GE): a("\n".join(gl[i]))
            gearly(0)
            a(f"""
            s_mul_i32 s8, s{sW}, {XSTR}
            s_add_u32 s8, s8, {XR0}
            s_movk_i32 s9, 1088
            v_mad_u32_u24 v96, v10, s9, v11
            v_add_u32 v96, s8, v96
            v_and_b32 v10, 7, v0
            v_lshrrev_b32 v11, 3, v0
            s_movk_i32 s9, 544
            v_lshl_add_u32 v97, v11, 3, s8
            v_mad_u32_u24 v97, v10, s9, v97
            v_lshlrev_b32 v98, 4, v10
            v_lshl_add_u32 v98, v11, 14, v98
            s_lshl_b32 s18, s5, 19
            s_lshl_b32 s9, s6, 9
            s_add_u32 s18, s18, s9
            s_lshl_b32 s9, s{sW}, 7
            s_add_u32 s18, s18, s9
            s_add_u32 s18, s18, {WS_XT}
            s_getreg_b32 s19, hwreg(HW_REG_XCC_ID, 0, 4)
            s_mov_b32 s22, {25*7168}
            s_cmp_eq_u32 s{sROLE}, 1
            s_cselect_b32 s22, s22, {(-39*7168)&0xffffffff:#x}
            s_cselect_b32 s23, 0, -1
            s_lshl_b32 s62, s5, 2
            s_bfe_u32 s9, s6, 0x20001
            s_add_u32 s62, s62, s9
            s_lshl_b32 s62, s62, 12
            s_lshr_b32 s9, s6, 3
            s_lshl_b32 s9, s9, 1
            s_add_u32 s62, s62, s9
            s_and_b32 s9, s6, 1
            s_add_u32 s62, s62, s9
            s_lshl_b32 s62, s62, 2
            s_add_u32 s62, s62, {WS_FL2}
            s_lshl_b32 s19, s19, 1
            s_lshl_b32 s9, s5, 2
            s_lshl_b32 s40, 15, s9
            s_mov_b32 s41, s40
            """)
            self.srd(rWS, sWS, WS_SIZE); self.srd(rD, sWD, 3584*2048)
        SS = self.opt.get('ss', 0); T = 224; TP = 16; E = T+8; KP = 32; CR = T+24; XT = 64
        def kpl():
            for i, so in enumerate((sO+1, 5, 6, 7)): a(f"buffer_load_dwordx4 {Q(KP+4*i)}, v{T+2}, {SQ(rWS)}, s{so} offen sc1")
        a(f"""
        s_lshl_b32 s7, s{sW}, 2
        v_mov_b32 v{vW4}, s7
        v_and_b32 v11, 3, v0
        v_lshlrev_b32 v{vL4}, 2, v11
        v_mov_b32 v{vONE}, 1
        s_lshl_b32 s8, s{sW}, 6
        v_add_u32 v14, s8, v0
        v_lshlrev_b32 v{T+2}, 4, v14
        {"v_and_b32 v10, -4, v14" if SS else ""}
        {"v_lshl_add_u32 v%d, v10, 4, v%d" % (T+2, T+2) if SS else ""}
        v_lshlrev_b32 v105, 4, v11
        v_lshrrev_b32 v63, 2, v0
        v_lshl_add_u32 v63, v63, 14, v105
        s_lshl_b32 s4, s5, 14
        v_add_u32 v223, {"s4" if self.opt.get("sm", 2) == 1 else 0}, v{T+2}
        s_mov_b32 s5, {WS_STAT+(0x1000<<SS)}
        s_mov_b32 s6, {WS_STAT+(0x2000<<SS)}
        s_mov_b32 s7, {WS_STAT+(0x3000<<SS)}
        """)
        vWD = 222
        a(f"""
        s_cmp_lg_u32 s{sW}, 0
        s_cbranch_scc1 L_NOZ
        v_lshlrev_b32 v{T}, 4, v0
        v_mov_b32 v{T+4}, 0
        v_mov_b32 v{T+5}, 0
        v_mov_b32 v{T+6}, 0
        v_mov_b32 v{T+7}, 0
        ds_write_b128 v{T}, {Q(T+4)} offset:{UPD}
        ds_write_b128 v{T}, {Q(T+4)} offset:{UPD+1024}
        ds_write_b128 v{T}, {Q(T+4)} offset:{UPD+2048}
        L_NOZ:
        s_lshl_b32 s4, s{sW}, 6
        v_add_u32 v14, s4, v0
        v_lshlrev_b32 v15, 4, v14
        s_mov_b32 s64, 0x05040100
        s_mov_b32 s65, 0x07060302
        v_lshlrev_b32 v{T}, 4, v0
        v_and_b32 v10, 15, v0
        v_lshlrev_b32 v10, 2, v10
        v_and_b32 v11, 48, v0
        s_movk_i32 s4, 0xfff
        v_lshlrev_b32 v{CR}, 1, v14
        v_sub_u32 v{CR}, s4, v{CR}
        v_subrev_u32 v{CR+1}, 1, v{CR}
        v_subrev_u32 v{CR+2}, 512, v{CR}
        v_subrev_u32 v{CR+3}, 513, v{CR}
        v_subrev_u32 v{CR+4}, 1024, v{CR}
        v_subrev_u32 v{CR+5}, 1025, v{CR}
        v_subrev_u32 v{CR+6}, 1536, v{CR}
        v_subrev_u32 v{CR+7}, 1537, v{CR}
        v_lshlrev_b32 v{T+3}, 3, v14
        v_lshrrev_b32 v{T+1}, 4, v14
        v_lshlrev_b32 v{T+1}, 2, v{T+1}
        v_lshlrev_b32 v14, 2, v14
        s_mov_b32 s16, 0
        s_mov_b32 s17, 0xffff0000
        v_lshlrev_b32 v{vPW}, 3, v11
        s_lshl_b32 s8, s{sW}, 12
        s_add_u32 s8, s8, {PRE}
        v_add_u32 v{vPW}, s8, v{vPW}
        v_lshrrev_b32 v12, 5, v0
        v_lshlrev_b32 v{vPR}, 7, v12
        v_bfe_u32 v12, v0, 4, 1
        v_lshl_add_u32 v{vPR}, v12, 3, v{vPR}
        v_bfe_u32 v12, v0, 3, 1
        v_lshl_add_u32 v{vPR}, v12, 9, v{vPR}
        v_and_b32 v12, 7, v0
        v_lshl_add_u32 v{vPR}, v12, 4, v{vPR}
        s_lshl_b32 s8, s{sW}, 10
        s_add_u32 s8, s8, {PRE}
        v_add_u32 v{vPR}, s8, v{vPR}
        v_bfe_u32 v12, v0, 4, 1
        v_lshlrev_b32 v12, 16, v12
        v_lshrrev_b32 v13, 5, v0
        v_lshl_add_u32 v12, v13, 12, v12
        v_lshl_add_u32 v{vWD}, v10, 1, v12
        s_lshl_b32 s10, s{sSG}, 17
        s_lshl_b32 s11, s{sK}, 9
        s_add_u32 s10, s10, s11
        s_lshl_b32 s11, s{sW}, 7
        s_add_u32 s10, s10, s11
        """)
        PZ = self.opt.get("pz", 0); PE = 2 if PZ == 3 else 0
        pzl = [f"buffer_store_dwordx4 v[216:219], v{T}, {SQ(rWS)}, s33 offen offset:{1024*r} {MOD[self.opt.get('pzm', 2)]}" for r in range(2)]
        if PZ >= 3:
            a(f"""s_and_b32 s9, s2, 7
            s_add_u32 s9, s9, 56
            s_cmp_eq_u32 s{sROLE}, 1
            s_cselect_b32 s33, s{sSG}, s9
            s_lshl_b32 s33, s33, 2
            s_add_u32 s33, s33, s{sK}
            s_lshl_b32 s33, s33, 2
            s_add_u32 s33, s33, s{sW}
            s_lshl_b32 s33, s33, 11
            s_add_u32 s33, s33, {WS_PART}
            v_mov_b32 v218, 0""")
        if PZ == 3:
            assert GE == 0
            PW_ = self.opt.get("pzw", 0)
            if PW_:
                PE = 1; a(f"v_lshlrev_b32 v217, 7, v0\ns_mov_b64 exec, 0xffff")
                a(f"buffer_store_dword v218, v217, {SQ(rWS)}, s33 offen offset:8" if PW_ == 1 else f"buffer_load_dword v219, v217, {SQ(rWS)}, s33 offen")
            else:
                a(f"s_cmp_eq_u32 s{sROLE}, 1\ns_cselect_b64 exec, -1, 1")
                for l in pzl: a(l)
            a("s_mov_b64 exec, -1")
        a("s_mov_b32 s8, 0x3f803f80")
        self.est(10)
        if True:
            a(f"s_waitcnt vmcnt({8 + PE + (GE if GP_ == 0 else 0)})")
            self.est(11)
            gearly(1)
            for i in range(16):
                c = lambda r: "0" if i == 0 else f"v{r}"
                a(f"v_dot2_f32_bf16 v{S}, v{X0+i}, s8, {c(S)}")
                a(f"v_dot2_f32_bf16 v{S+1}, v{X0+i}, v{X0+i}, {c(S+1)}")
            a("s_waitcnt lgkmcnt(0)")
            self.mktag()
            a(f"s_or_b32 s{sTX}, s19, s{sTAG}\nv_mov_b32 v{S+11}, s{sTX}\ns_waitcnt vmcnt({4 + PE + (GE if GP_ < 2 else 0)})")
            self.stamp(1)
            gearly(2)
        for i in range(16):
            c = lambda r: "0" if i == 0 else f"v{r}"
            a(f"v_dot2_f32_bf16 v{S+2}, v{X0+i}, v{W0+i}, {c(S+2)}")
            a(f"v_dot2_f32_bf16 v{S+3}, v{W0+i}, s8, {c(S+3)}")
        a("s_nop 1")
        for sh in ("row_shr:1 row_mask:0xf","row_shr:2 row_mask:0xf","row_shr:4 row_mask:0xf","row_shr:8 row_mask:0xf","row_bcast:15 row_mask:0xa"):
            for r in range(S, S+4): a(f"v_add_f32_dpp v{r}, v{r}, v{r} {sh} bank_mask:0xf")
        a(f"""
        v_mul_f32 v{S}, 0x3a800000, v{S}
        v_mul_f32 v{S+1}, 0x3a800000, v{S+1}
        v_cvt_pk_bf16_f32 v{S+4}, v{S}, v{S}
        v_fma_f32 v{S+1}, -v{S}, v{S}, v{S+1}
        v_max_f32 v{S+1}, 0, v{S+1}
        v_and_b32 v{S+5}, 0xffff0000, v{S+4}
        """)
        self.bf16r(S+1, S+1)
        a(f"v_add_f32 v{S+1}, {f2u(1e-5):#x}, v{S+1}\nv_fma_f32 v{S+2}, -v{S+5}, v{S+3}, v{S+2}")
        self.bf16r(S+1, S+1)
        a(f"""
        v_sqrt_f32 v{S+1}, v{S+1}
        v_lshlrev_b32 v104, 2, v{vW4}
        v_mov_b32 v{S+13}, 0
        v_and_b32 v{S+14}, 62, v0
        v_mad_u32_u24 v{S+14}, v{S+14}, 3, v0
        v_lshlrev_b32 v{S+14}, 6, v{S+14}
        v_cvt_pk_bf16_f32 v{S+6}, v{S+1}, v{S+1}
        v_and_b32 v{S+1}, 0xffff0000, v{S+6}
        v_rcp_f32 v{S+1}, v{S+1}
        v_mul_f32 v{S+2}, v{S+2}, v{S+1}
        v_cvt_pk_bf16_f32 v{S+2}, v{S+2}, v{S+2}
        v_bfe_i32 v{S+3}, v{S+2}, 15, 1
        v_or_b32 v{S+3}, 0x80008000, v{S+3}
        v_xor_b32 v{S+7}, v{S+2}, v{S+3}
        s_mov_b32 s8, 0xffff
        v_mov_b32_dpp v{S+8}, v{S+4} row_bcast:31 row_mask:0x8 bank_mask:0xf
        v_mov_b32_dpp v{S+9}, v{S+6} row_bcast:31 row_mask:0x8 bank_mask:0xf
        v_mov_b32_dpp v{S+10}, v{S+7} row_bcast:31 row_mask:0x8 bank_mask:0xf
        v_bfi_b32 v{S+8}, s8, v{S+8}, v{S+4}
        v_bfi_b32 v{S+9}, s8, v{S+9}, v{S+6}
        v_bfi_b32 v{S+10}, s8, v{S+10}, v{S+7}
        s_brev_b64 exec, 1
        ds_write_b128 v104, {Q(S+8)} offset:{STG}
        """)
        self.stamp(2)
        SM = self.opt.get("sm", 2); NCB = self.opt.get("ncb", 4); NCP = [1, 8, 1 << NCB][SM]
        a(f"""
        ds_add_rtn_u32 v{S+12}, v{S+13}, v{vONE} offset:{CNTR}
        s_mov_b64 exec, -1
        s_waitcnt lgkmcnt(0)
        v_readlane_b32 s8, v{S+12}, 63
        s_cmp_lg_u32 s8, 3
        s_cbranch_scc1 L_NOPUB
        s_bfm_b64 exec, {4*NCP & 63}, 0
        {"s_mov_b64 exec, -1" if NCP == 16 else ""}
        ds_read_b128 {Q(S+4)}, v105 offset:{STG}
        s_waitcnt lgkmcnt(0)
        buffer_store_dwordx4 {Q(S+4)}, v63, {SQ(rWS)}, s13 offen sc1
        ds_write_b32 v{S+13}, v{vONE} offset:{CNT2}
        s_mov_b64 exec, -1
        s_waitcnt vmcnt({1+GE+PE})
        s_branch L_PUB2
        L_NOPUB:
        """)
        vq = []; vdone = [0]
        def vis(tag, text, ld=1): a(text); vq.append((tag, ld))
        def vw(n):
            if len(vq) - n > vdone[0]: a(f"s_waitcnt vmcnt({n})"); vdone[0] = len(vq) - n
        def vfor(tag): vw(len(vq) - 1 - max(i for i, t in enumerate(vq) if t[0] == tag))
        def vwin(W):
            idx = [i for i, t in enumerate(vq) if t[1]]
            if len(idx) >= W: vw(len(vq) - 1 - idx[-W])
        gi = [0]
        def G(W=None):
            if W: vwin(W)
            vis(f"g{gi[0]}", "\n".join(gl[gi[0]])); gi[0] += 1
        di = [0]; vWD = 222
        def D(n=1):
            for _ in range(n):
                if di[0] >= 16: return
                ks, j = di[0]//8, di[0]%8
                vis(f"d{di[0]}", f"s_add_u32 s11, s10, {(16*(j>>2) + 8*(j&1) + 4*ks + ((j>>1)&1))*2048}\nbuffer_load_dwordx2 {P(WDR+16*ks+2*j)}, v{vWD}, {SQ(rD)}, s11 offen"); di[0] += 1
        N0 = self.opt.get("n0", 0); WN = self.opt.get("wn", 4); NP = self.opt.get("np", 12); XF = self.opt.get("xf", N0+WN); GA_ = self.opt.get("ga", 4)
        a(f"s_waitcnt vmcnt({GE+PE})\nL_PUB2:")
        for i in range(GE): vq.append((f"g{i}", 1))
        gi[0] = GE; XF += GE; NP += GE
        for i in range(N0): G()
        for i in range(4): a(f"ds_write_b128 v96, {Q(TL+4*i)} offset:{272*i}")
        for j in range(4): a(f"ds_read_b64 {P(TT+4*j)}, v97 offset:{64*j}\nds_read_b64 {P(TT+4*j+2)}, v97 offset:{64*j+272}")
        for j in range(4): vis("xt", f"s_waitcnt lgkmcnt({6-2*j})\nbuffer_store_dwordx4 {Q(TT+4*j)}, v98, {SQ(rWS)}, s18 offen {MOD[self.opt.get('xso',0)]}\ns_add_u32 s18, s18, 0x20000", 0)
        self.arrive(C_XS, vW4, S+11)
        if self.opt.get("wpub", 1): self.wait_flag(CNT2, S+13, S+12)
        self.stamp(4)
        def xflag():
            vfor("xt")
            a(f"""
            s_mov_b64 exec, 1
            ds_add_rtn_u32 v{S+12}, v{S+13}, v{vONE} offset:{CNT3}
            s_waitcnt lgkmcnt(0)
            v_readfirstlane_b32 s8, v{S+12}
            s_cmp_lg_u32 s8, 3
            s_mov_b64 exec, -1
            s_cbranch_scc1 L_NOXF
            """)
            for i in range(self.opt.get("nst", 3)): a(f"buffer_store_dword v{S+11}, v{S+14}, {SQ(rWS)}, s62 offen offset:{128*i}")
            a(f"""
            L_NOXF:
            """)
            self.stamp(5)
            if PZ == 4:
                for l in pzl: vis("pz", l, 0)
        PF = self.opt.get("pf", 0)
        def kcheck():
            a(f"""
            v_xor_b32 v{TP}, s{sTX}, v{KP+3}
            v_xor_b32 v{TP+1}, s{sTX}, v{KP+7}
            v_xor_b32 v{TP+2}, s{sTX}, v{KP+11}
            v_xor_b32 v{TP+3}, s{sTX}, v{KP+15}
            v_cmp_lt_u32 s[30:31], 31, v{TP}
            v_cmp_lt_u32 s[8:9], 31, v{TP+1}
            v_cmp_lt_u32 s[14:15], 31, v{TP+2}
            v_cmp_lt_u32 s[28:29], 31, v{TP+3}
            v_or3_b32 v{TP}, v{TP}, v{TP+1}, v{TP+2}
            s_or_b64 vcc, s[30:31], s[8:9]
            s_or_b64 s[66:67], s[14:15], s[28:29]
            s_or_b64 vcc, vcc, s[66:67]""")
        def kp4():
            for i, so in enumerate((sO+1, 5, 6, 7)): vis("kp", f"buffer_load_dwordx4 {Q(KP+4*i)}, v223, {SQ(rWS)}, s{so} offen sc1")
        while gi[0] < min(WN+GE, NP):
            if gi[0] == XF:
                xflag()
            if PF and gi[0] == PF-1+GE: kp4()
            G()
        if PF:
            vfor("kp"); kcheck()
            a("s_cbranch_vccnz L_KF")
            k0 = len(a.lines); g0 = gi[0]; n0 = len(vq); d0 = vdone[0]
            while gi[0] < NP: G()
            a("s_branch L_KPOK\nL_KF:")
            gi[0] = g0; del vq[n0:]
            while gi[0] < NP: G(WN)
            if self.opt.get("pw", 1): vwin(self.opt.get("pw2", 2))
            vdone[0] = d0
            a("s_branch L_KQ2")
        def perms(raw, out, nd, nj):
            L = []
            for d in range(nd):
                for jj in range(nj):
                    A = raw+nd*(2*jj)+d; B = raw+nd*(2*jj+1)+d
                    L.append(f"v_perm_b32 v{out+nj*(2*d)+jj}, v{B}, v{A}, s64")
                    L.append(f"v_perm_b32 v{out+nj*(2*d+1)+jj}, v{B}, v{A}, s65")
            return L
        if self.opt.get("ht") in (1, 2):
            a(f"s_lshl_b32 s4, s{sSG}, 14\ns_lshl_b32 s8, s{sW}, 12\ns_add_u32 s4, s4, s8\ns_lshl_b32 s8, s{sK}, 10\ns_add_u32 s4, s4, s8\ns_add_u32 s4, s4, {WS_H1}")
            if self.opt["ht"] == 1: vis("ht", f"buffer_load_dwordx4 v[216:219], v{T}, {SQ(rWS)}, s4 offen")
            else: vis("ht", f"s_cmp_lg_u32 s{sROLE}, 1\ns_cbranch_scc1 L_NHT\nv_mov_b32 v218, 0\nbuffer_store_dwordx4 v[216:219], v{T}, {SQ(rWS)}, s4 offen\nL_NHT:", 0); vq.pop()
        while gi[0] < NP:
            if gi[0] == XF: xflag()
            G(WN)
        if XF >= NP: xflag()
        def slot(): a(f"s_memrealtime s[66:67]\ns_waitcnt lgkmcnt(0)\ns_bfe_u32 s4, s66, {self.opt.get('tsb', 4) | NCB << 16:#x}\ns_lshl_b32 s4, s4, 14\nv_add_u32 v223, s4, v{T+2}")
        for i, so in enumerate((sO+1, 5, 6, 7)):
            if PF: break
            if self.opt.get("pw", 1): vwin(WN)
            if SM == 2 and (i == 0 or self.opt.get("se", 0)): slot()
            vis("kp", f"buffer_load_dwordx4 {Q(KP+4*i)}, v223, {SQ(rWS)}, s{so} offen {'' if SM == 2 else 'sc1'}")
        p0 = [0]
        def perm0():
            if p0[0] == 0 and gi[0] >= 8:
                vfor("g7"); p0[0] = 1
                for l in perms(GUR, GUF, 4, 4): a(l)
        if self.opt.get("pe", 0): perm0()
        for i in range(GA_):
            if gi[0] < 16: G(WN + self.opt.get("wx", 0))
            else: vwin(WN); D(2)
        vfor("kp")
        KM = (30, 8, 14, 28)
        a(f"s_branch L_KPW\nL_KP:\ns_sleep {self.opt.get('ksl', 1)}\nL_KQ2:")
        if SM == 2:
            a(f"s_cmp_ge_u32 s16, {self.opt.get('npl', 10)}\ns_cbranch_scc1 L_KQ")
            slot()
            for i, so in enumerate((sO+1, 5, 6, 7)):
                a(f"s_mov_b64 exec, {SP(KM[i])}\ns_cbranch_execz L_KT{i}\nbuffer_load_dwordx4 {Q(KP+4*i)}, v223, {SQ(rWS)}, s{so} offen\nL_KT{i}:")
            a("s_branch L_KS3\nL_KQ:")
        for i, so in enumerate((sO+1, 5, 6, 7)):
            a(f"s_mov_b64 exec, {SP(KM[i])}\ns_cbranch_execz L_KS{i}\nbuffer_load_dwordx4 {Q(KP+4*i)}, v223, {SQ(rWS)}, s{so} offen sc1\nL_KS{i}:")
        a(f"""
        s_mov_b64 exec, -1
        s_waitcnt vmcnt(0)
        L_KPW:
        s_add_u32 s16, s16, 1
        v_xor_b32 v{TP}, s{sTX}, v{KP+3}
        v_xor_b32 v{TP+1}, s{sTX}, v{KP+7}
        v_xor_b32 v{TP+2}, s{sTX}, v{KP+11}
        v_xor_b32 v{TP+3}, s{sTX}, v{KP+15}
        v_cmp_lt_u32 s[30:31], 31, v{TP}
        v_cmp_lt_u32 s[8:9], 31, v{TP+1}
        v_cmp_lt_u32 s[14:15], 31, v{TP+2}
        v_cmp_lt_u32 s[28:29], 31, v{TP+3}
        v_or3_b32 v{TP}, v{TP}, v{TP+1}, v{TP+2}
        s_or_b64 vcc, s[30:31], s[8:9]
        s_or_b64 s[66:67], s[14:15], s[28:29]
        s_or_b64 vcc, vcc, s[66:67]
        s_cbranch_vccz L_KPOK
        s_cmp_lt_u32 s16, 0x4000
        s_cbranch_scc1 L_KP
        L_KPOK:
        v_or_b32 v{TP}, v{TP}, v{TP+3}
        v_cmp_ne_u32 vcc, 0, v{TP}
        s_and_b64 vcc, vcc, s[40:41]
        s_cselect_b32 s8, 1, {1 if self.opt.get("forcex") else 2}
        v_mov_b32 v{TP}, s8
        """)
        if self.opt.get("ag", 0) > 0: a(f"s_cmp_le_u32 s16, {self.opt['ag']}\ns_cselect_b32 s33, 1, 2")
        if self.opt.get("xst") == 13: a(f"s_mov_b32 s{sST+2*15+1}, s{sST+1}\ns_mul_i32 s9, s16, 100\ns_add_u32 s{sST+2*15}, s{sST}, s9")
        self.stamp(3)
        if "fp3" in self.opt: a(f"s_setprio {self.opt['fp3']}")
        def more(n):
            for _ in range(n):
                if gi[0] < 16: G()
                elif di[0] < self.opt.get("d1", 8): D(2)
        DF = self.opt.get("df", 1); vXI = TP+1
        def cap(n):
            k = len(a.lines); more(n); L = a.lines[k:]; del a.lines[k:]; return L
        if DF: a(f"ds_read_b32 v{vXI}, v{vL4} offset:{C_XI}")
        a(f"ds_write2st64_b64 v{T+3}, {P(KP)}, {P(KP+4)} offset0:{MSB//512} offset1:{MSB//512+4}\nds_write2st64_b64 v{T+3}, {P(KP+8)}, {P(KP+12)} offset0:{MSB//512+8} offset1:{MSB//512+12}")
        self.arrive(C_MS, vW4, TP)
        if not DF: more(self.opt.get("m0", 1))
        for k in range(4):
            a(f"v_lshl_or_b32 v{CR+2*k}, v{KP+4*k+2}, 16, v{CR+2*k}\nv_and_or_b32 v{CR+1+2*k}, v{KP+4*k+2}, s17, v{CR+1+2*k}")
        if DF:
            vq0 = len(vq)
            B0 = cap(self.opt.get("m0", 1)); B1 = cap(self.opt.get("m1", 2))
            a(f"s_waitcnt lgkmcnt(3)\nv_cmp_eq_u32 s[66:67], 0, v{vXI}\ns_cmp_lg_u32 s66, 0\ns_cbranch_scc1 L_NB0")
            a.lines += B0
            a("L_NB0:")
        B = T+2
        a(f"v_max_u32 v{B}, v{CR}, v{CR+1}\nv_min_u32 v{B+1}, v{CR}, v{CR+1}\nv_max_u32 v{B+2}, v{CR+4}, v{CR+5}\nv_min_u32 v{B+3}, v{CR+4}, v{CR+5}")
        for j in (2, 3):
            a(f"v_med3_u32 v{B+1}, v{B}, v{B+1}, v{CR+j}\nv_med3_u32 v{B+3}, v{B+2}, v{B+3}, v{CR+j+4}\nv_max_u32 v{B}, v{B}, v{CR+j}\nv_max_u32 v{B+2}, v{B+2}, v{CR+j+4}")
        a(f"""
        v_min_u32 v{B+4}, v{B}, v{B+2}
        v_max_u32 v{B}, v{B}, v{B+2}
        v_max3_u32 v{B+1}, v{B+1}, v{B+3}, v{B+4}
        ds_write_b32 v14, v{B} offset:{LMC}
        """)
        if DF: a(f"ds_read_b32 v{vXI}, v{vL4} offset:{C_XI}")
        mid = [f"v_add_u32 v15, {KEYS}, v15", f"ds_write2_b32 v15, v{KP+2}, v{KP+6} offset0:0 offset1:1", f"ds_write2_b32 v15, v{KP+10}, v{KP+14} offset0:2 offset1:3", "s_nop 0"]
        for i, sh in enumerate((1,2,4,8)):
            a(mid[i])
            a(f"v_max_u32_dpp v{B}, v{B}, v{B} row_shr:{sh} row_mask:0xf bank_mask:0xf\nv_max_u32_dpp v{B+1}, v{B+1}, v{B+1} row_shr:{sh} row_mask:0xf bank_mask:0xf")
        a(f"""
        s_mov_b32 exec_lo, 0x80008000
        s_mov_b32 exec_hi, 0x80008000
        ds_write2_b32 v{T+1}, v{B}, v{B+1} offset0:{GM//4} offset1:{GM//4+16}
        """)
        self.arrive(C_KEYS, vW4, TP)
        self.xst(8, 12)
        if not DF: more(self.opt.get("m1", 2))
        else:
            a(f"s_waitcnt lgkmcnt(4)\nv_cmp_eq_u32 vcc, 0, v{vXI}\ns_mov_b32 s67, vcc_lo\ns_cbranch_vccnz L_NB1\ns_cmp_eq_u32 s66, 0\ns_cbranch_scc1 L_NB2")
            a.lines += B0
            a("L_NB2:")
            a.lines += B1
            a("L_NB1:")
        self.xst(8, 13)
        self.wait_flag(C_KEYS, vL4, T+1)
        a(f"v_cmp_ne_u32 s[12:13], 2, v{T+1}")
        self.stamp(6)
        def rank16(own, four, r, c):
            a(f"v_cmp_gt_u32 vcc, v{four}, v{own}\nv_cmp_gt_u32 s[8:9], v{four+1}, v{own}\nv_cmp_gt_u32 s[14:15], v{four+2}, v{own}\nv_cmp_gt_u32 s[28:29], v{four+3}, v{own}")
            a(f"v_cndmask_b32 v{r}, 0, 1, vcc\nv_cndmask_b32 v{c}, 0, 1, s[8:9]\nv_addc_co_u32 v{r}, vcc, 0, v{r}, s[14:15]\nv_addc_co_u32 v{r}, vcc, v{c}, v{r}, s[28:29]")
            a(f"v_mov_b32 v{c}, v{r}\nv_permlane32_swap_b32 v{r}, v{c}\nv_add_u32 v{r}, v{r}, v{c}\nv_mov_b32 v{c}, v{r}\nv_permlane16_swap_b32 v{r}, v{c}\nv_add_u32 v{r}, v{r}, v{c}")
        a(f"""
        ds_read2_b32 {P(T+2)}, v10 offset0:{GM//4} offset1:{GM//4+16}
        ds_read_b128 {Q(T+4)}, v11 offset:{GM}
        ds_read_b128 {Q(E)}, v{T} offset:{LMC}
        s_waitcnt lgkmcnt(1)
        """)
        rank16(T+2, T+4, T+12, T+13)
        a(f"""
        v_cmp_eq_u32 vcc, 7, v{T+12}
        s_ff1_i32_b32 s5, vcc_lo
        v_readlane_b32 s4, v{T+2}, s5
        s_waitcnt lgkmcnt(0)
        v_cmp_le_u32 vcc, s4, v{T+3}
        {"s_branch" if self.opt.get("forceslow") else "s_cbranch_vccnz"} L_SLOWT
        L_CAND:
        v_cmp_le_u32 s[8:9], s4, v{E}
        v_cmp_le_u32 s[14:15], s4, v{E+1}
        v_cmp_le_u32 s[28:29], s4, v{E+2}
        v_cmp_le_u32 s[30:31], s4, v{E+3}
        s_bcnt1_i32_b64 s5, s[8:9]
        s_bcnt1_i32_b64 s6, s[14:15]
        s_bcnt1_i32_b64 s7, s[28:29]
        s_bcnt1_i32_b64 s16, s[30:31]
        s_add_u32 s6, s6, s5
        s_add_u32 s7, s7, s6
        s_add_u32 s16, s16, s7
        s_cmp_gt_u32 s16, 16
        s_cbranch_scc1 L_TRIM
        """)
        MK = (8, 14, 28, 30)
        for k, (mk, base) in enumerate(zip(MK, ("0", "s5", "s6", "s7"))):
            a(f"v_mbcnt_lo_u32_b32 v{T+12+k}, s{mk}, 0\nv_mbcnt_hi_u32_b32 v{T+12+k}, s{mk+1}, v{T+12+k}\nv_add_lshl_u32 v{T+12+k}, v{T+12+k}, {base}, 2")
            a(f"s_mov_b64 exec, {SP(mk)}\nds_write_b32 v{T+12+k}, v{E+k} offset:{LIST}\ns_mov_b64 exec, -1")
        self.xst(8, 14)
        XO = self.opt.get("xo", 0)
        def grest():
            if DF:
                a("s_cmp_eq_u32 s67, 0\ns_cbranch_scc1 L_NB3")
                a.lines += B0 + B1
                a("L_NB3:")
            while gi[0] < 16: G()
        if not XO: grest()
        if PZ == 5:
            for l in pzl: vis("pz", l, 0)
        self.xst(8, 15)
        a(f"""
        s_movk_i32 s4, 0x7ff
        ds_read_b32 v{TP}, v10 offset:{LIST}
        ds_read_b128 {Q(TP+4)}, v11 offset:{LIST}
        s_cmp_lg_u32 s{sROLE}, 1
        s_waitcnt lgkmcnt(1)
        v_bfi_b32 v14, v{TP}, 0, s4
        s_cbranch_scc1 L_NOXS
        v_lshl_add_u32 v15, v14, 11, v{vXO}
        """)
        vis("xs", f"buffer_load_dwordx4 {Q(XS)}, v15, {SQ(rX)}, 0 offen")
        vis("xs", f"buffer_load_dwordx4 {Q(XS+4)}, v15, {SQ(rX)}, 0 offen offset:64")
        a(f"""
        v_lshrrev_b32 v15, 1, v14
        v_lshlrev_b32 v15, 3, v15
        ds_read_b64 v[8:9], v15 offset:{MSB}
        """)
        self.stamp(7)
        PT = self.opt.get("pt", 0)
        def ptouch():
            a(f"""s_mul_i32 s8, s{sW}, 14
            v_add_lshl_u32 v223, v0, s8, 15
            s_lshl_b32 s8, s{sDG}, 7
            s_add_u32 s8, s8, {WS_PART}
            s_mov_b64 exec, 0x3fff""")
            vis("pt", f"buffer_load_dword v219, v223, {SQ(rWS)}, s8 offen {MOD[self.opt.get('ptm', 2)]}")
            a("s_mov_b64 exec, -1")
        if PT == 4: ptouch()
        D(self.opt.get("d2", 0) - di[0])
        if PT == 3: ptouch()
        a("L_NOXS:")
        if XO:
            assert gi[0] < 16 and vdone[0] <= vq0 and vq[-1][0] == "xs"
            xs_ = vq[-2:]; del vq[-2:]; vq[vq0:vq0] = xs_
            if XO == 1: grest()
        a("s_waitcnt lgkmcnt(0)")
        rank16(TP, TP+4, TP+8, TP+9)
        a(f"""
        v_cmp_gt_u32 s[30:31], 8, v{TP+8}
        v_lshlrev_b32 v15, 2, v{TP+8}
        v_and_b32 v10, 7, v0
        v_lshlrev_b32 v10, 2, v10
        v_bfe_u32 v{TP+4}, v14, 1, 8
        v_lshrrev_b32 v{TP+5}, 9, v14
        v_lshlrev_b32 v{TP+4}, 3, v{TP+4}
        v_lshl_add_u32 v{TP+4}, v{TP+5}, 1, v{TP+4}
        v_and_b32 v14, 1, v14
        v_add_u32 v{TP+4}, v{TP+4}, v14
        v_mov_b32 v{TP+6}, 0x80
        s_mov_b64 exec, s[30:31]
        ds_write_b32 v15, v{TP} offset:{IDX}
        s_cmp_lg_u32 s{sW}, 0
        s_cbranch_scc1 L_NOSEL
        ds_write_b8 v{TP+4}, v{TP+6} offset:{SELF}
        s_cmp_lg_u32 s2, 255
        s_cbranch_scc1 L_NOSEL
        s_mov_b64 exec, 1
        v_mov_b32 v{TP+6}, s{sTAG}
        buffer_store_dword v{TP+6}, v{vW4}, {SQ(rWS)}, 0 offen sc1
        L_NOSEL:
        s_mov_b64 exec, -1
        ds_read_b32 v{vE}, v10 offset:{IDX}
        """)
        self.arrive(C_SEL, vW4, vONE)
        if XO == 2: assert self.opt.get("lg"); grest()
        self.xst(11, 12)
        gX = 246; gY = 247; gL = 220; gA = 221; gO = 223; gS = 254; TV = 248; TS = 34; g = 224; EA = self.opt.get("ea", 1)
        LG = self.opt.get("lg", 0)
        def gs1():
            a(f"""
            v_lshrrev_b32 v{gA}, 3, v0
            s_lshl_b32 s8, s{sW}, 3
            v_add_lshl_u32 v{gA}, v{gA}, s8, 15
            v_and_b32 v{g+1}, 7, v0
            v_lshlrev_b32 v{g+1}, 4, v{g+1}
            v_add_u32 v{gA}, v{gA}, v{g+1}
            v_bfe_u32 v{g+2}, v0, 3, 2
            v_bfrev_b32 v{gL}, v{g+2}
            v_lshrrev_b32 v{gL}, 22, v{gL}
            v_add_u32 v{gL}, v{gL}, v{g+1}
            v_lshrrev_b32 v{gL}, 2, v{gL}
            """)
        def gs2():
            a(f"""
            v_lshlrev_b32 v{gY}, 13, v{g+2}
            v_lshl_add_u32 v{gY}, v{g}, 2, v{gY}
            v_lshrrev_b32 v{g+1}, 1, v{g}
            v_and_b32 v{g+1}, 0x30, v{g+1}
            v_xor_b32 v{gY}, v{gY}, v{g+1}
            v_add_u32 v{gY}, {YB}, v{gY}
            """)
        def gs3():
            self.wait_flag(C_SEL, vL4, g)
            self.tsetup(0, PRE, 4096, TV, TS)
            a(f"""
            v_lshrrev_b32 v{gS}, 16, v{vE}
            v_bfe_i32 v{g}, v{gS}, 15, 1
            v_not_b32 v{g}, v{g}
            v_or_b32 v{g}, 0x8000, v{g}
            v_xor_b32 v{gS}, v{gS}, v{g}
            v_lshlrev_b32 v{gS}, 16, v{gS}
            v_mul_f32 v{gS}, {LOG2E|0x80000000:#x}, v{gS}
            v_exp_f32 v{gS}, v{gS}
            v_mov_b32 v{TV+5}, s{sTX}
            v_add_f32 v{gS}, 1.0, v{gS}
            v_rcp_f32 v{gS}, v{gS}
            """)
        def glate():
            gs1(); a(f"v_lshrrev_b32 v{g}, 11, v{gO}"); gs2(); gs3()
        a("s_movk_i32 s4, 0x7ff")
        if not LG: gs1()
        else: a(f"v_bfe_u32 v{g+2}, v0, 3, 2")
        a(f"""
        s_lshl_b32 s8, s{sDG}, 3
        s_mov_b32 s32, 0
        s_waitcnt lgkmcnt(1)
        v_bfi_b32 v{g}, v{vE}, 0, s4
        v_lshlrev_b32 v{gO}, 11, v{g}
        v_lshl_add_u32 v{gO}, v{g+2}, 1, v{gO}
        v_add_u32 v{gO}, s8, v{gO}
        """)
        vis("xu", f"buffer_load_ushort v{gX}, v{gO}, {SQ(rX)}, 0 offen")
        if not LG:
            gs2(); gs3()
        a(f"""
        s_cmp_lg_u32 s{sROLE}, 1
        s_cbranch_scc1 {"L_NF" if LG else "L_GATHER"}
        v_lshl_add_u32 v{vPW}, v{TP+8}, 4, v{vPW}
        v_lshlrev_b32 v14, 4, v14
        """)
        HQ = 216; R = 224; BL = 240; BH = 242; t = 244; PQ = 48; DA = 16; HP = 144
        a(f"""
        v_lshlrev_b32 v13, 4, v0
        s_lshl_b32 s4, s{sSG}, 14
        s_add_u32 s4, s4, {WS_H1}
        s_lshl_b32 s6, s{sW}, 12
        s_add_u32 s6, s6, s4
        s_lshl_b32 s5, s{sK}, 10
        s_add_u32 s5, s5, s6
        v_mov_b32 v{HQ+2}, s{sTAG}
        """)
        NMF = 240
        a(f"""v_lshrrev_b32 v{vRS}, v14, v9
        v_lshrrev_b32 v{vNM}, v14, v8
        v_lshlrev_b32 v{vRS}, 16, v{vRS}
        v_xor_b32 v{vNM}, 0x8000, v{vNM}
        v_rcp_f32 v{vRS}, v{vRS}""")
        for i in range(4): a(f"v_perm_b32 v{NMF+i}, v{vNM}, v{vNM}, s64")
        if "fprio" in self.opt: a(f"s_setprio {self.opt['fprio']}")
        self.xst(11, 13)
        htl = f"buffer_load_dword v{HQ+3}, v13, {SQ(rWS)}, s5 offen"
        if self.opt.get("ht") == 3: vis("ht", htl)
        D(self.opt.get("da", 8))
        if self.opt.get("ht") == 4: vis("ht", htl)
        perm0()
        D(self.opt.get("db", 0))
        self.xst(11, 14)
        M0 = lambda s_: [f"{MFMA} {Q(ACC+4*c)}, {Q(GUF+32*s_+4*c)}, {Q(NMF)}, {'0' if s_==0 else Q(ACC+4*c)}" for c in range(8)]
        vfor("g15")
        self.xst(11, 15)
        pm = perms(GUR+32, GUF+32, 4, 4)
        for l in interleave(M0(0), pm, per=4): a(l)
        self.stamp(8)
        for l in M0(1): a(l)
        vfor("xs")
        self.stamp(9)
        for s_ in range(2):
            for c in range(8):
                a(f"{MFMA} {Q(ACC+4*c)}, {Q(GUF+32*s_+4*c)}, {Q(XS+4*s_)}, {Q(ACC+4*c)}")
                if di[0] < self.opt.get("d3", 16) and s_ == 0: D()
        self.xst(5, 12)
        a("s_mov_b64 exec, s[30:31]")
        for c in range(8): a(f"ds_write_b128 v{vPW}, {Q(ACC+4*c)} offset:{512*c}")
        a(f"ds_write_b32 v15, v{vRS} offset:{RSV}")
        self.arrive(C_PRE, vW4, vONE)
        a(f"ds_read_b32 v{vRS}, v10 offset:{RSV}")
        self.xst(5, 13)
        self.wait_flag(C_PRE, vL4, 11)
        self.xst(5, 14)
        for k in range(4):
            for mat in range(2): a(f"ds_read_b64 {P(R+4*k+2*mat)}, v{vPR} offset:{4096*k+256*mat}")
        a("s_waitcnt lgkmcnt(4)")
        for i in range(4): a(f"v_add_f32 v{R+i}, v{R+i}, v{R+4+i}")
        a("s_waitcnt lgkmcnt(0)")
        for i in range(4): a(f"v_add_f32 v{R+8+i}, v{R+8+i}, v{R+12+i}")
        for i in range(4): a(f"v_add_f32 v{R+i}, v{R+i}, v{R+8+i}")
        a(f"""
        s_cmp_eq_u32 s12, 0
        v_cvt_pk_bf16_f32 v{HQ}, v{R}, v{R+1}
        v_cvt_pk_bf16_f32 v{HQ+1}, v{R+2}, v{R+3}
        """)
        vis("hq", f"s_cbranch_scc0 L_HSC\nbuffer_store_dwordx4 {Q(HQ)}, v13, {SQ(rWS)}, s5 offen\nL_HSB:", 0)
        self.stamp(10)
        if PT == 2: ptouch()
        D(16)
        a(f"""
        v_bfe_u32 v10, v0, 3, 1
        v_lshrrev_b32 v11, 4, v0
        v_cmp_ne_u32 s[22:23], 0, v10
        v_lshlrev_b32 v15, 2, v10
        v_lshl_add_u32 v15, v11, 3, v15
        v_lshlrev_b32 v10, 8, v10
        v_lshl_add_u32 v10, v11, 9, v10
        v_lshlrev_b32 v9, 4, v11
        v_and_b32 v11, 7, v0
        v_lshl_add_u32 v10, v11, 4, v10
        s_movk_i32 s5, 144
        v_mad_u32_u24 v15, v11, s5, v15
        v_mad_u32_u24 v9, v11, s5, v9
        s_lshl_b32 s5, s{sW}, 5
        v_add_u32 v15, s5, v15
        s_lshl_b32 s4, s{sSG}, 15
        s_lshl_b32 s5, s{sK}, 13
        s_add_u32 s4, s4, s5
        s_lshl_b32 s5, s{sW}, 11
        s_add_u32 s4, s4, s5
        s_add_u32 s4, s4, {WS_PART}
        v_mul_f32 v12, {LOG2E|0x80000000:#x}, v{vRS}
        v_mul_f32 v14, v{vRS}, v{vRS}
        v_mov_b32 v{PQ+2}, s{sTAG}
        v_mov_b32 v{PQ+6}, s{sTAG}
        """)
        hpl = [f"buffer_load_dwordx3 v[{HP+4*k}:{HP+4*k+2}], v13, {SQ(rWS)}, s6 offen offset:{1024*k} sc1" for k in range(4)]
        a("s_mov_b32 s16, 0")
        PZ = self.opt.get("pz", 0)
        def pzs():
            a(f"v_mov_b32 v{R+2}, 0")
            for r in range(2): vis("pz", f"buffer_store_dwordx4 {Q(R)}, v10, {SQ(rWS)}, s4 offen offset:{128*r} sc1", 0)
        if PZ == 1: pzs()
        if self.opt.get("xst") == 12:
            vfor("d15"); self.xst(12, 12); a("s_waitcnt vmcnt(0)"); self.xst(12, 13)
            for l in hpl: a(l)
            a("s_waitcnt vmcnt(0)"); self.xst(12, 14)
            for l in hpl: a(l)
            a("s_waitcnt vmcnt(0)"); self.xst(12, 15)
        vfor("d7")
        self.xst(1, 12)
        for l in perms(WDR, WDF, 2, 4): a(l)
        if self.opt.get("hw0", 0): vfor("hq")
        HPP = self.opt.get("hp", 0)
        if HPP == 0:
            for l in hpl: vis("hp", l)
        if PT == 1: ptouch()
        if PZ == 2: pzs()
        if LG == 1: glate()
        vfor("d15")
        if HPP == 1:
            for l in hpl: vis("hp", l)
        self.xst(1, 13)
        for l in perms(WDR+16, WDF+16, 2, 4): a(l)
        if HPP == 2:
            for l in hpl: vis("hp", l)
        if LG == 2: glate()
        if self.opt.get("xst") == 1: a("s_waitcnt vmcnt(0)")
        self.xst(1, 14)
        if PZ == 2: a("s_waitcnt vmcnt(2)\ns_branch L_HPX")
        a("s_branch L_HPW\nL_HP:")
        a(f"s_sleep {self.opt.get('hsl', 3)}")
        for k, mk in enumerate((18, 8, 14, 28)):
            a(f"s_cmp_eq_u64 {SP(mk)}, 0\ns_cbranch_scc1 L_HS{k}\n{hpl[k]}\nL_HS{k}:")
        a(f"""
        L_HPW:
        s_add_u32 s16, s16, 1
        s_waitcnt vmcnt(0)
        {"L_HPX:" if PZ == 2 else ""}
        v_cmp_ne_u32 s[18:19], s{sTAG}, v{HP+2}
        v_cmp_ne_u32 s[8:9], s{sTAG}, v{HP+6}
        v_cmp_ne_u32 s[14:15], s{sTAG}, v{HP+10}
        v_cmp_ne_u32 s[28:29], s{sTAG}, v{HP+14}
        s_or_b64 vcc, s[18:19], s[8:9]
        s_or_b64 s[20:21], s[14:15], s[28:29]
        s_or_b64 vcc, vcc, s[20:21]
        s_cbranch_vccz L_HOK
        s_cmp_lt_u32 s16, 0x4000
        s_cbranch_scc1 L_HP
        L_HOK:
        """)
        self.stamp(11)
        eal = f"s_mov_b32 exec_hi, 0\nbuffer_load_dword v{TV+5}, v{TV+7}, {SQ(rWS)}, s{TS+4} offen sc1\ns_mov_b32 exec_hi, -1"
        SK0 = self.opt.get("sk0", 0)
        if SK0: eal = f"s_cmp_lt_u32 s{sW}, 2\ns_cbranch_scc1 L_EAS\n" + eal + "\nL_EAS:"
        if EA == 1: a(eal)
        for k in range(4): self.unpack(R+2*k, R+2*k+1, HP+4*k)
        for i in range(2): a(f"v_add_f32 v{R+i}, v{R+i}, v{R+2+i}\nv_add_f32 v{R+4+i}, v{R+4+i}, v{R+6+i}")
        for i in range(2): a(f"v_add_f32 v{R+i}, v{R+i}, v{R+4+i}")
        for i in range(2): a(f"v_mul_f32 v{t+i}, v12, v{R+i}")
        for i in range(2): a(f"v_exp_f32 v{t+i}, v{t+i}")
        for k in range(4): self.unpack(R+8+2*k, R+8+2*k+1, HP+4*k+1)
        for i in range(2): a(f"v_add_f32 v{t+i}, 1.0, v{t+i}")
        for i in range(2): a(f"v_rcp_f32 v{t+i}, v{t+i}")
        for i in range(2): a(f"v_add_f32 v{R+8+i}, v{R+8+i}, v{R+10+i}\nv_add_f32 v{R+12+i}, v{R+12+i}, v{R+14+i}")
        for i in range(2): a(f"v_mul_f32 v{R+i}, v{R+i}, v14\nv_add_f32 v{R+8+i}, v{R+8+i}, v{R+12+i}")
        for i in range(2): a(f"v_mul_f32 v{R+i}, v{R+i}, v{t+i}")
        for i in range(2): a(f"v_mul_f32 v{R+i}, v{R+i}, v{R+8+i}")
        a(f"""
        v_cvt_pk_bf16_f32 v{t}, v{R}, v{R+1}
        ds_write_b32 v15, v{t} offset:{HB}
        """)
        self.arrive(C_H, vW4, vONE)
        if EA == 2: a(eal)
        self.xst(6, 12)
        self.wait_flag(C_H, vL4, 11)
        self.xst(6, 13)
        a(f"ds_read_b128 {Q(R)}, v9 offset:{HB}\nds_read_b128 {Q(R+4)}, v9 offset:{HB+64}")
        for ks in range(2):
            a(f"s_waitcnt lgkmcnt({1-ks})")
            for c in range(4): a(f"{MFMA} {Q(DA+4*c)}, {Q(WDF+16*ks+4*c)}, {Q(R+4*ks)}, {'0' if ks == 0 else Q(DA+4*c)}")
        self.xst(6, 14)
        if EA:
            if SK0: a(f"s_cmp_lt_u32 s{sW}, 2\ns_cbranch_scc1 L_EAN")
            a(f"s_waitcnt vmcnt(0)\nv_cmp_ne_u32 vcc, s{sTX}, v{TV+5}\ns_or_b64 vcc, vcc, s[12:13]\ns_cbranch_vccnz L_EAN\ns_mov_b32 s32, 1")
            self.tload(TV, TS, 96)
            a("L_EAN:")
        for r in range(2):
            for c in range(4): a(f"v_cndmask_b32 v{DA+4*c+r}, v{DA+4*c+r}, v{DA+4*c+r+2}, s[22:23]")
            a(f"v_cvt_pk_bf16_f32 v{PQ+4*r}, v{DA+r}, v{DA+4+r}\nv_cvt_pk_bf16_f32 v{PQ+4*r+1}, v{DA+8+r}, v{DA+12+r}")
            a(f"buffer_store_dwordx4 {Q(PQ+4*r)}, v10, {SQ(rWS)}, s4 offen offset:{128*r} {MOD[self.opt.get('psm', 2)]}")
        self.stamp(12); self.xst(6, 15)
        GP = 144; U = 176; F = 80; TW = self.opt.get("tw", 2)
        NT = self.opt.get("not01", 0)
        if EA:
            a(f"s_cmp_eq_u32 s32, 0\ns_cbranch_scc1 L_GATHER")
            self.xst(10, 12); self.xst(10, 13); self.xst(10, 14)
            a(f"s_waitcnt vmcnt(2)")
            self.tstore(TV, TS, 96, mod=self.opt.get('of'), novm=1)
            a("s_branch L_AFT")
        a(f"L_GATHER:\ns_cmp_lg_u32 s12, 0\ns_cbranch_scc1 L_AFT")
        if SK0: a(f"s_cmp_lt_u32 s{sW}, 2\ns_cbranch_scc1 L_AFT")
        self.xst(10, 12)
        a(f"s_setprio {self.opt.get('tprio', 0)}")
        self.wait_flag(C_Y2, vL4, F+1, sleep=2)
        self.tpoll(TV, TS, f"s{sTX}", self.opt.get("fsl", 3))
        self.xst(10, 13)
        self.tload(TV, TS, 96)
        if self.opt.get("xst") == 10: a("s_waitcnt vmcnt(0)")
        self.xst(10, 14)
        self.tstore(TV, TS, 96, mod=self.opt.get('of'))
        a("L_AFT:\ns_setprio 0")
        self.xst(7, 12); self.xst(10, 15)
        a(f"""s_lshl_b32 s4, s{sDG}, 7
        s_add_u32 s4, s4, {WS_PART}
        s_mov_b32 s11, 0
        s_lshl_b32 s8, s{sW}, 8
        v_lshl_add_u32 v{F+5}, v0, 2, s8""")
        AG = self.opt.get("ag")
        def agw(L, thr): a(f"s_branch {L}1\n{L}0:\ns_sleep 1\n{L}1:\nds_read_b32 v{F+1}, v{vL4} offset:{C_TL}\ns_waitcnt lgkmcnt(0)\nv_cmp_gt_u32 vcc, {thr}, v{F+1}\ns_cbranch_vccnz {L}0")
        if AG: agw("L_AG", "s33")
        else: self.wait_flag([C_TL, C_Y3, C_Y2][self.opt.get("gate", 0)], vL4 if self.opt.get("tla", 1) else vW4, F+1, sleep=1)
        a("s_setprio 2\nL_GGO:")
        self.stamp(13); self.xst(3, 12)
        a(f"""
        s_mov_b64 s[8:9], -1
        s_cmp_lt_u32 s{sW}, 3
        s_cselect_b64 s[12:13], -1, 0
        s_add_u32 s5, s4, 0x100000
        v_mov_b32 v{GP+4}, 0
        v_mov_b32 v{GP+5}, 0
        v_mov_b32 v{GP+6}, s{sTAG}
        {"s_waitcnt vmcnt(0)" if self.opt.get("gw", 0) else ""}
        """)
        self.xst(3, 13)
        if self.opt.get("gd"): a(f"s_sleep {self.opt['gd']}")
        a("L_GP:")
        for k, mk in enumerate((8, 12)):
            if self.opt.get("gm", 1): a(f"s_mov_b64 exec, {SP(mk)}\ns_cbranch_execz L_GS{k}\nbuffer_load_dwordx3 v[{GP+4*k}:{GP+4*k+2}], v{gA}, {SQ(rWS)}, s{4+k} offen {MOD[self.opt.get('gpm', 2)]}\nL_GS{k}:")
            else: a(f"s_cmp_eq_u64 {SP(mk)}, 0\ns_cbranch_scc1 L_GS{k}\nbuffer_load_dwordx3 v[{GP+4*k}:{GP+4*k+2}], v{gA}, {SQ(rWS)}, s{4+k} offen {MOD[self.opt.get('gpm', 2)]}\nL_GS{k}:")
        a(f"""
        s_mov_b64 exec, -1
        s_add_u32 s11, s11, 1
        s_waitcnt vmcnt(0)
        v_cmp_ne_u32 s[8:9], s{sTAG}, v{GP+2}
        v_cmp_ne_u32 s[12:13], s{sTAG}, v{GP+6}
        s_or_b64 vcc, s[8:9], s[12:13]
        s_cbranch_vccz L_GOT
        """)
        if AG == 0: agw("L_AH", 2)
        a(f"""
        s_sleep {self.opt.get("gsl", 2)}
        s_cmp_lt_u32 s11, 0x4000
        s_cbranch_scc1 L_GP
        L_GOT:
        """)
        self.stamp(14); self.xst(2, 12)
        if self.opt.get("xst") == 3: a(f"s_mov_b32 s{sST+2*15+1}, s{sST+1}\ns_mul_i32 s8, s11, 100\ns_add_u32 s{sST+2*15}, s{sST}, s8")
        self.xst(3, 14)
        for k in range(2):
            self.unpack(U+4*k, U+4*k+1, GP+4*k); self.unpack(U+4*k+2, U+4*k+3, GP+4*k+1)
        for i in range(4): a(f"v_add_f32 v{U+i}, v{U+i}, v{U+4+i}")
        a(f"""v_permlane32_swap_b32 v{U}, v{U+1}
        v_permlane32_swap_b32 v{U+2}, v{U+3}
        v_add_f32 v{U}, v{U}, v{U+1}
        v_add_f32 v{U+2}, v{U+2}, v{U+3}
        v_permlane16_swap_b32 v{U}, v{U+2}
        v_add_f32 v{U}, v{U}, v{U+2}
        v_add_f32_dpp v{U}, v{U}, v{U} row_ror:8 row_mask:0xf bank_mask:0xf
        ds_write_b32 v{F+5}, v{U} offset:{LMC}""")
        self.arrive(C_UPD, vW4, vONE)
        self.xst(2, 13); self.xst(4, 12)
        if self.opt.get("dq", 3) < 4 and not self.opt.get("ct"): a(f"s_cmp_ge_u32 s{sW}, {self.opt.get('dq', 3)}\ns_cbranch_scc1 L_FIN")
        if not self.opt.get("ct"): a(f"s_lshl_b32 s8, s{sLOC}, 2\ns_add_u32 s8, s{sW}, s8\ns_cmp_ge_u32 s8, {8+TW}\ns_cbranch_scc1 L_TILE")
        a(f"s_cmp_lg_u32 s{sW}, 0\ns_cbranch_scc1 L_FIN")
        self.xst(4, 13)
        a(f"""
        v_lshlrev_b32 v{F}, 16, v{gX}
        L_FW:
        ds_read2_b32 {P(F+6)}, v{vL4} offset0:{C_Y3//4} offset1:{C_UPD//4}
        ds_read_b32 v{F+9}, v{gY}
        ds_read2st64_b32 {P(F+10)}, v{gL} offset0:{LMC//256} offset1:{LMC//256+1}
        ds_read2st64_b32 {P(F+12)}, v{gL} offset0:{LMC//256+2} offset1:{LMC//256+3}
        s_waitcnt lgkmcnt(3)
        v_min_u32 v{F+6}, v{F+6}, v{F+7}
        v_cmp_eq_u32 vcc, 0, v{F+6}
        s_cbranch_vccnz L_FW
        s_waitcnt lgkmcnt(1)
        v_add_f32 v{F}, v{F}, v{F+9}
        v_add_f32 v{F+10}, v{F+10}, v{F+11}
        s_waitcnt lgkmcnt(0)
        v_add_f32 v{F+12}, v{F+12}, v{F+13}
        v_add_f32 v{F+10}, v{F+10}, v{F+12}
        v_fma_f32 v{F}, v{F+10}, v{gS}, v{F}
        v_cvt_pk_bf16_f32 v{F}, v{F}, v{F}
        s_mov_b32 exec_hi, 0
        buffer_store_short v{F}, v{gO}, {SQ(rOUT)}, 0 offen
        s_mov_b64 exec, -1
        """)
        self.stamp(15)
        a("s_branch L_FIN")
        a(f"L_HSC:\nbuffer_store_dwordx4 {Q(HQ)}, v13, {SQ(rWS)}, s5 offen sc1\ns_branch L_HSB")
        if LG:
            a("L_NF:"); glate(); a("s_branch L_GATHER")
        a(f"""
        L_TRIM:
        v_subrev_u32 v{T+12}, s4, v{E}
        v_subrev_u32 v{T+13}, s4, v{E+1}
        v_subrev_u32 v{T+14}, s4, v{E+2}
        v_subrev_u32 v{T+15}, s4, v{E+3}
        v_min3_u32 v{T+12}, v{T+12}, v{T+13}, v{T+14}
        v_min_u32 v{T+12}, v{T+12}, v{T+15}
        """)
        for sh in ("row_shr:1 row_mask:0xf","row_shr:2 row_mask:0xf","row_shr:4 row_mask:0xf","row_shr:8 row_mask:0xf","row_bcast:15 row_mask:0xa","row_bcast:31 row_mask:0xc"):
            a(f"v_min_u32_dpp v{T+12}, v{T+12}, v{T+12} {sh} bank_mask:0xf")
        a(f"""
        v_readlane_b32 s5, v{T+12}, 63
        s_add_u32 s4, s4, s5
        s_add_u32 s4, s4, 1
        s_branch L_CAND
        L_SLOWT:
        v_max3_u32 v{T+4}, v{E}, v{E+1}, v{E+2}
        v_max_u32 v{T+4}, v{T+4}, v{E+3}
        s_mov_b32 s4, 0
        s_brev_b32 s5, 1
        L_BS:
        s_or_b32 s6, s4, s5
        v_cmp_le_u32 vcc, s6, v{T+4}
        s_lshr_b32 s5, s5, 1
        s_bcnt1_i32_b64 s7, vcc
        s_cmp_ge_u32 s7, 8
        s_cselect_b32 s4, s6, s4
        s_cmp_lg_u32 s7, 8
        s_cbranch_scc1 L_BS
        v_mbcnt_lo_u32_b32 v{T+5}, vcc_lo, 0
        v_mbcnt_hi_u32_b32 v{T+5}, vcc_hi, v{T+5}
        v_lshlrev_b32 v{T+5}, 2, v{T+5}
        s_mov_b64 exec, vcc
        ds_write_b32 v{T+5}, v0 offset:{LST2}
        s_mov_b64 exec, -1
        v_lshrrev_b32 v{T+6}, 3, v0
        v_lshlrev_b32 v{T+6}, 2, v{T+6}
        ds_read_b32 v{T+5}, v{T+6} offset:{LST2}
        s_waitcnt lgkmcnt(0)
        v_and_b32 v{T+6}, 7, v0
        v_lshl_add_u32 v{T+5}, v{T+5}, 3, v{T+6}
        v_lshlrev_b32 v{T+6}, 3, v{T+5}
        ds_read_b64 {P(T+2)}, v{T+6} offset:{KEYS}
        v_and_b32 v{T+6}, 1, v{T+5}
        v_and_b32 v{T+5}, -2, v{T+5}
        v_lshl_add_u32 v{T+5}, v{T+6}, 10, v{T+5}
        v_sub_u32 v{E}, 0xfff, v{T+5}
        v_sub_u32 v{E+1}, 0xffe, v{T+5}
        v_sub_u32 v{E+2}, 0xdff, v{T+5}
        v_sub_u32 v{E+3}, 0xdfe, v{T+5}
        s_mov_b32 s5, 0xffff0000
        s_waitcnt lgkmcnt(0)
        v_lshl_or_b32 v{E}, v{T+2}, 16, v{E}
        v_and_or_b32 v{E+1}, v{T+2}, s5, v{E+1}
        v_lshl_or_b32 v{E+2}, v{T+3}, 16, v{E+2}
        v_and_or_b32 v{E+3}, v{T+3}, s5, v{E+3}
        s_branch L_CAND
        """)

    def ftile(self):
        a = self.a; vL4 = 1; sLOC = 60; TW = self.opt.get("tw", 2)
        a(f"""
        s_cmp_lg_u32 s{sLOC}, 2
        s_cbranch_scc1 L_AFT
        s_cmp_ge_u32 s{sW}, {TW}
        s_cbranch_scc1 L_AFT
        """)
        TD = 16; TO = 32; A0 = 92
        a(f"""
        L_TILE:
        s_lshl_b32 s8, s{sW}, 4
        s_cmp_eq_u32 s{sW}, 0
        s_cselect_b32 s8, {C_Y0}, s8
        v_add_u32 v{A0}, s8, v{vL4}
        s_and_b32 s14, s2, 7
        s_lshr_b32 s15, s2, 3
        s_lshl_b32 s16, s14, 12
        s_lshl_b32 s8, s{sW}, 9
        s_add_u32 s16, s16, s8
        s_lshr_b32 s9, s15, 3
        s_lshl_b32 s9, s9, 7
        s_add_u32 s16, s16, s9
        s_add_u32 s16, s16, {WS_FL3}
        s_lshl_b32 s9, s15, 4
        s_add_u32 s8, s8, s9
        s_lshl_b32 s17, s14, 19
        s_lshl_b32 s9, s8, 3
        s_add_u32 s17, s17, s9
        s_add_u32 s17, s17, {WS_XT}
        s_lshl_b32 s18, s8, 11
        s_lshl_b32 s9, s14, 8
        s_add_u32 s18, s18, s9
        s_add_u32 s19, s18, 4096
        s_mul_i32 s9, s{sW}, 4352
        s_add_u32 s9, s9, {PRE}
        s_cmp_eq_u32 s{sW}, 3
        s_cselect_b32 s9, {MSB}, s9
        v_lshlrev_b32 v{A0+1}, 2, v0
        v_and_b32 v{A0+6}, 7, v0
        v_lshrrev_b32 v{A0+7}, 3, v0
        v_lshlrev_b32 v{A0+2}, 4, v{A0+6}
        v_lshl_add_u32 v{A0+2}, v{A0+7}, 14, v{A0+2}
        s_movk_i32 s8, 544
        v_lshl_add_u32 v{A0+3}, v{A0+7}, 3, s9
        v_mad_u32_u24 v{A0+3}, v{A0+6}, s8, v{A0+3}
        v_lshrrev_b32 v{A0+6}, 4, v0
        v_and_b32 v{A0+7}, 15, v0
        v_lshlrev_b32 v{A0+7}, 4, v{A0+7}
        s_movk_i32 s8, 1088
        v_mad_u32_u24 v{A0+4}, v{A0+6}, s8, v{A0+7}
        v_add_u32 v{A0+4}, s9, v{A0+4}
        v_lshl_add_u32 v{A0+5}, v{A0+6}, 13, v{A0+7}
        s_lshl_b32 s8, s15, 6
        s_lshl_b32 s9, s{sW}, 1
        s_add_u32 s8, s8, s9
        v_lshl_add_u32 v{A0+6}, v{A0+6}, 4, s8
        ds_read_u16 v{A0+8}, v{A0+6} offset:{SELF}
        ds_read_u16 v{A0+9}, v{A0+6} offset:{SELF+8}
        s_brev_b32 s8, 1
        s_mov_b32 s20, 0
        s_setprio 0
        """)
        self.wait_flag(0, A0, A0+7, sleep=2)
        a(f"""
        s_setprio 2
        v_lshlrev_b32 v{A0+10}, 24, v{A0+8}
        v_lshlrev_b32 v{A0+11}, 16, v{A0+8}
        v_lshlrev_b32 v{A0+12}, 24, v{A0+9}
        v_lshlrev_b32 v{A0+13}, 16, v{A0+9}
        """)
        for i in range(4): a(f"v_and_or_b32 v{A0+10+i}, v{A0+10+i}, s8, v{A0+5}")
        a(f"""
        s_mov_b32 exec_hi, 0
        L_TP:
        s_sleep {self.opt.get("tsl", 1)}
        buffer_load_dword v{A0+7}, v{A0+1}, {SQ(rWS)}, s16 offen sc1
        s_add_u32 s20, s20, 1
        s_waitcnt vmcnt(0)
        v_cmp_ne_u32 vcc, s{sTX}, v{A0+7}
        s_cbranch_vccz L_TOK
        s_cmp_lt_u32 s20, 0x4000
        s_cbranch_scc1 L_TP
        L_TOK:
        s_mov_b32 exec_hi, -1
        """)
        for j in range(4): a(f"buffer_load_dwordx4 {Q(TD+4*j)}, v{A0+2}, {SQ(rWS)}, s17 offen sc1\ns_add_u32 s17, s17, 0x20000")
        for j in range(4): a(f"s_waitcnt vmcnt({3-j})\nds_write_b64 v{A0+3}, {P(TD+4*j)} offset:{64*j}\nds_write_b64 v{A0+3}, {P(TD+4*j+2)} offset:{64*j+272}")
        for i in range(4): a(f"ds_read_b128 {Q(TO+4*i)}, v{A0+4} offset:{272*i}")
        for i in range(4): a(f"s_waitcnt lgkmcnt({3-i})\nbuffer_store_dwordx4 {Q(TO+4*i)}, v{A0+10+i}, {SQ(rOUT)}, s{18+i//2} offen offset:{2048*(i%2)} {'sc1' if self.opt.get('osc', 1) else ''}")
        if "wbw" in self.opt:
            a(f"s_lshl_b32 s8, s15, 2\ns_add_u32 s8, s8, s{sW}\ns_cmp_lg_u32 s8, {31*4+self.opt['wbw']}\ns_cbranch_scc1 L_NWB\nbuffer_wbl2 sc1\nL_NWB:")
        if self.stamps or self.opt.get("gamp") == 15:
            a(f"s_cmp_lt_u32 s{sW}, {TW}\ns_cbranch_scc1 L_AFT\ns_waitcnt vmcnt(0)")
            self.stamp(15)
        a(f"""
        s_cmp_ge_u32 s{sW}, {TW}
        s_cbranch_scc1 L_FIN
        """)
    def fin(self):
        a = self.a
        a("L_FIN:")
        if self.opt.get("wb"): a("s_waitcnt vmcnt(0)\nbuffer_wbl2 sc1\ns_waitcnt vmcnt(0)")
        if "gamp" in self.opt:
            k = self.opt["gamp"]; half = self.opt.get("gC", 0); mode = self.opt.get("gmode", 0)
            if "gw" in self.opt: a(f"s_cmp_eq_u32 s{sW}, {self.opt['gw']}\ns_cselect_b32 s{sST+2*k}, s{sST+2*k}, 0")
            if "grole" in self.opt: a(f"s_cmp_{'lt' if self.opt['grole'] else 'ge'}_u32 s2, 224\ns_cselect_b32 s{sST+2*k}, s{sST+2*k}, 0")
            a(f"""
            s_lshr_b32 s4, s{sW}, 2
            s_lshl_b32 s4, s4, 10
            s_lshl_b32 s5, s2, 2
            s_add_u32 s4, s4, s5
            s_and_b32 s5, s{sW}, 3
            s_add_u32 s4, s4, s5
            s_lshl_b32 s4, s4, 3
            s_add_u32 s4, s4, {WS_STAMP}
            v_mov_b32 v1, 0
            v_mov_b32 v4, s{sST}
            v_mov_b32 v5, s{sST+2*k}
            s_mov_b64 exec, 1
            buffer_store_dwordx2 v[4:5], v1, {SQ(rWS)}, s4 offen sc1
            s_mov_b64 exec, -1
            s_cmp_lg_u32 s2, 0
            s_cbranch_scc1 L_END
            s_cmp_lg_u32 s{sW}, 0
            s_cbranch_scc1 L_END
            L_GA1:
            s_memrealtime s[6:7]
            s_waitcnt lgkmcnt(0)
            s_sub_u32 s5, s6, s{sST}
            s_cmp_lt_u32 s5, 4000
            s_cbranch_scc1 L_GA1
            v_lshlrev_b32 v1, 3, v0
            s_mov_b32 s4, {WS_STAMP + half*8192}
            s_sub_u32 s8, s{sST}, 1000
            """)
            for i in range(16): a(f"buffer_load_dwordx2 {P(16+2*i)}, v1, {SQ(rWS)}, s4 offen sc1\ns_add_u32 s4, s4, 512")
            a("s_waitcnt vmcnt(0)\nv_mov_b32 v2, -1\nv_mov_b32 v3, 0\nv_mov_b32 v6, 0")
            for i in range(16):
                a(f"v_subrev_u32 v{16+2*i}, s8, v{16+2*i}\nv_min_u32 v2, v2, v{16+2*i}\nv_cmp_ne_u32 vcc, 0, v{17+2*i}\nv_subrev_u32 v{17+2*i}, s8, v{17+2*i}\nv_cndmask_b32 v{17+2*i}, 0, v{17+2*i}, vcc\nv_addc_co_u32 v6, vcc, 0, v6, vcc")
                a(f"v_max_u32 v3, v3, v{17+2*i}" if mode == 0 else f"v_add_u32 v3, v3, v{17+2*i}")
            op = "v_max_u32_dpp" if mode == 0 else "v_add_u32_dpp"
            for sh in ("row_shr:1 row_mask:0xf","row_shr:2 row_mask:0xf","row_shr:4 row_mask:0xf","row_shr:8 row_mask:0xf","row_bcast:15 row_mask:0xa","row_bcast:31 row_mask:0xc"):
                a(f"v_min_u32_dpp v2, v2, v2 {sh} bank_mask:0xf\n{op} v3, v3, v3 {sh} bank_mask:0xf\nv_add_u32_dpp v6, v6, v6 {sh} bank_mask:0xf")
            if mode == 1:
                a("v_cvt_f32_u32 v3, v3\nv_cvt_f32_u32 v6, v6\nv_rcp_f32 v6, v6\nv_mul_f32 v3, v3, v6\nv_cvt_u32_f32 v3, v3")
            a(f"""
            v_readlane_b32 s4, v3, 63
            v_readlane_b32 s5, v2, 63
            s_sub_u32 s4, s4, s5
            s_min_u32 s4, s4, 4000
            s_mul_i32 s4, s4, 10
            s_add_u32 s4, s4, 5000
            L_GA2:
            s_memrealtime s[6:7]
            s_waitcnt lgkmcnt(0)
            s_sub_u32 s5, s6, s{sST}
            s_cmp_lt_u32 s5, s4
            s_cbranch_scc1 L_GA2
            """)
        if "amp" in self.opt:
            k = self.opt["amp"]
            a(f"""
            s_cmp_lg_u32 s2, {self.opt.get('ampb', 0)}
            s_cbranch_scc1 L_END
            s_cmp_lg_u32 s{sW}, {self.opt.get('ampw', 0)}
            s_cbranch_scc1 L_END
            s_sub_u32 s4, s{sST+2*k}, s{sST}
            s_min_u32 s4, s4, 5000
            s_mul_i32 s4, s4, 10
            {"s_mov_b32 s4, %d" % self.opt["fix"] if "fix" in self.opt else ""}
            L_AMP:
            s_memrealtime s[6:7]
            s_waitcnt lgkmcnt(0)
            s_sub_u32 s5, s6, s{sST}
            s_cmp_lt_u32 s5, s4
            s_cbranch_scc1 L_AMP
            """)
        if self.stamps and (self.opt.get("kst") == 2 or self.opt.get("cst") == 2):
            a(f"s_cmp_lt_u32 s{sW}, 4\ns_cbranch_scc1 L_NKC")
            for i in (10, 11, 12, 13, 15, 14):
                a(f"s_sub_u32 s{sST+2*i}, s{sST+2*i}, s{sST+28}\ns_add_u32 s{sST+2*i}, s{sST+2*i}, s{sST}\ns_addc_u32 s{sST+2*i+1}, s{sST+1}, 0")
            a("L_NKC:")
        if self.stamps:
            a(f"s_lshl_b32 s4, s2, 3\ns_add_u32 s4, s4, s{sW}\ns_lshl_b32 s4, s4, 7\ns_add_u32 s4, s4, {WS_STAMP}\nv_mov_b32 v1, s4\ns_mov_b64 exec, 1")
            for i in range(8):
                for k in range(4): a(f"v_mov_b32 v{4+k}, s{sST+4*i+k}")
                a(f"buffer_store_dwordx4 v[4:7], v1, {SQ(rWS)}, 0 offen offset:{16*i}")
        a("L_END:\ns_endpgm")

    def build(self):
        if self.stamps:
            for i in range(2, 32, 2): self.a(f"s_mov_b64 {SP(sST+i)}, 0")
        self.prologue(); self.kgen(); self.cmain(); self.fmain(); self.fin()
        body = self.a.finalize()
        if not self.opt.get("noalign"): body = align_pass(body, KN)
        hdr = open("parallel_sum__ssm_conv_s4d__moe_arch_mod__prompt.s.ref").read().split("; Override launch")[0]
        out = hdr + f"; @launch grid=(256,1,1) block=(512,1,1) lds={LDS_END}\n"
        out += f'.amdgcn_target "amdgcn-amd-amdhsa--gfx950"\n.text\n.globl {KN}\n.p2align 8\n.type {KN},@function\n{KN}:\n'
        out += body
        out += f'''.section .rodata,"a"
.p2align 6
.amdhsa_kernel {KN}
  .amdhsa_next_free_vgpr 256
  .amdhsa_next_free_sgpr 102
  .amdhsa_accum_offset 256
  .amdhsa_group_segment_fixed_size 0
  .amdhsa_kernarg_size 120
  .amdhsa_user_sgpr_count 2
  .amdhsa_user_sgpr_kernarg_segment_ptr 1
  .amdhsa_system_sgpr_workgroup_id_x 1
  .amdhsa_float_denorm_mode_32 3
.end_amdhsa_kernel
'''
        return out

if __name__ == "__main__":
    out = sys.argv[1]
    stamps = "--stamps" in sys.argv
    opt = {}
    for x in sys.argv[2:]:
        if "=" in x:
            k, v = x.split("="); opt[k] = int(v, 0)
    open(out, "w").write(G(stamps, opt).build())
```
